```python
import torch

def _softmax(x, axis=-1):
    return torch.softmax(x, dim=axis)
def _gelu(x):
    return torch.nn.functional.gelu(x, approximate="tanh")
def _silu(x):
    return torch.nn.functional.silu(x)
def _sigmoid(x):
    return torch.sigmoid(x)
def _layernorm(x, axis=-1, eps=1e-5):
    m = x.mean(dim=axis, keepdim=True)
    v = x.var(dim=axis, keepdim=True, unbiased=False)
    return (x - m) / torch.sqrt(v + eps)
def _scatter_add(tgt, idx, src, axis=0):
    return tgt.clone().index_add_(axis, idx, src)
def _segment_sum(src, seg, n):
    out = torch.zeros((n,) + src.shape[1:], dtype=src.dtype)
    return out.index_add_(0, seg, src)
def _pad(x, pw):
    flat = tuple(v for pair in reversed(pw) for v in pair)
    return torch.nn.functional.pad(x, flat)

kernel_name = 'concat_heads__gqa_block_cached__mha_block_cached__decode'

def setup_inputs():

    _w = (lambda a: (lambda t: t.to(torch.bfloat16) if t.is_floating_point() else t)(torch.as_tensor(a)))
    def _A_setup():
        B, Sq, D = 1, 1, 448
        Hq, Hkv, Sk, Dh = 16, 8, 32768, 256
        assert Hq % Hkv == 0, (Hq, Hkv)
        return {
            "x": _w((lambda *s: torch.randn(*s, dtype=torch.bfloat16) * 0.8)(B, Sq, D)),
            "k_cache": _w((lambda *s: torch.randn(*s, dtype=torch.bfloat16) * 1.6)(B, Hkv, Sk, Dh)),
            "v_cache": _w((lambda *s: torch.randn(*s, dtype=torch.bfloat16) * 0.2)(B, Hkv, Sk, Dh)),
            "wq": _w((lambda *s: torch.randn(*s, dtype=torch.bfloat16) * 1.6)(D, Hq * Dh) * (D ** -0.5)),
            "wo": _w((lambda *s: torch.randn(*s, dtype=torch.bfloat16) * 0.2)(Hq * Dh, D) * ((Hq * Dh) ** -0.5)),
        }
    _A_in = _A_setup()

    def _B_setup():
        B, Sq, D = 1, 1, 448
        H, Sk, Dh = 16, 32768, 256
        return {
            "x": _w((lambda *s: torch.randn(*s, dtype=torch.bfloat16) * 0.8)(B, Sq, D)),
            "k_cache": _w((lambda *s: torch.randn(*s, dtype=torch.bfloat16) * 1.6)(B, H, Sk, Dh)),
            "v_cache": _w((lambda *s: torch.randn(*s, dtype=torch.bfloat16) * 0.2)(B, H, Sk, Dh)),
            "wq": _w((lambda *s: torch.randn(*s, dtype=torch.bfloat16) * 1.6)(D, H * Dh) * (D ** -0.5)),
            "wo": _w((lambda *s: torch.randn(*s, dtype=torch.bfloat16) * 0.2)(H * Dh, D) * ((H * Dh) ** -0.5)),
        }
    _B_in = _B_setup()

    return {
        "A_x": _A_in["x"],
        "A_k_cache": _A_in["k_cache"],
        "A_v_cache": _A_in["v_cache"],
        "A_wq": _A_in["wq"],
        "A_wo": _A_in["wo"],
        "B_x": _B_in["x"],
        "B_k_cache": _B_in["k_cache"],
        "B_v_cache": _B_in["v_cache"],
        "B_wq": _B_in["wq"],
        "B_wo": _B_in["wo"],
    }

def reference(A_x, A_k_cache, A_v_cache, A_wq, A_wo, B_x, B_k_cache, B_v_cache, B_wq, B_wo):
    def _A_ref(x, k_cache, v_cache, wq, wo):
        B, Sq, D = x.shape
        Hq, Dh = 16, 256
        Hkv = k_cache.shape[1]
        rep = Hq // Hkv
        q = (lambda x, *d: x.permute(*d))((x @ wq).reshape(B, Sq, Hq, Dh), 0, 2, 1, 3)
        k = (lambda x, n, axis: torch.repeat_interleave(x, n, dim=axis))(k_cache, rep, axis=1)
        v = (lambda x, n, axis: torch.repeat_interleave(x, n, dim=axis))(v_cache, rep, axis=1)
        scores = torch.einsum("bhqd,bhkd->bhqk", q, k) * (Dh ** -0.5)
        p = _softmax(scores, axis=-1)
        o = torch.einsum("bhqk,bhkd->bhqd", p, v)
        return (lambda x, *d: x.permute(*d))(o, 0, 2, 1, 3).reshape(B, Sq, Hq * Dh) @ wo

    def _B_ref(x, k_cache, v_cache, wq, wo):
        B, Sq, D = x.shape
        H, Dh = 16, 256
        q = (lambda x, *d: x.permute(*d))((x @ wq).reshape(B, Sq, H, Dh), 0, 2, 1, 3)
        scores = torch.einsum("bhqd,bhkd->bhqk", q, k_cache) * (Dh ** -0.5)
        p = _softmax(scores, axis=-1)
        o = torch.einsum("bhqk,bhkd->bhqd", p, v_cache)
        return (lambda x, *d: x.permute(*d))(o, 0, 2, 1, 3).reshape(B, Sq, H * Dh) @ wo

    a = _A_ref(A_x, A_k_cache, A_v_cache, A_wq, A_wo)
    b = _B_ref(B_x, B_k_cache, B_v_cache, B_wq, B_wo)
    return torch.concatenate([a, b], axis=-1)
```

```python
import re
TRANS=("v_exp_f32","v_log_f32","v_rcp_f32","v_rsq_f32","v_sqrt_f32","v_sin_f32","v_cos_f32")
def regs(tok):
    tok=tok.strip().lstrip('-')
    if tok.startswith('abs(') or tok.startswith('|'): tok=tok.strip('abs()|')
    m=re.fullmatch(r'([vsa])(\d+)',tok)
    if m: return [(m.group(1),int(m.group(2)))]
    m=re.fullmatch(r'([vsa])\[(\d+):(\d+)\]',tok)
    if m: return [(m.group(1),i) for i in range(int(m.group(2)),int(m.group(3))+1)]
    if tok=='vcc': return [('s','vcc_lo'),('s','vcc_hi')]
    if tok in('vcc_lo','vcc_hi'): return [('s',tok)]
    return []
class Asm:
    def __init__(s):
        s.lines=[]; s.t=0
        s.w={}
        s.cread={}
        s.store={}
        s.nops=0
    def raw(s,t): s.lines.append(t)
    def pad(s,n):
        while n>0:
            k=min(n,16); s.lines.append(f"    s_nop {k-1}"); s.t+=k; n-=k; s.nops+=1
    def flush(s):
        need=0
        for r,(t,k,op,d) in s.w.items():
            mx={'valu':2,'dot':3,'trans':2,'mfma':8,'valu_s':5}.get(k,0)
            need=max(need,mx-(s.t-t-1))
        for r,t in s.cread.items(): need=max(need,3-(s.t-t-1))
        for r,t in s.store.items(): need=max(need,2-(s.t-t-1))
        s.pad(need)
        s.w={}; s.cread={}; s.store={}
    def label(s,name):
        s.flush(); s.lines.append(f"{name}:")
    def __call__(s,text):
        for ln in text.split('\n'):
            ln=ln.split(';')[0].strip()
            if ln: s.ins(ln)
    def ins(s,ln):
        op,_,rest=ln.partition(' ')
        parts=[p.strip() for p in re.split(r',(?![^\[]*\])',rest)] if rest else []
        ops=[]
        for i,p in enumerate(parts):
            ops.append(p.split(' ')[0])
        base=op.replace('_dpp','').replace('_e32','').replace('_e64','')
        isdpp=op.endswith('_dpp')
        dst=[];src=[];kind=None;A=B=C=[]
        if op.startswith('v_mfma'):
            kind='mfma'; dst=regs(ops[0]); A=regs(ops[1]); B=regs(ops[2]); C=regs(ops[3]); src=A+B+C
        elif op.startswith('v_permlane'):
            kind='valu'; dst=regs(ops[0])+regs(ops[1]); src=list(dst)
        elif op.startswith('v_'):
            kind='valu'
            if base.startswith('v_dot'): kind='dot'
            if base in TRANS: kind='trans'
            dst=regs(ops[0]); src=[r for o in ops[1:] for r in regs(o)]
            if base.startswith('v_fmac') or base.startswith('v_dot2c'): src+=dst
            if base.startswith('v_cndmask') and len(ops)==3: src+=regs('vcc')
        elif op.startswith('buffer_load') or op.startswith('global_load'):
            kind='vmem'
            if ' lds' in ln: src=[r for o in ops for r in regs(o)]
            else: dst=regs(ops[0]); src=[r for o in ops[1:] for r in regs(o)]
        elif op.startswith('buffer_store') or op.startswith('buffer_atomic') or op.startswith('global_store'):
            kind='vmem'; src=[r for o in ops for r in regs(o)]
            if 'atomic' in op and 'sc0' in ln: dst=regs(ops[0])
        elif op.startswith('ds_read') or '_rtn' in op or op.startswith('ds_bpermute') or op.startswith('ds_swizzle'):
            kind='ds'; dst=regs(ops[0]); src=[r for o in ops[1:] for r in regs(o)]
        elif op.startswith('ds_'):
            kind='ds'; src=[r for o in ops for r in regs(o)]
        else:
            kind='salu'
        isvalu=kind in('valu','dot','trans')
        need=0
        def req(r,n):
            nonlocal need
            t=s.w[r][0]; need=max(need,n-(s.t-t-1))
        for r in src:
            if r not in s.w: continue
            t,k,pop,pd=s.w[r]
            if k in('valu','dot','trans'):
                if isdpp and r in regs(ops[1]): req(r,2)
                if kind=='mfma': req(r,2)
                if op.startswith('v_permlane'): req(r,2)
                if op.startswith('v_readlane') or op.startswith('v_readfirstlane'): req(r,1)
            if k=='dot':
                if base==pop and len(ops)>=4 and r in regs(ops[3]) and r not in regs(ops[1])+regs(ops[2]): pass
                else: req(r,3)
            if k=='trans' and kind!='trans': req(r,1)
            if k=='mfma':
                if kind=='mfma':
                    if r in A or r in B: req(r,8)
                    elif pd==C: pass
                    else: req(r,6)
                else: req(r,8)
            if k=='valu_s':
                if kind=='vmem': req(r,5)
                elif isvalu or kind=='mfma': req(r,4 if op.startswith('v_readlane') or op.startswith('v_writelane') else 2)
        for r in dst:
            if r in s.w:
                t,k,pop,pd=s.w[r]
                if k=='mfma' and kind!='mfma': req(r,8)
                if k=='mfma' and kind=='mfma' and pd!=dst: req(r,6)
                if k=='dot' and base!=pop: req(r,3)
            if r in s.cread and isvalu: need=max(need,3-(s.t-s.cread[r]-1))
            if r in s.store: need=max(need,(2 if isvalu else 1)-(s.t-s.store[r]-1))
        if op.startswith('s_cbranch') or op=='s_branch' or op=='s_endpgm' or op.startswith('s_setpc'):
            if op!='s_endpgm': s.flush()
        s.pad(need)
        s.lines.append("    "+ln)
        for r in dst:
            if kind in('vmem','ds'): s.w.pop(r,None)
            elif r[0]=='s': s.w[r]=(s.t,'valu_s',base,dst)
            else: s.w[r]=(s.t,kind,base,dst)
        if kind=='mfma':
            for r in C: s.cread[r]=s.t
        if kind=='vmem' and 'store' in op and ('x4' in op or 'x3' in op):
            for r in regs(ops[0]): s.store[r]=s.t
        if kind=='salu' and ops:
            for r in regs(ops[0]):
                if not op.startswith('s_cmp'): s.w.pop(r,None)
        if op=='s_nop': s.t+=int(ops[0])+1
        else: s.t+=1
    def text(s): return "\n".join(s.lines)+"\n"
```

```python
import struct, math, sys
from asmlib import Asm
NAME="concat_heads__gqa_block_cached__mha_block_cached__decode_kernel"
HDR=open('concat_heads__gqa_block_cached__mha_block_cached__decode.s.ref').read().split('; Override')[0]
def f2u(x): return struct.unpack('<I',struct.pack('<f',x))[0]
QP=0x10000; IN1D=0x40000; IN1H=0x440000; YO=0x480000; WS_USED=0x500000
LQA=0; LQB=1024; LCNT=1536; LSC=2048
SPIN=1<<20
DPPF="row_mask:0xf bank_mask:0xf"

def gen(R=4, stamp=False, sflags='nt', wflags='nt', lds=90112):
    a=Asm()
    a.raw(HDR.rstrip())
    a.raw(f"; @launch grid=(256,1,1) block=(320,1,1) lds={lds}")
    a.raw('.amdgcn_target "amdgcn-amd-amdhsa--gfx950"')
    a.raw(".text"); a.raw(f".globl {NAME}"); a.raw(".p2align 8"); a.raw(f".type {NAME},@function"); a.raw(f"{NAME}:")
    nst=[0]
    def st(k):
        if stamp:
            a("s_memrealtime s[68:69]"); a("s_waitcnt lgkmcnt(0)"); a(f"s_mov_b32 s{72+k}, s68")
    a("""
    s_cmp_ge_u32 s2, 256
    s_cbranch_scc1 L_done
    s_load_dwordx16 s[4:19], s[0:1], 0
    s_load_dwordx8 s[20:27], s[0:1], 64
    s_load_dwordx2 s[28:29], s[0:1], 96
    v_lshrrev_b32 v1, 6, v0
    v_and_b32 v0, 63, v0
    v_readfirstlane_b32 s30, v1
    v_and_b32 v2, 15, v0        ; n
    v_lshrrev_b32 v3, 4, v0     ; g
    """)
    a("""
    v_and_b32 v4, 1, v0
    v_cmp_eq_u32 vcc, 1, v4
    v_mov_b32 v5, 0x0c0c0100
    v_mov_b32 v6, 0x01000c0c
    v_cndmask_b32 v5, v5, v6, vcc
    v_mov_b32 v6, 0x0c0c0302
    v_mov_b32 v7, 0x03020c0c
    v_cndmask_b32 v6, v6, v7, vcc
    v_bfe_u32 v4, v0, 1, 2
    v_mov_b32 v7, 0x0c0c0c0c
    """)
    for v in range(4):
        a(f"v_cmp_eq_u32 vcc, {v}, v4")
        a(f"v_cndmask_b32 v{8+v}, v7, v5, vcc")
        a(f"v_cndmask_b32 v{12+v}, v7, v6, vcc")
    SEL=[[8,9,10,11],[12,13,14,15]]
    a("s_waitcnt lgkmcnt(0)")
    if stamp:
        for k in range(8): a(f"s_mov_b32 s{72+k}, 0")
    st(0)
    a(f"""
    s_mov_b32 s36, s28
    s_mov_b32 s37, s29
    s_mov_b32 s38, {WS_USED}
    s_mov_b32 s39, 0x20000
    s_cmp_eq_u32 s30, 0
    s_cbranch_scc1 L_helper
    """)
    def write_stamps(helper):
        if not stamp: return
        st(7)
        a("s_getreg_b32 s66, hwreg(HW_REG_XCC_ID)")
        a("s_mov_b64 exec, 1")
        a("v_mov_b32 v4, 0")
        if not helper:
            a("v_mov_b32 v20, s72"); a("v_mov_b32 v21, s79"); a("v_mov_b32 v22, s66"); a("v_mov_b32 v23, 0")
            a("s_lshl_b32 s64, s2, 2"); a("s_add_u32 s64, s64, s31"); a("s_lshl_b32 s64, s64, 4")
            a("buffer_store_dwordx4 v[20:23], v4, s[36:39], s64 offen")
        for k in range(8): a(f"v_mov_b32 v{24+k}, s{72+k}")
        a("s_mul_i32 s64, s2, 5"); a("s_add_u32 s64, s64, s30"); a("s_lshl_b32 s64, s64, 5"); a("s_add_u32 s64, s64, 0x4000")
        a("buffer_store_dwordx4 v[24:27], v4, s[36:39], s64 offen")
        a("buffer_store_dwordx4 v[28:31], v4, s[36:39], s64 offen offset:16")
    VOFF=1; VSC=4; VM=5; VL=6; VMC=7
    Q=16
    ACC=32
    AR=40
    D=48
    T=52
    PK=60
    RING=64
    a(f"""
    s_sub_u32 s31, s30, 1            ; sw
    v_lshlrev_b32 v{VOFF}, 9, v3
    v_lshl_add_u32 v{VOFF}, v2, 4, v{VOFF}
    s_lshl_b32 s60, s2, 19
    s_add_u32 s32, s6, s60
    s_addc_u32 s33, s7, 0
    s_add_u32 s54, s8, s60
    s_addc_u32 s55, s9, 0
    s_lshl_b32 s60, s2, 20
    s_add_u32 s56, s16, s60
    s_addc_u32 s57, s17, 0
    s_add_u32 s58, s18, s60
    s_addc_u32 s59, s19, 0
    s_mov_b32 s34, 0x100000
    s_mov_b32 s35, 0x20000
    s_lshl_b32 s61, s31, 12
    s_mov_b32 s52, s61
    s_mov_b32 s53, 0
    s_mov_b32 s62, {f2u(math.log2(math.e)/16.0)}
    """)
    OFFS=[0,256,2048,2304]
    PH=[('A','K',32),('A','V',32),('B','K',64),('B','V',64)]
    ends=[32,64,128,192]
    def issue(slot,p):
        for i in range(4):
            r=RING+slot*16+i*4
            a(f"buffer_load_dwordx4 v[{r}:{r+3}], v{VOFF}, s[32:35], s52 offen offset:{OFFS[i]} {sflags}")
        a("s_add_u32 s52, s52, 0x4000")
        a("s_add_u32 s53, s53, 1")
        if p is not None:
            a(f"s_cmp_eq_u32 s53, {ends[p]}")
            if p<3:
                b=54+2*p
                a(f"s_cselect_b32 s32, s{b}, s32"); a(f"s_cselect_b32 s33, s{b+1}, s33"); a("s_cselect_b32 s52, s61, s52")
            else:
                a("s_cselect_b32 s34, 0, s34")
    for k in range(R): issue(k,None)
    a(f"""
    s_lshl_b32 s63, s31, 14
    s_add_u32 s63, s63, {LSC}
    v_lshlrev_b32 v{T}, 4, v2
    s_barrier
    """)
    st(1)
    def kunit(slot,p,nh,j):
        a(f"s_waitcnt vmcnt({(R-1)*4})")
        for e in range(8):
            for s_ in range(2):
                for h in range(nh):
                    d=D+s_*2+h
                    k=RING+slot*16+(2*s_+e//4)*4+e%4
                    a(f"v_dot2_f32_bf16 v{d}, v{k}, v{Q+h*8+e}, {'0' if e==0 else 'v%d'%d}")
        issue(slot,p)
        for s_ in range(2):
            if nh==2:
                a(f"v_add_f32_dpp v{T+s_}, v{D+s_*2}, v{D+s_*2} row_ror:8 row_mask:0xf bank_mask:0x3")
                a(f"v_add_f32_dpp v{T+s_}, v{D+s_*2+1}, v{D+s_*2+1} row_ror:8 row_mask:0xf bank_mask:0xc")
            else:
                a(f"v_add_f32_dpp v{T+s_}, v{D+s_*2}, v{D+s_*2} row_ror:8 {DPPF}")
        for m in ("row_half_mirror","quad_perm:[1,0,3,2]","quad_perm:[2,3,0,1]"):
            for s_ in range(2):
                a(f"v_add_f32_dpp v{T+s_}, v{T+s_}, v{T+s_} {m} {DPPF}")
        a(f"v_max3_f32 v{VM}, v{VM}, v{T}, v{T+1}")
        a(f"v_cvt_pk_bf16_f32 v{T+2}, v{T}, v{T+1}")
        a(f"ds_write_b32 v{VSC}, v{T+2} offset:{j*256}")
    def vunit(slot,p,j,par):
        pk=PK+par
        a("s_waitcnt lgkmcnt(0)")
        a(f"v_lshlrev_b32 v{T}, 16, v{pk}")
        a(f"v_and_b32 v{T+1}, 0xffff0000, v{pk}")
        a(f"ds_read_b32 v{PK+1-par}, v{VSC} offset:{(j+1)*256}")
        a(f"v_fma_f32 v{T}, v{T}, s62, -v{VMC}")
        a(f"v_fma_f32 v{T+1}, v{T+1}, s62, -v{VMC}")
        a(f"v_exp_f32 v{T}, v{T}")
        a(f"v_exp_f32 v{T+1}, v{T+1}")
        a(f"v_add_f32 v{VL}, v{VL}, v{T}")
        a(f"v_cvt_pk_bf16_f32 v{T+2}, v{T}, v{T+1}")
        a(f"v_add_f32 v{VL}, v{VL}, v{T+1}")
        for s_ in range(2):
            for v in range(4):
                a(f"v_perm_b32 v{AR+s_*4+v}, v{T+2}, v{T+2}, v{SEL[s_][v]}")
        a(f"s_waitcnt vmcnt({(R-1)*4})")
        for s_ in range(2):
            for blk in range(2):
                r=RING+slot*16+(2*s_+blk)*4
                c=ACC+blk*4
                a(f"v_mfma_f32_16x16x32_bf16 v[{c}:{c+3}], v[{AR+s_*4}:{AR+s_*4+3}], v[{r}:{r+3}], v[{c}:{c+3}]")
        issue(slot,p)
    def xrow(reg,op):
        a(f"v_mov_b32 v{T}, v{reg}")
        a(f"v_permlane16_swap_b32 v{reg}, v{T}")
        a(f"{op} v{reg}, v{reg}, v{T}")
        a(f"v_mov_b32 v{T}, v{reg}")
        a(f"v_permlane32_swap_b32 v{reg}, v{T}")
        a(f"{op} v{reg}, v{reg}, v{T}")
    u0=0
    for p,(br,kv,n) in enumerate(PH):
        nh=2 if br=='A' else 1
        UN=R if (R%2==0 or kv=='K') else 2*R
        nl,rem=divmod(n,UN)
        a(f"v_lshlrev_b32 v{VSC}, 2, v0")
        a(f"v_add_u32 v{VSC}, s63, v{VSC}")
        if kv=='K':
            lq=LQA if br=='A' else LQB
            a(f"v_lshlrev_b32 v{T}, 4, v2")
            for h in range(nh):
                a(f"ds_read_b128 v[{Q+h*8}:{Q+h*8+3}], v{T} offset:{lq+h*512}")
                a(f"ds_read_b128 v[{Q+h*8+4}:{Q+h*8+7}], v{T} offset:{lq+h*512+256}")
            a(f"v_mov_b32 v{VM}, 0xff800000")
            a("s_waitcnt lgkmcnt(0)")
        else:
            a(f"ds_read_b32 v{PK}, v{VSC}")
            xrow(VM,"v_max_f32")
            a(f"v_cvt_pk_bf16_f32 v{VM}, v{VM}, v{VM}")
            a(f"v_and_b32 v{VM}, 0xffff0000, v{VM}")
            a(f"v_mul_f32 v{VMC}, s62, v{VM}")
            a(f"v_mov_b32 v{VL}, 0")
            for i in range(8): a(f"v_mov_b32 v{ACC+i}, 0")
        def body(cnt,base):
            for j in range(cnt):
                slot=(base+j)%R
                if kv=='K': kunit(slot,p,nh,j)
                else: vunit(slot,p,j,j%2)
        a(f"s_mov_b32 s60, {nl}")
        a.label(f"L_ph{p}")
        body(UN,u0)
        a(f"v_add_u32 v{VSC}, {UN*256}, v{VSC}")
        a("s_sub_u32 s60, s60, 1")
        a("s_cmp_lg_u32 s60, 0")
        a(f"s_cbranch_scc1 L_ph{p}")
        body(rem,u0)
        u0+=n
        if kv=='V':
            xrow(VL,"v_add_f32")
            sh=5 if br=='A' else 4
            bri=0 if br=='A' else 1
            a(f"s_lshr_b32 s64, s2, {sh}")
            a(f"s_and_b32 s65, s2, {(1<<sh)-1}")
            a("s_lshl_b32 s65, s65, 2"); a("s_add_u32 s65, s65, s31")
            a(f"s_lshl_b32 s64, s64, {4 if br=='A' else 3}")
            a("s_lshl_b32 s66, s64, 14"); a("s_lshl_b32 s67, s65, 7"); a("s_add_u32 s66, s66, s67")
            a(f"s_add_u32 s66, s66, {IN1D+bri*0x200000}")
            a("s_add_u32 s67, s66, 0x10000")
            a(f"v_lshrrev_b32 v{T}, 5, v0"); a(f"v_lshlrev_b32 v{T}, 17, v{T}")
            a(f"v_lshrrev_b32 v{T+1}, 2, v2"); a(f"v_lshl_add_u32 v{T}, v{T+1}, 14, v{T}")
            a(f"v_and_b32 v{T+1}, 3, v2"); a(f"v_lshl_add_u32 v{T}, v{T+1}, 5, v{T}")
            a(f"v_and_b32 v{T+1}, 1, v3"); a(f"v_lshl_add_u32 v{T}, v{T+1}, 4, v{T}")
            for i in range(8): a(f"v_min_u32 v{ACC+i}, -2, v{ACC+i}")
            a(f"v_min_u32 v{T+2}, -2, v{VMC}"); a(f"v_min_u32 v{T+3}, -2, v{VL}")
            a(f"v_lshlrev_b32 v{T+1}, 10, v0")
            if br=='B': a("s_mov_b32 exec_hi, 0")
            a(f"buffer_store_dwordx4 v[{ACC}:{ACC+3}], v{T}, s[36:39], s66 offen sc1")
            a(f"buffer_store_dwordx4 v[{ACC+4}:{ACC+7}], v{T}, s[36:39], s67 offen sc1")
            a("s_lshl_b32 s66, s64, 10"); a("s_lshl_b32 s67, s65, 3"); a("s_add_u32 s66, s66, s67")
            a(f"s_add_u32 s66, s66, {IN1H+bri*0x20000}")
            a(f"s_mov_b64 exec, {0xffff if br=='A' else 0xff}")
            a(f"buffer_store_dwordx2 v[{T+2}:{T+3}], v{T+1}, s[36:39], s66 offen sc1")
            a("s_mov_b64 exec, 1")
            a(f"v_mov_b32 v{T+4}, {LCNT}"); a(f"v_mov_b32 v{T+5}, 1")
            a(f"ds_add_u32 v{T+4}, v{T+5}")
            a("s_mov_b64 exec, -1")
            if br=='A':
                pass
        st(2+p)
    write_stamps(False)
    a("s_endpgm")
    a.label("L_helper")
    a("""
    s_setprio 3
    s_lshr_b32 s31, s2, 4
    s_lshl_b32 s31, s31, 3
    s_and_b32 s60, s2, 7
    s_or_b32 s31, s31, s60           ; i = 0..127
    s_mov_b32 s48, s26
    s_mov_b32 s49, s27
    s_mov_b32 s50, 256
    s_mov_b32 s51, 0x20000
    s_bitcmp1_b32 s2, 3
    s_cbranch_scc1 L_helper_B
    """)
    def helper(br):
        bri=0 if br=='A' else 1
        X,WQ,WO=(4,10,12) if br=='A' else (14,20,22)
        RP=8 if br=='A' else 4
        W=64
        XR=16
        HA=32
        HC=40
        T=56
        DT=192
        HD=16
        a(f"""
        s_mov_b32 s40, s{X}
        s_mov_b32 s41, s{X+1}
        s_mov_b32 s42, 896
        s_mov_b32 s43, 0x20000
        s_mov_b32 s44, s{WQ}
        s_mov_b32 s45, s{WQ+1}
        s_mov_b32 s46, {448*8192}
        s_mov_b32 s47, 0x20000
        s_and_b32 s60, s31, 31           ; cb
        s_lshr_b32 s61, s31, 5           ; ks
        v_mul_u32_u24 v{T}, 56, v3
        s_mul_i32 s62, s61, 224
        s_mov_b32 s63, {28*8192}
        v_mul_lo_u32 v{T+1}, s63, v3
        v_lshl_add_u32 v{T+1}, v2, 4, v{T+1}
        s_mul_i32 s63, s61, {112*8192}
        s_lshl_b32 s64, s60, 8
        s_add_u32 s63, s63, s64
        """)
        for k in range(7):
            a(f"buffer_load_dwordx2 v[{XR+2*k}:{XR+2*k+1}], v{T}, s[40:43], s62 offen offset:{8*k}")
        for i in range(28):
            a(f"buffer_load_dwordx4 v[{W+4*i}:{W+4*i+3}], v{T+1}, s[44:47], s63 offen {wflags}")
            if i<27: a("s_add_u32 s63, s63, 8192")
        a(f"v_lshlrev_b32 v{T+2}, 4, v0")
        for k in range(4): a(f"v_mov_b32 v{T+4+k}, -1")
        a("s_lshl_b32 s52, s31, 14"); a(f"s_add_u32 s52, s52, {IN1D+bri*0x200000}")
        a("s_lshl_b32 s53, s31, 10"); a(f"s_add_u32 s53, s53, {IN1H+bri*0x20000}")
        a("s_lshl_b32 s54, s31, 11"); a(f"s_add_u32 s54, s54, {YO+bri*0x40000}")
        nstores=0
        a("s_mov_b32 s63, s52")
        for k in range(RP*2):
            a(f"buffer_store_dwordx4 v[{T+4}:{T+7}], v{T+2}, s[36:39], s63 offen offset:{(k%4)*1024} sc1"); nstores+=1
            if k%4==3: a("s_add_u32 s63, s63, 4096")
        a(f"buffer_store_dwordx4 v[{T+4}:{T+7}], v{T+2}, s[36:39], s53 offen sc1"); nstores+=1
        a(f"buffer_store_dwordx4 v[{T+4}:{T+7}], v{T+2}, s[36:39], s54 offen sc1"); nstores+=1
        a(f"buffer_store_dwordx4 v[{T+4}:{T+7}], v{T+2}, s[36:39], s54 offen offset:1024 sc1"); nstores+=1
        a(f"v_mov_b32 v{T}, {LCNT}"); a(f"v_mov_b32 v{T+1}, 0")
        a(f"ds_write_b32 v{T}, v{T+1}")
        for i in range(28):
            a(f"s_waitcnt vmcnt({nstores+27-i})")
            ar=HA+(i%2)*4
            for v in range(4):
                a(f"v_perm_b32 v{ar+v}, v{XR+i//2}, v{XR+i//2}, v{SEL[i%2][v]}")
            a(f"v_mfma_f32_16x16x32_bf16 v[{HC}:{HC+3}], v[{ar}:{ar+3}], v[{W+4*i}:{W+4*i+3}], {'0' if i==0 else 'v[%d:%d]'%(HC,HC+3)}")
        st(1)
        a(f"v_and_b32 v{T+3}, 1, v3"); a(f"v_lshlrev_b32 v{T+3}, 4, v{T+3}"); a(f"v_lshl_add_u32 v{T+3}, v2, 5, v{T+3}")
        a("s_lshl_b32 s63, s61, 14"); a("s_lshl_b32 s64, s60, 9"); a("s_add_u32 s63, s63, s64"); a(f"s_add_u32 s63, s63, {QP+bri*0x10000}")
        a("s_mov_b32 exec_hi, 0")
        a(f"buffer_store_dwordx4 v[{HC}:{HC+3}], v{T+3}, s[36:39], s63 offen sc1")
        a("s_mov_b64 exec, 1")
        a(f"v_mov_b32 v{T}, 1"); a(f"v_mov_b32 v{T+1}, 0")
        a("s_waitcnt vmcnt(0)")
        a(f"buffer_store_byte v{T}, v{T+1}, s[48:51], s2 offen sc1")
        a("s_mov_b64 exec, -1")
        st(2)
        a(f"v_lshlrev_b32 v{T}, 2, v0")
        a("s_mov_b32 s64, 0x01010101")
        a(f"s_mov_b32 s65, {SPIN}")
        a.label(f"L_fl{br}")
        a(f"buffer_load_dword v{T+1}, v{T}, s[48:51], 0 offen sc1")
        a("s_waitcnt vmcnt(0)")
        a(f"v_cmp_ne_u32 vcc, s64, v{T+1}")
        a("s_cmp_eq_u64 vcc, 0")
        a(f"s_cbranch_scc1 L_fd{br}")
        a("s_sleep 2")
        a("s_sub_u32 s65, s65, 1"); a("s_cmp_lg_u32 s65, 0")
        a(f"s_cbranch_scc1 L_fl{br}")
        a.label(f"L_fd{br}")
        st(3)
        a("s_lshr_b32 s63, s2, 5"); a("s_lshl_b32 s63, s63, 11"); a(f"s_add_u32 s63, s63, {QP}")
        a("s_lshr_b32 s64, s2, 4"); a("s_lshl_b32 s64, s64, 10"); a(f"s_add_u32 s64, s64, {QP+0x10000}")
        for ks in range(4):
            a(f"buffer_load_dwordx4 v[{DT+ks*12}:{DT+ks*12+3}], v{T+2}, s[36:39], s63 offen sc1")
            a(f"buffer_load_dwordx4 v[{DT+ks*12+4}:{DT+ks*12+7}], v{T+2}, s[36:39], s63 offen offset:1024 sc1")
            a(f"buffer_load_dwordx4 v[{DT+ks*12+8}:{DT+ks*12+11}], v{T+2}, s[36:39], s64 offen sc1")
            if ks<3: a("s_add_u32 s63, s63, 0x4000"); a("s_add_u32 s64, s64, 0x4000")
        a(f"v_lshlrev_b32 v{T}, 3, v0")
        a("s_waitcnt vmcnt(0)")
        for k in range(12):
            a(f"v_add_f32 v{DT+k}, v{DT+k}, v{DT+12+k}")
            a(f"v_add_f32 v{DT+24+k}, v{DT+24+k}, v{DT+36+k}")
        for k in range(12): a(f"v_add_f32 v{DT+k}, v{DT+k}, v{DT+24+k}")
        for k in range(6): a(f"v_cvt_pk_bf16_f32 v{DT+12+k}, v{DT+2*k}, v{DT+2*k+1}")
        for k in range(3): a(f"ds_write_b64 v{T}, v[{DT+12+2*k}:{DT+13+2*k}] offset:{512*k}")
        a("s_waitcnt lgkmcnt(0)")
        a("s_barrier")
        a("s_setprio 0")
        st(4)
        a(f"""
        s_mov_b32 s44, s{WO}
        s_mov_b32 s45, s{WO+1}
        s_mov_b32 s46, {4096*896}
        s_mul_i32 s63, s31, {32*896}
        v_mul_u32_u24 v{T}, {8*896}, v3
        v_lshl_add_u32 v{T}, v2, 4, v{T}
        v_add_u32 v{T+1}, {4*896}, v{T}
        """)
        for i in range(8):
            for blk in range(4):
                r=W+(i*4+blk)*4
                a(f"buffer_load_dwordx4 v[{r}:{r+3}], v{T+i//4}, s[44:47], s63 offen offset:{(i%4)*896+blk*256} {wflags}")
        a(f"v_mov_b32 v{T}, {LCNT}")
        a(f"s_mov_b32 s65, {SPIN}")
        a.label(f"L_ow{br}")
        a(f"ds_read_b32 v{T+1}, v{T}")
        a("s_waitcnt lgkmcnt(0)")
        a(f"v_readfirstlane_b32 s64, v{T+1}")
        a(f"s_cmp_ge_u32 s64, {4 if br=='A' else 8}")
        a(f"s_cbranch_scc1 L_od{br}")
        a("s_sleep 4")
        a("s_sub_u32 s65, s65, 1"); a("s_cmp_lg_u32 s65, 0")
        a(f"s_cbranch_scc1 L_ow{br}")
        a.label(f"L_od{br}")
        a("s_setprio 3")
        a(f"v_mul_u32_u24 v{T}, {RP*8}, v2")
        a(f"v_mul_u32_u24 v{T+1}, {RP*128}, v2"); a(f"v_lshl_add_u32 v{T+1}, v3, 5, v{T+1}")
        a(f"s_mov_b32 s65, {SPIN}")
        a.label(f"L_hp{br}")
        for k in range(RP//2):
            a(f"buffer_load_dwordx4 v[{HD+4*k}:{HD+4*k+3}], v{T}, s[36:39], s53 offen offset:{16*k} sc1")
        a("s_waitcnt vmcnt(0)")
        def anysent(base,n,tmp):
            a(f"v_max3_u32 v{tmp}, v{base}, v{base+1}, v{base+2}")
            k=3
            while k<n:
                if k+1<n: a(f"v_max3_u32 v{tmp}, v{tmp}, v{base+k}, v{base+k+1}"); k+=2
                else: a(f"v_max_u32 v{tmp}, v{tmp}, v{base+k}"); k+=1
            a(f"v_cmp_eq_u32 vcc, -1, v{tmp}")
            a("s_cmp_eq_u64 vcc, 0")
        anysent(HD,RP*2,T+2)
        a(f"s_cbranch_scc1 L_hd{br}")
        a("s_sleep 1")
        a("s_sub_u32 s65, s65, 1"); a("s_cmp_lg_u32 s65, 0")
        a(f"s_cbranch_scc1 L_hp{br}")
        a.label(f"L_hd{br}")
        a(f"s_mov_b32 s65, {SPIN}")
        a.label(f"L_dp{br}")
        for k in range(RP):
            for h in range(2):
                r=DT+k*8+h*4
                a(f"buffer_load_dwordx4 v[{r}:{r+3}], v{T+1}, s[36:39], s52 offen offset:{k*128+16*h} sc1")
        a("s_waitcnt vmcnt(0)")
        anysent(DT,RP*8,T+2)
        a(f"s_cbranch_scc1 L_dd{br}")
        a("s_sub_u32 s65, s65, 1"); a("s_cmp_lg_u32 s65, 0")
        a(f"s_cbranch_scc1 L_dp{br}")
        a.label(f"L_dd{br}")
        st(5)
        ROWRED=("row_ror:8","row_ror:4","row_ror:2","row_ror:1")
        a(f"v_max_f32 v{T+2}, v{HD}, v{HD+2}")
        for k in range(2,RP): a(f"v_max_f32 v{T+2}, v{T+2}, v{HD+2*k}")
        for m in ROWRED: a(f"v_max_f32_dpp v{T+2}, v{T+2}, v{T+2} {m} {DPPF}")
        for k in range(RP): a(f"v_sub_f32 v{HD+2*k}, v{HD+2*k}, v{T+2}")
        for k in range(RP): a(f"v_exp_f32 v{HD+2*k}, v{HD+2*k}")
        a(f"v_mul_f32 v{T+4}, v{HD}, v{HD+1}")
        for e in range(8): a(f"v_mul_f32 v{DT+e}, v{HD}, v{DT+e}")
        for k in range(1,RP):
            a(f"v_fmac_f32 v{T+4}, v{HD+2*k}, v{HD+2*k+1}")
            for e in range(8): a(f"v_fmac_f32 v{DT+e}, v{HD+2*k}, v{DT+k*8+e}")
        for m in ROWRED:
            a(f"v_add_f32_dpp v{T+4}, v{T+4}, v{T+4} {m} {DPPF}")
            for e in range(8): a(f"v_add_f32_dpp v{DT+e}, v{DT+e}, v{DT+e} {m} {DPPF}")
        a(f"v_rcp_f32 v{T+4}, v{T+4}")
        for e in range(8): a(f"v_mul_f32 v{DT+e}, v{DT+e}, v{T+4}")
        for e in range(4): a(f"v_cvt_pk_bf16_f32 v{DT+8+e}, v{DT+2*e}, v{DT+2*e+1}")
        for i in range(8):
            ar=HA+(i%2)*4
            for v in range(4):
                a(f"v_perm_b32 v{ar+v}, v{DT+8+i//2}, v{DT+8+i//2}, v{SEL[i%2][v]}")
            for blk in range(4):
                r=W+(i*4+blk)*4; c=HC+blk*4
                a(f"v_mfma_f32_16x16x32_bf16 v[{c}:{c+3}], v[{ar}:{ar+3}], v[{r}:{r+3}], {'0' if i==0 else 'v[%d:%d]'%(c,c+3)}")
        for k in range(16): a(f"v_min_u32 v{HC+k}, -2, v{HC+k}")
        a("s_mov_b32 exec_hi, 0")
        for blk in range(4):
            a(f"buffer_store_dwordx4 v[{HC+blk*4}:{HC+blk*4+3}], v{T+3}, s[36:39], s54 offen offset:{blk*512} sc1")
        a("s_mov_b64 exec, -1")
        st(6)
        a("s_cmp_ge_u32 s31, 28")
        a(f"s_cbranch_scc1 L_he{br}")
        a(f"v_lshrrev_b32 v{T}, 2, v0"); a(f"v_lshlrev_b32 v{T}, 11, v{T}")
        a(f"v_and_b32 v{T+1}, 3, v0"); a(f"v_lshl_add_u32 v{T}, v{T+1}, 4, v{T}")
        a("s_lshl_b32 s62, s31, 6"); a(f"s_add_u32 s62, s62, {YO+bri*0x40000}")
        a(f"s_mov_b32 s65, {SPIN}")
        a.label(f"L_yp{br}")
        a("s_mov_b32 s63, s62")
        for k in range(8):
            a(f"buffer_load_dwordx4 v[{DT+4*k}:{DT+4*k+3}], v{T}, s[36:39], s63 offen sc1")
            if k<7: a("s_add_u32 s63, s63, 0x8000")
        a("s_waitcnt vmcnt(0)")
        anysent(DT,32,T+2)
        a(f"s_cbranch_scc1 L_yd{br}")
        a("s_sleep 1")
        a("s_sub_u32 s65, s65, 1"); a("s_cmp_lg_u32 s65, 0")
        a(f"s_cbranch_scc1 L_yp{br}")
        a.label(f"L_yd{br}")
        for half in (16,8,4):
            for e in range(half): a(f"v_add_f32 v{DT+e}, v{DT+e}, v{DT+half+e}")
        for m in ("row_ror:8","row_ror:4"):
            for e in range(4): a(f"v_add_f32_dpp v{DT+e}, v{DT+e}, v{DT+e} {m} {DPPF}")
        for sw in ("v_permlane16_swap_b32","v_permlane32_swap_b32"):
            for e in range(4): a(f"v_mov_b32 v{DT+4+e}, v{DT+e}")
            for e in range(4): a(f"{sw} v{DT+e}, v{DT+4+e}")
            for e in range(4): a(f"v_add_f32 v{DT+e}, v{DT+e}, v{DT+4+e}")
        a(f"v_cvt_pk_bf16_f32 v{DT+4}, v{DT}, v{DT+1}")
        a(f"v_cvt_pk_bf16_f32 v{DT+5}, v{DT+2}, v{DT+3}")
        a(f"""
        s_mov_b32 s40, s24
        s_mov_b32 s41, s25
        s_mov_b32 s42, 1792
        s_lshl_b32 s62, s31, 5
        s_add_u32 s62, s62, {bri*896}
        v_lshlrev_b32 v{T}, 3, v0
        s_mov_b64 exec, 15
        buffer_store_dwordx2 v[{DT+4}:{DT+5}], v{T}, s[40:43], s62 offen
        s_mov_b64 exec, -1
        """)
        a.label(f"L_he{br}")
        write_stamps(True)
        a("s_endpgm")
    helper('A')
    a.label("L_helper_B")
    helper('B')
    a.label("L_done")
    a("s_endpgm")
    a.raw('.section .rodata,"a"'); a.raw(".p2align 6"); a.raw(f".amdhsa_kernel {NAME}")
    a.raw("  .amdhsa_next_free_vgpr 256"); a.raw("  .amdhsa_next_free_sgpr 96"); a.raw("  .amdhsa_accum_offset 256")
    a.raw("  .amdhsa_float_denorm_mode_32 3"); a.raw("  .amdhsa_group_segment_fixed_size 0"); a.raw("  .amdhsa_kernarg_size 104"); a.raw("  .amdhsa_user_sgpr_count 2")
    a.raw("  .amdhsa_user_sgpr_kernarg_segment_ptr 1"); a.raw("  .amdhsa_system_sgpr_workgroup_id_x 1"); a.raw(".end_amdhsa_kernel")
    return a.text()

def make(cfgs, listfile="list.txt"):
    import build
    lines=[]
    for c in cfgs:
        lab="_".join(f"{k}{str(v).replace(' ','')}" for k,v in c.items()) or "base"
        fn="k_"+lab+".s"
        open(fn,"w").write(gen(**c))
        co=build.build(fn)
        lines.append(f"{lab} {co} {1024 if c.get('stamp') else 0} {NAME}:256:320:{c.get('lds',90112)}")
    open(listfile,"w").write("\n".join(lines)+"\n")
if __name__=="__main__":
    import json
    cfg=json.loads(sys.argv[2]) if len(sys.argv)>2 else {}
    open(sys.argv[1],"w").write(gen(**cfg))
```

```python
NAME="concat_heads__gqa_block_cached__mha_block_cached__decode_kernel"
def gen(pat='P3', W=4, U=8, R=2, flags='nt', lds=100000, xloc=1, ilv=1, rotj=0, rotx=0):
    G=256 if pat.startswith('P3') else 192
    VB=8
    o=[]; a=o.append
    a(f"; @launch grid=({G},1,1) block=({W*64},1,1) lds={lds}")
    a('.amdgcn_target "amdgcn-amd-amdhsa--gfx950"')
    a(".text"); a(f".globl {NAME}"); a(".p2align 8"); a(f".type {NAME},@function"); a(f"{NAME}:")
    a(f"s_cmp_ge_u32 s2, {G}"); a("s_cbranch_scc1 L_done")
    a("s_load_dwordx4 s[4:7], s[0:1], 8")
    a("s_load_dwordx4 s[8:11], s[0:1], 48")
    a("s_load_dwordx2 s[12:13], s[0:1], 96")
    a("s_memrealtime s[60:61]")
    a("v_lshrrev_b32 v1, 6, v0"); a("v_and_b32 v0, 63, v0"); a("s_nop 0")
    a("v_readfirstlane_b32 s14, v1")
    a("v_lshrrev_b32 v2, 4, v0"); a("v_lshlrev_b32 v2, 9, v2"); a("v_and_b32 v3, 15, v0"); a("v_lshl_add_u32 v2, v3, 4, v2")
    offs=[0,256,2048,2304]
    a("v_add_u32 v3, 0x1000, v2")
    a("s_and_b32 s15, s2, 7"); a("s_lshr_b32 s16, s2, 3")
    a("s_waitcnt lgkmcnt(0)")
    PB=["s[44:45]","s[46:47]","s[48:49]","s[52:53]"]; PL=[44,46,48,52]
    ub=U*1024*W
    if G==256:
        pos={0:0,1:5}.get(xloc, xloc-1)
        a(f"s_and_b32 s17, s16, {(1<<pos)-1}")
        a(f"s_lshl_b32 s33, s15, {pos}"); a("s_or_b32 s17, s17, s33")
        a(f"s_lshr_b32 s33, s16, {pos}"); a(f"s_lshl_b32 s33, s33, {pos+3}"); a("s_or_b32 s17, s17, s33")
        order={'P3':[(8,20),(10,20),(4,19),(6,19)],'P3b':[(8,20),(4,19),(10,20),(6,19)]}[pat]
        ends=[]; tot=0
        for k,(sb,sh) in enumerate(order):
            a(f"s_and_b32 s33, s17, {(~(ilv-1))&0xff}")
            a(f"s_lshl_b32 s33, s33, {sh}")
            a(f"s_add_u32 s{PL[k]}, s{sb}, s33"); a(f"s_addc_u32 s{PL[k]+1}, s{sb+1}, 0")
            tot+=(1<<sh)//ub; ends.append(tot)
    else:
        if xloc:
            a("s_lshr_b32 s17, s16, 3"); a("s_and_b32 s18, s16, 7")
        else:
            a("s_mov_b32 s18, s15"); a("s_and_b32 s15, s16, 7"); a("s_lshr_b32 s17, s16, 3")
        a("s_lshl_b32 s33, s15, 1"); a("s_add_u32 s33, s33, s17"); a("s_sub_u32 s33, s33, 1")
        a("s_cmp_eq_u32 s17, 0")
        a("s_cselect_b32 s33, s15, s33"); a("s_lshl_b32 s33, s33, 24")
        a("s_lshl_b32 s34, s18, 21"); a("s_add_u32 s33, s33, s34")
        a("s_cmp_eq_u32 s17, 0")
        if pat=='P2':
            a("s_cselect_b32 s44, s4, s8"); a("s_cselect_b32 s45, s5, s9"); a("s_cselect_b32 s46, s6, s10"); a("s_cselect_b32 s47, s7, s11")
        else:
            a("s_cselect_b32 s44, s6, s8"); a("s_cselect_b32 s45, s7, s9"); a("s_cselect_b32 s46, s4, s10"); a("s_cselect_b32 s47, s5, s11")
        a("s_add_u32 s44, s44, s33"); a("s_addc_u32 s45, s45, 0")
        a("s_add_u32 s46, s46, s33"); a("s_addc_u32 s47, s47, 0")
        ends=[(1<<21)//ub, 2*(1<<21)//ub]; tot=ends[-1]
    a("s_mov_b32 s20, s44"); a("s_mov_b32 s21, s45"); a("s_mov_b32 s22, 0x10000000"); a("s_mov_b32 s23, 0x20000")
    a(f"s_mul_i32 s36, s14, {U*1024}")
    if ilv>1:
        a(f"s_and_b32 s33, s17, {ilv-1}"); a(f"s_mul_i32 s33, s33, {ub}"); a("s_add_u32 s36, s36, s33")
    a("s_mov_b32 s28, s36")
    a("s_mov_b32 s30, 0")
    masks=[(1<<sh)*ilv-1 for _,sh in order] if G==256 else [(1<<21)-1]*2
    a("s_lshr_b32 s33, s2, 3"); a(f"s_mul_i32 s38, s33, {rotj}")
    a("s_and_b32 s33, s2, 7"); a(f"s_mul_i32 s33, s33, {rotx}"); a("s_add_u32 s38, s38, s33")
    a(f"s_mov_b32 s39, {masks[0]}")
    def issue(slot):
        a("s_add_u32 s37, s28, s38"); a("s_and_b32 s37, s37, s39")
        for i in range(U):
            r=VB+(slot*U+i)*4
            va="v2" if i<4 else "v3"
            a(f"buffer_load_dwordx4 v[{r}:{r+3}], {va}, s[20:23], s37 offen offset:{offs[i%4]} {flags}")
        a(f"s_add_u32 s28, s28, {ub*ilv}")
        a("s_add_u32 s30, s30, 1")
        for k,e in enumerate(ends):
            a(f"s_cmp_eq_u32 s30, {e}")
            if k+1<len(ends):
                a(f"s_cselect_b32 s20, s{PL[k+1]}, s20"); a(f"s_cselect_b32 s21, s{PL[k+1]+1}, s21"); a("s_cselect_b32 s28, s36, s28"); a(f"s_cselect_b32 s39, {masks[k+1]}, s39")
            else:
                a("s_cselect_b32 s22, 0, s22")
    assert tot%R==0,(tot,R)
    for k in range(R): issue(k)
    a("s_mov_b32 s29, 0")
    a("L_loop:")
    for k in range(R):
        a(f"s_waitcnt vmcnt({(R-1)*U})")
        for i in range(U):
            r=VB+(k*U+i)*4
            a(f"v_xor_b32 v4, v4, v{r}")
        issue(k)
    a(f"s_add_u32 s29, s29, {R}")
    a(f"s_cmp_lt_u32 s29, {tot}")
    a("s_cbranch_scc1 L_loop")
    a("s_waitcnt vmcnt(0)")
    a("s_mov_b32 s40, s12"); a("s_mov_b32 s41, s13"); a("s_mov_b32 s42, 0x40000000"); a("s_mov_b32 s43, 0x20000")
    a(f"s_mul_i32 s33, s2, {W}"); a("s_add_u32 s33, s33, s14")
    a("s_memrealtime s[62:63]")
    a("s_getreg_b32 s64, hwreg(HW_REG_XCC_ID)")
    a("s_getreg_b32 s65, hwreg(HW_REG_HW_ID)")
    a("s_waitcnt lgkmcnt(0)")
    a("v_mov_b32 v8, s60"); a("v_mov_b32 v9, s62"); a("v_mov_b32 v10, s64"); a("v_mov_b32 v11, s65")
    a("s_lshl_b32 s34, s33, 4")
    a("v_mov_b32 v5, 0")
    a("v_cmp_eq_u32 vcc, 0, v0"); a("s_and_saveexec_b64 s[50:51], vcc")
    a("buffer_store_dwordx4 v[8:11], v5, s[40:43], s34 offen")
    a("s_mov_b64 exec, s[50:51]")
    a("s_lshl_b32 s33, s33, 8"); a("s_add_u32 s33, s33, 0x100000")
    a("v_lshlrev_b32 v5, 2, v0")
    a("buffer_store_dword v4, v5, s[40:43], s33 offen")
    a("L_done:")
    a("s_endpgm")
    nv=max(VB+R*U*4,12)
    a('.section .rodata,"a"'); a(".p2align 6"); a(f".amdhsa_kernel {NAME}")
    a(f"  .amdhsa_next_free_vgpr {nv}"); a("  .amdhsa_next_free_sgpr 72"); a(f"  .amdhsa_accum_offset {min(256,(nv+3)//4*4)}")
    a("  .amdhsa_group_segment_fixed_size 0"); a("  .amdhsa_kernarg_size 104"); a("  .amdhsa_user_sgpr_count 2")
    a("  .amdhsa_user_sgpr_kernarg_segment_ptr 1"); a("  .amdhsa_system_sgpr_workgroup_id_x 1"); a(".end_amdhsa_kernel")
    return "\n".join(o)+"\n", G
def make(cfgs, listfile="list.txt"):
    import build
    lines=[]
    for c in cfgs:
        lab="_".join(f"{k}{str(v).replace(' ','')}" for k,v in c.items() if k not in('stamp','lds')) or "base"
        fn="s_"+lab+".s"
        src,G=gen(**c)
        open(fn,"w").write(src)
        co=build.build(fn)
        n=G*c.get('W',4)
        lines.append(f"{lab} {co} {n} {NAME}:{G}:{c.get('W',4)*64}:{c.get('lds',100000)}")
    open(listfile,"w").write("\n".join(lines)+"\n")
```

```python
NAME="concat_heads__gqa_block_cached__mha_block_cached__decode_kernel"
import math
def gen(W=4, U=4, R=2, alt=2, flags='nt', lds=100000, wc=0, vrot=0):
    G=256; VB=8
    o=[]; a=o.append
    a(f"; @launch grid=({G},1,1) block=({W*64},1,1) lds={lds}")
    a('.amdgcn_target "amdgcn-amd-amdhsa--gfx950"')
    a(".text"); a(f".globl {NAME}"); a(".p2align 8"); a(f".type {NAME},@function"); a(f"{NAME}:")
    a(f"s_cmp_ge_u32 s2, {G}"); a("s_cbranch_scc1 L_done")
    a("s_load_dwordx4 s[4:7], s[0:1], 8"); a("s_load_dwordx4 s[8:11], s[0:1], 48"); a("s_load_dwordx2 s[12:13], s[0:1], 96")
    a("s_memrealtime s[60:61]")
    a("v_lshrrev_b32 v1, 6, v0"); a("v_and_b32 v0, 63, v0"); a("s_nop 0")
    a("v_readfirstlane_b32 s14, v1")
    a("v_lshrrev_b32 v2, 4, v0"); a("v_lshlrev_b32 v2, 9, v2"); a("v_and_b32 v3, 15, v0"); a("v_lshl_add_u32 v2, v3, 4, v2")
    offs=[0,256,2048,2304]
    a("v_add_u32 v3, 0x1000, v2")
    a("s_waitcnt lgkmcnt(0)")
    a("s_lshl_b32 s33, s2, 19")
    a("s_add_u32 s20, s4, s33"); a("s_addc_u32 s21, s5, 0"); a("s_add_u32 s24, s6, s33"); a("s_addc_u32 s25, s7, 0")
    a("s_lshl_b32 s33, s2, 20")
    a("s_add_u32 s44, s8, s33"); a("s_addc_u32 s45, s9, 0"); a("s_add_u32 s46, s10, s33"); a("s_addc_u32 s47, s11, 0")
    a("s_mov_b32 s22, 0x100000"); a("s_mov_b32 s23, 0x20000"); a("s_mov_b32 s26, 0x100000"); a("s_mov_b32 s27, 0x20000")
    ub=U*1024
    nA=(1<<19)//(ub*W); nB=2*nA
    if wc: a(f"s_mul_i32 s36, s14, {ub*alt}")
    else: a(f"s_mul_i32 s36, s14, {ub}")
    a("s_mov_b32 s28, s36"); a("s_mov_b32 s29, s36"); a("s_mov_b32 s30, 0"); a("s_mov_b32 s31, 0")
    seq=[0]*alt+[1]*alt
    P=R*len(seq)//math.gcd(R,len(seq))
    tot=2*(nA+nB)
    assert tot%P==0
    def issue(k):
        slot=k%R; w=seq[k%len(seq)]; pos=k%alt
        srd=20+4*w; so=28+w; cn=30+w
        for i in range(U):
            r=VB+(slot*U+i)*4
            va="v2" if i<4 else "v3"
            a(f"buffer_load_dwordx4 v[{r}:{r+3}], {va}, s[{srd}:{srd+3}], s{so} offen offset:{offs[i%4]} {flags}")
        if wc: inc=ub if pos<alt-1 else ub+ub*alt*(W-1)
        else: inc=ub*W
        a(f"s_add_u32 s{so}, s{so}, {inc}"); a(f"s_add_u32 s{cn}, s{cn}, 1")
        a(f"s_cmp_eq_u32 s{cn}, {nA}")
        a(f"s_cselect_b32 s{srd}, s{44+2*w}, s{srd}"); a(f"s_cselect_b32 s{srd+1}, s{45+2*w}, s{srd+1}"); a(f"s_cselect_b32 s{so}, s36, s{so}")
    for k in range(R): issue(k)
    a("s_mov_b32 s34, 0")
    a("L_loop:")
    for k in range(P):
        a(f"s_waitcnt vmcnt({(R-1)*U})")
        for i in range(U):
            r=VB+((k%R)*U+i)*4
            a(f"v_xor_b32 v4, v4, v{r}")
        issue(k+R)
    a(f"s_add_u32 s34, s34, {P}")
    a(f"s_cmp_lt_u32 s34, {tot}")
    a("s_cbranch_scc1 L_loop")
    a("s_waitcnt vmcnt(0)")
    a("s_mov_b32 s40, s12"); a("s_mov_b32 s41, s13"); a("s_mov_b32 s42, 0x40000000"); a("s_mov_b32 s43, 0x20000")
    a(f"s_mul_i32 s33, s2, {W}"); a("s_add_u32 s33, s33, s14")
    a("s_memrealtime s[62:63]")
    a("s_getreg_b32 s64, hwreg(HW_REG_XCC_ID)")
    a("s_getreg_b32 s65, hwreg(HW_REG_HW_ID)")
    a("s_waitcnt lgkmcnt(0)")
    a("v_mov_b32 v8, s60"); a("v_mov_b32 v9, s62"); a("v_mov_b32 v10, s64"); a("v_mov_b32 v11, s65")
    a("s_lshl_b32 s34, s33, 4")
    a("v_mov_b32 v5, 0")
    a("v_cmp_eq_u32 vcc, 0, v0"); a("s_and_saveexec_b64 s[50:51], vcc")
    a("buffer_store_dwordx4 v[8:11], v5, s[40:43], s34 offen")
    a("s_mov_b64 exec, s[50:51]")
    a("s_lshl_b32 s33, s33, 8"); a("s_add_u32 s33, s33, 0x100000")
    a("v_lshlrev_b32 v5, 2, v0")
    a("buffer_store_dword v4, v5, s[40:43], s33 offen")
    a("L_done:")
    a("s_endpgm")
    nv=max(VB+R*U*4,12)
    a('.section .rodata,"a"'); a(".p2align 6"); a(f".amdhsa_kernel {NAME}")
    a(f"  .amdhsa_next_free_vgpr {nv}"); a("  .amdhsa_next_free_sgpr 72"); a(f"  .amdhsa_accum_offset {min(256,(nv+3)//4*4)}")
    a("  .amdhsa_group_segment_fixed_size 0"); a("  .amdhsa_kernarg_size 104"); a("  .amdhsa_user_sgpr_count 2")
    a("  .amdhsa_user_sgpr_kernarg_segment_ptr 1"); a("  .amdhsa_system_sgpr_workgroup_id_x 1"); a(".end_amdhsa_kernel")
    return "\n".join(o)+"\n"
def lines(cfgs):
    import build
    out=[]
    for c in cfgs:
        lab="P4_"+"_".join(f"{k}{str(v).replace(' ','')}" for k,v in c.items())
        fn="s_"+lab+".s"
        open(fn,"w").write(gen(**c))
        co=build.build(fn)
        out.append(f"{lab} {co} {256*c.get('W',4)} {NAME}:256:{c.get('W',4)*64}:{c.get('lds',100000)}")
    return out
```

```python
import gen, gen_stream3 as g3, gen_stream4 as g4, re, build
NAME=gen.NAME
def merge(probe_src, G, W, lds, real_src, out, twice=False):
    p=probe_src.replace(NAME,"probe_kernel").replace("L_done","LP_done").replace("L_loop","LP_loop")
    p="\n".join(l for l in p.split("\n") if not l.startswith("; @launch") and not l.startswith(".amdgcn_target"))
    r=real_src
    m=re.search(r"; @launch (grid=\S+ block=\S+ lds=\d+)",r)
    ll=f"; @launch kernel=probe_kernel grid=({G},1,1) block=({W*64},1,1) lds={lds}\n"
    if twice: ll=ll+ll
    r=r.replace(m.group(0), ll+f"; @launch kernel={NAME} {m.group(1)}")
    open(out,"w").write(r+"\n"+p)
    build.build(out)
real=gen.gen(R=2)
s,G=g3.gen(pat="P3",U=4,xloc=0); merge(s,G,4,100000,real,"pr_P3.s"); merge(s,G,4,100000,real,"pr_P3x2.s",True)
s,G=g3.gen(pat="P2",U=4,xloc=0); merge(s,G,4,100000,real,"pr_P2.s")
s,G=g3.gen(pat="P3",U=4,xloc=0); s=s.replace("s_cmp_ge_u32 s2, 256","s_cmp_ge_u32 s2, 0"); merge(s,G,4,100000,real,"pr_empty.s")
open("pr_real.s","w").write(real)
```

```python
import struct, math, sys
from asmlib import Asm
NAME="concat_heads__gqa_block_cached__mha_block_cached__decode_kernel"
HDR=open('concat_heads__gqa_block_cached__mha_block_cached__decode.s.ref').read().split('; Override')[0]
def f2u(x): return struct.unpack('<I',struct.pack('<f',x))[0]
QP=0x10000; TK=0x30000; IN1D=0x40000; IN1H=0x440000; YO=0x480000; WS_USED=0x500000
LQA=0; LQB=1024; LCNT=1536; LSC=2048
DPPF="row_mask:0xf bank_mask:0xf"
INV=0x7f000000

def gen(stamp=False, sflags='nt', wflags='nt', lds=90112, W=2, dh=5, NS=4, PK=128, bar0=True, spin=1<<16,
        nodots=False, nopv=False, nowo=False):
    SPIN=spin
    LW=W.bit_length()-1
    a=Asm()
    a.raw(HDR.rstrip())
    a.raw(f"; @launch kernel=prep_kernel grid=(256,1,1) block=(128,1,1) lds=0")
    a.raw(f"; @launch kernel={NAME} grid=(256,1,1) block=({(W+1)*64},1,1) lds={lds}")
    a.raw('.amdgcn_target "amdgcn-amd-amdhsa--gfx950"')
    a.raw(".text"); a.raw(f".globl {NAME}"); a.raw(".p2align 8"); a.raw(f".type {NAME},@function"); a.raw(f"{NAME}:")
    def st(k):
        if stamp:
            a("s_memrealtime s[68:69]"); a("s_waitcnt lgkmcnt(0)"); a(f"s_mov_b32 s{72+k}, s68")
    def prologue(done):
        a(f"""
        s_cmp_ge_u32 s2, 256
        s_cbranch_scc1 {done}
        s_load_dwordx16 s[4:19], s[0:1], 0
        s_load_dwordx8 s[20:27], s[0:1], 64
        s_load_dwordx2 s[28:29], s[0:1], 96
        v_lshrrev_b32 v1, 6, v0
        v_and_b32 v0, 63, v0
        v_readfirstlane_b32 s30, v1
        v_and_b32 v2, 15, v0        ; n
        v_lshrrev_b32 v3, 4, v0     ; g
        s_mov_b32 s38, {WS_USED}
        s_mov_b32 s39, 0x20000
        """)
    def selectors():
        a("""
        v_and_b32 v4, 1, v0
        v_cmp_eq_u32 vcc, 1, v4
        v_mov_b32 v5, 0x0c0c0100
        v_mov_b32 v6, 0x01000c0c
        v_cndmask_b32 v5, v5, v6, vcc
        v_mov_b32 v6, 0x0c0c0302
        v_mov_b32 v7, 0x03020c0c
        v_cndmask_b32 v6, v6, v7, vcc
        v_bfe_u32 v4, v0, 1, 2
        v_mov_b32 v7, 0x0c0c0c0c
        """)
        for v in range(4):
            a(f"v_cmp_eq_u32 vcc, {v}, v4")
            a(f"v_cndmask_b32 v{8+v}, v7, v5, vcc")
            a(f"v_cndmask_b32 v{12+v}, v7, v6, vcc")
    SEL=[[8,9,10,11],[12,13,14,15]]
    prologue('L_done')
    a("s_cmp_eq_u32 s30, 0"); a("s_cbranch_scc1 L_helper")
    def after_kernarg():
        a("s_waitcnt lgkmcnt(0)")
        if stamp:
            for k in range(8): a(f"s_mov_b32 s{72+k}, 0")
        st(0)
        a("s_mov_b32 s36, s28"); a("s_mov_b32 s37, s29")
    def write_stamps(helper):
        if not stamp: return
        st(7)
        a("s_getreg_b32 s66, hwreg(HW_REG_XCC_ID)")
        a("s_mov_b64 exec, 1")
        a("v_mov_b32 v4, 0")
        if not helper:
            a("v_mov_b32 v20, s72"); a("v_mov_b32 v21, s79"); a("v_mov_b32 v22, s66"); a("v_mov_b32 v23, 0")
            a(f"s_lshl_b32 s64, s2, {LW}"); a("s_add_u32 s64, s64, s31"); a("s_lshl_b32 s64, s64, 4")
            a("buffer_store_dwordx4 v[20:23], v4, s[36:39], s64 offen")
        for k in range(8): a(f"v_mov_b32 v{24+k}, s{72+k}")
        a(f"s_mul_i32 s64, s2, {W+1}"); a("s_add_u32 s64, s64, s30"); a("s_lshl_b32 s64, s64, 5"); a("s_add_u32 s64, s64, 0x4000")
        a("buffer_store_dwordx4 v[24:27], v4, s[36:39], s64 offen")
        a("buffer_store_dwordx4 v[28:31], v4, s[36:39], s64 offen offset:16")
    def spin_tail(lbl,sleep):
        if sleep: a(f"s_sleep {sleep}")
        a("s_sub_u32 s65, s65, 1"); a("s_cmp_lg_u32 s65, 0")
        a(f"s_cbranch_scc1 {lbl}")
    VOFF=1; VSC=4; VM=5; VL=6; VMC=7
    Q=16; ACC=32; AR=40; D=48; T=52; PKR=60; VOFF2=62; VTK=63
    RING=64; SIDE=128
    STEP=4096*W
    NA=(1<<19)//STEP; NB=((1<<20)-PK*1024)//STEP
    NT=16*PK//8
    a(f"""
    s_sub_u32 s31, s30, 1            ; sw
    v_lshlrev_b32 v{VOFF}, 9, v3
    v_lshl_add_u32 v{VOFF}, v2, 4, v{VOFF}
    s_mov_b32 s34, 0x100000
    s_mov_b32 s35, 0x20000
    s_lshl_b32 s61, s31, 12
    s_lshl_b32 s60, s2, 19
    """)
    after_kernarg()
    a("s_add_u32 s32, s6, s60"); a("s_addc_u32 s33, s7, 0")
    if bar0: a("s_barrier")
    OFFS=[0,256,2048,2304]
    PH=[('A','K',NA),('A','V',NA),('B','K',NB),('B','V',NB)]
    ends=[NA,2*NA,2*NA+NB,2*NA+2*NB]
    def ldhalf(base,half,srd,soff,voff=VOFF):
        for i in range(2):
            r=base+(half*2+i)*4
            a(f"buffer_load_dwordx4 v[{r}:{r+3}], v{voff}, {srd}, {soff} offen offset:{OFFS[half*2+i]} {sflags}")
    def issue_static(h,p):
        h%=8
        ldhalf(RING+(h//2)*16,h%2,"s[32:35]","s52")
        if h%2==1:
            a(f"s_add_u32 s52, s52, {STEP}")
            a("s_add_u32 s53, s53, 1")
            if p is not None:
                a(f"s_cmp_eq_u32 s53, {ends[p]}")
                if p<3:
                    b=54+2*p
                    a(f"s_cselect_b32 s32, s{b}, s32"); a(f"s_cselect_b32 s33, s{b+1}, s33"); a("s_cselect_b32 s52, s61, s52")
                else:
                    a("s_cselect_b32 s34, 0, s34")
    def ticket_req():
        a("s_mov_b64 exec, 1")
        a(f"v_mov_b32 v{VTK}, 1")
        a(f"buffer_atomic_add v{VTK}, off, s[36:39], s91 sc0 sc1")
        a("s_mov_b64 exec, -1")
    def ticket_use():
        a(f"v_readfirstlane_b32 s90, v{VTK}")
        a("s_and_b32 s88, s90, 15"); a("s_lshl_b32 s88, s88, 20")
        a("s_lshr_b32 s89, s90, 4"); a("s_lshl_b32 s89, s89, 13")
        a("s_add_u32 s88, s88, s89"); a(f"s_add_u32 s88, s88, {NB*STEP}")
        a(f"s_cmp_lt_u32 s90, {NT}")
        a(f"s_cselect_b32 s88, s88, {INV}")
    def issue_pool(h):
        h%=8
        if h==0: ticket_use(); ticket_req()
        k=h//2
        ldhalf(RING+k*16,h%2,"s[80:83]" if k<2 else "s[84:87]","s88",VOFF if k%2==0 else VOFF2)
    a(f"s_add_u32 s52, s61, {NS*STEP}")
    a(f"s_mov_b32 s53, {NS}")
    for h in range(dh): issue_static(h,None)
    a("s_mov_b32 s64, s61")
    for k in range(NS):
        ldhalf(SIDE+k*16,0,"s[32:35]","s64"); ldhalf(SIDE+k*16,1,"s[32:35]","s64")
        if k<NS-1: a(f"s_add_u32 s64, s64, {STEP}")
    selectors()
    a(f"""
    s_add_u32 s54, s8, s60
    s_addc_u32 s55, s9, 0
    s_lshl_b32 s60, s2, 20
    s_add_u32 s56, s16, s60
    s_addc_u32 s57, s17, 0
    s_add_u32 s58, s18, s60
    s_addc_u32 s59, s19, 0
    s_and_b32 s60, s60, 0xff000000
    s_add_u32 s80, s16, s60
    s_addc_u32 s81, s17, 0
    s_mov_b32 s82, 0x1000000
    s_mov_b32 s83, 0x20000
    s_add_u32 s84, s18, s60
    s_addc_u32 s85, s19, 0
    s_mov_b32 s86, 0x1000000
    s_mov_b32 s87, 0x20000
    s_lshr_b32 s91, s2, 4
    s_lshl_b32 s91, s91, 8
    s_add_u32 s91, s91, {TK}
    s_mov_b32 s62, {f2u(math.log2(math.e)/16.0)}
    s_mul_i32 s63, s31, {65536//W}
    s_add_u32 s63, s63, {LSC}
    v_add_u32 v{VOFF2}, 0x1000, v{VOFF}
    s_barrier
    """)
    st(1)
    WN=2*(dh-1)
    def dots(base,nh,dbase):
        for e in range(1 if nodots else 8):
            for s_ in range(2):
                for h in range(nh):
                    d=dbase+s_*nh+h
                    k=base+(2*s_+e//4)*4+e%4
                    a(f"v_dot2_f32_bf16 v{d}, v{k}, v{Q+h*8+e}, {'0' if e==0 else 'v%d'%d}")
    def reduce(nh,dbase,tb,ns=2):
        for s_ in range(ns):
            if nh==2:
                a(f"v_add_f32_dpp v{tb+s_}, v{dbase+s_*2}, v{dbase+s_*2} row_ror:8 row_mask:0xf bank_mask:0x3")
                a(f"v_add_f32_dpp v{tb+s_}, v{dbase+s_*2+1}, v{dbase+s_*2+1} row_ror:8 row_mask:0xf bank_mask:0xc")
            else:
                a(f"v_add_f32_dpp v{tb+s_}, v{dbase+s_}, v{dbase+s_} row_ror:8 {DPPF}")
        for m in ("row_half_mirror","quad_perm:[1,0,3,2]","quad_perm:[2,3,0,1]"):
            for s_ in range(ns):
                a(f"v_add_f32_dpp v{tb+s_}, v{tb+s_}, v{tb+s_} {m} {DPPF}")
    def arrive(j,iss,extra=(0,0)):
        for half in range(2):
            a(f"s_waitcnt vmcnt({WN+extra[half]})")
            iss(2*j+half+dh)
    def kcompute(base,nh,j):
        dots(base,nh,D)
        reduce(nh,D,T)
        a(f"v_max3_f32 v{VM}, v{VM}, v{T}, v{T+1}")
        a(f"v_cvt_pk_bf16_f32 v{T+2}, v{T}, v{T+1}")
        a(f"ds_write_b32 v{VSC}, v{T+2} offset:{j*256}")
    def pcalc(t0,ar):
        a(f"v_fma_f32 v{t0}, v{t0}, s62, -v{VMC}")
        a(f"v_fma_f32 v{t0+1}, v{t0+1}, s62, -v{VMC}")
        a(f"v_exp_f32 v{t0}, v{t0}")
        a(f"v_exp_f32 v{t0+1}, v{t0+1}")
        a(f"v_add_f32 v{VL}, v{VL}, v{t0}")
        a(f"v_add_f32 v{VL}, v{VL}, v{t0+1}")
        a(f"v_cvt_pk_bf16_f32 v{t0}, v{t0}, v{t0+1}")
        for s_ in range(2):
            for v in range(4):
                a(f"v_perm_b32 v{ar+s_*4+v}, v{t0}, v{t0}, v{SEL[s_][v]}")
    def pv(base,ar):
        for s_ in range(0 if nopv else 2):
            for blk in range(2):
                r=base+(2*s_+blk)*4
                c=ACC+blk*4
                a(f"v_mfma_f32_16x16x32_bf16 v[{c}:{c+3}], v[{ar+s_*4}:{ar+s_*4+3}], v[{r}:{r+3}], v[{c}:{c+3}]")
    def vunit(j,jl,iss):
        par=j%2
        pk=PKR+par
        a("s_waitcnt lgkmcnt(0)")
        a(f"v_lshlrev_b32 v{T}, 16, v{pk}")
        a(f"v_and_b32 v{T+1}, 0xffff0000, v{pk}")
        a(f"ds_read_b32 v{PKR+1-par}, v{VSC} offset:{(jl+1)*256}")
        pcalc(T,AR)
        arrive(j,iss)
        pv(RING+(j%4)*16,AR)
    def xrow(reg,op):
        a(f"v_mov_b32 v{T+7}, v{reg}")
        a(f"v_permlane16_swap_b32 v{reg}, v{T+7}")
        a(f"{op} v{reg}, v{reg}, v{T+7}")
        a(f"v_mov_b32 v{T+7}, v{reg}")
        a(f"v_permlane32_swap_b32 v{reg}, v{T+7}")
        a(f"{op} v{reg}, v{reg}, v{T+7}")
    def lds_inc():
        a("s_mov_b64 exec, 1")
        a(f"v_mov_b32 v{T+4}, {LCNT}"); a(f"v_mov_b32 v{T+5}, 1")
        a(f"ds_add_u32 v{T+4}, v{T+5}")
        a("s_mov_b64 exec, -1")
    def publish(br):
        xrow(VL,"v_add_f32")
        sh=5 if br=='A' else 4
        bri=0 if br=='A' else 1
        a(f"s_lshr_b32 s64, s2, {sh}")
        a(f"s_and_b32 s65, s2, {(1<<sh)-1}")
        a(f"s_lshl_b32 s65, s65, {LW}"); a("s_add_u32 s65, s65, s31")
        a(f"s_lshl_b32 s64, s64, {4 if br=='A' else 3}")
        a("s_lshl_b32 s66, s64, 14"); a("s_lshl_b32 s67, s65, 7"); a("s_add_u32 s66, s66, s67")
        a(f"s_add_u32 s66, s66, {IN1D+bri*0x200000}")
        a("s_add_u32 s67, s66, 0x10000")
        a(f"v_lshrrev_b32 v{T}, 5, v0"); a(f"v_lshlrev_b32 v{T}, 17, v{T}")
        a(f"v_lshrrev_b32 v{T+1}, 2, v2"); a(f"v_lshl_add_u32 v{T}, v{T+1}, 14, v{T}")
        a(f"v_and_b32 v{T+1}, 3, v2"); a(f"v_lshl_add_u32 v{T}, v{T+1}, 5, v{T}")
        a(f"v_and_b32 v{T+1}, 1, v3"); a(f"v_lshl_add_u32 v{T}, v{T+1}, 4, v{T}")
        for i in range(8): a(f"v_min_u32 v{ACC+i}, -2, v{ACC+i}")
        a(f"v_min_u32 v{T+2}, -2, v{VMC}"); a(f"v_min_u32 v{T+3}, -2, v{VL}")
        a(f"v_lshlrev_b32 v{T+1}, 10, v0")
        if br=='B': a("s_mov_b32 exec_hi, 0")
        a(f"buffer_store_dwordx4 v[{ACC}:{ACC+3}], v{T}, s[36:39], s66 offen sc1")
        a(f"buffer_store_dwordx4 v[{ACC+4}:{ACC+7}], v{T}, s[36:39], s67 offen sc1")
        a("s_lshl_b32 s66, s64, 10"); a("s_lshl_b32 s67, s65, 3"); a("s_add_u32 s66, s66, s67")
        a(f"s_add_u32 s66, s66, {IN1H+bri*0x20000}")
        a(f"s_mov_b64 exec, {0xffff if br=='A' else 0xff}")
        a(f"buffer_store_dwordx2 v[{T+2}:{T+3}], v{T+1}, s[36:39], s66 offen sc1")
        lds_inc()
    for p,(br,kv,n) in enumerate(PH):
        nh=2 if br=='A' else 1
        iss=lambda h,p=p: issue_static(h,p)
        a(f"v_lshlrev_b32 v{VSC}, 2, v0")
        a(f"v_add_u32 v{VSC}, s63, v{VSC}")
        done=0; tail=0
        if kv=='K':
            lq=LQA if br=='A' else LQB
            a(f"v_lshlrev_b32 v{T}, 4, v2")
            for h in range(nh):
                a(f"ds_read_b128 v[{Q+h*8}:{Q+h*8+3}], v{T} offset:{lq+h*512}")
                a(f"ds_read_b128 v[{Q+h*8+4}:{Q+h*8+7}], v{T} offset:{lq+h*512+256}")
            a(f"v_mov_b32 v{VM}, 0xff800000")
            a("s_waitcnt lgkmcnt(0)")
            if p==0 and NS:
                assert NS<=4 or NS%4==0
                sd=0
                for j in range(4):
                    ex=[4*NS if 2*j+half<dh else 0 for half in range(2)]
                    arrive(j,iss,ex)
                    kcompute(RING+j*16,nh,NS+j)
                    if 2*j+1>=dh:
                        m=NS-sd if j==3 else (NS+1)//2
                        for k in range(m): kcompute(SIDE+(sd+k)*16,nh,sd+k)
                        sd+=m
                assert sd==NS
                done=4+NS
                a(f"v_add_u32 v{VSC}, {done*256}, v{VSC}")
        else:
            a(f"ds_read_b32 v{PKR}, v{VSC}")
            xrow(VM,"v_max_f32")
            a(f"v_cvt_pk_bf16_f32 v{VM}, v{VM}, v{VM}")
            a(f"v_and_b32 v{VM}, 0xffff0000, v{VM}")
            a(f"v_mul_f32 v{VMC}, s62, v{VM}")
            a(f"v_mov_b32 v{VL}, 0")
            for i in range(8): a(f"v_mov_b32 v{ACC+i}, 0")
            if p==3 and PK: tail=8
        assert (n-done-tail)%4==0
        a(f"s_mov_b32 s60, {(n-done-tail)//4}")
        a.label(f"L_ph{p}")
        for j in range(4):
            if kv=='K':
                arrive(j,iss); kcompute(RING+j*16,nh,j)
            else: vunit(j,j,iss)
        a(f"v_add_u32 v{VSC}, 1024, v{VSC}")
        a("s_sub_u32 s60, s60, 1")
        a("s_cmp_lg_u32 s60, 0")
        a(f"s_cbranch_scc1 L_ph{p}")
        if tail:
            ticket_req()
            for j in range(4): vunit(j,j,iss)
            for j in range(4): vunit(j,4+j,lambda h: issue_static(h,None) if h<8 else issue_pool(h))
            st(5)
            a(f"s_cmp_eq_u32 s88, {INV}")
            a("s_cbranch_scc1 L_pool_end")
            a.label("L_pool")
            apos=8-dh
            def ex(j): return [1 if 1<=((2*j+half-apos)%8)<=dh-1 else 0 for half in range(2)]
            arrive(0,issue_pool,ex(0)); dots(RING,1,D)
            arrive(1,issue_pool,ex(1)); dots(RING+16,1,D+2)
            reduce(1,D,T,4)
            a(f"v_cvt_pk_bf16_f32 v{T+4}, v{T}, v{T+1}")
            a(f"v_cvt_pk_bf16_f32 v{T+5}, v{T+2}, v{T+3}")
            a(f"v_lshlrev_b32 v{T}, 16, v{T+4}"); a(f"v_and_b32 v{T+1}, 0xffff0000, v{T+4}")
            a(f"v_lshlrev_b32 v{T+2}, 16, v{T+5}"); a(f"v_and_b32 v{T+3}, 0xffff0000, v{T+5}")
            a(f"v_max3_f32 v{T+4}, v{T}, v{T+1}, v{T+2}")
            a(f"v_max_f32 v{T+4}, v{T+4}, v{T+3}")
            a(f"v_cmp_gt_f32 vcc, v{T+4}, v{VM}")
            a("s_cmp_eq_u64 vcc, 0")
            a("s_cbranch_scc1 L_norescale")
            a(f"v_max_f32 v{VM}, v{VM}, v{T+4}")
            xrow(VM,"v_max_f32")
            a(f"v_mul_f32 v{T+4}, s62, v{VM}")
            a(f"v_sub_f32 v{T+5}, v{VMC}, v{T+4}")
            a(f"v_exp_f32 v{T+5}, v{T+5}")
            a(f"v_mov_b32 v{VMC}, v{T+4}")
            a(f"v_mul_f32 v{VL}, v{VL}, v{T+5}")
            for i in range(8): a(f"v_mul_f32 v{ACC+i}, v{ACC+i}, v{T+5}")
            a.label("L_norescale")
            pcalc(T,AR)
            arrive(2,issue_pool,ex(2)); pv(RING+32,AR)
            pcalc(T+2,AR)
            arrive(3,issue_pool,ex(3)); pv(RING+48,AR)
            a(f"s_cmp_lg_u32 s88, {INV}")
            a("s_cbranch_scc1 L_pool")
            a.label("L_pool_end")
        if kv=='V': publish(br)
        if p==2: lds_inc()
        if p<3: st(2+p)
        elif not tail: st(5)
    write_stamps(False)
    a("s_endpgm")
    WR=64; XR=16; HA=32; HC=40; T=56; DT=192; HD=16
    a.label("L_helper")
    a(f"""
    s_setprio 3
    v_lshlrev_b32 v{T+2}, 4, v0
    s_lshr_b32 s63, s2, 5
    s_lshl_b32 s63, s63, 11
    s_add_u32 s63, s63, {QP}
    s_lshr_b32 s64, s2, 4
    s_lshl_b32 s64, s64, 10
    s_add_u32 s64, s64, {QP+0x10000}
    """)
    after_kernarg()
    for ks in range(4):
        a(f"buffer_load_dwordx4 v[{DT+ks*12}:{DT+ks*12+3}], v{T+2}, s[36:39], s63 offen")
        a(f"buffer_load_dwordx4 v[{DT+ks*12+4}:{DT+ks*12+7}], v{T+2}, s[36:39], s63 offen offset:1024")
        a(f"buffer_load_dwordx4 v[{DT+ks*12+8}:{DT+ks*12+11}], v{T+2}, s[36:39], s64 offen")
        if ks<3: a("s_add_u32 s63, s63, 0x4000"); a("s_add_u32 s64, s64, 0x4000")
    if bar0: a("s_barrier")
    a(f"v_mov_b32 v{HC+4}, {LCNT}"); a(f"v_mov_b32 v{HC+6}, 0")
    a(f"ds_write_b32 v{HC+4}, v{HC+6}")
    a(f"v_lshlrev_b32 v{T}, 3, v0")
    a("s_waitcnt vmcnt(0)")
    st(3)
    for k in range(0,12,2):
        a(f"v_pk_add_f32 v[{DT+k}:{DT+k+1}], v[{DT+k}:{DT+k+1}], v[{DT+12+k}:{DT+13+k}]")
        a(f"v_pk_add_f32 v[{DT+24+k}:{DT+25+k}], v[{DT+24+k}:{DT+25+k}], v[{DT+36+k}:{DT+37+k}]")
    for k in range(0,12,2): a(f"v_pk_add_f32 v[{DT+k}:{DT+k+1}], v[{DT+k}:{DT+k+1}], v[{DT+24+k}:{DT+25+k}]")
    for k in range(6): a(f"v_cvt_pk_bf16_f32 v{DT+12+k}, v{DT+2*k}, v{DT+2*k+1}")
    for k in range(3): a(f"ds_write_b64 v{T}, v[{DT+12+2*k}:{DT+13+2*k}] offset:{512*k}")
    a("s_waitcnt lgkmcnt(0)")
    a("s_barrier")
    a("s_setprio 0")
    st(4)
    selectors()
    a(f"""
    s_lshr_b32 s31, s2, 4
    s_lshl_b32 s31, s31, 3
    s_and_b32 s60, s2, 7
    s_or_b32 s31, s31, s60           ; i = 0..127
    s_mov_b32 s43, 0x20000
    s_mov_b32 s47, 0x20000
    v_and_b32 v{T+3}, 1, v3
    v_lshlrev_b32 v{T+3}, 4, v{T+3}
    v_lshl_add_u32 v{T+3}, v2, 5, v{T+3}
    s_bitcmp1_b32 s2, 3
    s_cselect_b32 s44, s22, s12
    s_cselect_b32 s45, s23, s13
    s_mov_b32 s46, {0 if nowo else 4096*896}
    s_mul_i32 s63, s31, {32*896}
    v_mul_u32_u24 v{T}, {8*896}, v3
    v_lshl_add_u32 v{T}, v2, 4, v{T}
    v_add_u32 v{T+1}, {4*896}, v{T}
    """)
    for i in range(8):
        for blk in range(4):
            r=WR+(i*4+blk)*4
            a(f"buffer_load_dwordx4 v[{r}:{r+3}], v{T+i//4}, s[44:47], s63 offen offset:{(i%4)*896+blk*256} {wflags}")
        a("s_waitcnt vmcnt(0)")
    a("s_bitcmp1_b32 s2, 3")
    a("s_cbranch_scc1 L_helper_B")
    def anysent(base,n,tmp):
        a(f"v_max3_u32 v{tmp}, v{base}, v{base+1}, v{base+2}")
        k=3
        while k<n:
            if k+1<n: a(f"v_max3_u32 v{tmp}, v{tmp}, v{base+k}, v{base+k+1}"); k+=2
            else: a(f"v_max_u32 v{tmp}, v{tmp}, v{base+k}"); k+=1
        a(f"v_cmp_eq_u32 vcc, -1, v{tmp}")
        a("s_cmp_eq_u64 vcc, 0")
    def helper(br):
        bri=0 if br=='A' else 1
        RP=(2 if br=='A' else 1)*W
        a("s_lshl_b32 s52, s31, 14"); a(f"s_add_u32 s52, s52, {IN1D+bri*0x200000}")
        a("s_lshl_b32 s53, s31, 10"); a(f"s_add_u32 s53, s53, {IN1H+bri*0x20000}")
        a("s_lshl_b32 s54, s31, 11"); a(f"s_add_u32 s54, s54, {YO+bri*0x40000}")
        a(f"v_mov_b32 v{T}, {LCNT}")
        a(f"s_mov_b32 s65, {SPIN}")
        a.label(f"L_ow{br}")
        a(f"ds_read_b32 v{T+1}, v{T}")
        a("s_waitcnt lgkmcnt(0)")
        a(f"v_readfirstlane_b32 s64, v{T+1}")
        a(f"s_cmp_ge_u32 s64, {2*W if br=='A' else 2*W+1}")
        a(f"s_cbranch_scc1 L_od{br}")
        spin_tail(f"L_ow{br}",32 if br=='A' else 4)
        a.label(f"L_od{br}")
        if br=='B': a("s_setprio 3")
        slp=64 if br=='A' else 1
        a(f"v_mul_u32_u24 v{T}, {RP*8}, v2")
        a(f"v_mul_u32_u24 v{T+1}, {RP*128}, v2"); a(f"v_lshl_add_u32 v{T+1}, v3, 5, v{T+1}")
        a(f"s_mov_b32 s65, {SPIN}")
        a.label(f"L_hp{br}")
        for k in range(RP//2):
            a(f"buffer_load_dwordx4 v[{HD+4*k}:{HD+4*k+3}], v{T}, s[36:39], s53 offen offset:{16*k} sc1")
        a("s_waitcnt vmcnt(0)")
        anysent(HD,RP*2,T+2)
        a(f"s_cbranch_scc1 L_hd{br}")
        spin_tail(f"L_hp{br}",slp)
        a.label(f"L_hd{br}")
        a(f"s_mov_b32 s65, {SPIN}")
        a.label(f"L_dp{br}")
        for k in range(RP):
            for h in range(2):
                r=DT+k*8+h*4
                a(f"buffer_load_dwordx4 v[{r}:{r+3}], v{T+1}, s[36:39], s52 offen offset:{k*128+16*h} sc1")
        a("s_waitcnt vmcnt(0)")
        anysent(DT,RP*8,T+2)
        a(f"s_cbranch_scc1 L_dd{br}")
        spin_tail(f"L_dp{br}",0)
        a.label(f"L_dd{br}")
        st(5)
        ROWRED=("row_ror:8","row_ror:4","row_ror:2","row_ror:1")
        a(f"v_max_f32 v{T+2}, v{HD}, v{HD+2}")
        for k in range(2,RP): a(f"v_max_f32 v{T+2}, v{T+2}, v{HD+2*k}")
        for m in ROWRED: a(f"v_max_f32_dpp v{T+2}, v{T+2}, v{T+2} {m} {DPPF}")
        for k in range(RP): a(f"v_sub_f32 v{HD+2*k}, v{HD+2*k}, v{T+2}")
        for k in range(RP): a(f"v_exp_f32 v{HD+2*k}, v{HD+2*k}")
        a(f"v_mul_f32 v{T+4}, v{HD}, v{HD+1}")
        for e in range(8): a(f"v_mul_f32 v{DT+e}, v{HD}, v{DT+e}")
        for k in range(1,RP):
            a(f"v_fmac_f32 v{T+4}, v{HD+2*k}, v{HD+2*k+1}")
            for e in range(8): a(f"v_fmac_f32 v{DT+e}, v{HD+2*k}, v{DT+k*8+e}")
        for m in ROWRED:
            a(f"v_add_f32_dpp v{T+4}, v{T+4}, v{T+4} {m} {DPPF}")
            for e in range(8): a(f"v_add_f32_dpp v{DT+e}, v{DT+e}, v{DT+e} {m} {DPPF}")
        a(f"v_rcp_f32 v{T+4}, v{T+4}")
        for e in range(8): a(f"v_mul_f32 v{DT+e}, v{DT+e}, v{T+4}")
        for e in range(4): a(f"v_cvt_pk_bf16_f32 v{DT+8+e}, v{DT+2*e}, v{DT+2*e+1}")
        for i in range(8):
            ar=HA+(i%2)*4
            for v in range(4):
                a(f"v_perm_b32 v{ar+v}, v{DT+8+i//2}, v{DT+8+i//2}, v{SEL[i%2][v]}")
            for blk in range(4):
                r=WR+(i*4+blk)*4; c=HC+blk*4
                a(f"v_mfma_f32_16x16x32_bf16 v[{c}:{c+3}], v[{ar}:{ar+3}], v[{r}:{r+3}], {'0' if i==0 else 'v[%d:%d]'%(c,c+3)}")
        for k in range(16): a(f"v_min_u32 v{HC+k}, -2, v{HC+k}")
        a("s_mov_b32 exec_hi, 0")
        for blk in range(4):
            a(f"buffer_store_dwordx4 v[{HC+blk*4}:{HC+blk*4+3}], v{T+3}, s[36:39], s54 offen offset:{blk*512} sc1")
        a("s_mov_b64 exec, -1")
        st(6)
        a("s_cmp_ge_u32 s31, 28")
        a(f"s_cbranch_scc1 L_he{br}")
        a(f"v_lshrrev_b32 v{T}, 2, v0"); a(f"v_lshlrev_b32 v{T}, 11, v{T}")
        a(f"v_and_b32 v{T+1}, 3, v0"); a(f"v_lshl_add_u32 v{T}, v{T+1}, 4, v{T}")
        a("s_lshl_b32 s62, s31, 6"); a(f"s_add_u32 s62, s62, {YO+bri*0x40000}")
        a(f"s_mov_b32 s65, {SPIN}")
        if br=='A': a("s_sleep 127"); a("s_sleep 127")
        a.label(f"L_yp{br}")
        a("s_mov_b32 s63, s62")
        for k in range(8):
            a(f"buffer_load_dwordx4 v[{DT+4*k}:{DT+4*k+3}], v{T}, s[36:39], s63 offen sc1")
            if k<7: a("s_add_u32 s63, s63, 0x8000")
        a("s_waitcnt vmcnt(0)")
        anysent(DT,32,T+2)
        a(f"s_cbranch_scc1 L_yd{br}")
        spin_tail(f"L_yp{br}",127 if br=='A' else 1)
        a.label(f"L_yd{br}")
        for half in (16,8,4):
            for e in range(half): a(f"v_add_f32 v{DT+e}, v{DT+e}, v{DT+half+e}")
        for m in ("row_ror:8","row_ror:4"):
            for e in range(4): a(f"v_add_f32_dpp v{DT+e}, v{DT+e}, v{DT+e} {m} {DPPF}")
        for sw in ("v_permlane16_swap_b32","v_permlane32_swap_b32"):
            for e in range(4): a(f"v_mov_b32 v{DT+4+e}, v{DT+e}")
            for e in range(4): a(f"{sw} v{DT+e}, v{DT+4+e}")
            for e in range(4): a(f"v_add_f32 v{DT+e}, v{DT+e}, v{DT+4+e}")
        a(f"v_cvt_pk_bf16_f32 v{DT+4}, v{DT}, v{DT+1}")
        a(f"v_cvt_pk_bf16_f32 v{DT+5}, v{DT+2}, v{DT+3}")
        a(f"""
        s_mov_b32 s40, s24
        s_mov_b32 s41, s25
        s_mov_b32 s42, 1792
        s_lshl_b32 s62, s31, 5
        s_add_u32 s62, s62, {bri*896}
        v_lshlrev_b32 v{T}, 3, v0
        s_mov_b64 exec, 15
        buffer_store_dwordx2 v[{DT+4}:{DT+5}], v{T}, s[40:43], s62 offen
        s_mov_b64 exec, -1
        """)
        a.label(f"L_he{br}")
        write_stamps(True)
        a("s_endpgm")
    helper('A')
    a.label("L_helper_B")
    helper('B')
    a.label("L_done")
    a("s_endpgm")
    a.raw(".globl prep_kernel"); a.raw(".p2align 8"); a.raw(".type prep_kernel,@function"); a.raw("prep_kernel:")
    prologue('LP_done')
    a(f"""
    s_lshr_b32 s31, s2, 4
    s_lshl_b32 s31, s31, 3
    s_and_b32 s60, s2, 7
    s_or_b32 s31, s31, s60           ; i = 0..127
    s_bfe_u32 s55, s2, 0x10003       ; branch
    s_cmp_eq_u32 s30, 0
    s_cbranch_scc0 LP_clear
    s_mov_b32 s42, 896
    s_mov_b32 s43, 0x20000
    s_mov_b32 s47, 0x20000
    s_and_b32 s60, s31, 31           ; cb
    s_lshr_b32 s61, s31, 5           ; ks
    s_mov_b32 s46, {448*8192}
    v_mul_u32_u24 v{T}, 56, v3
    s_mul_i32 s62, s61, 224
    s_mov_b32 s63, {28*8192}
    v_mul_lo_u32 v{T+1}, s63, v3
    v_lshl_add_u32 v{T+1}, v2, 4, v{T+1}
    s_mul_i32 s63, s61, {112*8192}
    s_lshl_b32 s64, s60, 8
    s_add_u32 s63, s63, s64
    s_waitcnt lgkmcnt(0)
    s_cmp_eq_u32 s55, 0
    s_cselect_b32 s40, s4, s14
    s_cselect_b32 s41, s5, s15
    s_cselect_b32 s44, s10, s20
    s_cselect_b32 s45, s11, s21
    """)
    for i in range(28):
        a(f"buffer_load_dwordx4 v[{WR+4*i}:{WR+4*i+3}], v{T+1}, s[44:47], s63 offen {wflags}")
        if i<27: a("s_add_u32 s63, s63, 8192")
        if i==0:
            for k in range(7):
                a(f"buffer_load_dwordx2 v[{XR+2*k}:{XR+2*k+1}], v{T}, s[40:43], s62 offen offset:{8*k}")
    selectors()
    a(f"""
    s_mov_b32 s36, s28
    s_mov_b32 s37, s29
    v_and_b32 v{T+3}, 1, v3
    v_lshlrev_b32 v{T+3}, 4, v{T+3}
    v_lshl_add_u32 v{T+3}, v2, 5, v{T+3}
    """)
    a("s_lshl_b32 s63, s61, 14"); a("s_lshl_b32 s64, s60, 9"); a("s_add_u32 s63, s63, s64")
    a("s_lshl_b32 s64, s55, 16"); a("s_add_u32 s63, s63, s64"); a(f"s_add_u32 s63, s63, {QP}")
    for i in range(28):
        a(f"s_waitcnt vmcnt({27-i})")
        ar=HA+(i%2)*4
        for v in range(4):
            a(f"v_perm_b32 v{ar+v}, v{XR+i//2}, v{XR+i//2}, v{SEL[i%2][v]}")
        a(f"v_mfma_f32_16x16x32_bf16 v[{HC}:{HC+3}], v[{ar}:{ar+3}], v[{WR+4*i}:{WR+4*i+3}], {'0' if i==0 else 'v[%d:%d]'%(HC,HC+3)}")
    a("s_mov_b32 exec_hi, 0")
    a(f"buffer_store_dwordx4 v[{HC}:{HC+3}], v{T+3}, s[36:39], s63 offen sc1")
    a("s_endpgm")
    a.label("LP_clear")
    a(f"v_lshlrev_b32 v{T+2}, 4, v0")
    for k in range(4): a(f"v_mov_b32 v{T+4+k}, -1")
    a("s_lshl_b32 s52, s31, 14"); a("s_lshl_b32 s60, s55, 21"); a("s_add_u32 s52, s52, s60"); a(f"s_add_u32 s52, s52, {IN1D}")
    a("s_lshl_b32 s53, s31, 10"); a("s_lshl_b32 s60, s55, 17"); a("s_add_u32 s53, s53, s60"); a(f"s_add_u32 s53, s53, {IN1H}")
    a("s_lshl_b32 s54, s31, 11"); a("s_lshl_b32 s60, s55, 18"); a("s_add_u32 s54, s54, s60"); a(f"s_add_u32 s54, s54, {YO}")
    a("s_lshl_b32 s63, s31, 8"); a(f"s_add_u32 s63, s63, {TK}")
    a(f"v_mov_b32 v{T}, 0")
    a("s_waitcnt lgkmcnt(0)")
    a("s_mov_b32 s36, s28"); a("s_mov_b32 s37, s29")
    a(f"buffer_store_dwordx4 v[{T+4}:{T+7}], v{T+2}, s[36:39], s53 offen sc1")
    a(f"buffer_store_dwordx4 v[{T+4}:{T+7}], v{T+2}, s[36:39], s54 offen sc1")
    a(f"buffer_store_dwordx4 v[{T+4}:{T+7}], v{T+2}, s[36:39], s54 offen offset:1024 sc1")
    for k in range(4*W):
        if k==2*W:
            a("s_cmp_eq_u32 s55, 1"); a("s_cbranch_scc1 LP_c2")
        a(f"buffer_store_dwordx4 v[{T+4}:{T+7}], v{T+2}, s[36:39], s52 offen offset:{(k%4)*1024} sc1")
        if k%4==3: a("s_add_u32 s52, s52, 4096")
    a.label("LP_c2")
    a("s_mov_b64 exec, 1")
    a(f"buffer_store_dword v{T}, off, s[36:39], s63 sc1")
    a.label("LP_done")
    a("s_endpgm")
    a.raw('.section .rodata,"a"')
    for nm,nv in ((NAME,256),("prep_kernel",176)):
        a.raw(".p2align 6"); a.raw(f".amdhsa_kernel {nm}")
        a.raw(f"  .amdhsa_next_free_vgpr {nv}"); a.raw("  .amdhsa_next_free_sgpr 96"); a.raw(f"  .amdhsa_accum_offset {nv}")
        a.raw("  .amdhsa_float_denorm_mode_32 3")
        a.raw("  .amdhsa_group_segment_fixed_size 0"); a.raw("  .amdhsa_kernarg_size 104"); a.raw("  .amdhsa_user_sgpr_count 2")
        a.raw("  .amdhsa_user_sgpr_kernarg_segment_ptr 1"); a.raw("  .amdhsa_system_sgpr_workgroup_id_x 1"); a.raw(".end_amdhsa_kernel")
    return a.text()

def make(cfgs, listfile="list.txt"):
    import build
    lines=[]
    for c in cfgs:
        lab="_".join(f"{k}{str(v).replace(' ','')}" for k,v in c.items()) or "base"
        fn="k_"+lab+".s"
        open(fn,"w").write(gen(**c))
        co=build.build(fn)
        W=c.get('W',2)
        lines.append(f"{lab} {co} {256*W if c.get('stamp') else 0} prep_kernel:256:128:0 {NAME}:256:{(W+1)*64}:{c.get('lds',90112)}")
    open(listfile,"w").write("\n".join(lines)+"\n")
if __name__=="__main__":
    import json
    cfg=json.loads(sys.argv[2]) if len(sys.argv)>2 else {}
    open(sys.argv[1],"w").write(gen(**cfg))
```

```python
import struct, math, sys
from asmlib import Asm
NAME="concat_heads__gqa_block_cached__mha_block_cached__decode_kernel"
HDR=open('concat_heads__gqa_block_cached__mha_block_cached__decode.s.ref').read().split('; Override')[0]
def f2u(x): return struct.unpack('<I',struct.pack('<f',x))[0]
QP=0x10000; TK=0x50000; RDY=0x58000; IN1D=0x80000; IN1H=0x480000; YO=0x4C0000; WS_USED=0x540000
LQA=0; LQB=1024; LCNT=1536; LGO=1540; LSC=2048
DPPF="row_mask:0xf bank_mask:0xf"
INV=0x7f000000

def gen(stamp=False, sflags='nt', wflags='nt', lds=90112, W=2, dl=(10,10,10,10,10), NS=8, PK=128, bar0=True, spin=1<<16,
        nodots=False, nopv=False, nowo=False, report=None, tq=6, npos=14, gsleep=0):
    SPIN=spin
    LW=W.bit_length()-1
    a=Asm()
    a.raw(HDR.rstrip())
    if report is None: a.raw(f"; @launch grid=(256,1,1) block=({(W+1)*64},1,1) lds={lds}")
    else: a.raw(f"; @launch kernel={NAME} grid=(256,1,1) block=({(W+1)*64},1,1) lds={lds}")
    if report is not None: a.raw("; @launch kernel=report_kernel grid=(1,1,1) block=(64,1,1) lds=1024")
    a.raw('.amdgcn_target "amdgcn-amd-amdhsa--gfx950"')
    a.raw(".text"); a.raw(f".globl {NAME}"); a.raw(".p2align 8"); a.raw(f".type {NAME},@function"); a.raw(f"{NAME}:")
    def st(k):
        if stamp:
            a("s_memrealtime s[68:69]"); a("s_waitcnt lgkmcnt(0)"); a(f"s_mov_b32 s{72+k}, s68")
    def prologue(done):
        a(f"""
        s_cmp_ge_u32 s2, 256
        s_cbranch_scc1 {done}
        s_load_dwordx16 s[4:19], s[0:1], 0
        s_load_dwordx8 s[20:27], s[0:1], 64
        s_load_dwordx2 s[28:29], s[0:1], 96
        v_lshrrev_b32 v1, 6, v0
        v_and_b32 v0, 63, v0
        v_readfirstlane_b32 s30, v1
        v_and_b32 v2, 15, v0        ; n
        v_lshrrev_b32 v3, 4, v0     ; g
        s_mov_b32 s38, {WS_USED}
        s_mov_b32 s39, 0x20000
        """)
    def selectors():
        a("""
        v_and_b32 v4, 1, v0
        v_cmp_eq_u32 vcc, 1, v4
        v_mov_b32 v5, 0x0c0c0100
        v_mov_b32 v6, 0x01000c0c
        v_cndmask_b32 v5, v5, v6, vcc
        v_mov_b32 v6, 0x0c0c0302
        v_mov_b32 v7, 0x03020c0c
        v_cndmask_b32 v6, v6, v7, vcc
        v_bfe_u32 v4, v0, 1, 2
        v_mov_b32 v7, 0x0c0c0c0c
        """)
        for v in range(4):
            a(f"v_cmp_eq_u32 vcc, {v}, v4")
            a(f"v_cndmask_b32 v{8+v}, v7, v5, vcc")
            a(f"v_cndmask_b32 v{12+v}, v7, v6, vcc")
    SEL=[[8,9,10,11],[12,13,14,15]]
    prologue('L_done')
    a("s_cmp_eq_u32 s30, 0"); a("s_cbranch_scc1 L_helper")
    def after_kernarg():
        a("s_waitcnt lgkmcnt(0)")
        if stamp:
            for k in range(8): a(f"s_mov_b32 s{72+k}, 0")
        st(0)
        a("s_mov_b32 s36, s28"); a("s_mov_b32 s37, s29")
    def write_stamps(helper):
        if not stamp: return
        st(7)
        a("s_getreg_b32 s66, hwreg(HW_REG_XCC_ID)")
        a("s_mov_b64 exec, 1")
        a("v_mov_b32 v4, 0")
        if not helper:
            a("v_mov_b32 v20, s72"); a("v_mov_b32 v21, s79"); a("v_mov_b32 v22, s66"); a("v_mov_b32 v23, 0")
            a(f"s_lshl_b32 s64, s2, {LW}"); a("s_add_u32 s64, s64, s31"); a("s_lshl_b32 s64, s64, 4")
            a("buffer_store_dwordx4 v[20:23], v4, s[36:39], s64 offen")
        for k in range(8): a(f"v_mov_b32 v{24+k}, s{72+k}")
        a(f"s_mul_i32 s64, s2, {W+1}"); a("s_add_u32 s64, s64, s30"); a("s_lshl_b32 s64, s64, 5"); a("s_add_u32 s64, s64, 0x4000")
        a("buffer_store_dwordx4 v[24:27], v4, s[36:39], s64 offen")
        a("buffer_store_dwordx4 v[28:31], v4, s[36:39], s64 offen offset:16")
    def spin_tail(lbl,sleep):
        if sleep: a(f"s_sleep {sleep}")
        a("s_sub_u32 s65, s65, 1"); a("s_cmp_lg_u32 s65, 0")
        a(f"s_cbranch_scc1 {lbl}")
    VOFF=1; VSC=4; VM=5; VL=6; VMC=7
    Q=16; ACC=32; AR=40; D=48; T=52; PKR=60; VOFF2=62; VTK=63
    RING=64; SIDE=128
    STEP=4096*W
    NA=(1<<19)//STEP; NB=((1<<20)-PK*1024)//STEP
    NT=16*PK//8
    TQ=min(tq,16-dl[4])
    a(f"""
    s_sub_u32 s31, s30, 1            ; sw
    v_lshlrev_b32 v{VOFF}, 9, v3
    v_lshl_add_u32 v{VOFF}, v2, 4, v{VOFF}
    s_mov_b32 s34, 0x100000
    s_mov_b32 s35, 0x20000
    s_lshl_b32 s61, s31, 12
    s_lshl_b32 s60, s2, 19
    """)
    after_kernarg()
    a("s_add_u32 s32, s6, s60"); a("s_addc_u32 s33, s7, 0")
    if bar0: a("s_barrier")
    OFFS=[0,256,2048,2304]
    PH=[('A','K',NA),('A','V',NA),('B','K',NB),('B','V',NB)]
    ends=[NA,2*NA,2*NA+NB,2*NA+2*NB]
    def ld(base,i,srd,soff,voff=VOFF):
        r=base+i*4
        a(f"buffer_load_dwordx4 v[{r}:{r+3}], v{voff}, {srd}, {soff} offen offset:{OFFS[i]} {sflags}")
    def issue_static(h,p):
        h%=16
        ld(RING+(h//4)*16,h%4,"s[32:35]","s52")
        if h%4==3:
            a(f"s_add_u32 s52, s52, {STEP}")
            a("s_add_u32 s53, s53, 1")
            if p is not None:
                a(f"s_cmp_eq_u32 s53, {ends[p]}")
                if p<3:
                    b=54+2*p
                    a(f"s_cselect_b32 s32, s{b}, s32"); a(f"s_cselect_b32 s33, s{b+1}, s33"); a("s_cselect_b32 s52, s61, s52")
                else:
                    a("s_cselect_b32 s34, 0, s34")
    def ticket_req():
        a("s_mov_b64 exec, 1")
        a(f"v_mov_b32 v{VTK}, 1")
        a(f"buffer_atomic_add v{VTK}, off, s[36:39], s91 sc0 sc1")
        a("s_mov_b64 exec, -1")
    def ticket_use():
        a(f"v_readfirstlane_b32 s90, v{VTK}")
        a("s_and_b32 s88, s90, 15"); a("s_lshl_b32 s88, s88, 20")
        a("s_lshr_b32 s89, s90, 4"); a("s_lshl_b32 s89, s89, 13")
        a("s_add_u32 s88, s88, s89"); a(f"s_add_u32 s88, s88, {NB*STEP}")
        a(f"s_cmp_lt_u32 s90, {NT}")
        a(f"s_cselect_b32 s88, s88, {INV}")
    def issue_pool(h):
        h%=16
        if h==0: ticket_use()
        if h==TQ: ticket_req()
        k=h//4
        ld(RING+k*16,h%4,"s[80:83]" if k<2 else "s[84:87]","s88",VOFF if k%2==0 else VOFF2)
    def initial_prefetch():
        n=0
        a("s_mov_b32 s52, s61")
        for k in range(NS):
            for i in range(4):
                if n>=dl[0]: a(f"s_waitcnt vmcnt({dl[0]-1})")
                ld(SIDE+k*16,i,"s[32:35]","s52"); n+=1
                if n==dl[0]: setup2()
            a(f"s_add_u32 s52, s52, {STEP}")
        a(f"s_mov_b32 s53, {NS}")
        for h in range(dl[0]):
            if n>=dl[0]: a(f"s_waitcnt vmcnt({dl[0]-1})")
            issue_static(h,None); n+=1
            if n==dl[0]: setup2()
    def setup2():
        selectors()
        a(f"""
        s_add_u32 s54, s8, s60
        s_addc_u32 s55, s9, 0
        s_lshl_b32 s60, s2, 20
        s_add_u32 s56, s16, s60
        s_addc_u32 s57, s17, 0
        s_add_u32 s58, s18, s60
        s_addc_u32 s59, s19, 0
        s_and_b32 s60, s60, 0xff000000
        s_add_u32 s80, s16, s60
        s_addc_u32 s81, s17, 0
        s_mov_b32 s82, 0x1000000
        s_mov_b32 s83, 0x20000
        s_add_u32 s84, s18, s60
        s_addc_u32 s85, s19, 0
        s_mov_b32 s86, 0x1000000
        s_mov_b32 s87, 0x20000
        s_lshr_b32 s91, s2, 4
        s_lshl_b32 s91, s91, 8
        s_add_u32 s91, s91, {TK}
        s_mov_b32 s62, {f2u(math.log2(math.e)/16.0)}
        s_mul_i32 s63, s31, {65536//W}
        s_add_u32 s63, s63, {LSC}
        v_add_u32 v{VOFF2}, 0x1000, v{VOFF}
        """)
    initial_prefetch()
    st(6)
    a("s_barrier")
    st(1)
    def dots1(base,i,nh,dbase):
        s_=i//2
        for e4 in range(1 if nodots else 4):
            e=(i%2)*4+e4
            for h in range(nh):
                d=dbase+s_*nh+h
                a(f"v_dot2_f32_bf16 v{d}, v{base+i*4+e4}, v{Q+h*8+e}, {'0' if e==0 else 'v%d'%d}")
    def reduce(nh,dbase,tb,ns=2):
        for s_ in range(ns):
            if nh==2:
                a(f"v_add_f32_dpp v{tb+s_}, v{dbase+s_*2}, v{dbase+s_*2} row_ror:8 row_mask:0xf bank_mask:0x3")
                a(f"v_add_f32_dpp v{tb+s_}, v{dbase+s_*2+1}, v{dbase+s_*2+1} row_ror:8 row_mask:0xf bank_mask:0xc")
            else:
                a(f"v_add_f32_dpp v{tb+s_}, v{dbase+s_}, v{dbase+s_} row_ror:8 {DPPF}")
        for m in ("row_half_mirror","quad_perm:[1,0,3,2]","quad_perm:[2,3,0,1]"):
            for s_ in range(ns):
                a(f"v_add_f32_dpp v{tb+s_}, v{tb+s_}, v{tb+s_} {m} {DPPF}")
    class Cur: pass
    cur=Cur(); cur.d=dl[0]; cur.skip=0
    def arrive(c,iss,extra=0):
        if cur.skip:
            a(f"s_waitcnt vmcnt({cur.d+cur.skip-1+extra})"); cur.skip-=1
        else:
            a(f"s_waitcnt vmcnt({cur.d-1+extra})")
            iss(c+cur.d)
    def retarget(nd,iss):
        assert cur.skip==0
        if nd>cur.d:
            for h in range(cur.d,nd): iss(h)
        else: cur.skip=cur.d-nd
        cur.d=nd
    def kfinish(nh,j):
        reduce(nh,D,T)
        a(f"v_max3_f32 v{VM}, v{VM}, v{T}, v{T+1}")
        a(f"v_cvt_pk_bf16_f32 v{T+2}, v{T}, v{T+1}")
        a(f"ds_write_b32 v{VSC}, v{T+2} offset:{j*256}")
    def kunit(j,jl,nh,iss,extra=lambda c:0):
        for i in range(4):
            arrive(4*j+i,iss,extra(4*j+i)); dots1(RING+j*16,i,nh,D)
        kfinish(nh,jl)
    def pcalc(t0,ar):
        a(f"v_fma_f32 v{t0}, v{t0}, s62, -v{VMC}")
        a(f"v_fma_f32 v{t0+1}, v{t0+1}, s62, -v{VMC}")
        a(f"v_exp_f32 v{t0}, v{t0}")
        a(f"v_exp_f32 v{t0+1}, v{t0+1}")
        a(f"v_add_f32 v{VL}, v{VL}, v{t0}")
        a(f"v_add_f32 v{VL}, v{VL}, v{t0+1}")
        a(f"v_cvt_pk_bf16_f32 v{t0}, v{t0}, v{t0+1}")
        for s_ in range(2):
            for v in range(4):
                a(f"v_perm_b32 v{ar+s_*4+v}, v{t0}, v{t0}, v{SEL[s_][v]}")
    def pvunit(j,iss,extra=lambda c:0):
        for i in range(4):
            arrive(4*j+i,iss,extra(4*j+i))
            r=RING+j*16+i*4; c=ACC+(i%2)*4; ar=AR+(i//2)*4
            if not nopv: a(f"v_mfma_f32_16x16x32_bf16 v[{c}:{c+3}], v[{ar}:{ar+3}], v[{r}:{r+3}], v[{c}:{c+3}]")
    def vunit(j,jl,iss):
        par=j%2
        pk=PKR+par
        a("s_waitcnt lgkmcnt(0)")
        a(f"v_lshlrev_b32 v{T}, 16, v{pk}")
        a(f"v_and_b32 v{T+1}, 0xffff0000, v{pk}")
        a(f"ds_read_b32 v{PKR+1-par}, v{VSC} offset:{(jl+1)*256}")
        pcalc(T,AR)
        pvunit(j,iss)
    def xrow(reg,op):
        a(f"v_mov_b32 v{T+7}, v{reg}")
        a(f"v_permlane16_swap_b32 v{reg}, v{T+7}")
        a(f"{op} v{reg}, v{reg}, v{T+7}")
        a(f"v_mov_b32 v{T+7}, v{reg}")
        a(f"v_permlane32_swap_b32 v{reg}, v{T+7}")
        a(f"{op} v{reg}, v{reg}, v{T+7}")
    def lds_inc():
        a("s_mov_b64 exec, 1")
        a(f"v_mov_b32 v{T+4}, {LCNT}"); a(f"v_mov_b32 v{T+5}, 1")
        a(f"ds_add_u32 v{T+4}, v{T+5}")
        a("s_mov_b64 exec, -1")
    def publish(br):
        xrow(VL,"v_add_f32")
        sh=5 if br=='A' else 4
        bri=0 if br=='A' else 1
        a(f"s_lshr_b32 s64, s2, {sh}")
        a(f"s_and_b32 s65, s2, {(1<<sh)-1}")
        a(f"s_lshl_b32 s65, s65, {LW}"); a("s_add_u32 s65, s65, s31")
        a(f"s_lshl_b32 s64, s64, {4 if br=='A' else 3}")
        a("s_lshl_b32 s66, s64, 14"); a("s_lshl_b32 s67, s65, 7"); a("s_add_u32 s66, s66, s67")
        a(f"s_add_u32 s66, s66, {IN1D+bri*0x200000}")
        a("s_add_u32 s67, s66, 0x10000")
        a(f"v_lshrrev_b32 v{T}, 5, v0"); a(f"v_lshlrev_b32 v{T}, 17, v{T}")
        a(f"v_lshrrev_b32 v{T+1}, 2, v2"); a(f"v_lshl_add_u32 v{T}, v{T+1}, 14, v{T}")
        a(f"v_and_b32 v{T+1}, 3, v2"); a(f"v_lshl_add_u32 v{T}, v{T+1}, 5, v{T}")
        a(f"v_and_b32 v{T+1}, 1, v3"); a(f"v_lshl_add_u32 v{T}, v{T+1}, 4, v{T}")
        for i in range(8): a(f"v_min_u32 v{ACC+i}, -2, v{ACC+i}")
        a(f"v_min_u32 v{T+2}, -2, v{VMC}"); a(f"v_min_u32 v{T+3}, -2, v{VL}")
        a(f"v_lshlrev_b32 v{T+1}, 10, v0")
        if br=='B': a("s_mov_b32 exec_hi, 0")
        a(f"buffer_store_dwordx4 v[{ACC}:{ACC+3}], v{T}, s[36:39], s66 offen sc1")
        a(f"buffer_store_dwordx4 v[{ACC+4}:{ACC+7}], v{T}, s[36:39], s67 offen sc1")
        a("s_lshl_b32 s66, s64, 10"); a("s_lshl_b32 s67, s65, 3"); a("s_add_u32 s66, s66, s67")
        a(f"s_add_u32 s66, s66, {IN1H+bri*0x20000}")
        a(f"s_mov_b64 exec, {0xffff if br=='A' else 0xff}")
        a(f"buffer_store_dwordx2 v[{T+2}:{T+3}], v{T+1}, s[36:39], s66 offen sc1")
        lds_inc()
    for p,(br,kv,n) in enumerate(PH):
        nh=2 if br=='A' else 1
        iss=lambda h,p=p: issue_static(h,p)
        a(f"v_lshlrev_b32 v{VSC}, 2, v0")
        a(f"v_add_u32 v{VSC}, s63, v{VSC}")
        done=0; tail=0
        if kv=='K':
            lq=LQA if br=='A' else LQB
            a(f"v_lshlrev_b32 v{T}, 4, v2")
            for h in range(nh):
                a(f"ds_read_b128 v[{Q+h*8}:{Q+h*8+3}], v{T} offset:{lq+h*512}")
                a(f"ds_read_b128 v[{Q+h*8+4}:{Q+h*8+7}], v{T} offset:{lq+h*512+256}")
            a(f"v_mov_b32 v{VM}, 0xff800000")
            a("s_waitcnt lgkmcnt(0)")
            if p==0 and NS:
                for k in range(NS):
                    kunit(k%4,NS+k,nh,iss)
                    for i in range(4): dots1(SIDE+k*16,i,nh,D)
                    kfinish(nh,k)
                done=2*NS
                a(f"v_add_u32 v{VSC}, {done*256}, v{VSC}")
        else:
            a(f"ds_read_b32 v{PKR}, v{VSC}")
            xrow(VM,"v_max_f32")
            a(f"v_cvt_pk_bf16_f32 v{VM}, v{VM}, v{VM}")
            a(f"v_and_b32 v{VM}, 0xffff0000, v{VM}")
            a(f"v_mul_f32 v{VMC}, s62, v{VM}")
            a(f"v_mov_b32 v{VL}, 0")
            for i in range(8): a(f"v_mov_b32 v{ACC+i}, 0")
            if p==3 and PK: tail=8
        def group(jl0,iss):
            for j in range(4):
                if kv=='K': kunit(j,jl0+j,nh,iss)
                else: vunit(j,jl0+j,iss)
        if dl[p]!=cur.d:
            retarget(dl[p],iss)
            if cur.skip:
                group(0,iss); done+=4
                a(f"v_add_u32 v{VSC}, 1024, v{VSC}")
        assert (n-done-tail)%4==0
        a(f"s_mov_b32 s60, {(n-done-tail)//4}")
        a.label(f"L_ph{p}")
        group(0,iss)
        a(f"v_add_u32 v{VSC}, 1024, v{VSC}")
        a("s_sub_u32 s60, s60, 1")
        a("s_cmp_lg_u32 s60, 0")
        a(f"s_cbranch_scc1 L_ph{p}")
        if tail:
            ticket_req()
            if dl[4]!=cur.d: retarget(dl[4],iss)
            group(0,iss)
            group(4,lambda h: issue_static(h,None) if h<16 else issue_pool(h))
            st(5)
            a(f"s_cmp_eq_u32 s88, {INV}")
            a("s_cbranch_scc1 L_pool_end")
            a.label("L_pool")
            apos=(16-cur.d+TQ)%16
            ex=lambda c: 1 if 1<=((c-apos)%16)<=cur.d-1 else 0
            for j in range(2):
                for i in range(4):
                    arrive(4*j+i,issue_pool,ex(4*j+i)); dots1(RING+j*16,i,1,D+2*j)
            reduce(1,D,T,4)
            a(f"v_cvt_pk_bf16_f32 v{T+4}, v{T}, v{T+1}")
            a(f"v_cvt_pk_bf16_f32 v{T+5}, v{T+2}, v{T+3}")
            a(f"v_lshlrev_b32 v{T}, 16, v{T+4}"); a(f"v_and_b32 v{T+1}, 0xffff0000, v{T+4}")
            a(f"v_lshlrev_b32 v{T+2}, 16, v{T+5}"); a(f"v_and_b32 v{T+3}, 0xffff0000, v{T+5}")
            a(f"v_max3_f32 v{T+4}, v{T}, v{T+1}, v{T+2}")
            a(f"v_max_f32 v{T+4}, v{T+4}, v{T+3}")
            a(f"v_cmp_gt_f32 vcc, v{T+4}, v{VM}")
            a("s_cmp_eq_u64 vcc, 0")
            a("s_cbranch_scc1 L_norescale")
            a(f"v_max_f32 v{VM}, v{VM}, v{T+4}")
            xrow(VM,"v_max_f32")
            a(f"v_mul_f32 v{T+4}, s62, v{VM}")
            a(f"v_sub_f32 v{T+5}, v{VMC}, v{T+4}")
            a(f"v_exp_f32 v{T+5}, v{T+5}")
            a(f"v_mov_b32 v{VMC}, v{T+4}")
            a(f"v_mul_f32 v{VL}, v{VL}, v{T+5}")
            for i in range(8): a(f"v_mul_f32 v{ACC+i}, v{ACC+i}, v{T+5}")
            a.label("L_norescale")
            pcalc(T,AR)
            pvunit(2,issue_pool,ex)
            pcalc(T+2,AR)
            pvunit(3,issue_pool,ex)
            a(f"s_cmp_lg_u32 s88, {INV}")
            a("s_cbranch_scc1 L_pool")
            a.label("L_pool_end")
        if p==1:
            a(f"v_mov_b32 v{T}, {LGO}")
            a(f"s_mov_b32 s65, {SPIN}")
            a.label("L_go")
            a(f"ds_read_b32 v{T+1}, v{T}")
            a("s_waitcnt lgkmcnt(0)")
            a(f"v_readfirstlane_b32 s64, v{T+1}")
            a("s_cmp_lg_u32 s64, 0")
            a("s_cbranch_scc1 L_god")
            spin_tail("L_go",2)
            a.label("L_god")
        if kv=='V': publish(br)
        if p==2: lds_inc()
        if p<3: st(2+p)
        elif not tail: st(5)
    write_stamps(False)
    a("s_endpgm")
    WR=64; XR=16; HA=32; HC=40; T=56; DT=192; HD=16
    a.label("L_helper")
    a(f"""
    s_setprio 3
    s_memrealtime s[92:93]
    s_lshr_b32 s31, s2, 4
    s_lshl_b32 s31, s31, 3
    s_and_b32 s60, s2, 7
    s_or_b32 s31, s31, s60           ; i = 0..127
    s_bfe_u32 s55, s2, 0x10003       ; branch
    s_mov_b32 s42, 896
    s_mov_b32 s43, 0x20000
    s_mov_b32 s47, 0x20000
    s_mov_b32 s50, 256
    s_mov_b32 s51, 0x20000
    s_and_b32 s60, s31, 31           ; cb
    s_lshr_b32 s61, s31, 5           ; ks
    s_mov_b32 s46, {448*8192}
    v_mul_u32_u24 v{T}, 56, v3
    s_mul_i32 s62, s61, 224
    s_mov_b32 s63, {28*8192}
    v_mul_lo_u32 v{T+1}, s63, v3
    v_lshl_add_u32 v{T+1}, v2, 4, v{T+1}
    s_mul_i32 s63, s61, {112*8192}
    s_lshl_b32 s64, s60, 8
    s_add_u32 s63, s63, s64
    """)
    after_kernarg()
    a(f"""
    s_mov_b32 s48, s26
    s_mov_b32 s49, s27
    s_cmp_lg_u32 s2, 0
    s_cbranch_scc1 L_nononce
    s_or_b32 s92, s92, 1
    v_mov_b32 v{T+4}, s92
    v_mov_b32 v{T+5}, s93
    s_mov_b64 exec, 1
    buffer_store_dwordx2 v[{T+4}:{T+5}], off, s[48:51], 0 sc1
    s_mov_b64 exec, -1
    """)
    a.label("L_nononce")
    a("""
    s_cmp_eq_u32 s55, 0
    s_cselect_b32 s40, s4, s14
    s_cselect_b32 s41, s5, s15
    s_cselect_b32 s44, s10, s20
    s_cselect_b32 s45, s11, s21
    """)
    for i in range(28):
        a(f"buffer_load_dwordx4 v[{WR+4*i}:{WR+4*i+3}], v{T+1}, s[44:47], s63 offen {wflags}")
        if i<27: a("s_add_u32 s63, s63, 8192")
        if i==0:
            for k in range(7):
                a(f"buffer_load_dwordx2 v[{XR+2*k}:{XR+2*k+1}], v{T}, s[40:43], s62 offen offset:{8*k}")
    if bar0: a("s_barrier")
    selectors()
    a(f"""
    v_mov_b32 v{HC+4}, {LCNT}
    v_mov_b32 v{HC+6}, 0
    v_mov_b32 v{HC+7}, 0
    ds_write_b64 v{HC+4}, v[{HC+6}:{HC+7}]
    v_lshlrev_b32 v{T+2}, 4, v0
    v_and_b32 v{T+3}, 1, v3
    v_lshlrev_b32 v{T+3}, 4, v{T+3}
    v_lshl_add_u32 v{T+3}, v2, 5, v{T+3}     ; n*32+gb*16
    v_lshrrev_b32 v{T+6}, 5, v0
    v_lshlrev_b32 v{T+6}, 4, v{T+6}
    v_lshl_add_u32 v{T+6}, v{T+3}, 1, v{T+6} ; n*64+gb*32+hi*16
    s_lshl_b32 s63, s61, 15
    s_lshl_b32 s64, s60, 10
    s_add_u32 s63, s63, s64
    s_lshl_b32 s64, s55, 17
    s_add_u32 s63, s63, s64
    s_add_u32 s63, s63, {QP}
    """)
    for i in range(28):
        a(f"s_waitcnt vmcnt({27-i+(1 if i>=npos else 0)})")
        if i==npos-1: a(f"buffer_load_dwordx2 v[{T+4}:{T+5}], off, s[48:51], 0 sc1")
        ar=HA+(i%2)*4
        for v in range(4):
            a(f"v_perm_b32 v{ar+v}, v{XR+i//2}, v{XR+i//2}, v{SEL[i%2][v]}")
        a(f"v_mfma_f32_16x16x32_bf16 v[{HC}:{HC+3}], v[{ar}:{ar+3}], v[{WR+4*i}:{WR+4*i+3}], {'0' if i==0 else 'v[%d:%d]'%(HC,HC+3)}")
    st(1)
    a(f"s_mov_b32 s65, {SPIN}")
    a.label("L_np")
    a("s_waitcnt vmcnt(0)")
    a(f"v_readfirstlane_b32 s92, v{T+4}"); a(f"v_readfirstlane_b32 s93, v{T+5}")
    a("s_cmp_lg_u32 s92, 0")
    a("s_cbranch_scc1 L_nd")
    a(f"buffer_load_dwordx2 v[{T+4}:{T+5}], off, s[48:51], 0 sc1")
    spin_tail("L_np",0)
    a.label("L_nd")
    a("s_mov_b32 exec_lo, 0")
    a(f"v_mov_b32 v{HC}, v{HC+2}"); a(f"v_mov_b32 v{HC+1}, v{HC+3}")
    a("s_mov_b32 exec_lo, -1")
    a(f"v_mov_b32 v{HC+2}, v{T+4}"); a(f"v_mov_b32 v{HC+3}, v{T+5}")
    a(f"buffer_store_dwordx4 v[{HC}:{HC+3}], v{T+6}, s[36:39], s63 offen sc1")
    st(2)
    def gather(lbl,nk,base_expr,ldsoff,sleep):
        a(f"s_mov_b32 s65, {SPIN}")
        a.label(lbl)
        base_expr()
        for ks in range(4):
            for k in range(nk):
                r=DT+(ks*nk+k)*4
                a(f"buffer_load_dwordx4 v[{r}:{r+3}], v{T+2}, s[36:39], s64 offen offset:{k*1024} sc1")
            if ks<3: a("s_add_u32 s64, s64, 0x8000")
        a("s_mov_b64 s[66:67], 0")
        for j in range(4*nk):
            a(f"s_waitcnt vmcnt({4*nk-1-j})")
            a(f"v_cmp_ne_u64 vcc, s[92:93], v[{DT+j*4+2}:{DT+j*4+3}]")
            a("s_or_b64 s[66:67], s[66:67], vcc")
        a("s_cmp_eq_u64 s[66:67], 0")
        a(f"s_cbranch_scc1 {lbl}d")
        spin_tail(lbl,sleep)
        a.label(lbl+"d")
        def pr(j): return f"v[{DT+j*4}:{DT+j*4+1}]"
        for k in range(nk):
            a(f"v_pk_add_f32 {pr(k)}, {pr(k)}, {pr(nk+k)}")
            a(f"v_pk_add_f32 {pr(2*nk+k)}, {pr(2*nk+k)}, {pr(3*nk+k)}")
        for k in range(nk): a(f"v_pk_add_f32 {pr(k)}, {pr(k)}, {pr(2*nk+k)}")
        a(f"v_lshlrev_b32 v{T}, 2, v0")
        for k in range(nk): a(f"v_cvt_pk_bf16_f32 v{DT+k*4+2}, v{DT+k*4}, v{DT+k*4+1}")
        for k in range(nk): a(f"ds_write_b32 v{T}, v{DT+k*4+2} offset:{ldsoff+256*k}")
        a("s_waitcnt lgkmcnt(0)")
    def baseA(): a("s_lshr_b32 s64, s2, 5"); a("s_lshl_b32 s64, s64, 12"); a(f"s_add_u32 s64, s64, {QP}")
    def baseB(): a("s_lshr_b32 s64, s2, 4"); a("s_lshl_b32 s64, s64, 11"); a(f"s_add_u32 s64, s64, {QP+0x20000}")
    if gsleep: a(f"s_sleep {gsleep}")
    gather("L_ga",4,baseA,LQA,2)
    a("s_barrier")
    a("s_setprio 0")
    st(4)
    for k in range(4): a(f"v_mov_b32 v{HC+k}, -1")
    a("s_lshl_b32 s52, s31, 14"); a("s_lshl_b32 s60, s55, 21"); a("s_add_u32 s52, s52, s60"); a(f"s_add_u32 s52, s52, {IN1D}")
    a("s_lshl_b32 s53, s31, 10"); a("s_lshl_b32 s60, s55, 17"); a("s_add_u32 s53, s53, s60"); a(f"s_add_u32 s53, s53, {IN1H}")
    a("s_lshl_b32 s54, s31, 11"); a("s_lshl_b32 s60, s55, 18"); a("s_add_u32 s54, s54, s60"); a(f"s_add_u32 s54, s54, {YO}")
    a(f"buffer_store_dwordx4 v[{HC}:{HC+3}], v{T+2}, s[36:39], s53 offen sc1")
    a(f"buffer_store_dwordx4 v[{HC}:{HC+3}], v{T+2}, s[36:39], s54 offen sc1")
    a(f"buffer_store_dwordx4 v[{HC}:{HC+3}], v{T+2}, s[36:39], s54 offen offset:1024 sc1")
    a("s_mov_b32 s63, s52")
    for k in range(4*W):
        if k==2*W:
            a("s_cmp_eq_u32 s55, 1"); a("s_cbranch_scc1 L_c2")
        a(f"buffer_store_dwordx4 v[{HC}:{HC+3}], v{T+2}, s[36:39], s63 offen offset:{(k%4)*1024} sc1")
        if k%4==3: a("s_add_u32 s63, s63, 4096")
    a.label("L_c2")
    a("s_lshl_b32 s63, s31, 8"); a(f"s_add_u32 s63, s63, {TK}")
    a("s_lshl_b32 s64, s2, 3"); a(f"s_add_u32 s64, s64, {RDY}")
    a("s_mov_b64 exec, 1")
    a(f"v_mov_b32 v{T}, 0")
    a(f"buffer_store_dword v{T}, off, s[36:39], s63 sc1")
    a("s_waitcnt vmcnt(0)")
    a(f"buffer_store_dwordx2 v[{T+4}:{T+5}], off, s[36:39], s64 sc1")
    a("s_mov_b64 exec, -1")
    a(f"""
    s_cmp_eq_u32 s55, 1
    s_cselect_b32 s44, s22, s12
    s_cselect_b32 s45, s23, s13
    s_mov_b32 s46, {0 if nowo else 4096*896}
    s_mul_i32 s63, s31, {32*896}
    v_mul_u32_u24 v{T}, {8*896}, v3
    v_lshl_add_u32 v{T}, v2, 4, v{T}
    v_add_u32 v{T+1}, {4*896}, v{T}
    """)
    for i in range(8):
        for blk in range(4):
            r=WR+(i*4+blk)*4
            a(f"buffer_load_dwordx4 v[{r}:{r+3}], v{T+i//4}, s[44:47], s63 offen offset:{(i%4)*896+blk*256} {wflags}")
        a("s_waitcnt vmcnt(0)")
    a(f"s_mov_b32 s64, {RDY}")
    a(f"s_mov_b32 s65, {SPIN}")
    a.label("L_rd")
    a(f"buffer_load_dwordx4 v[{DT}:{DT+3}], v{T+2}, s[36:39], s64 offen sc1")
    a(f"buffer_load_dwordx4 v[{DT+4}:{DT+7}], v{T+2}, s[36:39], s64 offen offset:1024 sc1")
    a("s_mov_b64 s[66:67], 0")
    a("s_waitcnt vmcnt(0)")
    for j in range(4):
        a(f"v_cmp_ne_u64 vcc, s[92:93], v[{DT+j*2}:{DT+j*2+1}]")
        a("s_or_b64 s[66:67], s[66:67], vcc")
    a("s_cmp_eq_u64 s[66:67], 0")
    a("s_cbranch_scc1 L_rdd")
    spin_tail("L_rd",64)
    a.label("L_rdd")
    gather("L_gb",2,baseB,LQB,64)
    a(f"v_mov_b32 v{T}, {LGO}"); a(f"v_mov_b32 v{T+1}, 1")
    a(f"ds_write_b32 v{T}, v{T+1}")
    st(3)
    a("s_bitcmp1_b32 s2, 3")
    a("s_cbranch_scc1 L_helper_B")
    def anysent(base,n,tmp):
        a(f"v_max3_u32 v{tmp}, v{base}, v{base+1}, v{base+2}")
        k=3
        while k<n:
            if k+1<n: a(f"v_max3_u32 v{tmp}, v{tmp}, v{base+k}, v{base+k+1}"); k+=2
            else: a(f"v_max_u32 v{tmp}, v{tmp}, v{base+k}"); k+=1
        a(f"v_cmp_eq_u32 vcc, -1, v{tmp}")
        a("s_cmp_eq_u64 vcc, 0")
    def helper(br):
        bri=0 if br=='A' else 1
        RP=(2 if br=='A' else 1)*W
        a(f"v_mov_b32 v{T}, {LCNT}")
        a(f"s_mov_b32 s65, {SPIN}")
        a.label(f"L_ow{br}")
        a(f"ds_read_b32 v{T+1}, v{T}")
        a("s_waitcnt lgkmcnt(0)")
        a(f"v_readfirstlane_b32 s64, v{T+1}")
        a(f"s_cmp_ge_u32 s64, {2*W if br=='A' else 2*W+1}")
        a(f"s_cbranch_scc1 L_od{br}")
        spin_tail(f"L_ow{br}",32 if br=='A' else 4)
        a.label(f"L_od{br}")
        if br=='B': a("s_setprio 3")
        slp=64 if br=='A' else 1
        a(f"v_mul_u32_u24 v{T}, {RP*8}, v2")
        a(f"v_mul_u32_u24 v{T+1}, {RP*128}, v2"); a(f"v_lshl_add_u32 v{T+1}, v3, 5, v{T+1}")
        a(f"s_mov_b32 s65, {SPIN}")
        a.label(f"L_hp{br}")
        for k in range(RP//2):
            a(f"buffer_load_dwordx4 v[{HD+4*k}:{HD+4*k+3}], v{T}, s[36:39], s53 offen offset:{16*k} sc1")
        a("s_waitcnt vmcnt(0)")
        anysent(HD,RP*2,T+2)
        a(f"s_cbranch_scc1 L_hd{br}")
        spin_tail(f"L_hp{br}",slp)
        a.label(f"L_hd{br}")
        a(f"s_mov_b32 s65, {SPIN}")
        a.label(f"L_dp{br}")
        for k in range(RP):
            for h in range(2):
                r=DT+k*8+h*4
                a(f"buffer_load_dwordx4 v[{r}:{r+3}], v{T+1}, s[36:39], s52 offen offset:{k*128+16*h} sc1")
        a("s_waitcnt vmcnt(0)")
        anysent(DT,RP*8,T+2)
        a(f"s_cbranch_scc1 L_dd{br}")
        spin_tail(f"L_dp{br}",0)
        a.label(f"L_dd{br}")
        st(5)
        ROWRED=("row_ror:8","row_ror:4","row_ror:2","row_ror:1")
        a(f"v_max_f32 v{T+2}, v{HD}, v{HD+2}")
        for k in range(2,RP): a(f"v_max_f32 v{T+2}, v{T+2}, v{HD+2*k}")
        for m in ROWRED: a(f"v_max_f32_dpp v{T+2}, v{T+2}, v{T+2} {m} {DPPF}")
        for k in range(RP): a(f"v_sub_f32 v{HD+2*k}, v{HD+2*k}, v{T+2}")
        for k in range(RP): a(f"v_exp_f32 v{HD+2*k}, v{HD+2*k}")
        a(f"v_mul_f32 v{T+4}, v{HD}, v{HD+1}")
        for e in range(8): a(f"v_mul_f32 v{DT+e}, v{HD}, v{DT+e}")
        for k in range(1,RP):
            a(f"v_fmac_f32 v{T+4}, v{HD+2*k}, v{HD+2*k+1}")
            for e in range(8): a(f"v_fmac_f32 v{DT+e}, v{HD+2*k}, v{DT+k*8+e}")
        for m in ROWRED:
            a(f"v_add_f32_dpp v{T+4}, v{T+4}, v{T+4} {m} {DPPF}")
            for e in range(8): a(f"v_add_f32_dpp v{DT+e}, v{DT+e}, v{DT+e} {m} {DPPF}")
        a(f"v_rcp_f32 v{T+4}, v{T+4}")
        for e in range(8): a(f"v_mul_f32 v{DT+e}, v{DT+e}, v{T+4}")
        for e in range(4): a(f"v_cvt_pk_bf16_f32 v{DT+8+e}, v{DT+2*e}, v{DT+2*e+1}")
        for i in range(8):
            ar=HA+(i%2)*4
            for v in range(4):
                a(f"v_perm_b32 v{ar+v}, v{DT+8+i//2}, v{DT+8+i//2}, v{SEL[i%2][v]}")
            for blk in range(4):
                r=WR+(i*4+blk)*4; c=HC+blk*4
                a(f"v_mfma_f32_16x16x32_bf16 v[{c}:{c+3}], v[{ar}:{ar+3}], v[{r}:{r+3}], {'0' if i==0 else 'v[%d:%d]'%(c,c+3)}")
        for k in range(16): a(f"v_min_u32 v{HC+k}, -2, v{HC+k}")
        a("s_mov_b32 exec_hi, 0")
        for blk in range(4):
            a(f"buffer_store_dwordx4 v[{HC+blk*4}:{HC+blk*4+3}], v{T+3}, s[36:39], s54 offen offset:{blk*512} sc1")
        a("s_mov_b64 exec, -1")
        st(6)
        a("s_cmp_ge_u32 s31, 28")
        a(f"s_cbranch_scc1 L_he{br}")
        a(f"v_lshrrev_b32 v{T}, 2, v0"); a(f"v_lshlrev_b32 v{T}, 11, v{T}")
        a(f"v_and_b32 v{T+1}, 3, v0"); a(f"v_lshl_add_u32 v{T}, v{T+1}, 4, v{T}")
        a("s_lshl_b32 s62, s31, 6"); a(f"s_add_u32 s62, s62, {YO+bri*0x40000}")
        a(f"s_mov_b32 s65, {SPIN}")
        if br=='A': a("s_sleep 127"); a("s_sleep 127")
        a.label(f"L_yp{br}")
        a("s_mov_b32 s63, s62")
        for k in range(8):
            a(f"buffer_load_dwordx4 v[{DT+4*k}:{DT+4*k+3}], v{T}, s[36:39], s63 offen sc1")
            if k<7: a("s_add_u32 s63, s63, 0x8000")
        a("s_waitcnt vmcnt(0)")
        anysent(DT,32,T+2)
        a(f"s_cbranch_scc1 L_yd{br}")
        spin_tail(f"L_yp{br}",127 if br=='A' else 1)
        a.label(f"L_yd{br}")
        for half in (16,8,4):
            for e in range(half): a(f"v_add_f32 v{DT+e}, v{DT+e}, v{DT+half+e}")
        for m in ("row_ror:8","row_ror:4"):
            for e in range(4): a(f"v_add_f32_dpp v{DT+e}, v{DT+e}, v{DT+e} {m} {DPPF}")
        for sw in ("v_permlane16_swap_b32","v_permlane32_swap_b32"):
            for e in range(4): a(f"v_mov_b32 v{DT+4+e}, v{DT+e}")
            for e in range(4): a(f"{sw} v{DT+e}, v{DT+4+e}")
            for e in range(4): a(f"v_add_f32 v{DT+e}, v{DT+e}, v{DT+4+e}")
        a(f"v_cvt_pk_bf16_f32 v{DT+4}, v{DT}, v{DT+1}")
        a(f"v_cvt_pk_bf16_f32 v{DT+5}, v{DT+2}, v{DT+3}")
        a(f"""
        s_mov_b32 s40, s24
        s_mov_b32 s41, s25
        s_mov_b32 s42, 1792
        s_lshl_b32 s62, s31, 5
        s_add_u32 s62, s62, {bri*896}
        v_lshlrev_b32 v{T}, 3, v0
        s_mov_b64 exec, 15
        buffer_store_dwordx2 v[{DT+4}:{DT+5}], v{T}, s[40:43], s62 offen
        s_mov_b64 exec, -1
        """)
        a.label(f"L_he{br}")
        write_stamps(True)
        a("s_endpgm")
    helper('A')
    a.label("L_helper_B")
    helper('B')
    a.label("L_done")
    a("s_endpgm")
    if report is not None:
        a.raw(".globl report_kernel"); a.raw(".p2align 8"); a.raw(".type report_kernel,@function"); a.raw("report_kernel:")
        a(f"""
        s_cmp_ge_u32 s2, 1
        s_cbranch_scc1 LR_done
        s_load_dwordx4 s[4:7], s[0:1], 88
        s_mov_b32 s38, {WS_USED}
        s_mov_b32 s39, 0x20000
        s_mov_b32 s42, 256
        s_mov_b32 s43, 0x20000
        v_lshlrev_b32 v1, 2, v0
        v_mov_b32 v2, 0
        v_mov_b32 v3, -1
        ds_write_b32 v1, v3            ; 0..255: mins
        ds_write_b32 v1, v2 offset:256 ; maxs
        ds_write_b32 v1, v2 offset:512 ; sums
        s_waitcnt lgkmcnt(0)
        s_mov_b32 s36, s6
        s_mov_b32 s37, s7
        s_mov_b32 s40, s4
        s_mov_b32 s41, s5
        v_lshlrev_b32 v4, 4, v0
        s_mov_b32 s8, 0
        buffer_load_dwordx4 v[8:11], v4, s[36:39], s8 offen
        s_waitcnt vmcnt(0)
        v_subrev_u32 v8, 100, v8
        v_mov_b32 v5, 252
        ds_min_u32 v5, v8
        s_waitcnt lgkmcnt(0)
        ds_read_b32 v6, v5
        s_waitcnt lgkmcnt(0)
        v_mul_u32_u24 v4, {(W+1)*32}, v0
        """)
        for i in range(4):
            for w in range(W+1):
                a(f"s_mov_b32 s8, {0x4000+i*64*(W+1)*32+w*32}")
                a("buffer_load_dwordx4 v[8:11], v4, s[36:39], s8 offen")
                a("buffer_load_dwordx4 v[12:15], v4, s[36:39], s8 offen offset:16")
                a("s_waitcnt vmcnt(0)")
                g=0 if w else 32
                for k in range(8):
                    a(f"v_sub_u32 v{8+k}, v{8+k}, v6")
                    a(f"ds_min_u32 v2, v{8+k} offset:{g+4*k}")
                    a(f"ds_max_u32 v2, v{8+k} offset:{256+g+4*k}")
                    a(f"ds_add_u32 v2, v{8+k} offset:{512+g+4*k}")
                a("s_waitcnt lgkmcnt(0)")
        picks=[(0,0),(256+4,0),(512+8,8+LW),(512+12,8+LW),(512+16,8+LW),(512+20,8+LW),(28,0),(256+28,0),(256+32+28,0),(256+32+20,0),(256+32+24,0)]
        a("s_mov_b64 exec, 1")
        for k,(off,sh) in enumerate(picks):
            a(f"ds_read_b32 v8, v2 offset:{off}")
            a("s_waitcnt lgkmcnt(0)")
            a(f"v_lshrrev_b32 v8, {sh}, v8")
            a(f"buffer_store_dword v8, off, s[40:43], 0 offset:{4*k}")
            if report[0]==k: a("v_readfirstlane_b32 s10, v8")
        if report[0]<0: a("s_mov_b32 s10, 0")
        a(f"s_mul_i32 s10, s10, {report[1]}")
        a("s_min_u32 s10, s10, 200000")
        a("s_memrealtime s[12:13]"); a("s_waitcnt lgkmcnt(0)")
        a.label("LR_spin")
        a("s_memrealtime s[14:15]"); a("s_waitcnt lgkmcnt(0)")
        a("s_sub_u32 s16, s14, s12"); a("s_cmp_lt_u32 s16, s10"); a("s_cbranch_scc1 LR_spin")
        a.label("LR_done")
        a("s_endpgm")
    a.raw('.section .rodata,"a"')
    for nm,nv in ((NAME,256),)+((("report_kernel",16),) if report is not None else ()):
        a.raw(".p2align 6"); a.raw(f".amdhsa_kernel {nm}")
        a.raw(f"  .amdhsa_next_free_vgpr {nv}"); a.raw("  .amdhsa_next_free_sgpr 96"); a.raw(f"  .amdhsa_accum_offset {nv}")
        a.raw("  .amdhsa_float_denorm_mode_32 3")
        a.raw("  .amdhsa_group_segment_fixed_size 0"); a.raw("  .amdhsa_kernarg_size 104"); a.raw("  .amdhsa_user_sgpr_count 2")
        a.raw("  .amdhsa_user_sgpr_kernarg_segment_ptr 1"); a.raw("  .amdhsa_system_sgpr_workgroup_id_x 1"); a.raw(".end_amdhsa_kernel")
    return a.text()

def make(cfgs, listfile="list.txt"):
    import build
    lines=[]
    for c in cfgs:
        lab="_".join(f"{k}{str(v).replace(' ','').replace(',','.').strip('()[]')}" for k,v in c.items() if k!='stamp') or "base"
        fn="k_"+lab+".s"
        open(fn,"w").write(gen(**c))
        co=build.build(fn)
        W=c.get('W',2)
        lines.append(f"{lab} {co} {256*W if c.get('stamp') else 0} {NAME}:256:{(W+1)*64}:{c.get('lds',90112)}")
    open(listfile,"w").write("\n".join(lines)+"\n")
if __name__=="__main__":
    import json
    cfg=json.loads(sys.argv[2]) if len(sys.argv)>2 else {}
    open(sys.argv[1],"w").write(gen(**cfg))
```

```python
import struct, math, sys
from asmlib import Asm
NAME="concat_heads__gqa_block_cached__mha_block_cached__decode_kernel"
HDR=open('concat_heads__gqa_block_cached__mha_block_cached__decode.s.ref').read().split('; Override')[0]
def f2u(x): return struct.unpack('<I',struct.pack('<f',x))[0]
QP=0x10000; TK=0x50000; RDY=0x58000; IN1D=0x80000; IN1H=0x480000; YO=0x4C0000; WS_USED=0x540000
LQA=0; LQB=1024; LCNT=1536; LGO=1540; LSC=2048
DPPF="row_mask:0xf bank_mask:0xf"
INV=0x7f000000

def gen(stamp=False, sflags='nt', wflags='nt', lds=90112, W=2, dl=(10,10,10,10,10), NS=8, PK=128, bar0=True, spin=1<<16,
        nodots=False, nopv=False, nowo=False, report=None, tq=6, npos=0, gsleep=24, dry=False, nrep=True, vside=False, wog=4, wosleep=0, wolate=False, merged=True, hprio=True, align=0, alate=True, noclear=False, nordy=False):
    SPIN=spin
    LW=W.bit_length()-1
    a=Asm()
    a.raw(HDR.rstrip())
    if report is None: a.raw(f"; @launch grid=(256,1,1) block=({(W+1)*64},1,1) lds={lds}")
    else: a.raw(f"; @launch kernel={NAME} grid=(256,1,1) block=({(W+1)*64},1,1) lds={lds}")
    if report is not None: a.raw("; @launch kernel=report_kernel grid=(1,1,1) block=(64,1,1) lds=1024")
    a.raw('.amdgcn_target "amdgcn-amd-amdhsa--gfx950"')
    a.raw(".text"); a.raw(f".globl {NAME}"); a.raw(".p2align 8"); a.raw(f".type {NAME},@function"); a.raw(f"{NAME}:")
    def st(k):
        if stamp:
            a("s_memrealtime s[68:69]"); a("s_waitcnt lgkmcnt(0)"); a(f"s_mov_b32 s{72+k}, s68")
    def prologue(done):
        a(f"""
        s_cmp_ge_u32 s2, 256
        s_cbranch_scc1 {done}
        s_load_dwordx16 s[4:19], s[0:1], 0
        s_load_dwordx8 s[20:27], s[0:1], 64
        s_load_dwordx2 s[28:29], s[0:1], 96
        v_lshrrev_b32 v1, 6, v0
        v_and_b32 v0, 63, v0
        v_readfirstlane_b32 s30, v1
        v_and_b32 v2, 15, v0        ; n
        v_lshrrev_b32 v3, 4, v0     ; g
        s_mov_b32 s38, {WS_USED}
        s_mov_b32 s39, 0x20000
        """)
    def selectors():
        a("""
        v_and_b32 v4, 1, v0
        v_cmp_eq_u32 vcc, 1, v4
        v_mov_b32 v5, 0x0c0c0100
        v_mov_b32 v6, 0x01000c0c
        v_cndmask_b32 v5, v5, v6, vcc
        v_mov_b32 v6, 0x0c0c0302
        v_mov_b32 v7, 0x03020c0c
        v_cndmask_b32 v6, v6, v7, vcc
        v_bfe_u32 v4, v0, 1, 2
        v_mov_b32 v7, 0x0c0c0c0c
        """)
        for v in range(4):
            a(f"v_cmp_eq_u32 vcc, {v}, v4")
            a(f"v_cndmask_b32 v{8+v}, v7, v5, vcc")
            a(f"v_cndmask_b32 v{12+v}, v7, v6, vcc")
    SEL=[[8,9,10,11],[12,13,14,15]]
    prologue('L_done')
    a("s_cmp_eq_u32 s30, 0"); a("s_cbranch_scc1 L_helper")
    def after_kernarg():
        a("s_waitcnt lgkmcnt(0)")
        if stamp:
            for k in range(8): a(f"s_mov_b32 s{72+k}, 0")
        st(0)
        a("s_mov_b32 s36, s28"); a("s_mov_b32 s37, s29")
    def write_stamps(helper):
        if not stamp: return
        st(7)
        a("s_getreg_b32 s66, hwreg(HW_REG_XCC_ID)")
        a("s_mov_b64 exec, 1")
        a("v_mov_b32 v4, 0")
        if not helper:
            a("v_mov_b32 v20, s72"); a("v_mov_b32 v21, s79"); a("v_mov_b32 v22, s66"); a("v_mov_b32 v23, 0")
            a(f"s_lshl_b32 s64, s2, {LW}"); a("s_add_u32 s64, s64, s31"); a("s_lshl_b32 s64, s64, 4")
            a("buffer_store_dwordx4 v[20:23], v4, s[36:39], s64 offen")
        for k in range(8): a(f"v_mov_b32 v{24+k}, s{72+k}")
        a(f"s_mul_i32 s64, s2, {W+1}"); a("s_add_u32 s64, s64, s30"); a("s_lshl_b32 s64, s64, 5"); a("s_add_u32 s64, s64, 0x4000")
        a("buffer_store_dwordx4 v[24:27], v4, s[36:39], s64 offen")
        a("buffer_store_dwordx4 v[28:31], v4, s[36:39], s64 offen offset:16")
    def spin_tail(lbl,sleep):
        if sleep: a(f"s_sleep {sleep}")
        a("s_sub_u32 s65, s65, 1"); a("s_cmp_lg_u32 s65, 0")
        a(f"s_cbranch_scc1 {lbl}")
    VOFF=1; VSC=4; VM=5; VL=6; VMC=7
    Q=16; ACC=32; AR=40; D=48; T=52; PKR=60; VOFF2=62; VTK=63
    RING=64; SIDE=128
    STEP=4096*W
    NA=(1<<19)//STEP; NB=((1<<20)-PK*1024)//STEP
    NT=16*PK//8
    TQ=min(tq,16-dl[4])
    a(f"""
    s_sub_u32 s31, s30, 1            ; sw
    v_lshlrev_b32 v{VOFF}, 9, v3
    v_lshl_add_u32 v{VOFF}, v2, 4, v{VOFF}
    s_mov_b32 s34, 0x100000
    s_mov_b32 s35, 0x20000
    s_lshl_b32 s61, s31, 12
    s_lshl_b32 s60, s2, 19
    """)
    after_kernarg()
    a("s_add_u32 s32, s6, s60"); a("s_addc_u32 s33, s7, 0")
    a("s_add_u32 s40, s8, s60"); a("s_addc_u32 s41, s9, 0"); a("s_mov_b32 s42, 0x100000"); a("s_mov_b32 s43, 0x20000")
    if bar0: a("s_barrier")
    OFFS=[0,256,2048,2304]
    PH=[('A','K',NA),('A','V',NA),('B','K',NB),('B','V',NB)]
    ends=[NA if vside else NA-NS,2*NA-NS,2*NA-NS+NB,2*NA-NS+2*NB]
    def ld(base,i,srd,soff,voff=VOFF):
        r=base+i*4
        a(f"buffer_load_dwordx4 v[{r}:{r+3}], v{voff}, {srd}, {soff} offen offset:{OFFS[i]} {sflags}")
    def issue_static(h,p):
        h%=16
        ld(RING+(h//4)*16,h%4,"s[32:35]","s52")
        if h%4==3:
            a(f"s_add_u32 s52, s52, {STEP}")
            a("s_add_u32 s53, s53, 1")
            if p is not None:
                a(f"s_cmp_eq_u32 s53, {ends[p]}")
                if p<3:
                    b=54+2*p
                    a(f"s_cselect_b32 s32, s{b}, s32"); a(f"s_cselect_b32 s33, s{b+1}, s33"); a(f"s_cselect_b32 s52, {'s95' if p==0 and vside else 's61'}, s52")
                else:
                    a("s_cselect_b32 s34, 0, s34")
    def ticket_req():
        a("s_mov_b64 exec, 1")
        a(f"v_mov_b32 v{VTK}, 1")
        a(f"buffer_atomic_add v{VTK}, off, s[36:39], s91 sc0 sc1")
        a("s_mov_b64 exec, -1")
    def ticket_use():
        a(f"v_readfirstlane_b32 s90, v{VTK}")
        a("s_and_b32 s88, s90, 15"); a("s_lshl_b32 s88, s88, 20")
        a("s_lshr_b32 s89, s90, 4"); a("s_lshl_b32 s89, s89, 13")
        a("s_add_u32 s88, s88, s89"); a(f"s_add_u32 s88, s88, {NB*STEP}")
        a(f"s_cmp_lt_u32 s90, {NT}")
        a(f"s_cselect_b32 s88, s88, {INV}")
    def issue_pool(h):
        h%=16
        if h==0: ticket_use()
        if h==TQ: ticket_req()
        k=h//4
        ld(RING+k*16,h%4,"s[80:83]" if k<2 else "s[84:87]","s88",VOFF if k%2==0 else VOFF2)
    def initial_prefetch():
        n=0
        a("s_mov_b32 s95, s61")
        for k in range(NS):
            for i in range(4):
                if n>=dl[0]: a(f"s_waitcnt vmcnt({dl[0]-1})")
                ld(SIDE+k*16,i,"s[40:43]" if vside else "s[32:35]","s95"); n+=1
                if n==dl[0]: setup2()
            a(f"s_add_u32 s95, s95, {STEP}")
        a("s_mov_b32 s52, s61" if vside else "s_mov_b32 s52, s95")
        a("s_mov_b32 s53, 0")
        for h in range(dl[0]):
            if n>=dl[0]: a(f"s_waitcnt vmcnt({dl[0]-1})")
            issue_static(h,None); n+=1
            if n==dl[0]: setup2()
    def setup2():
        selectors()
        a(f"""
        s_add_u32 s54, s8, s60
        s_addc_u32 s55, s9, 0
        s_lshl_b32 s60, s2, 20
        s_add_u32 s56, s16, s60
        s_addc_u32 s57, s17, 0
        s_add_u32 s58, s18, s60
        s_addc_u32 s59, s19, 0
        s_and_b32 s60, s60, 0xff000000
        s_add_u32 s80, s16, s60
        s_addc_u32 s81, s17, 0
        s_mov_b32 s82, 0x1000000
        s_mov_b32 s83, 0x20000
        s_add_u32 s84, s18, s60
        s_addc_u32 s85, s19, 0
        s_mov_b32 s86, 0x1000000
        s_mov_b32 s87, 0x20000
        s_lshr_b32 s91, s2, 4
        s_lshl_b32 s91, s91, 8
        s_add_u32 s91, s91, {TK}
        s_mov_b32 s62, {f2u(math.log2(math.e)/16.0)}
        s_mul_i32 s63, s31, {65536//W}
        s_add_u32 s63, s63, {LSC}
        v_add_u32 v{VOFF2}, 0x1000, v{VOFF}
        """)
    initial_prefetch()
    st(6)
    a("s_barrier")
    st(1)
    def dots1(base,i,nh,dbase):
        s_=i//2
        for e4 in range(1 if nodots else 4):
            e=(i%2)*4+e4
            for h in range(nh):
                d=dbase+s_*nh+h
                a(f"v_dot2_f32_bf16 v{d}, v{base+i*4+e4}, v{Q+h*8+e}, {'0' if e==0 else 'v%d'%d}")
    def reduce(nh,dbase,tb,ns=2):
        for s_ in range(ns):
            if nh==2:
                a(f"v_add_f32_dpp v{tb+s_}, v{dbase+s_*2}, v{dbase+s_*2} row_ror:8 row_mask:0xf bank_mask:0x3")
                a(f"v_add_f32_dpp v{tb+s_}, v{dbase+s_*2+1}, v{dbase+s_*2+1} row_ror:8 row_mask:0xf bank_mask:0xc")
            else:
                a(f"v_add_f32_dpp v{tb+s_}, v{dbase+s_}, v{dbase+s_} row_ror:8 {DPPF}")
        for m in ("row_half_mirror","quad_perm:[1,0,3,2]","quad_perm:[2,3,0,1]"):
            for s_ in range(ns):
                a(f"v_add_f32_dpp v{tb+s_}, v{tb+s_}, v{tb+s_} {m} {DPPF}")
    class Cur: pass
    cur=Cur(); cur.d=dl[0]; cur.skip=0
    def arrive(c,iss,extra=0):
        if cur.skip:
            a(f"s_waitcnt vmcnt({cur.d+cur.skip-1+extra})"); cur.skip-=1
        else:
            a(f"s_waitcnt vmcnt({cur.d-1+extra})")
            iss(c+cur.d)
    def retarget(nd,iss):
        assert cur.skip==0
        if nd>cur.d:
            for h in range(cur.d,nd): iss(h)
        else: cur.skip=cur.d-nd
        cur.d=nd
    def kfinish(nh,j):
        reduce(nh,D,T)
        a(f"v_max3_f32 v{VM}, v{VM}, v{T}, v{T+1}")
        a(f"v_cvt_pk_bf16_f32 v{T+2}, v{T}, v{T+1}")
        a(f"ds_write_b32 v{VSC}, v{T+2} offset:{j*256}")
    def kunit(j,jl,nh,iss,extra=lambda c:0):
        for i in range(4):
            arrive(4*j+i,iss,extra(4*j+i)); dots1(RING+j*16,i,nh,D)
        kfinish(nh,jl)
    def pcalc(t0,ar):
        a(f"v_fma_f32 v{t0}, v{t0}, s62, -v{VMC}")
        a(f"v_fma_f32 v{t0+1}, v{t0+1}, s62, -v{VMC}")
        a(f"v_exp_f32 v{t0}, v{t0}")
        a(f"v_exp_f32 v{t0+1}, v{t0+1}")
        a(f"v_add_f32 v{VL}, v{VL}, v{t0}")
        a(f"v_add_f32 v{VL}, v{VL}, v{t0+1}")
        a(f"v_cvt_pk_bf16_f32 v{t0}, v{t0}, v{t0+1}")
        for s_ in range(2):
            for v in range(4):
                a(f"v_perm_b32 v{ar+s_*4+v}, v{t0}, v{t0}, v{SEL[s_][v]}")
    def pvunit(j,iss,extra=lambda c:0):
        for i in range(4):
            arrive(4*j+i,iss,extra(4*j+i))
            r=RING+j*16+i*4; c=ACC+(i%2)*4; ar=AR+(i//2)*4
            if not nopv: a(f"v_mfma_f32_16x16x32_bf16 v[{c}:{c+3}], v[{ar}:{ar+3}], v[{r}:{r+3}], v[{c}:{c+3}]")
    def vunit(j,jl,iss,par=None,nxt=None,side=None):
        if par is None: par=j%2
        if nxt is None: nxt=jl+1
        pk=PKR+par
        a("s_waitcnt lgkmcnt(0)")
        a(f"v_lshlrev_b32 v{T}, 16, v{pk}")
        a(f"v_and_b32 v{T+1}, 0xffff0000, v{pk}")
        a(f"ds_read_b32 v{PKR+1-par}, v{VSC} offset:{nxt*256}")
        pcalc(T,AR)
        if side is None: pvunit(j,iss)
        else:
            for i in range(4):
                r=SIDE+side*16+i*4; c=ACC+(i%2)*4; ar=AR+(i//2)*4
                a(f"v_mfma_f32_16x16x32_bf16 v[{c}:{c+3}], v[{ar}:{ar+3}], v[{r}:{r+3}], v[{c}:{c+3}]")
    def xrow(reg,op):
        a(f"v_mov_b32 v{T+7}, v{reg}")
        a(f"v_permlane16_swap_b32 v{reg}, v{T+7}")
        a(f"{op} v{reg}, v{reg}, v{T+7}")
        a(f"v_mov_b32 v{T+7}, v{reg}")
        a(f"v_permlane32_swap_b32 v{reg}, v{T+7}")
        a(f"{op} v{reg}, v{reg}, v{T+7}")
    def lds_inc():
        a("s_mov_b64 exec, 1")
        a(f"v_mov_b32 v{T+4}, {LCNT}"); a(f"v_mov_b32 v{T+5}, 1")
        a(f"ds_add_u32 v{T+4}, v{T+5}")
        a("s_mov_b64 exec, -1")
    def publish(br):
        xrow(VL,"v_add_f32")
        sh=5 if br=='A' else 4
        bri=0 if br=='A' else 1
        a(f"s_lshr_b32 s64, s2, {sh}")
        a(f"s_and_b32 s65, s2, {(1<<sh)-1}")
        a(f"s_lshl_b32 s65, s65, {LW}"); a("s_add_u32 s65, s65, s31")
        a(f"s_lshl_b32 s64, s64, {4 if br=='A' else 3}")
        a("s_lshl_b32 s66, s64, 14"); a("s_lshl_b32 s67, s65, 7"); a("s_add_u32 s66, s66, s67")
        a(f"s_add_u32 s66, s66, {IN1D+bri*0x200000}")
        a("s_add_u32 s67, s66, 0x10000")
        a(f"v_lshrrev_b32 v{T}, 5, v0"); a(f"v_lshlrev_b32 v{T}, 17, v{T}")
        a(f"v_lshrrev_b32 v{T+1}, 2, v2"); a(f"v_lshl_add_u32 v{T}, v{T+1}, 14, v{T}")
        a(f"v_and_b32 v{T+1}, 3, v2"); a(f"v_lshl_add_u32 v{T}, v{T+1}, 5, v{T}")
        a(f"v_and_b32 v{T+1}, 1, v3"); a(f"v_lshl_add_u32 v{T}, v{T+1}, 4, v{T}")
        for i in range(8): a(f"v_min_u32 v{ACC+i}, -2, v{ACC+i}")
        a(f"v_min_u32 v{T+2}, -2, v{VMC}"); a(f"v_min_u32 v{T+3}, -2, v{VL}")
        a(f"v_lshlrev_b32 v{T+1}, 10, v0")
        if br=='B': a("s_mov_b32 exec_hi, 0")
        a(f"buffer_store_dwordx4 v[{ACC}:{ACC+3}], v{T}, s[36:39], s66 offen sc1")
        a(f"buffer_store_dwordx4 v[{ACC+4}:{ACC+7}], v{T}, s[36:39], s67 offen sc1")
        a("s_lshl_b32 s66, s64, 10"); a("s_lshl_b32 s67, s65, 3"); a("s_add_u32 s66, s66, s67")
        a(f"s_add_u32 s66, s66, {IN1H+bri*0x20000}")
        a(f"s_mov_b64 exec, {0xffff if br=='A' else 0xff}")
        a(f"buffer_store_dwordx2 v[{T+2}:{T+3}], v{T+1}, s[36:39], s66 offen sc1")
        lds_inc()
    for p,(br,kv,n) in enumerate(PH):
        nh=2 if br=='A' else 1
        iss=lambda h,p=p: issue_static(h,p)
        a(f"v_lshlrev_b32 v{VSC}, 2, v0")
        a(f"v_add_u32 v{VSC}, s63, v{VSC}")
        done=0; tail=0
        if kv=='K':
            lq=LQA if br=='A' else LQB
            a(f"v_lshlrev_b32 v{T}, 4, v2")
            for h in range(nh):
                a(f"ds_read_b128 v[{Q+h*8}:{Q+h*8+3}], v{T} offset:{lq+h*512}")
                a(f"ds_read_b128 v[{Q+h*8+4}:{Q+h*8+7}], v{T} offset:{lq+h*512+256}")
            a(f"v_mov_b32 v{VM}, 0xff800000")
            a("s_waitcnt lgkmcnt(0)")
        else:
            a(f"ds_read_b32 v{PKR}, v{VSC} offset:{NS*256 if p==1 and vside else 0}")
            xrow(VM,"v_max_f32")
            a(f"v_cvt_pk_bf16_f32 v{VM}, v{VM}, v{VM}")
            a(f"v_and_b32 v{VM}, 0xffff0000, v{VM}")
            a(f"v_mul_f32 v{VMC}, s62, v{VM}")
            a(f"v_mov_b32 v{VL}, 0")
            for i in range(8): a(f"v_mov_b32 v{ACC+i}, 0")
            if p==3 and PK: tail=8
        def group(jl0,iss):
            for j in range(4):
                if kv=='K': kunit(j,jl0+j,nh,iss)
                else: vunit(j,jl0+j,iss)
        if dl[p]!=cur.d: retarget(dl[p],iss)
        if p==0 and NS and not vside:
            for k in range(NS):
                kunit(k%4,NS+k,nh,iss)
                for i in range(4): dots1(SIDE+k*16,i,nh,D)
                kfinish(nh,k)
            done=2*NS
            a(f"v_add_u32 v{VSC}, {done*256}, v{VSC}")
        if p==1 and NS and vside:
            for k in range(NS):
                vunit(k%4,None,iss,0,k)
                vunit(None,None,None,1,NS+k+1,side=k)
            done=2*NS
            a(f"v_add_u32 v{VSC}, {done*256}, v{VSC}")
        if True:
            if cur.skip:
                group(0,iss); done+=4
                a(f"v_add_u32 v{VSC}, 1024, v{VSC}")
        assert (n-done-tail)%4==0
        a(f"s_mov_b32 s60, {(n-done-tail)//4}")
        if align: a.flush(); a.raw(f".p2align {align}")
        a.label(f"L_ph{p}")
        group(0,iss)
        a(f"v_add_u32 v{VSC}, 1024, v{VSC}")
        a("s_sub_u32 s60, s60, 1")
        a("s_cmp_lg_u32 s60, 0")
        a(f"s_cbranch_scc1 L_ph{p}")
        if tail:
            ticket_req()
            if dl[4]!=cur.d: retarget(dl[4],iss)
            group(0,iss)
            group(4,lambda h: issue_static(h,None) if h<16 else issue_pool(h))
            st(5)
            a(f"s_cmp_eq_u32 s88, {INV}")
            a("s_cbranch_scc1 L_pool_end")
            a.label("L_pool")
            apos=(16-cur.d+TQ)%16
            ex=lambda c: 1 if 1<=((c-apos)%16)<=cur.d-1 else 0
            for j in range(2):
                for i in range(4):
                    arrive(4*j+i,issue_pool,ex(4*j+i)); dots1(RING+j*16,i,1,D+2*j)
            reduce(1,D,T,4)
            a(f"v_cvt_pk_bf16_f32 v{T+4}, v{T}, v{T+1}")
            a(f"v_cvt_pk_bf16_f32 v{T+5}, v{T+2}, v{T+3}")
            a(f"v_lshlrev_b32 v{T}, 16, v{T+4}"); a(f"v_and_b32 v{T+1}, 0xffff0000, v{T+4}")
            a(f"v_lshlrev_b32 v{T+2}, 16, v{T+5}"); a(f"v_and_b32 v{T+3}, 0xffff0000, v{T+5}")
            a(f"v_max3_f32 v{T+4}, v{T}, v{T+1}, v{T+2}")
            a(f"v_max_f32 v{T+4}, v{T+4}, v{T+3}")
            a(f"v_cmp_gt_f32 vcc, v{T+4}, v{VM}")
            a("s_cmp_eq_u64 vcc, 0")
            a("s_cbranch_scc1 L_norescale")
            a(f"v_max_f32 v{VM}, v{VM}, v{T+4}")
            xrow(VM,"v_max_f32")
            a(f"v_mul_f32 v{T+4}, s62, v{VM}")
            a(f"v_sub_f32 v{T+5}, v{VMC}, v{T+4}")
            a(f"v_exp_f32 v{T+5}, v{T+5}")
            a(f"v_mov_b32 v{VMC}, v{T+4}")
            a(f"v_mul_f32 v{VL}, v{VL}, v{T+5}")
            for i in range(8): a(f"v_mul_f32 v{ACC+i}, v{ACC+i}, v{T+5}")
            a.label("L_norescale")
            pcalc(T,AR)
            pvunit(2,issue_pool,ex)
            pcalc(T+2,AR)
            pvunit(3,issue_pool,ex)
            a(f"s_cmp_lg_u32 s88, {INV}")
            a("s_cbranch_scc1 L_pool")
            a.label("L_pool_end")
        if p==1:
            a(f"v_mov_b32 v{T}, {LGO}")
            a(f"s_mov_b32 s65, {SPIN}")
            a.label("L_go")
            a(f"ds_read_b32 v{T+1}, v{T}")
            a("s_waitcnt lgkmcnt(0)")
            a(f"v_readfirstlane_b32 s64, v{T+1}")
            a("s_cmp_lg_u32 s64, 0")
            a("s_cbranch_scc1 L_god")
            spin_tail("L_go",2)
            a.label("L_god")
        if kv=='V': publish(br)
        if p==2: lds_inc()
        if p<3: st(2+p)
        elif not tail: st(5)
    write_stamps(False)
    a("s_endpgm")
    WR=64; XR=16; HA=32; HC=40; T=56; DT=192; HD=16
    a.label("L_helper")
    a(f"""
    s_setprio 3
    s_memrealtime s[92:93]
    s_lshr_b32 s31, s2, 4
    s_lshl_b32 s31, s31, 3
    s_and_b32 s60, s2, 7
    s_or_b32 s31, s31, s60           ; i = 0..127
    s_bfe_u32 s55, s2, 0x10003       ; branch
    s_mov_b32 s42, 896
    s_mov_b32 s43, 0x20000
    s_mov_b32 s47, 0x20000
    s_mov_b32 s50, 256
    s_mov_b32 s51, 0x20000
    s_and_b32 s60, s31, 31           ; cb
    s_lshr_b32 s61, s31, 5           ; ks
    s_mov_b32 s46, {448*8192}
    v_mul_u32_u24 v{T}, 56, v3
    s_mul_i32 s62, s61, 224
    s_mov_b32 s63, {28*8192}
    v_mul_lo_u32 v{T+1}, s63, v3
    v_lshl_add_u32 v{T+1}, v2, 4, v{T+1}
    s_mul_i32 s63, s61, {112*8192}
    s_lshl_b32 s64, s60, 8
    s_add_u32 s63, s63, s64
    """)
    after_kernarg()
    a(f"""
    s_mov_b32 s48, s26
    s_mov_b32 s49, s27
    s_cmp_lg_u32 s2, 0
    s_cbranch_scc1 L_nononce
    s_or_b32 s92, s92, 1
    v_mov_b32 v{T+4}, s92
    v_mov_b32 v{T+5}, s93
    v_lshlrev_b32 v{T+6}, 3, v0
    s_mov_b32 exec_hi, 0
    buffer_store_dwordx2 v[{T+4}:{T+5}], v{T+6}, s[48:51], 0 offen sc1
    s_mov_b64 exec, -1
    """)
    a.label("L_nononce")
    a("""
    s_lshr_b32 s56, s2, 3
    s_lshl_b32 s56, s56, 3
    s_cmp_eq_u32 s55, 0
    s_cselect_b32 s40, s4, s14
    s_cselect_b32 s41, s5, s15
    s_cselect_b32 s44, s10, s20
    s_cselect_b32 s45, s11, s21
    """)
    for i in range(28):
        a(f"buffer_load_dwordx4 v[{WR+4*i}:{WR+4*i+3}], v{T+1}, s[44:47], s63 offen {wflags}")
        if i<27: a("s_add_u32 s63, s63, 8192")
        if i==0:
            for k in range(7):
                a(f"buffer_load_dwordx2 v[{XR+2*k}:{XR+2*k+1}], v{T}, s[40:43], s62 offen offset:{8*k}")
    NOFF="s56" if nrep else "0"
    if bar0: a("s_barrier")
    if npos==0: a(f"buffer_load_dwordx2 v[{T+4}:{T+5}], off, s[48:51], {NOFF} sc1")
    selectors()
    a(f"""
    v_mov_b32 v{HC+4}, {LCNT}
    v_mov_b32 v{HC+6}, 0
    v_mov_b32 v{HC+7}, 0
    ds_write_b64 v{HC+4}, v[{HC+6}:{HC+7}]
    v_lshlrev_b32 v{T+2}, 4, v0
    v_and_b32 v{T+3}, 1, v3
    v_lshlrev_b32 v{T+3}, 4, v{T+3}
    v_lshl_add_u32 v{T+3}, v2, 5, v{T+3}     ; n*32+gb*16
    v_lshrrev_b32 v{T+6}, 5, v0
    v_lshlrev_b32 v{T+6}, 4, v{T+6}
    v_lshl_add_u32 v{T+6}, v{T+3}, 1, v{T+6} ; n*64+gb*32+hi*16
    s_lshl_b32 s63, s61, 15
    s_lshl_b32 s64, s60, 10
    s_add_u32 s63, s63, s64
    s_lshl_b32 s64, s55, 17
    s_add_u32 s63, s63, s64
    s_add_u32 s63, s63, {QP}
    """)
    for i in range(28):
        a(f"s_waitcnt vmcnt({27-i+(1 if i>=npos else 0)})")
        if i==npos-1: a(f"buffer_load_dwordx2 v[{T+4}:{T+5}], off, s[48:51], {NOFF} sc1")
        ar=HA+(i%2)*4
        for v in range(4):
            a(f"v_perm_b32 v{ar+v}, v{XR+i//2}, v{XR+i//2}, v{SEL[i%2][v]}")
        a(f"v_mfma_f32_16x16x32_bf16 v[{HC}:{HC+3}], v[{ar}:{ar+3}], v[{WR+4*i}:{WR+4*i+3}], {'0' if i==0 else 'v[%d:%d]'%(HC,HC+3)}")
    st(1)
    a(f"s_mov_b32 s65, {SPIN}")
    a.label("L_np")
    a("s_waitcnt vmcnt(0)")
    a(f"v_readfirstlane_b32 s92, v{T+4}"); a(f"v_readfirstlane_b32 s93, v{T+5}")
    a("s_cmp_lg_u32 s92, 0")
    a("s_cbranch_scc1 L_nd")
    a(f"buffer_load_dwordx2 v[{T+4}:{T+5}], off, s[48:51], {NOFF} sc1")
    spin_tail("L_np",0)
    a.label("L_nd")
    a("s_mov_b32 exec_lo, 0")
    a(f"v_mov_b32 v{HC}, v{HC+2}"); a(f"v_mov_b32 v{HC+1}, v{HC+3}")
    a("s_mov_b32 exec_lo, -1")
    a(f"v_mov_b32 v{HC+2}, v{T+4}"); a(f"v_mov_b32 v{HC+3}, v{T+5}")
    a(f"buffer_store_dwordx4 v[{HC}:{HC+3}], v{T+6}, s[36:39], s63 offen sc1")
    st(2)
    def gather(lbl,nk,base_expr,ldsoff,sleep):
        a(f"s_mov_b32 s65, {SPIN}")
        a.label(lbl)
        base_expr()
        for ks in range(4):
            for k in range(nk):
                r=DT+(ks*nk+k)*4
                a(f"buffer_load_dwordx4 v[{r}:{r+3}], v{T+2}, s[36:39], s64 offen offset:{k*1024} sc1")
            if ks<3: a("s_add_u32 s64, s64, 0x8000")
        a("s_mov_b64 s[66:67], 0")
        for j in range(4*nk):
            a(f"s_waitcnt vmcnt({4*nk-1-j})")
            a(f"v_cmp_ne_u64 vcc, s[92:93], v[{DT+j*4+2}:{DT+j*4+3}]")
            a("s_or_b64 s[66:67], s[66:67], vcc")
        a("s_cmp_eq_u64 s[66:67], 0")
        a(f"s_cbranch_scc1 {lbl}d")
        spin_tail(lbl,sleep)
        a.label(lbl+"d")
        def pr(j): return f"v[{DT+j*4}:{DT+j*4+1}]"
        for k in range(nk):
            a(f"v_pk_add_f32 {pr(k)}, {pr(k)}, {pr(nk+k)}")
            a(f"v_pk_add_f32 {pr(2*nk+k)}, {pr(2*nk+k)}, {pr(3*nk+k)}")
        for k in range(nk): a(f"v_pk_add_f32 {pr(k)}, {pr(k)}, {pr(2*nk+k)}")
        a(f"v_lshlrev_b32 v{T}, 2, v0")
        for k in range(nk): a(f"v_cvt_pk_bf16_f32 v{DT+k*4+2}, v{DT+k*4}, v{DT+k*4+1}")
        for k in range(nk): a(f"ds_write_b32 v{T}, v{DT+k*4+2} offset:{ldsoff+256*k}")
        a("s_waitcnt lgkmcnt(0)")
    def baseA(): a("s_lshr_b32 s64, s2, 5"); a("s_lshl_b32 s64, s64, 12"); a(f"s_add_u32 s64, s64, {QP}")
    def baseB(): a("s_lshr_b32 s64, s2, 4"); a("s_lshl_b32 s64, s64, 11"); a(f"s_add_u32 s64, s64, {QP+0x20000}")
    if gsleep: a(f"s_sleep {gsleep}")
    gather("L_ga",4,baseA,LQA,8)
    a("s_barrier")
    a("s_setprio 0")
    st(4)
    for k in range(4): a(f"v_mov_b32 v{HC+k}, -1")
    a("s_lshl_b32 s52, s31, 14"); a("s_lshl_b32 s60, s55, 21"); a("s_add_u32 s52, s52, s60"); a(f"s_add_u32 s52, s52, {IN1D}")
    a("s_lshl_b32 s53, s31, 10"); a("s_lshl_b32 s60, s55, 17"); a("s_add_u32 s53, s53, s60"); a(f"s_add_u32 s53, s53, {IN1H}")
    a("s_lshl_b32 s54, s31, 11"); a("s_lshl_b32 s60, s55, 18"); a("s_add_u32 s54, s54, s60"); a(f"s_add_u32 s54, s54, {YO}")
    if noclear: a("s_branch L_c2")
    a(f"buffer_store_dwordx4 v[{HC}:{HC+3}], v{T+2}, s[36:39], s53 offen sc1")
    a(f"buffer_store_dwordx4 v[{HC}:{HC+3}], v{T+2}, s[36:39], s54 offen sc1")
    a(f"buffer_store_dwordx4 v[{HC}:{HC+3}], v{T+2}, s[36:39], s54 offen offset:1024 sc1")
    a("s_mov_b32 s63, s52")
    for k in range(4*W):
        if k==2*W:
            a("s_cmp_eq_u32 s55, 1"); a("s_cbranch_scc1 L_c2")
        a(f"buffer_store_dwordx4 v[{HC}:{HC+3}], v{T+2}, s[36:39], s63 offen offset:{(k%4)*1024} sc1")
        if k%4==3: a("s_add_u32 s63, s63, 4096")
    a.label("L_c2")
    a("s_lshl_b32 s63, s31, 8"); a(f"s_add_u32 s63, s63, {TK}")
    a("s_lshl_b32 s64, s2, 3"); a(f"s_add_u32 s64, s64, {RDY}")
    a("s_mov_b64 exec, 1")
    a(f"v_mov_b32 v{T}, 0")
    a(f"buffer_store_dword v{T}, off, s[36:39], s63 sc1")
    a("s_waitcnt vmcnt(0)")
    a(f"buffer_store_dwordx2 v[{T+4}:{T+5}], off, s[36:39], s64 sc1")
    a("s_mov_b64 exec, -1")
    def woloads():
        a(f"""
        s_cmp_eq_u32 s55, 1
        s_cselect_b32 s44, s22, s12
        s_cselect_b32 s45, s23, s13
        s_mov_b32 s46, {0 if nowo else 4096*896}
        s_mul_i32 s63, s31, {32*896}
        v_mul_u32_u24 v{T}, {8*896}, v3
        v_lshl_add_u32 v{T}, v2, 4, v{T}
        v_add_u32 v{T+1}, {4*896}, v{T}
        """)
        n=0
        for i in range(8):
            for blk in range(4):
                r=WR+(i*4+blk)*4
                a(f"buffer_load_dwordx4 v[{r}:{r+3}], v{T+i//4}, s[44:47], s63 offen offset:{(i%4)*896+blk*256} {wflags}")
                n+=1
                if n%wog==0:
                    a("s_waitcnt vmcnt(0)")
                    if wosleep: a(f"s_sleep {wosleep}")
    if not wolate: woloads()
    else: a("s_sleep 127")
    a(f"s_mov_b32 s64, {RDY}")
    a(f"s_mov_b32 s65, {SPIN}")
    if nordy: a("s_branch L_rdd")
    a.label("L_rd")
    a(f"buffer_load_dwordx4 v[{DT}:{DT+3}], v{T+2}, s[36:39], s64 offen sc1")
    a(f"buffer_load_dwordx4 v[{DT+4}:{DT+7}], v{T+2}, s[36:39], s64 offen offset:1024 sc1")
    a("s_mov_b64 s[66:67], 0")
    a("s_waitcnt vmcnt(0)")
    for j in range(4):
        a(f"v_cmp_ne_u64 vcc, s[92:93], v[{DT+j*2}:{DT+j*2+1}]")
        a("s_or_b64 s[66:67], s[66:67], vcc")
    a("s_cmp_eq_u64 s[66:67], 0")
    a("s_cbranch_scc1 L_rdd")
    spin_tail("L_rd",64)
    a.label("L_rdd")
    gather("L_gb",2,baseB,LQB,64)
    a(f"v_mov_b32 v{T}, {LGO}"); a(f"v_mov_b32 v{T+1}, 1")
    a(f"ds_write_b32 v{T}, v{T+1}")
    st(3)
    if wolate:
        a("s_waitcnt lgkmcnt(0)")
        woloads()
    a("s_bitcmp1_b32 s2, 3")
    a("s_cbranch_scc1 L_helper_B")
    def anysent(rs,tmp):
        h=len(rs)//2
        chains=[(tmp,rs[:h]),(tmp+3,rs[h:])]
        for t,c in chains: a(f"v_max_u32 v{t}, v{c[0]}, v{c[1]}")
        k=2
        while k<h:
            for t,c in chains:
                if k+1<h: a(f"v_max3_u32 v{t}, v{t}, v{c[k]}, v{c[k+1]}")
                else: a(f"v_max_u32 v{t}, v{t}, v{c[k]}")
            k+=2
        a(f"v_max_u32 v{tmp}, v{tmp}, v{tmp+3}")
        a(f"v_cmp_eq_u32 vcc, -1, v{tmp}")
        a("s_cmp_eq_u64 vcc, 0")
    def helper(br):
        bri=0 if br=='A' else 1
        RP=(2 if br=='A' else 1)*W
        a(f"s_mov_b32 s94, {1 if dry else 0}")
        a(f"s_mov_b32 s57, {INV}")
        if dry: a(f"s_branch L_od{br}")
        a.label(f"L_real{br}")
        a(f"v_mov_b32 v{T}, {LCNT}")
        a(f"s_mov_b32 s65, {SPIN}")
        a.label(f"L_ow{br}")
        a(f"ds_read_b32 v{T+1}, v{T}")
        a("s_waitcnt lgkmcnt(0)")
        a(f"v_readfirstlane_b32 s64, v{T+1}")
        a(f"s_cmp_ge_u32 s64, {2*W if (br=='A' and not alate) else 2*W+1}")
        a(f"s_cbranch_scc1 L_od{br}")
        spin_tail(f"L_ow{br}",32 if (br=='A' and not alate) else 4)
        a.label(f"L_od{br}")
        slp=64 if (br=='A' and not alate) else 1
        a(f"v_mul_u32_u24 v{T}, {RP*8}, v2")
        a(f"v_mul_u32_u24 v{T+1}, {RP*128}, v2"); a(f"v_lshl_add_u32 v{T+1}, v3, 5, v{T+1}")
        a("s_cmp_eq_u32 s94, 0")
        a(f"s_cselect_b32 s65, {SPIN}, 1")
        a("s_cselect_b32 s57, s54, s57")
        a.label(f"L_hp{br}")
        for k in range(RP//2):
            a(f"buffer_load_dwordx4 v[{HD+4*k}:{HD+4*k+3}], v{T}, s[36:39], s53 offen offset:{16*k} sc1")
        if not merged:
            a("s_waitcnt vmcnt(0)")
            anysent([HD+k for k in range(RP*2)],T+2)
            a(f"s_cbranch_scc1 L_h2{br}")
            spin_tail(f"L_hp{br}",slp)
            a("s_mov_b32 s65, 1")
            a.label(f"L_h2{br}")
        for k in range(RP):
            for h in range(2):
                r=DT+k*8+h*4
                a(f"buffer_load_dwordx4 v[{r}:{r+3}], v{T+1}, s[36:39], s52 offen offset:{k*128+16*h} sc1")
        a("s_waitcnt vmcnt(0)")
        anysent([HD+k for k in range(RP*2)]+[DT+k for k in range(RP*8)],T+2)
        a(f"s_cbranch_scc1 L_dd{br}")
        spin_tail(f"L_hp{br}",slp)
        a.label(f"L_dd{br}")
        st(5)
        ROWRED=("row_ror:8","row_ror:4","row_ror:2","row_ror:1")
        a(f"v_max_f32 v{T+2}, v{HD}, v{HD+2}")
        for k in range(2,RP): a(f"v_max_f32 v{T+2}, v{T+2}, v{HD+2*k}")
        for m in ROWRED: a(f"v_max_f32_dpp v{T+2}, v{T+2}, v{T+2} {m} {DPPF}")
        for k in range(RP): a(f"v_sub_f32 v{HD+2*k}, v{HD+2*k}, v{T+2}")
        for k in range(RP): a(f"v_exp_f32 v{HD+2*k}, v{HD+2*k}")
        a(f"v_mul_f32 v{T+4}, v{HD}, v{HD+1}")
        for e in range(8): a(f"v_mul_f32 v{DT+e}, v{HD}, v{DT+e}")
        for k in range(1,RP):
            a(f"v_fmac_f32 v{T+4}, v{HD+2*k}, v{HD+2*k+1}")
            for e in range(8): a(f"v_fmac_f32 v{DT+e}, v{HD+2*k}, v{DT+k*8+e}")
        for m in ROWRED:
            a(f"v_add_f32_dpp v{T+4}, v{T+4}, v{T+4} {m} {DPPF}")
            for e in range(8): a(f"v_add_f32_dpp v{DT+e}, v{DT+e}, v{DT+e} {m} {DPPF}")
        a(f"v_rcp_f32 v{T+4}, v{T+4}")
        for e in range(8): a(f"v_mul_f32 v{DT+e}, v{DT+e}, v{T+4}")
        for e in range(4): a(f"v_cvt_pk_bf16_f32 v{DT+8+e}, v{DT+2*e}, v{DT+2*e+1}")
        def prm(i,v): a(f"v_perm_b32 v{HA+(i%2)*4+v}, v{DT+8+i//2}, v{DT+8+i//2}, v{SEL[i%2][v]}")
        for v in range(4): prm(0,v)
        for i in range(8):
            ar=HA+(i%2)*4
            for blk in range(4):
                r=WR+(i*4+blk)*4; c=HC+blk*4
                a(f"v_mfma_f32_16x16x32_bf16 v[{c}:{c+3}], v[{ar}:{ar+3}], v[{r}:{r+3}], {'0' if i==0 else 'v[%d:%d]'%(c,c+3)}")
                if i<7 and blk<2: prm(i+1,2*blk); prm(i+1,2*blk+1)
        for k in range(16): a(f"v_min_u32 v{HC+k}, -2, v{HC+k}")
        a("s_mov_b32 exec_hi, 0")
        for blk in range(4):
            a(f"buffer_store_dwordx4 v[{HC+blk*4}:{HC+blk*4+3}], v{T+3}, s[36:39], s57 offen offset:{blk*512} sc1")
        a("s_mov_b64 exec, -1")
        st(6)
        a("s_cmp_ge_u32 s31, 28")
        a(f"s_cbranch_scc1 L_he{br}")
        a(f"v_lshrrev_b32 v{T}, 2, v0"); a(f"v_lshlrev_b32 v{T}, 11, v{T}")
        a(f"v_and_b32 v{T+1}, 3, v0"); a(f"v_lshl_add_u32 v{T}, v{T+1}, 4, v{T}")
        a("s_lshl_b32 s62, s31, 6"); a(f"s_add_u32 s62, s62, {YO+bri*0x40000}")
        a("s_cmp_eq_u32 s94, 0")
        a(f"s_cselect_b32 s65, {SPIN}, 1")
        a("s_cselect_b32 s42, 1792, 0")
        if br=='A' and not alate: a("s_sleep 127"); a("s_sleep 127")
        a.label(f"L_yp{br}")
        a("s_mov_b32 s63, s62")
        for k in range(8):
            a(f"buffer_load_dwordx4 v[{DT+4*k}:{DT+4*k+3}], v{T}, s[36:39], s63 offen sc1")
            if k<7: a("s_add_u32 s63, s63, 0x8000")
        a("s_waitcnt vmcnt(0)")
        anysent([DT+k for k in range(32)],T+2)
        a(f"s_cbranch_scc1 L_yd{br}")
        spin_tail(f"L_yp{br}",127 if (br=='A' and not alate) else 1)
        a.label(f"L_yd{br}")
        for half in (16,8,4):
            for e in range(half): a(f"v_add_f32 v{DT+e}, v{DT+e}, v{DT+half+e}")
        for m in ("row_ror:8","row_ror:4"):
            for e in range(4): a(f"v_add_f32_dpp v{DT+e}, v{DT+e}, v{DT+e} {m} {DPPF}")
        for sw in ("v_permlane16_swap_b32","v_permlane32_swap_b32"):
            for e in range(4): a(f"v_mov_b32 v{DT+4+e}, v{DT+e}")
            for e in range(4): a(f"{sw} v{DT+e}, v{DT+4+e}")
            for e in range(4): a(f"v_add_f32 v{DT+e}, v{DT+e}, v{DT+4+e}")
        a(f"v_cvt_pk_bf16_f32 v{DT+4}, v{DT}, v{DT+1}")
        a(f"v_cvt_pk_bf16_f32 v{DT+5}, v{DT+2}, v{DT+3}")
        a(f"""
        s_mov_b32 s40, s24
        s_mov_b32 s41, s25
        s_lshl_b32 s62, s31, 5
        s_add_u32 s62, s62, {bri*896}
        v_lshlrev_b32 v{T}, 3, v0
        s_mov_b64 exec, 15
        buffer_store_dwordx2 v[{DT+4}:{DT+5}], v{T}, s[40:43], s62 offen
        s_mov_b64 exec, -1
        """)
        a.label(f"L_he{br}")
        a("s_cmp_eq_u32 s94, 0")
        a("s_mov_b32 s94, 0")
        if br=='B' and hprio: a("s_setprio 3")
        a(f"s_cbranch_scc0 L_real{br}")
        write_stamps(True)
        a("s_endpgm")
    helper('A')
    a.label("L_helper_B")
    helper('B')
    a.label("L_done")
    a("s_endpgm")
    if report is not None:
        a.raw(".globl report_kernel"); a.raw(".p2align 8"); a.raw(".type report_kernel,@function"); a.raw("report_kernel:")
        a(f"""
        s_cmp_ge_u32 s2, 1
        s_cbranch_scc1 LR_done
        s_load_dwordx4 s[4:7], s[0:1], 88
        s_mov_b32 s38, {WS_USED}
        s_mov_b32 s39, 0x20000
        s_mov_b32 s42, 256
        s_mov_b32 s43, 0x20000
        v_lshlrev_b32 v1, 2, v0
        v_mov_b32 v2, 0
        v_mov_b32 v3, -1
        ds_write_b32 v1, v3            ; 0..255: mins
        ds_write_b32 v1, v2 offset:256 ; maxs
        ds_write_b32 v1, v2 offset:512 ; sums
        s_waitcnt lgkmcnt(0)
        s_mov_b32 s36, s6
        s_mov_b32 s37, s7
        s_mov_b32 s40, s4
        s_mov_b32 s41, s5
        v_lshlrev_b32 v4, 4, v0
        s_mov_b32 s8, 0
        buffer_load_dwordx4 v[8:11], v4, s[36:39], s8 offen
        s_waitcnt vmcnt(0)
        v_subrev_u32 v8, 100, v8
        v_mov_b32 v5, 252
        ds_min_u32 v5, v8
        s_waitcnt lgkmcnt(0)
        ds_read_b32 v6, v5
        s_waitcnt lgkmcnt(0)
        v_mul_u32_u24 v4, {(W+1)*32}, v0
        """)
        for i in range(4):
            for w in range(W+1):
                a(f"s_mov_b32 s8, {0x4000+i*64*(W+1)*32+w*32}")
                a("buffer_load_dwordx4 v[8:11], v4, s[36:39], s8 offen")
                a("buffer_load_dwordx4 v[12:15], v4, s[36:39], s8 offen offset:16")
                a("s_waitcnt vmcnt(0)")
                g=0 if w else 32
                for k in range(8):
                    a(f"v_sub_u32 v{8+k}, v{8+k}, v6")
                    a(f"ds_min_u32 v2, v{8+k} offset:{g+4*k}")
                    a(f"ds_max_u32 v2, v{8+k} offset:{256+g+4*k}")
                    a(f"ds_add_u32 v2, v{8+k} offset:{512+g+4*k}")
                a("s_waitcnt lgkmcnt(0)")
        picks=[(0,0),(256+4,0),(512+8,8+LW),(512+12,8+LW),(512+16,8+LW),(512+20,8+LW),(28,0),(256+28,0),(256+32+28,0),(256+32+20,0),(256+32+24,0)]
        a("s_mov_b64 exec, 1")
        for k,(off,sh) in enumerate(picks):
            a(f"ds_read_b32 v8, v2 offset:{off}")
            a("s_waitcnt lgkmcnt(0)")
            a(f"v_lshrrev_b32 v8, {sh}, v8")
            a(f"buffer_store_dword v8, off, s[40:43], 0 offset:{4*k}")
            if report[0]==k: a("v_readfirstlane_b32 s10, v8")
        if report[0]<0: a("s_mov_b32 s10, 0")
        a(f"s_mul_i32 s10, s10, {report[1]}")
        a("s_min_u32 s10, s10, 200000")
        a("s_memrealtime s[12:13]"); a("s_waitcnt lgkmcnt(0)")
        a.label("LR_spin")
        a("s_memrealtime s[14:15]"); a("s_waitcnt lgkmcnt(0)")
        a("s_sub_u32 s16, s14, s12"); a("s_cmp_lt_u32 s16, s10"); a("s_cbranch_scc1 LR_spin")
        a.label("LR_done")
        a("s_endpgm")
    a.raw('.section .rodata,"a"')
    for nm,nv in ((NAME,256),)+((("report_kernel",16),) if report is not None else ()):
        a.raw(".p2align 6"); a.raw(f".amdhsa_kernel {nm}")
        a.raw(f"  .amdhsa_next_free_vgpr {nv}"); a.raw("  .amdhsa_next_free_sgpr 96"); a.raw(f"  .amdhsa_accum_offset {nv}")
        a.raw("  .amdhsa_float_denorm_mode_32 3")
        a.raw("  .amdhsa_group_segment_fixed_size 0"); a.raw("  .amdhsa_kernarg_size 104"); a.raw("  .amdhsa_user_sgpr_count 2")
        a.raw("  .amdhsa_user_sgpr_kernarg_segment_ptr 1"); a.raw("  .amdhsa_system_sgpr_workgroup_id_x 1"); a.raw(".end_amdhsa_kernel")
    return a.text()

def make(cfgs, listfile="list.txt"):
    import build
    lines=[]
    for c in cfgs:
        lab="_".join(f"{k}{str(v).replace(' ','').replace(',','.').strip('()[]')}" for k,v in c.items() if k!='stamp') or "base"
        fn="k_"+lab+".s"
        open(fn,"w").write(gen(**c))
        co=build.build(fn)
        W=c.get('W',2)
        lines.append(f"{lab} {co} {256*W if c.get('stamp') else 0} {NAME}:256:{(W+1)*64}:{c.get('lds',90112)}")
    open(listfile,"w").write("\n".join(lines)+"\n")
if __name__=="__main__":
    import json
    cfg=json.loads(sys.argv[2]) if len(sys.argv)>2 else {}
    open(sys.argv[1],"w").write(gen(**cfg))
```

```python
import struct, math, sys
from asmlib import Asm
NAME="concat_heads__gqa_block_cached__mha_block_cached__decode_kernel"
HDR=open('concat_heads__gqa_block_cached__mha_block_cached__decode.s.ref').read().split('; Override')[0]
def f2u(x): return struct.unpack('<I',struct.pack('<f',x))[0]
QP=0x10000; TK=0x50000; RDY=0x58000; IN1D=0x80000; IN1H=0x480000; YO=0x4C0000; WS_USED=0x540000
LQA=0; LQB=1024; LCNT=1536; LGO=1540; LSC=2048
DPPF="row_mask:0xf bank_mask:0xf"
INV=0x7f000000

def gen(stamp=False, sflags='nt', wflags='nt', lds=90112, W=2, dl=(10,10,10,10,10), NS=0, PK=64, gr=1, NV=12, thr=3, psl=2, osc='', tlate=True, prepub=True, satom=False, blk=64, hfirst=True, bar0=True, spin=1<<16,
        nodots=False, nopv=False, nowo=False, report=None, tq=3, npos=0, gsleep=24, dry=False, nrep=True, vside=False, wog=32, wosleep=0, wolate=False, merged=True, hprio=True, align=0, alate=True, noclear=False, nordy=False):
    SPIN=spin
    LW=W.bit_length()-1
    a=Asm()
    a.raw(HDR.rstrip())
    if report is None: a.raw(f"; @launch grid=(256,1,1) block=({(W+1)*64},1,1) lds={lds}")
    else: a.raw(f"; @launch kernel={NAME} grid=(256,1,1) block=({(W+1)*64},1,1) lds={lds}")
    if report is not None: a.raw("; @launch kernel=report_kernel grid=(1,1,1) block=(64,1,1) lds=1024")
    a.raw('.amdgcn_target "amdgcn-amd-amdhsa--gfx950"')
    a.raw(".text"); a.raw(f".globl {NAME}"); a.raw(".p2align 8"); a.raw(f".type {NAME},@function"); a.raw(f"{NAME}:")
    def st(k):
        if stamp:
            a("s_memrealtime s[68:69]"); a("s_waitcnt lgkmcnt(0)"); a(f"s_mov_b32 s{72+k}, s68")
    def prologue(done):
        a(f"""
        s_cmp_ge_u32 s2, 256
        s_cbranch_scc1 {done}
        s_load_dwordx16 s[4:19], s[0:1], 0
        s_load_dwordx8 s[20:27], s[0:1], 64
        s_load_dwordx2 s[28:29], s[0:1], 96
        v_lshrrev_b32 v1, 6, v0
        v_and_b32 v0, 63, v0
        v_readfirstlane_b32 s30, v1
        v_and_b32 v2, 15, v0        ; n
        v_lshrrev_b32 v3, 4, v0     ; g
        s_mov_b32 s38, {WS_USED}
        s_mov_b32 s39, 0x20000
        """)
    def selectors():
        a("""
        v_and_b32 v4, 1, v0
        v_cmp_eq_u32 vcc, 1, v4
        v_mov_b32 v5, 0x0c0c0100
        v_mov_b32 v6, 0x01000c0c
        v_cndmask_b32 v5, v5, v6, vcc
        v_mov_b32 v6, 0x0c0c0302
        v_mov_b32 v7, 0x03020c0c
        v_cndmask_b32 v6, v6, v7, vcc
        v_bfe_u32 v4, v0, 1, 2
        v_mov_b32 v7, 0x0c0c0c0c
        """)
        for v in range(4):
            a(f"v_cmp_eq_u32 vcc, {v}, v4")
            a(f"v_cndmask_b32 v{8+v}, v7, v5, vcc")
            a(f"v_cndmask_b32 v{12+v}, v7, v6, vcc")
    SEL=[[8,9,10,11],[12,13,14,15]]
    prologue('L_done')
    if hfirst:
        a("s_cmp_eq_u32 s30, 0"); a("s_cbranch_scc0 L_stream")
        mark0=len(a.lines)
        a.label("L_stream")
    else:
        a("s_cmp_eq_u32 s30, 0"); a("s_cbranch_scc1 L_helper")
    def after_kernarg():
        a("s_waitcnt lgkmcnt(0)")
        if stamp:
            for k in range(8): a(f"s_mov_b32 s{72+k}, 0")
        st(0)
        a("s_mov_b32 s36, s28"); a("s_mov_b32 s37, s29")
    def write_stamps(helper):
        if not stamp: return
        st(7)
        a("s_getreg_b32 s66, hwreg(HW_REG_XCC_ID)")
        a("s_mov_b64 exec, 1")
        a("v_mov_b32 v4, 0")
        if not helper:
            a("v_mov_b32 v20, s72"); a("v_mov_b32 v21, s79"); a("v_mov_b32 v22, s66"); a("v_mov_b32 v23, 0")
            a(f"s_lshl_b32 s64, s2, {LW}"); a("s_add_u32 s64, s64, s31"); a("s_lshl_b32 s64, s64, 4")
            a("buffer_store_dwordx4 v[20:23], v4, s[36:39], s64 offen")
        for k in range(8): a(f"v_mov_b32 v{24+k}, s{72+k}")
        a(f"s_mul_i32 s64, s2, {W+1}"); a("s_add_u32 s64, s64, s30"); a("s_lshl_b32 s64, s64, 5"); a("s_add_u32 s64, s64, 0x4000")
        a("buffer_store_dwordx4 v[24:27], v4, s[36:39], s64 offen")
        a("buffer_store_dwordx4 v[28:31], v4, s[36:39], s64 offen offset:16")
    def spin_tail(lbl,sleep):
        if sleep: a(f"s_sleep {sleep}")
        a("s_sub_u32 s65, s65, 1"); a("s_cmp_lg_u32 s65, 0")
        a(f"s_cbranch_scc1 {lbl}")
    VOFF=1; VSC=4; VM=5; VL=6; VMC=7
    Q=16; ACC=32; AR=40; D=48; T=52; PKR=60; VOFF2=62; VTK=63
    RING=64; SIDE=128
    STEP=4096*W
    NA=(1<<19)//STEP; NB=((1<<20)-PK*1024)//STEP
    NT=16*PK//8
    c0=((16-dl[4])//gr)*gr
    TQ=tq if satom else min(tq,c0+gr-1)
    assert gr==1 or len(set(dl))==1
    assert max(dl)+gr<=16
    a(f"""
    s_sub_u32 s31, s30, 1            ; sw
    v_lshlrev_b32 v{VOFF}, 9, v3
    v_lshl_add_u32 v{VOFF}, v2, 4, v{VOFF}
    s_mov_b32 s34, 0x200000
    s_mov_b32 s35, 0x20000
    s_lshl_b32 s61, s31, 12
    """)
    if blk:
        a("s_lshr_b32 s48, s2, 4"); a("s_lshl_b32 s48, s48, 3"); a("s_and_b32 s49, s2, 7"); a("s_or_b32 s48, s48, s49")
        a("s_bfe_u32 s49, s2, 0x10003"); a(f"s_mul_i32 s49, s49, {blk*1024}")
        a("s_lshl_b32 s60, s48, 20"); a("s_add_u32 s60, s60, s49")
    else: a("s_lshl_b32 s60, s2, 19")
    def adv(r):
        if blk:
            a(f"s_bitset1_b32 {r}, {(blk*1024).bit_length()-1}"); a(f"s_add_u32 {r}, {r}, {STEP}"); a(f"s_bitset0_b32 {r}, {(blk*1024).bit_length()-1}")
        else: a(f"s_add_u32 {r}, {r}, {STEP}")
    after_kernarg()
    a("s_add_u32 s32, s6, s60"); a("s_addc_u32 s33, s7, 0")
    a("s_add_u32 s40, s8, s60"); a("s_addc_u32 s41, s9, 0"); a("s_mov_b32 s42, 0x200000"); a("s_mov_b32 s43, 0x20000")
    if bar0: a("s_barrier")
    OFFS=[0,256,2048,2304]
    PH=[('A','K',NA),('A','V',NA),('B','K',NB),('B','V',NB)]
    assert not vside
    ends=[NA-NS,2*NA-NS-NV,2*NA-NS-NV+NB,2*NA-NS-NV+2*NB]
    def ld(base,i,srd,soff,voff=VOFF,rf='v'):
        r=base+i*4
        a(f"buffer_load_dwordx4 {rf}[{r}:{r+3}], v{voff}, {srd}, {soff} offen offset:{OFFS[i]} {sflags}")
    def issue_static(h,p):
        h%=16
        ld(RING+(h//4)*16,h%4,"s[32:35]","s52")
        if h%4==3:
            adv("s52")
            a("s_add_u32 s53, s53, 1")
            if p is not None:
                a(f"s_cmp_eq_u32 s53, {ends[p]}")
                if p<3:
                    b=54+2*p
                    a(f"s_cselect_b32 s32, s{b}, s32"); a(f"s_cselect_b32 s33, s{b+1}, s33"); a(f"s_cselect_b32 s52, {'s94' if p==0 else 's61'}, s52")
                else:
                    a("s_cselect_b32 s34, 0, s34")
    def ticket_req():
        if satom:
            a("s_mov_b32 s90, 1")
            a("s_atomic_add s90, s[28:29], s91 glc")
            return
        a("s_mov_b64 exec, 1")
        a(f"v_mov_b32 v{VTK}, 1")
        a(f"buffer_atomic_add v{VTK}, off, s[36:39], s91 sc0 sc1")
        a("s_mov_b64 exec, -1")
    def ticket_use():
        if satom: a("s_waitcnt lgkmcnt(0)")
        else: a(f"v_readfirstlane_b32 s90, v{VTK}")
        if blk:
            assert PK%blk==0
            a("s_and_b32 s88, s90, 7"); a("s_lshl_b32 s88, s88, 21")
            a("s_lshr_b32 s89, s90, 3"); a("s_lshl_b32 s89, s89, 13")
            a("s_add_u32 s88, s88, s89"); a(f"s_add_u32 s88, s88, {2*NB*STEP}")
        else:
            a("s_and_b32 s88, s90, 15"); a("s_lshl_b32 s88, s88, 20")
            a("s_lshr_b32 s89, s90, 4"); a("s_lshl_b32 s89, s89, 13")
            a("s_add_u32 s88, s88, s89"); a(f"s_add_u32 s88, s88, {NB*STEP}")
        a(f"s_cmp_lt_u32 s90, {NT}")
        a(f"s_cselect_b32 s88, s88, {INV}")
    def issue_pool(h):
        h%=16
        if h==0: ticket_use()
        if h==TQ: ticket_req()
        k=h//4
        ld(RING+k*16,h%4,"s[80:83]" if k<2 else "s[84:87]","s88",VOFF if k%2==0 else VOFF2)
    def initial_prefetch():
        n=0
        a("s_mov_b32 s94, s61")
        for k in range(NV):
            for i in range(4):
                if n>=dl[0]: a(f"s_waitcnt vmcnt({dl[0]-1})")
                ld(k*16,i,"s[40:43]","s94",rf='a'); n+=1
                if n==dl[0]: setup2()
            adv("s94")
        a("s_mov_b32 s95, s61")
        for k in range(NS):
            for i in range(4):
                if n>=dl[0]: a(f"s_waitcnt vmcnt({dl[0]-1})")
                ld(SIDE+k*16,i,"s[40:43]" if vside else "s[32:35]","s95"); n+=1
                if n==dl[0]: setup2()
            adv("s95")
        a("s_mov_b32 s52, s61" if vside else "s_mov_b32 s52, s95")
        a("s_mov_b32 s53, 0")
        for h in range(dl[0]):
            if n>=dl[0]: a(f"s_waitcnt vmcnt({dl[0]-1})")
            issue_static(h,None); n+=1
            if n==dl[0]: setup2()
    def setup2():
        selectors()
        a(f"""
        s_add_u32 s54, s8, s60
        s_addc_u32 s55, s9, 0
        {"s_lshl_b32 s60, s48, 21" if blk else "s_lshl_b32 s60, s2, 20"}
        {"s_add_u32 s60, s60, s49" if blk else ""}
        s_add_u32 s56, s16, s60
        s_addc_u32 s57, s17, 0
        s_add_u32 s58, s18, s60
        s_addc_u32 s59, s19, 0
        s_and_b32 s60, s60, 0xff000000
        s_add_u32 s80, s16, s60
        s_addc_u32 s81, s17, 0
        s_mov_b32 s82, 0x1000000
        s_mov_b32 s83, 0x20000
        s_add_u32 s84, s18, s60
        s_addc_u32 s85, s19, 0
        s_mov_b32 s86, 0x1000000
        s_mov_b32 s87, 0x20000
        s_lshr_b32 s91, s2, 4
        s_lshl_b32 s91, s91, 8
        s_add_u32 s91, s91, {TK}
        s_mov_b32 s62, {f2u(math.log2(math.e)/16.0)}
        s_mul_i32 s63, s31, {65536//W}
        s_add_u32 s63, s63, {LSC}
        v_add_u32 v{VOFF2}, 0x1000, v{VOFF}
        """)
    initial_prefetch()
    st(6)
    a("s_barrier")
    st(1)
    def dots1(base,i,nh,dbase):
        s_=i//2
        for e4 in range(1 if nodots else 4):
            e=(i%2)*4+e4
            for h in range(nh):
                d=dbase+s_*nh+h
                a(f"v_dot2_f32_bf16 v{d}, v{base+i*4+e4}, v{Q+h*8+e}, {'0' if e==0 else 'v%d'%d}")
    def reduce(nh,dbase,tb,ns=2):
        for s_ in range(ns):
            if nh==2:
                a(f"v_add_f32_dpp v{tb+s_}, v{dbase+s_*2}, v{dbase+s_*2} row_ror:8 row_mask:0xf bank_mask:0x3")
                a(f"v_add_f32_dpp v{tb+s_}, v{dbase+s_*2+1}, v{dbase+s_*2+1} row_ror:8 row_mask:0xf bank_mask:0xc")
            else:
                a(f"v_add_f32_dpp v{tb+s_}, v{dbase+s_}, v{dbase+s_} row_ror:8 {DPPF}")
        for m in ("row_half_mirror","quad_perm:[1,0,3,2]","quad_perm:[2,3,0,1]"):
            for s_ in range(ns):
                a(f"v_add_f32_dpp v{tb+s_}, v{tb+s_}, v{tb+s_} {m} {DPPF}")
    class Cur: pass
    cur=Cur(); cur.d=dl[0]; cur.skip=0
    def arrive(c,iss,extra=0):
        if cur.skip:
            a(f"s_waitcnt vmcnt({cur.d+cur.skip-1+extra})"); cur.skip-=1
        elif c%gr==0:
            a(f"s_waitcnt vmcnt({cur.d-gr+extra})")
            for k in range(gr): iss(c+cur.d+k)
    def retarget(nd,iss):
        assert cur.skip==0
        if nd>cur.d:
            for h in range(cur.d,nd): iss(h)
        else: cur.skip=cur.d-nd
        cur.d=nd
    def kfinish(nh,j):
        reduce(nh,D,T)
        a(f"v_max3_f32 v{VM}, v{VM}, v{T}, v{T+1}")
        a(f"v_cvt_pk_bf16_f32 v{T+2}, v{T}, v{T+1}")
        a(f"ds_write_b32 v{VSC}, v{T+2} offset:{j*256}")
    def kunit(j,jl,nh,iss,extra=lambda c:0):
        for i in range(4):
            arrive(4*j+i,iss,extra(4*j+i)); dots1(RING+j*16,i,nh,D)
        kfinish(nh,jl)
    def pcalc(t0,ar):
        a(f"v_fma_f32 v{t0}, v{t0}, s62, -v{VMC}")
        a(f"v_fma_f32 v{t0+1}, v{t0+1}, s62, -v{VMC}")
        a(f"v_exp_f32 v{t0}, v{t0}")
        a(f"v_exp_f32 v{t0+1}, v{t0+1}")
        a(f"v_add_f32 v{VL}, v{VL}, v{t0}")
        a(f"v_add_f32 v{VL}, v{VL}, v{t0+1}")
        a(f"v_cvt_pk_bf16_f32 v{t0}, v{t0}, v{t0+1}")
        for s_ in range(2):
            for v in range(4):
                a(f"v_perm_b32 v{ar+s_*4+v}, v{t0}, v{t0}, v{SEL[s_][v]}")
    def pvunit(j,iss,extra=lambda c:0):
        for i in range(4):
            arrive(4*j+i,iss,extra(4*j+i))
            r=RING+j*16+i*4; c=ACC+(i%2)*4; ar=AR+(i//2)*4
            if not nopv: a(f"v_mfma_f32_16x16x32_bf16 v[{c}:{c+3}], v[{ar}:{ar+3}], v[{r}:{r+3}], v[{c}:{c+3}]")
    def vunit(j,jl,iss,par=None,nxt=None,side=None):
        if par is None: par=j%2
        if nxt is None: nxt=jl+1
        pk=PKR+par
        a("s_waitcnt lgkmcnt(0)")
        a(f"v_lshlrev_b32 v{T}, 16, v{pk}")
        a(f"v_and_b32 v{T+1}, 0xffff0000, v{pk}")
        a(f"ds_read_b32 v{PKR+1-par}, v{VSC} offset:{nxt*256}")
        pcalc(T,AR)
        if side is None: pvunit(j,iss)
        else:
            for i in range(4):
                r=side*16+i*4; c=ACC+(i%2)*4; ar=AR+(i//2)*4
                a(f"v_mfma_f32_16x16x32_bf16 v[{c}:{c+3}], v[{ar}:{ar+3}], a[{r}:{r+3}], v[{c}:{c+3}]")
    def xrow(reg,op):
        a(f"v_mov_b32 v{T+7}, v{reg}")
        a(f"v_permlane16_swap_b32 v{reg}, v{T+7}")
        a(f"{op} v{reg}, v{reg}, v{T+7}")
        a(f"v_mov_b32 v{T+7}, v{reg}")
        a(f"v_permlane32_swap_b32 v{reg}, v{T+7}")
        a(f"{op} v{reg}, v{reg}, v{T+7}")
    def lds_inc():
        a("s_mov_b64 exec, 1")
        a(f"v_mov_b32 v{T+4}, {LCNT}"); a(f"v_mov_b32 v{T+5}, 1")
        a(f"ds_add_u32 v{T+4}, v{T+5}")
        a("s_mov_b64 exec, -1")
    PA=24
    def pubaddr(br):
        sh=5 if br=='A' else 4
        bri=0 if br=='A' else 1
        a(f"s_lshr_b32 s64, s2, {sh}")
        a(f"s_and_b32 s65, s2, {(1<<sh)-1}")
        a(f"s_lshl_b32 s65, s65, {LW}"); a("s_add_u32 s65, s65, s31")
        a(f"s_lshl_b32 s64, s64, {4 if br=='A' else 3}")
        a("s_lshl_b32 s44, s64, 14"); a("s_lshl_b32 s45, s65, 7"); a("s_add_u32 s44, s44, s45")
        a(f"s_add_u32 s44, s44, {IN1D+bri*0x200000}")
        a("s_add_u32 s45, s44, 0x10000")
        a("s_lshl_b32 s46, s64, 10"); a("s_lshl_b32 s47, s65, 3"); a("s_add_u32 s46, s46, s47")
        a(f"s_add_u32 s46, s46, {IN1H+bri*0x20000}")
        a(f"v_lshrrev_b32 v{PA}, 5, v0"); a(f"v_lshlrev_b32 v{PA}, 17, v{PA}")
        a(f"v_lshrrev_b32 v{PA+1}, 2, v2"); a(f"v_lshl_add_u32 v{PA}, v{PA+1}, 14, v{PA}")
        a(f"v_and_b32 v{PA+1}, 3, v2"); a(f"v_lshl_add_u32 v{PA}, v{PA+1}, 5, v{PA}")
        a(f"v_and_b32 v{PA+1}, 1, v3"); a(f"v_lshl_add_u32 v{PA}, v{PA+1}, 4, v{PA}")
        a(f"v_lshlrev_b32 v{PA+1}, 10, v0")
        a(f"v_mov_b32 v{PA+2}, {LCNT}"); a(f"v_mov_b32 v{PA+3}, 1")
    def publish(br):
        if br=='A' or not (prepub and PK): pubaddr(br)
        xrow(VL,"v_add_f32")
        a(f"v_min_u32 v{T+2}, -2, v{VMC}"); a(f"v_min_u32 v{T+3}, -2, v{VL}")
        for i in range(8): a(f"v_min_u32 v{ACC+i}, -2, v{ACC+i}")
        if br=='B': a("s_mov_b32 exec_hi, 0")
        a(f"buffer_store_dwordx4 v[{ACC}:{ACC+3}], v{PA}, s[36:39], s44 offen sc1")
        a(f"buffer_store_dwordx4 v[{ACC+4}:{ACC+7}], v{PA}, s[36:39], s45 offen sc1")
        a(f"s_mov_b64 exec, {0xffff if br=='A' else 0xff}")
        a(f"buffer_store_dwordx2 v[{T+2}:{T+3}], v{PA+1}, s[36:39], s46 offen sc1")
        a("s_mov_b64 exec, 1")
        a(f"ds_add_u32 v{PA+2}, v{PA+3}")
        a("s_mov_b64 exec, -1")
    for p,(br,kv,n) in enumerate(PH):
        nh=2 if br=='A' else 1
        iss=lambda h,p=p: issue_static(h,p)
        a(f"v_lshlrev_b32 v{VSC}, 2, v0")
        a(f"v_add_u32 v{VSC}, s63, v{VSC}")
        done=0; tail=0
        if kv=='K':
            lq=LQA if br=='A' else LQB
            a(f"v_lshlrev_b32 v{T}, 4, v2")
            for h in range(nh):
                a(f"ds_read_b128 v[{Q+h*8}:{Q+h*8+3}], v{T} offset:{lq+h*512}")
                a(f"ds_read_b128 v[{Q+h*8+4}:{Q+h*8+7}], v{T} offset:{lq+h*512+256}")
            a(f"v_mov_b32 v{VM}, 0xff800000")
            a("s_waitcnt lgkmcnt(0)")
        else:
            a(f"ds_read_b32 v{PKR}, v{VSC} offset:{NV*256 if p==1 else 0}")
            xrow(VM,"v_max_f32")
            a(f"v_cvt_pk_bf16_f32 v{VM}, v{VM}, v{VM}")
            a(f"v_and_b32 v{VM}, 0xffff0000, v{VM}")
            a(f"v_mul_f32 v{VMC}, s62, v{VM}")
            a(f"v_mov_b32 v{VL}, 0")
            for i in range(8): a(f"v_mov_b32 v{ACC+i}, 0")
            if p==3 and PK: tail=8
        def group(jl0,iss):
            for j in range(4):
                if kv=='K': kunit(j,jl0+j,nh,iss)
                else: vunit(j,jl0+j,iss)
        if dl[p]!=cur.d: retarget(dl[p],iss)
        if p==0 and NS and not vside:
            for k in range(NS):
                kunit(k%4,NS+k,nh,iss)
                for i in range(4): dots1(SIDE+k*16,i,nh,D)
                kfinish(nh,k)
            done=2*NS
            a(f"v_add_u32 v{VSC}, {done*256}, v{VSC}")
        if p==1 and NV:
            for k in range(NV):
                vunit(k%4,None,iss,0,k)
                vunit(None,None,None,1,NV+k+1,side=k)
            done=2*NV
            a(f"v_add_u32 v{VSC}, {done*256}, v{VSC}")
        if True:
            if cur.skip:
                group(0,iss); done+=4
                a(f"v_add_u32 v{VSC}, 1024, v{VSC}")
        assert (n-done-tail)%4==0
        a(f"s_mov_b32 s60, {(n-done-tail)//4}")
        if align: a.flush(); a.raw(f".p2align {align}")
        a.label(f"L_ph{p}")
        group(0,iss)
        a(f"v_add_u32 v{VSC}, 1024, v{VSC}")
        a("s_sub_u32 s60, s60, 1")
        a("s_cmp_lg_u32 s60, 0")
        a(f"s_cbranch_scc1 L_ph{p}")
        if tail:
            if prepub: pubaddr('B')
            if not tlate: ticket_req()
            if dl[4]!=cur.d: retarget(dl[4],iss)
            def iss1(h):
                if tlate and h==16+TQ: ticket_req()
                iss(h)
            group(0,iss1)
            def iss2(h):
                if h<16:
                    if tlate and h==TQ: ticket_req()
                    issue_static(h,None)
                else: issue_pool(h)
            group(4,iss2)
            st(5)
            a(f"s_cmp_eq_u32 s88, {INV}")
            a("s_cbranch_scc1 L_pool_end")
            a.label("L_pool")
            ex=lambda c: 1 if (not satom and any(c+gr-1<A<=c+cur.d-1 for A in (TQ,TQ+16))) else 0
            for j in range(2):
                for i in range(4):
                    arrive(4*j+i,issue_pool,ex(4*j+i)); dots1(RING+j*16,i,1,D+2*j)
            reduce(1,D,T,4)
            a(f"v_cvt_pk_bf16_f32 v{T+4}, v{T}, v{T+1}")
            a(f"v_cvt_pk_bf16_f32 v{T+5}, v{T+2}, v{T+3}")
            a(f"v_lshlrev_b32 v{T}, 16, v{T+4}"); a(f"v_and_b32 v{T+1}, 0xffff0000, v{T+4}")
            a(f"v_lshlrev_b32 v{T+2}, 16, v{T+5}"); a(f"v_and_b32 v{T+3}, 0xffff0000, v{T+5}")
            a(f"v_max3_f32 v{T+4}, v{T}, v{T+1}, v{T+2}")
            a(f"v_max_f32 v{T+4}, v{T+4}, v{T+3}")
            a(f"v_cmp_gt_f32 vcc, v{T+4}, v{VM}")
            a("s_cmp_eq_u64 vcc, 0")
            a("s_cbranch_scc1 L_norescale")
            a(f"v_max_f32 v{VM}, v{VM}, v{T+4}")
            xrow(VM,"v_max_f32")
            a(f"v_mul_f32 v{T+4}, s62, v{VM}")
            a(f"v_sub_f32 v{T+5}, v{VMC}, v{T+4}")
            a(f"v_exp_f32 v{T+5}, v{T+5}")
            a(f"v_mov_b32 v{VMC}, v{T+4}")
            a(f"v_mul_f32 v{VL}, v{VL}, v{T+5}")
            for i in range(8): a(f"v_mul_f32 v{ACC+i}, v{ACC+i}, v{T+5}")
            a.label("L_norescale")
            pcalc(T,AR)
            pvunit(2,issue_pool,ex)
            pcalc(T+2,AR)
            pvunit(3,issue_pool,ex)
            a(f"s_cmp_lg_u32 s88, {INV}")
            a("s_cbranch_scc1 L_pool")
            a.label("L_pool_end")
        if p==1:
            a(f"v_mov_b32 v{T}, {LGO}")
            a(f"s_mov_b32 s65, {SPIN}")
            a.label("L_go")
            a(f"ds_read_b32 v{T+1}, v{T}")
            a("s_waitcnt lgkmcnt(0)")
            a(f"v_readfirstlane_b32 s64, v{T+1}")
            a("s_cmp_lg_u32 s64, 0")
            a("s_cbranch_scc1 L_god")
            spin_tail("L_go",2)
            a.label("L_god")
        if kv=='V': publish(br)
        if p==2: lds_inc()
        if p<3: st(2+p)
        elif not tail: st(5)
    write_stamps(False)
    a("s_endpgm")
    WR=64; XR=16; HA=32; HC=40; T=56; DT=192; HD=16
    mark1=len(a.lines)
    a.label("L_helper")
    a(f"""
    s_setprio 3
    s_memrealtime s[92:93]
    s_lshr_b32 s31, s2, 4
    s_lshl_b32 s31, s31, 3
    s_and_b32 s60, s2, 7
    s_or_b32 s31, s31, s60           ; i = 0..127
    s_bfe_u32 s55, s2, 0x10003       ; branch
    s_mov_b32 s42, 896
    s_mov_b32 s43, 0x20000
    s_mov_b32 s47, 0x20000
    s_mov_b32 s50, 256
    s_mov_b32 s51, 0x20000
    s_and_b32 s60, s31, 31           ; cb
    s_lshr_b32 s61, s31, 5           ; ks
    s_mov_b32 s46, {448*8192}
    v_mul_u32_u24 v{T}, 56, v3
    s_mul_i32 s62, s61, 224
    s_mov_b32 s63, {28*8192}
    v_mul_lo_u32 v{T+1}, s63, v3
    v_lshl_add_u32 v{T+1}, v2, 4, v{T+1}
    s_mul_i32 s63, s61, {112*8192}
    s_lshl_b32 s64, s60, 8
    s_add_u32 s63, s63, s64
    """)
    after_kernarg()
    a(f"""
    s_mov_b32 s48, s26
    s_mov_b32 s49, s27
    s_cmp_lg_u32 s2, 0
    s_cbranch_scc1 L_nononce
    s_or_b32 s92, s92, 1
    v_mov_b32 v{T+4}, s92
    v_mov_b32 v{T+5}, s93
    v_lshlrev_b32 v{T+6}, 3, v0
    s_mov_b32 exec_hi, 0
    buffer_store_dwordx2 v[{T+4}:{T+5}], v{T+6}, s[48:51], 0 offen sc1
    s_mov_b64 exec, -1
    """)
    a.label("L_nononce")
    a("""
    s_lshr_b32 s56, s2, 3
    s_lshl_b32 s56, s56, 3
    s_cmp_eq_u32 s55, 0
    s_cselect_b32 s40, s4, s14
    s_cselect_b32 s41, s5, s15
    s_cselect_b32 s44, s10, s20
    s_cselect_b32 s45, s11, s21
    """)
    for i in range(28):
        a(f"buffer_load_dwordx4 v[{WR+4*i}:{WR+4*i+3}], v{T+1}, s[44:47], s63 offen {wflags}")
        if i<27: a("s_add_u32 s63, s63, 8192")
        if i==0:
            for k in range(7):
                a(f"buffer_load_dwordx2 v[{XR+2*k}:{XR+2*k+1}], v{T}, s[40:43], s62 offen offset:{8*k}")
    NOFF="s56" if nrep else "0"
    if bar0: a("s_barrier")
    if npos==0: a(f"buffer_load_dwordx2 v[{T+4}:{T+5}], off, s[48:51], {NOFF} sc1")
    selectors()
    a(f"""
    v_mov_b32 v{HC+4}, {LCNT}
    v_mov_b32 v{HC+6}, 0
    v_mov_b32 v{HC+7}, 0
    ds_write_b64 v{HC+4}, v[{HC+6}:{HC+7}]
    v_lshlrev_b32 v{T+2}, 4, v0
    v_and_b32 v{T+3}, 1, v3
    v_lshlrev_b32 v{T+3}, 4, v{T+3}
    v_lshl_add_u32 v{T+3}, v2, 5, v{T+3}     ; n*32+gb*16
    v_lshrrev_b32 v{T+6}, 5, v0
    v_lshlrev_b32 v{T+6}, 4, v{T+6}
    v_lshl_add_u32 v{T+6}, v{T+3}, 1, v{T+6} ; n*64+gb*32+hi*16
    s_lshl_b32 s63, s61, 15
    s_lshl_b32 s64, s60, 10
    s_add_u32 s63, s63, s64
    s_lshl_b32 s64, s55, 17
    s_add_u32 s63, s63, s64
    s_add_u32 s63, s63, {QP}
    """)
    for i in range(28):
        a(f"s_waitcnt vmcnt({27-i+(1 if i>=npos else 0)})")
        if i==npos-1: a(f"buffer_load_dwordx2 v[{T+4}:{T+5}], off, s[48:51], {NOFF} sc1")
        ar=HA+(i%2)*4
        for v in range(4):
            a(f"v_perm_b32 v{ar+v}, v{XR+i//2}, v{XR+i//2}, v{SEL[i%2][v]}")
        a(f"v_mfma_f32_16x16x32_bf16 v[{HC}:{HC+3}], v[{ar}:{ar+3}], v[{WR+4*i}:{WR+4*i+3}], {'0' if i==0 else 'v[%d:%d]'%(HC,HC+3)}")
    st(1)
    a(f"s_mov_b32 s65, {SPIN}")
    a.label("L_np")
    a("s_waitcnt vmcnt(0)")
    a(f"v_readfirstlane_b32 s92, v{T+4}"); a(f"v_readfirstlane_b32 s93, v{T+5}")
    a("s_cmp_lg_u32 s92, 0")
    a("s_cbranch_scc1 L_nd")
    a(f"buffer_load_dwordx2 v[{T+4}:{T+5}], off, s[48:51], {NOFF} sc1")
    spin_tail("L_np",0)
    a.label("L_nd")
    a("s_mov_b32 exec_lo, 0")
    a(f"v_mov_b32 v{HC}, v{HC+2}"); a(f"v_mov_b32 v{HC+1}, v{HC+3}")
    a("s_mov_b32 exec_lo, -1")
    a(f"v_mov_b32 v{HC+2}, v{T+4}"); a(f"v_mov_b32 v{HC+3}, v{T+5}")
    a(f"buffer_store_dwordx4 v[{HC}:{HC+3}], v{T+6}, s[36:39], s63 offen sc1")
    st(2)
    def gather(lbl,nk,base_expr,ldsoff,sleep):
        a(f"s_mov_b32 s65, {SPIN}")
        a.label(lbl)
        base_expr()
        for ks in range(4):
            for k in range(nk):
                r=DT+(ks*nk+k)*4
                a(f"buffer_load_dwordx4 v[{r}:{r+3}], v{T+2}, s[36:39], s64 offen offset:{k*1024} sc1")
            if ks<3: a("s_add_u32 s64, s64, 0x8000")
        a("s_mov_b64 s[66:67], 0")
        for j in range(4*nk):
            a(f"s_waitcnt vmcnt({4*nk-1-j})")
            a(f"v_cmp_ne_u64 vcc, s[92:93], v[{DT+j*4+2}:{DT+j*4+3}]")
            a("s_or_b64 s[66:67], s[66:67], vcc")
        a("s_cmp_eq_u64 s[66:67], 0")
        a(f"s_cbranch_scc1 {lbl}d")
        spin_tail(lbl,sleep)
        a.label(lbl+"d")
        def pr(j): return f"v[{DT+j*4}:{DT+j*4+1}]"
        for k in range(nk):
            a(f"v_pk_add_f32 {pr(k)}, {pr(k)}, {pr(nk+k)}")
            a(f"v_pk_add_f32 {pr(2*nk+k)}, {pr(2*nk+k)}, {pr(3*nk+k)}")
        for k in range(nk): a(f"v_pk_add_f32 {pr(k)}, {pr(k)}, {pr(2*nk+k)}")
        a(f"v_lshlrev_b32 v{T}, 2, v0")
        for k in range(nk): a(f"v_cvt_pk_bf16_f32 v{DT+k*4+2}, v{DT+k*4}, v{DT+k*4+1}")
        for k in range(nk): a(f"ds_write_b32 v{T}, v{DT+k*4+2} offset:{ldsoff+256*k}")
        a("s_waitcnt lgkmcnt(0)")
    def baseA(): a("s_lshr_b32 s64, s2, 5"); a("s_lshl_b32 s64, s64, 12"); a(f"s_add_u32 s64, s64, {QP}")
    def baseB(): a("s_lshr_b32 s64, s2, 4"); a("s_lshl_b32 s64, s64, 11"); a(f"s_add_u32 s64, s64, {QP+0x20000}")
    if gsleep: a(f"s_sleep {gsleep}")
    gather("L_ga",4,baseA,LQA,8)
    a("s_barrier")
    a("s_setprio 0")
    st(4)
    for k in range(4): a(f"v_mov_b32 v{HC+k}, -1")
    a("s_lshl_b32 s52, s31, 14"); a("s_lshl_b32 s60, s55, 21"); a("s_add_u32 s52, s52, s60"); a(f"s_add_u32 s52, s52, {IN1D}")
    a("s_lshl_b32 s53, s31, 10"); a("s_lshl_b32 s60, s55, 17"); a("s_add_u32 s53, s53, s60"); a(f"s_add_u32 s53, s53, {IN1H}")
    a("s_lshl_b32 s54, s31, 11"); a("s_lshl_b32 s60, s55, 18"); a("s_add_u32 s54, s54, s60"); a(f"s_add_u32 s54, s54, {YO}")
    if noclear: a("s_branch L_c2")
    a(f"buffer_store_dwordx4 v[{HC}:{HC+3}], v{T+2}, s[36:39], s53 offen sc1")
    a(f"buffer_store_dwordx4 v[{HC}:{HC+3}], v{T+2}, s[36:39], s54 offen sc1")
    a(f"buffer_store_dwordx4 v[{HC}:{HC+3}], v{T+2}, s[36:39], s54 offen offset:1024 sc1")
    a("s_mov_b32 s63, s52")
    for k in range(4*W):
        if k==2*W:
            a("s_cmp_eq_u32 s55, 1"); a("s_cbranch_scc1 L_c2")
        a(f"buffer_store_dwordx4 v[{HC}:{HC+3}], v{T+2}, s[36:39], s63 offen offset:{(k%4)*1024} sc1")
        if k%4==3: a("s_add_u32 s63, s63, 4096")
    a.label("L_c2")
    a("s_lshl_b32 s63, s31, 8"); a(f"s_add_u32 s63, s63, {TK}")
    a("s_lshl_b32 s64, s2, 3"); a(f"s_add_u32 s64, s64, {RDY}")
    a("s_mov_b64 exec, 1")
    a(f"v_mov_b32 v{T}, 0")
    a(f"buffer_store_dword v{T}, off, s[36:39], s63 sc1")
    a("s_waitcnt vmcnt(0)")
    a(f"buffer_store_dwordx2 v[{T+4}:{T+5}], off, s[36:39], s64 sc1")
    a("s_mov_b64 exec, -1")
    def woloads():
        a(f"""
        s_cmp_eq_u32 s55, 1
        s_cselect_b32 s44, s22, s12
        s_cselect_b32 s45, s23, s13
        s_mov_b32 s46, {0 if nowo else 4096*896}
        s_mul_i32 s63, s31, {32*896}
        v_mul_u32_u24 v{T}, {8*896}, v3
        v_lshl_add_u32 v{T}, v2, 4, v{T}
        v_add_u32 v{T+1}, {4*896}, v{T}
        """)
        n=0
        for i in range(8):
            for blk in range(4):
                r=WR+(i*4+blk)*4
                a(f"buffer_load_dwordx4 v[{r}:{r+3}], v{T+i//4}, s[44:47], s63 offen offset:{(i%4)*896+blk*256} {wflags}")
                n+=1
                if n%wog==0:
                    a("s_waitcnt vmcnt(0)")
                    if wosleep: a(f"s_sleep {wosleep}")
    if not wolate: woloads()
    else: a("s_sleep 127")
    a(f"s_mov_b32 s64, {RDY}")
    a(f"s_mov_b32 s65, {SPIN}")
    if nordy: a("s_branch L_rdd")
    a.label("L_rd")
    a(f"buffer_load_dwordx4 v[{DT}:{DT+3}], v{T+2}, s[36:39], s64 offen sc1")
    a(f"buffer_load_dwordx4 v[{DT+4}:{DT+7}], v{T+2}, s[36:39], s64 offen offset:1024 sc1")
    a("s_mov_b64 s[66:67], 0")
    a("s_waitcnt vmcnt(0)")
    for j in range(4):
        a(f"v_cmp_ne_u64 vcc, s[92:93], v[{DT+j*2}:{DT+j*2+1}]")
        a("s_or_b64 s[66:67], s[66:67], vcc")
    a("s_cmp_eq_u64 s[66:67], 0")
    a("s_cbranch_scc1 L_rdd")
    spin_tail("L_rd",64)
    a.label("L_rdd")
    gather("L_gb",2,baseB,LQB,64)
    a(f"v_mov_b32 v{T}, {LGO}"); a(f"v_mov_b32 v{T+1}, 1")
    a(f"ds_write_b32 v{T}, v{T+1}")
    st(3)
    if wolate:
        a("s_waitcnt lgkmcnt(0)")
        woloads()
    a("s_bitcmp1_b32 s2, 3")
    a("s_cbranch_scc1 L_helper_B")
    def anysent(rs,tmp):
        h=len(rs)//2
        chains=[(tmp,rs[:h]),(tmp+3,rs[h:])]
        for t,c in chains: a(f"v_max_u32 v{t}, v{c[0]}, v{c[1]}")
        k=2
        while k<h:
            for t,c in chains:
                if k+1<h: a(f"v_max3_u32 v{t}, v{t}, v{c[k]}, v{c[k+1]}")
                else: a(f"v_max_u32 v{t}, v{t}, v{c[k]}")
            k+=2
        a(f"v_max_u32 v{tmp}, v{tmp}, v{tmp+3}")
        a(f"v_cmp_eq_u32 vcc, -1, v{tmp}")
        a("s_cmp_eq_u64 vcc, 0")
    O=224
    def poll(lbl,loads,rs):
        loads()
        a("s_waitcnt vmcnt(0)")
        a(f"s_mov_b32 s65, {SPIN}")
        a.label(lbl)
        anysent(rs,T+2)
        a(f"s_cbranch_scc1 {lbl}d")
        a("s_mov_b64 exec, vcc")
        loads()
        a("s_mov_b64 exec, -1")
        if psl is None: a("s_waitcnt vmcnt(0)")
        else: a("s_waitcnt vmcnt(48)")
        spin_tail(lbl,psl)
        a.label(lbl+"d")
    def helper(br):
        bri=0 if br=='A' else 1
        RP=(2 if br=='A' else 1)*W
        assert RP<=4
        a(f"v_mul_u32_u24 v{T+6}, {RP*8}, v2")
        a(f"v_mul_u32_u24 v{T+7}, {RP*128}, v2"); a(f"v_lshl_add_u32 v{T+7}, v3, 5, v{T+7}")
        a(f"v_lshrrev_b32 v{T+4}, 2, v0"); a(f"v_lshlrev_b32 v{T+4}, 11, v{T+4}")
        a(f"v_and_b32 v{T+1}, 3, v0"); a(f"v_lshl_add_u32 v{T+4}, v{T+1}, 4, v{T+4}")
        a("s_lshl_b32 s80, s31, 6"); a(f"s_add_u32 s80, s80, {YO+bri*0x40000}")
        for k in range(1,8): a(f"s_add_u32 s{80+k}, s{79+k}, 0x8000")
        a(f"""
        s_mov_b32 s40, s24
        s_mov_b32 s41, s25
        s_mov_b32 s42, 1792
        s_lshl_b32 s62, s31, 5
        s_add_u32 s62, s62, {bri*896}
        v_lshlrev_b32 v1, 3, v0
        """)
        a(f"v_mov_b32 v{T}, {LCNT}")
        a(f"s_mov_b32 s65, {SPIN}")
        a.label(f"L_ow{br}")
        a(f"ds_read_b32 v{T+1}, v{T}")
        a("s_waitcnt lgkmcnt(0)")
        a(f"v_readfirstlane_b32 s64, v{T+1}")
        a(f"s_cmp_ge_u32 s64, {3*W if thr==3 else 2*W+1}")
        a(f"s_cbranch_scc1 L_od{br}")
        spin_tail(f"L_ow{br}",2)
        a.label(f"L_od{br}")
        def l1loads():
            for k in range(RP//2):
                a(f"buffer_load_dwordx4 v[{HD+4*k}:{HD+4*k+3}], v{T+6}, s[36:39], s53 offen offset:{16*k} sc1")
            for k in range(RP):
                for h in range(2):
                    r=DT+k*8+h*4
                    a(f"buffer_load_dwordx4 v[{r}:{r+3}], v{T+7}, s[36:39], s52 offen offset:{k*128+16*h} sc1")
        poll(f"L_hp{br}",l1loads,[HD+k for k in range(RP*2)]+[DT+k for k in range(RP*8)])
        st(5)
        ROWRED=("row_ror:8","row_ror:4","row_ror:2","row_ror:1")
        OW=O; OO=O+4; OL=O+12; OP=O+16
        a(f"v_max_f32 v{T+2}, v{HD}, v{HD+2}")
        for k in range(2,RP): a(f"v_max_f32 v{T+2}, v{T+2}, v{HD+2*k}")
        for m in ROWRED: a(f"v_max_f32_dpp v{T+2}, v{T+2}, v{T+2} {m} {DPPF}")
        for k in range(RP): a(f"v_sub_f32 v{OW+k}, v{HD+2*k}, v{T+2}")
        for k in range(RP): a(f"v_exp_f32 v{OW+k}, v{OW+k}")
        a(f"v_mul_f32 v{OL}, v{OW}, v{HD+1}")
        for e in range(8): a(f"v_mul_f32 v{OO+e}, v{OW}, v{DT+e}")
        for k in range(1,RP):
            a(f"v_fmac_f32 v{OL}, v{OW+k}, v{HD+2*k+1}")
            for e in range(8): a(f"v_fmac_f32 v{OO+e}, v{OW+k}, v{DT+k*8+e}")
        for m in ROWRED:
            a(f"v_add_f32_dpp v{OL}, v{OL}, v{OL} {m} {DPPF}")
            if m==ROWRED[-1]: a(f"v_rcp_f32 v{OL}, v{OL}")
            for e in range(8): a(f"v_add_f32_dpp v{OO+e}, v{OO+e}, v{OO+e} {m} {DPPF}")
        for e in range(8): a(f"v_mul_f32 v{OO+e}, v{OO+e}, v{OL}")
        for e in range(4): a(f"v_cvt_pk_bf16_f32 v{OP+e}, v{OO+2*e}, v{OO+2*e+1}")
        def prm(i,v): a(f"v_perm_b32 v{HA+(i%2)*4+v}, v{OP+i//2}, v{OP+i//2}, v{SEL[i%2][v]}")
        for v in range(4): prm(0,v)
        for i in range(8):
            ar=HA+(i%2)*4
            for blk in range(4):
                r=WR+(i*4+blk)*4; c=HC+blk*4
                a(f"v_mfma_f32_16x16x32_bf16 v[{c}:{c+3}], v[{ar}:{ar+3}], v[{r}:{r+3}], {'0' if i==0 else 'v[%d:%d]'%(c,c+3)}")
                if i<7 and blk<2: prm(i+1,2*blk); prm(i+1,2*blk+1)
        a("s_mov_b32 exec_hi, 0")
        for blk in range(4):
            for k in range(4): a(f"v_min_u32 v{HC+blk*4+k}, -2, v{HC+blk*4+k}")
            a(f"buffer_store_dwordx4 v[{HC+blk*4}:{HC+blk*4+3}], v{T+3}, s[36:39], s54 offen offset:{blk*512} sc1")
        a("s_mov_b64 exec, -1")
        st(6)
        a("s_cmp_ge_u32 s31, 28")
        a(f"s_cbranch_scc1 L_he{br}")
        def l2loads():
            for k in range(8):
                a(f"buffer_load_dwordx4 v[{DT+4*k}:{DT+4*k+3}], v{T+4}, s[36:39], s{80+k} offen sc1")
        poll(f"L_yp{br}",l2loads,[DT+k for k in range(32)])
        for e in range(0,16,2): a(f"v_pk_add_f32 v[{O+e}:{O+e+1}], v[{DT+e}:{DT+e+1}], v[{DT+16+e}:{DT+17+e}]")
        for half in (8,4):
            for e in range(0,half,2): a(f"v_pk_add_f32 v[{O+e}:{O+e+1}], v[{O+e}:{O+e+1}], v[{O+half+e}:{O+half+e+1}]")
        for m in ("row_ror:8","row_ror:4"):
            for e in range(4): a(f"v_add_f32_dpp v{O+e}, v{O+e}, v{O+e} {m} {DPPF}")
        for sw in ("v_permlane16_swap_b32","v_permlane32_swap_b32"):
            for e in range(4): a(f"v_mov_b32 v{O+4+e}, v{O+e}")
            for e in range(4): a(f"{sw} v{O+e}, v{O+4+e}")
            for e in range(4): a(f"v_add_f32 v{O+e}, v{O+e}, v{O+4+e}")
        a(f"v_cvt_pk_bf16_f32 v{O+4}, v{O}, v{O+1}")
        a(f"v_cvt_pk_bf16_f32 v{O+5}, v{O+2}, v{O+3}")
        a("s_mov_b64 exec, 15")
        a(f"buffer_store_dwordx2 v[{O+4}:{O+5}], v1, s[40:43], s62 offen {osc}")
        a("s_mov_b64 exec, -1")
        a.label(f"L_he{br}")
        write_stamps(True)
        a("s_endpgm")
    helper('A')
    a.label("L_helper_B")
    helper('B')
    if hfirst:
        a.flush()
        a.lines=a.lines[:mark0]+a.lines[mark1:]+a.lines[mark0:mark1]
    a.label("L_done")
    a("s_endpgm")
    if report is not None:
        a.raw(".globl report_kernel"); a.raw(".p2align 8"); a.raw(".type report_kernel,@function"); a.raw("report_kernel:")
        a(f"""
        s_cmp_ge_u32 s2, 1
        s_cbranch_scc1 LR_done
        s_load_dwordx4 s[4:7], s[0:1], 88
        s_mov_b32 s38, {WS_USED}
        s_mov_b32 s39, 0x20000
        s_mov_b32 s42, 256
        s_mov_b32 s43, 0x20000
        v_lshlrev_b32 v1, 2, v0
        v_mov_b32 v2, 0
        v_mov_b32 v3, -1
        ds_write_b32 v1, v3            ; 0..255: mins
        ds_write_b32 v1, v2 offset:256 ; maxs
        ds_write_b32 v1, v2 offset:512 ; sums
        s_waitcnt lgkmcnt(0)
        s_mov_b32 s36, s6
        s_mov_b32 s37, s7
        s_mov_b32 s40, s4
        s_mov_b32 s41, s5
        v_lshlrev_b32 v4, 4, v0
        s_mov_b32 s8, 0
        buffer_load_dwordx4 v[8:11], v4, s[36:39], s8 offen
        s_waitcnt vmcnt(0)
        v_subrev_u32 v8, 100, v8
        v_mov_b32 v5, 252
        ds_min_u32 v5, v8
        s_waitcnt lgkmcnt(0)
        ds_read_b32 v6, v5
        s_waitcnt lgkmcnt(0)
        v_mul_u32_u24 v4, {(W+1)*32}, v0
        """)
        for i in range(4):
            for w in range(W+1):
                a(f"s_mov_b32 s8, {0x4000+i*64*(W+1)*32+w*32}")
                a("buffer_load_dwordx4 v[8:11], v4, s[36:39], s8 offen")
                a("buffer_load_dwordx4 v[12:15], v4, s[36:39], s8 offen offset:16")
                a("s_waitcnt vmcnt(0)")
                g=0 if w else 32
                for k in range(8):
                    a(f"v_sub_u32 v{8+k}, v{8+k}, v6")
                    a(f"ds_min_u32 v2, v{8+k} offset:{g+4*k}")
                    a(f"ds_max_u32 v2, v{8+k} offset:{256+g+4*k}")
                    a(f"ds_add_u32 v2, v{8+k} offset:{512+g+4*k}")
                a("s_waitcnt lgkmcnt(0)")
        picks=[(0,0),(256+4,0),(512+8,8+LW),(512+12,8+LW),(512+16,8+LW),(512+20,8+LW),(28,0),(256+28,0),(256+32+28,0),(256+32+20,0),(256+32+24,0)]
        a("s_mov_b64 exec, 1")
        for k,(off,sh) in enumerate(picks):
            a(f"ds_read_b32 v8, v2 offset:{off}")
            a("s_waitcnt lgkmcnt(0)")
            a(f"v_lshrrev_b32 v8, {sh}, v8")
            a(f"buffer_store_dword v8, off, s[40:43], 0 offset:{4*k}")
            if report[0]==k: a("v_readfirstlane_b32 s10, v8")
        if report[0]<0: a("s_mov_b32 s10, 0")
        a(f"s_mul_i32 s10, s10, {report[1]}")
        a("s_min_u32 s10, s10, 200000")
        a("s_memrealtime s[12:13]"); a("s_waitcnt lgkmcnt(0)")
        a.label("LR_spin")
        a("s_memrealtime s[14:15]"); a("s_waitcnt lgkmcnt(0)")
        a("s_sub_u32 s16, s14, s12"); a("s_cmp_lt_u32 s16, s10"); a("s_cbranch_scc1 LR_spin")
        a.label("LR_done")
        a("s_endpgm")
    a.raw('.section .rodata,"a"')
    for nm,nv in ((NAME,256+16*NV),)+((("report_kernel",16),) if report is not None else ()):
        a.raw(".p2align 6"); a.raw(f".amdhsa_kernel {nm}")
        a.raw(f"  .amdhsa_next_free_vgpr {nv}"); a.raw("  .amdhsa_next_free_sgpr 96"); a.raw(f"  .amdhsa_accum_offset {min(nv,256)}")
        a.raw("  .amdhsa_float_denorm_mode_32 3")
        a.raw("  .amdhsa_group_segment_fixed_size 0"); a.raw("  .amdhsa_kernarg_size 104"); a.raw("  .amdhsa_user_sgpr_count 2")
        a.raw("  .amdhsa_user_sgpr_kernarg_segment_ptr 1"); a.raw("  .amdhsa_system_sgpr_workgroup_id_x 1"); a.raw(".end_amdhsa_kernel")
    return a.text()

def make(cfgs, listfile="list.txt"):
    import build
    lines=[]
    for c in cfgs:
        lab="_".join(f"{k}{str(v).replace(' ','').replace(',','.').strip('()[]')}" for k,v in c.items() if k!='stamp') or "base"
        fn="k_"+lab+".s"
        open(fn,"w").write(gen(**c))
        co=build.build(fn)
        W=c.get('W',2)
        lines.append(f"{lab} {co} {256*W if c.get('stamp') else 0} {NAME}:256:{(W+1)*64}:{c.get('lds',90112)}")
    open(listfile,"w").write("\n".join(lines)+"\n")
if __name__=="__main__":
    import json
    cfg=json.loads(sys.argv[2]) if len(sys.argv)>2 else {}
    open(sys.argv[1],"w").write(gen(**cfg))
```

```python
import struct, math, sys
from asmlib import Asm
NAME="concat_heads__gqa_block_cached__mha_block_cached__decode_kernel"
HDR=open('concat_heads__gqa_block_cached__mha_block_cached__decode.s.ref').read().split('; Override')[0]
def f2u(x): return struct.unpack('<I',struct.pack('<f',x))[0]
QP=0x10000; TK=0x50000; RDY=0x58000; IN1D=0x80000; IN1H=0x480000; YO=0x4C0000; WS_USED=0x540000
LQA=0; LQB=1024; LCNT=1536; LGO=1540; LSC=2048
DPPF="row_mask:0xf bank_mask:0xf"
INV=0x7f000000

def gen(stamp=False, sflags='nt', wflags='nt', lds=90112, W=2, dl=(10,10,10,10,10), NS=0, PK=64, gr=1, NV=12, thr=3, psl=2, osc='', tlate=True, prepub=True, satom=False, blk=64, hfirst=True, est=False, bar0=True, spin=1<<16,
        nodots=False, nopv=False, nowo=False, report=None, tq=3, npos=0, gsleep=24, dry=False, nrep=True, vside=False, wog=32, wosleep=0, wolate=False, merged=True, hprio=True, align=0, alate=True, noclear=False, nordy=False):
    SPIN=spin
    LW=W.bit_length()-1
    a=Asm()
    a.raw(HDR.rstrip())
    if report is None: a.raw(f"; @launch grid=(256,1,1) block=({(W+1)*64},1,1) lds={lds}")
    else: a.raw(f"; @launch kernel={NAME} grid=(256,1,1) block=({(W+1)*64},1,1) lds={lds}")
    if report is not None: a.raw("; @launch kernel=report_kernel grid=(1,1,1) block=(64,1,1) lds=1024")
    a.raw('.amdgcn_target "amdgcn-amd-amdhsa--gfx950"')
    a.raw(".text"); a.raw(f".globl {NAME}"); a.raw(".p2align 8"); a.raw(f".type {NAME},@function"); a.raw(f"{NAME}:")
    def st(k):
        if stamp:
            a("s_memrealtime s[68:69]"); a("s_waitcnt lgkmcnt(0)"); a(f"s_mov_b32 s{72+k}, s68")
    def prologue(done):
        a(f"""
        s_cmp_ge_u32 s2, 256
        s_cbranch_scc1 {done}
        s_load_dwordx16 s[4:19], s[0:1], 0
        s_load_dwordx8 s[20:27], s[0:1], 64
        s_load_dwordx2 s[28:29], s[0:1], 96
        v_lshrrev_b32 v1, 6, v0
        v_and_b32 v0, 63, v0
        v_readfirstlane_b32 s30, v1
        v_and_b32 v2, 15, v0        ; n
        v_lshrrev_b32 v3, 4, v0     ; g
        s_mov_b32 s38, {WS_USED}
        s_mov_b32 s39, 0x20000
        """)
    def selectors():
        a("""
        v_and_b32 v4, 1, v0
        v_cmp_eq_u32 vcc, 1, v4
        v_mov_b32 v5, 0x0c0c0100
        v_mov_b32 v6, 0x01000c0c
        v_cndmask_b32 v5, v5, v6, vcc
        v_mov_b32 v6, 0x0c0c0302
        v_mov_b32 v7, 0x03020c0c
        v_cndmask_b32 v6, v6, v7, vcc
        v_bfe_u32 v4, v0, 1, 2
        v_mov_b32 v7, 0x0c0c0c0c
        """)
        for v in range(4):
            a(f"v_cmp_eq_u32 vcc, {v}, v4")
            a(f"v_cndmask_b32 v{8+v}, v7, v5, vcc")
            a(f"v_cndmask_b32 v{12+v}, v7, v6, vcc")
    SEL=[[8,9,10,11],[12,13,14,15]]
    prologue('L_done')
    if hfirst:
        a("s_cmp_eq_u32 s30, 0"); a("s_cbranch_scc0 L_stream")
        mark0=len(a.lines)
        a.label("L_stream")
    else:
        a("s_cmp_eq_u32 s30, 0"); a("s_cbranch_scc1 L_helper")
    def after_kernarg():
        a("s_waitcnt lgkmcnt(0)")
        if stamp:
            for k in range(8): a(f"s_mov_b32 s{72+k}, 0")
        st(0)
        a("s_mov_b32 s36, s28"); a("s_mov_b32 s37, s29")
    def write_stamps(helper):
        if not stamp: return
        st(7)
        a("s_getreg_b32 s66, hwreg(HW_REG_XCC_ID)")
        a("s_mov_b64 exec, 1")
        a("v_mov_b32 v4, 0")
        if not helper:
            a("v_mov_b32 v20, s72"); a("v_mov_b32 v21, s79"); a("v_mov_b32 v22, s66"); a("v_mov_b32 v23, 0")
            a(f"s_lshl_b32 s64, s2, {LW}"); a("s_add_u32 s64, s64, s31"); a("s_lshl_b32 s64, s64, 4")
            a("buffer_store_dwordx4 v[20:23], v4, s[36:39], s64 offen")
        for k in range(8): a(f"v_mov_b32 v{24+k}, s{72+k}")
        a(f"s_mul_i32 s64, s2, {W+1}"); a("s_add_u32 s64, s64, s30"); a("s_lshl_b32 s64, s64, 5"); a("s_add_u32 s64, s64, 0x4000")
        a("buffer_store_dwordx4 v[24:27], v4, s[36:39], s64 offen")
        a("buffer_store_dwordx4 v[28:31], v4, s[36:39], s64 offen offset:16")
    def spin_tail(lbl,sleep):
        if sleep: a(f"s_sleep {sleep}")
        a("s_sub_u32 s65, s65, 1"); a("s_cmp_lg_u32 s65, 0")
        a(f"s_cbranch_scc1 {lbl}")
    VOFF=1; VSC=4; VM=5; VL=6; VMC=7
    Q=16; ACC=32; AR=40; D=48; T=52; PKR=60; VOFF2=62; VTK=63
    RING=64; SIDE=128
    STEP=4096*W
    NA=(1<<19)//STEP; NB=((1<<20)-PK*1024)//STEP
    NT=16*PK//8
    c0=((16-dl[4])//gr)*gr
    TQ=tq if satom else min(tq,c0+gr-1)
    assert gr==1 or len(set(dl))==1
    assert max(dl)+gr<=16
    a(f"""
    s_sub_u32 s31, s30, 1            ; sw
    v_lshlrev_b32 v{VOFF}, 9, v3
    v_lshl_add_u32 v{VOFF}, v2, 4, v{VOFF}
    s_mov_b32 s34, 0x200000
    s_mov_b32 s35, 0x20000
    s_lshl_b32 s61, s31, 12
    """)
    if blk:
        a("s_lshr_b32 s48, s2, 4"); a("s_lshl_b32 s48, s48, 3"); a("s_and_b32 s49, s2, 7"); a("s_or_b32 s48, s48, s49")
        a("s_bfe_u32 s49, s2, 0x10003"); a(f"s_mul_i32 s49, s49, {blk*1024}")
        a("s_lshl_b32 s60, s48, 20"); a("s_add_u32 s60, s60, s49")
    else: a("s_lshl_b32 s60, s2, 19")
    def adv(r):
        if blk:
            a(f"s_bitset1_b32 {r}, {(blk*1024).bit_length()-1}"); a(f"s_add_u32 {r}, {r}, {STEP}"); a(f"s_bitset0_b32 {r}, {(blk*1024).bit_length()-1}")
        else: a(f"s_add_u32 {r}, {r}, {STEP}")
    after_kernarg()
    a("s_add_u32 s32, s6, s60"); a("s_addc_u32 s33, s7, 0")
    a("s_add_u32 s40, s8, s60"); a("s_addc_u32 s41, s9, 0"); a("s_mov_b32 s42, 0x200000"); a("s_mov_b32 s43, 0x20000")
    if bar0: a("s_barrier")
    OFFS=[0,256,2048,2304]
    PH=[('A','K',NA),('A','V',NA),('B','K',NB),('B','V',NB)]
    assert not vside
    ends=[NA-NS,2*NA-NS-NV,2*NA-NS-NV+NB,2*NA-NS-NV+2*NB]
    def ld(base,i,srd,soff,voff=VOFF,rf='v'):
        r=base+i*4
        a(f"buffer_load_dwordx4 {rf}[{r}:{r+3}], v{voff}, {srd}, {soff} offen offset:{OFFS[i]} {sflags}")
    def issue_static(h,p):
        h%=16
        ld(RING+(h//4)*16,h%4,"s[32:35]","s52")
        if h%4==3:
            adv("s52")
            a("s_add_u32 s53, s53, 1")
            if p is not None:
                a(f"s_cmp_eq_u32 s53, {ends[p]}")
                if p<3:
                    b=54+2*p
                    a(f"s_cselect_b32 s32, s{b}, s32"); a(f"s_cselect_b32 s33, s{b+1}, s33"); a(f"s_cselect_b32 s52, {'s94' if p==0 else 's61'}, s52")
                else:
                    a("s_cselect_b32 s34, 0, s34")
    def ticket_req():
        if satom:
            a("s_mov_b32 s90, 1")
            a("s_atomic_add s90, s[28:29], s91 glc")
            return
        a("s_mov_b64 exec, 1")
        a(f"v_mov_b32 v{VTK}, 1")
        a(f"buffer_atomic_add v{VTK}, off, s[36:39], s91 sc0 sc1")
        a("s_mov_b64 exec, -1")
    def ticket_use():
        if satom: a("s_waitcnt lgkmcnt(0)")
        else: a(f"v_readfirstlane_b32 s90, v{VTK}")
        if blk:
            assert PK%blk==0
            a("s_and_b32 s88, s90, 7"); a("s_lshl_b32 s88, s88, 21")
            a("s_lshr_b32 s89, s90, 3"); a("s_lshl_b32 s89, s89, 13")
            a("s_add_u32 s88, s88, s89"); a(f"s_add_u32 s88, s88, {2*NB*STEP}")
        else:
            a("s_and_b32 s88, s90, 15"); a("s_lshl_b32 s88, s88, 20")
            a("s_lshr_b32 s89, s90, 4"); a("s_lshl_b32 s89, s89, 13")
            a("s_add_u32 s88, s88, s89"); a(f"s_add_u32 s88, s88, {NB*STEP}")
        a(f"s_cmp_lt_u32 s90, {NT}")
        a(f"s_cselect_b32 s88, s88, {INV}")
    def issue_pool(h):
        h%=16
        if h==0: ticket_use()
        if h==TQ: ticket_req()
        k=h//4
        ld(RING+k*16,h%4,"s[80:83]" if k<2 else "s[84:87]","s88",VOFF if k%2==0 else VOFF2)
    def initial_prefetch():
        n=0
        a("s_mov_b32 s94, s61")
        for k in range(NV):
            for i in range(4):
                if n>=dl[0]: a(f"s_waitcnt vmcnt({dl[0]-1})")
                ld(k*16,i,"s[40:43]","s94",rf='a'); n+=1
                if n==dl[0]: setup2()
            adv("s94")
        a("s_mov_b32 s95, s61")
        for k in range(NS):
            for i in range(4):
                if n>=dl[0]: a(f"s_waitcnt vmcnt({dl[0]-1})")
                ld(SIDE+k*16,i,"s[40:43]" if vside else "s[32:35]","s95"); n+=1
                if n==dl[0]: setup2()
            adv("s95")
        a("s_mov_b32 s52, s61" if vside else "s_mov_b32 s52, s95")
        a("s_mov_b32 s53, 0")
        for h in range(dl[0]):
            if n>=dl[0]: a(f"s_waitcnt vmcnt({dl[0]-1})")
            issue_static(h,None); n+=1
            if n==dl[0]: setup2()
    def setup2():
        selectors()
        a(f"""
        s_add_u32 s54, s8, s60
        s_addc_u32 s55, s9, 0
        {"s_lshl_b32 s60, s48, 21" if blk else "s_lshl_b32 s60, s2, 20"}
        {"s_add_u32 s60, s60, s49" if blk else ""}
        s_add_u32 s56, s16, s60
        s_addc_u32 s57, s17, 0
        s_add_u32 s58, s18, s60
        s_addc_u32 s59, s19, 0
        s_and_b32 s60, s60, 0xff000000
        s_add_u32 s80, s16, s60
        s_addc_u32 s81, s17, 0
        s_mov_b32 s82, 0x1000000
        s_mov_b32 s83, 0x20000
        s_add_u32 s84, s18, s60
        s_addc_u32 s85, s19, 0
        s_mov_b32 s86, 0x1000000
        s_mov_b32 s87, 0x20000
        s_lshr_b32 s91, s2, 4
        s_lshl_b32 s91, s91, 8
        s_add_u32 s91, s91, {TK}
        s_mov_b32 s62, {f2u(math.log2(math.e)/16.0)}
        s_mul_i32 s63, s31, {65536//W}
        s_add_u32 s63, s63, {LSC}
        v_add_u32 v{VOFF2}, 0x1000, v{VOFF}
        """)
    initial_prefetch()
    st(6)
    a("s_barrier")
    st(1)
    def dots1(base,i,nh,dbase):
        s_=i//2
        for e4 in range(1 if nodots else 4):
            e=(i%2)*4+e4
            for h in range(nh):
                d=dbase+s_*nh+h
                a(f"v_dot2_f32_bf16 v{d}, v{base+i*4+e4}, v{Q+h*8+e}, {'0' if e==0 else 'v%d'%d}")
    def reduce(nh,dbase,tb,ns=2):
        for s_ in range(ns):
            if nh==2:
                a(f"v_add_f32_dpp v{tb+s_}, v{dbase+s_*2}, v{dbase+s_*2} row_ror:8 row_mask:0xf bank_mask:0x3")
                a(f"v_add_f32_dpp v{tb+s_}, v{dbase+s_*2+1}, v{dbase+s_*2+1} row_ror:8 row_mask:0xf bank_mask:0xc")
            else:
                a(f"v_add_f32_dpp v{tb+s_}, v{dbase+s_}, v{dbase+s_} row_ror:8 {DPPF}")
        for m in ("row_half_mirror","quad_perm:[1,0,3,2]","quad_perm:[2,3,0,1]"):
            for s_ in range(ns):
                a(f"v_add_f32_dpp v{tb+s_}, v{tb+s_}, v{tb+s_} {m} {DPPF}")
    class Cur: pass
    cur=Cur(); cur.d=dl[0]; cur.skip=0
    def arrive(c,iss,extra=0):
        if cur.skip:
            a(f"s_waitcnt vmcnt({cur.d+cur.skip-1+extra})"); cur.skip-=1
        elif c%gr==0:
            a(f"s_waitcnt vmcnt({cur.d-gr+extra})")
            for k in range(gr): iss(c+cur.d+k)
    def retarget(nd,iss):
        assert cur.skip==0
        if nd>cur.d:
            for h in range(cur.d,nd): iss(h)
        else: cur.skip=cur.d-nd
        cur.d=nd
    def kfinish(nh,j):
        reduce(nh,D,T)
        a(f"v_max3_f32 v{VM}, v{VM}, v{T}, v{T+1}")
        a(f"v_cvt_pk_bf16_f32 v{T+2}, v{T}, v{T+1}")
        a(f"ds_write_b32 v{VSC}, v{T+2} offset:{j*256}")
    def kunit(j,jl,nh,iss,extra=lambda c:0):
        for i in range(4):
            arrive(4*j+i,iss,extra(4*j+i)); dots1(RING+j*16,i,nh,D)
        kfinish(nh,jl)
    def pcalc(t0,ar):
        a(f"v_fma_f32 v{t0}, v{t0}, s62, -v{VMC}")
        a(f"v_fma_f32 v{t0+1}, v{t0+1}, s62, -v{VMC}")
        a(f"v_exp_f32 v{t0}, v{t0}")
        a(f"v_exp_f32 v{t0+1}, v{t0+1}")
        a(f"v_add_f32 v{VL}, v{VL}, v{t0}")
        a(f"v_add_f32 v{VL}, v{VL}, v{t0+1}")
        a(f"v_cvt_pk_bf16_f32 v{t0}, v{t0}, v{t0+1}")
        for s_ in range(2):
            for v in range(4):
                a(f"v_perm_b32 v{ar+s_*4+v}, v{t0}, v{t0}, v{SEL[s_][v]}")
    def pvunit(j,iss,extra=lambda c:0):
        for i in range(4):
            arrive(4*j+i,iss,extra(4*j+i))
            r=RING+j*16+i*4; c=ACC+(i%2)*4; ar=AR+(i//2)*4
            if not nopv: a(f"v_mfma_f32_16x16x32_bf16 v[{c}:{c+3}], v[{ar}:{ar+3}], v[{r}:{r+3}], v[{c}:{c+3}]")
    def vunit(j,jl,iss,par=None,nxt=None,side=None):
        if par is None: par=j%2
        if nxt is None: nxt=jl+1
        pk=PKR+par
        a("s_waitcnt lgkmcnt(0)")
        a(f"v_lshlrev_b32 v{T}, 16, v{pk}")
        a(f"v_and_b32 v{T+1}, 0xffff0000, v{pk}")
        a(f"ds_read_b32 v{PKR+1-par}, v{VSC} offset:{nxt*256}")
        pcalc(T,AR)
        if side is None: pvunit(j,iss)
        else:
            for i in range(4):
                r=side*16+i*4; c=ACC+(i%2)*4; ar=AR+(i//2)*4
                a(f"v_mfma_f32_16x16x32_bf16 v[{c}:{c+3}], v[{ar}:{ar+3}], a[{r}:{r+3}], v[{c}:{c+3}]")
    def xrow(reg,op):
        a(f"v_mov_b32 v{T+7}, v{reg}")
        a(f"v_permlane16_swap_b32 v{reg}, v{T+7}")
        a(f"{op} v{reg}, v{reg}, v{T+7}")
        a(f"v_mov_b32 v{T+7}, v{reg}")
        a(f"v_permlane32_swap_b32 v{reg}, v{T+7}")
        a(f"{op} v{reg}, v{reg}, v{T+7}")
    def lds_inc():
        a("s_mov_b64 exec, 1")
        a(f"v_mov_b32 v{T+4}, {LCNT}"); a(f"v_mov_b32 v{T+5}, 1")
        a(f"ds_add_u32 v{T+4}, v{T+5}")
        a("s_mov_b64 exec, -1")
    PA=24
    def pubaddr(br):
        sh=5 if br=='A' else 4
        bri=0 if br=='A' else 1
        a(f"s_lshr_b32 s64, s2, {sh}")
        a(f"s_and_b32 s65, s2, {(1<<sh)-1}")
        a(f"s_lshl_b32 s65, s65, {LW}"); a("s_add_u32 s65, s65, s31")
        a(f"s_lshl_b32 s64, s64, {4 if br=='A' else 3}")
        a("s_lshl_b32 s44, s64, 14"); a("s_lshl_b32 s45, s65, 7"); a("s_add_u32 s44, s44, s45")
        a(f"s_add_u32 s44, s44, {IN1D+bri*0x200000}")
        a("s_add_u32 s45, s44, 0x10000")
        a("s_lshl_b32 s46, s64, 10"); a("s_lshl_b32 s47, s65, 3"); a("s_add_u32 s46, s46, s47")
        a(f"s_add_u32 s46, s46, {IN1H+bri*0x20000}")
        a(f"v_lshrrev_b32 v{PA}, 5, v0"); a(f"v_lshlrev_b32 v{PA}, 17, v{PA}")
        a(f"v_lshrrev_b32 v{PA+1}, 2, v2"); a(f"v_lshl_add_u32 v{PA}, v{PA+1}, 14, v{PA}")
        a(f"v_and_b32 v{PA+1}, 3, v2"); a(f"v_lshl_add_u32 v{PA}, v{PA+1}, 5, v{PA}")
        a(f"v_and_b32 v{PA+1}, 1, v3"); a(f"v_lshl_add_u32 v{PA}, v{PA+1}, 4, v{PA}")
        a(f"v_lshlrev_b32 v{PA+1}, 10, v0")
        a(f"v_mov_b32 v{PA+2}, {LCNT}"); a(f"v_mov_b32 v{PA+3}, 1")
    def publish(br):
        if br=='A' or not (prepub and PK): pubaddr(br)
        xrow(VL,"v_add_f32")
        a(f"v_min_u32 v{T+2}, -2, v{VMC}"); a(f"v_min_u32 v{T+3}, -2, v{VL}")
        for i in range(8): a(f"v_min_u32 v{ACC+i}, -2, v{ACC+i}")
        if br=='B': a("s_mov_b32 exec_hi, 0")
        a(f"buffer_store_dwordx4 v[{ACC}:{ACC+3}], v{PA}, s[36:39], s44 offen sc1")
        a(f"buffer_store_dwordx4 v[{ACC+4}:{ACC+7}], v{PA}, s[36:39], s45 offen sc1")
        a(f"s_mov_b64 exec, {0xffff if br=='A' else 0xff}")
        a(f"buffer_store_dwordx2 v[{T+2}:{T+3}], v{PA+1}, s[36:39], s46 offen sc1")
        a("s_mov_b64 exec, 1")
        a(f"ds_add_u32 v{PA+2}, v{PA+3}")
        a("s_mov_b64 exec, -1")
    for p,(br,kv,n) in enumerate(PH):
        nh=2 if br=='A' else 1
        iss=lambda h,p=p: issue_static(h,p)
        a(f"v_lshlrev_b32 v{VSC}, 2, v0")
        a(f"v_add_u32 v{VSC}, s63, v{VSC}")
        done=0; tail=0
        if kv=='K':
            lq=LQA if br=='A' else LQB
            a(f"v_lshlrev_b32 v{T}, 4, v2")
            for h in range(nh):
                a(f"ds_read_b128 v[{Q+h*8}:{Q+h*8+3}], v{T} offset:{lq+h*512}")
                a(f"ds_read_b128 v[{Q+h*8+4}:{Q+h*8+7}], v{T} offset:{lq+h*512+256}")
            a(f"v_mov_b32 v{VM}, 0xff800000")
            a("s_waitcnt lgkmcnt(0)")
        else:
            a(f"ds_read_b32 v{PKR}, v{VSC} offset:{NV*256 if p==1 else 0}")
            xrow(VM,"v_max_f32")
            a(f"v_cvt_pk_bf16_f32 v{VM}, v{VM}, v{VM}")
            a(f"v_and_b32 v{VM}, 0xffff0000, v{VM}")
            a(f"v_mul_f32 v{VMC}, s62, v{VM}")
            a(f"v_mov_b32 v{VL}, 0")
            for i in range(8): a(f"v_mov_b32 v{ACC+i}, 0")
            if p==3 and PK: tail=8
        def group(jl0,iss):
            for j in range(4):
                if kv=='K': kunit(j,jl0+j,nh,iss)
                else: vunit(j,jl0+j,iss)
        if dl[p]!=cur.d: retarget(dl[p],iss)
        if p==0 and NS and not vside:
            for k in range(NS):
                kunit(k%4,NS+k,nh,iss)
                for i in range(4): dots1(SIDE+k*16,i,nh,D)
                kfinish(nh,k)
            done=2*NS
            a(f"v_add_u32 v{VSC}, {done*256}, v{VSC}")
        if p==1 and NV:
            for k in range(NV):
                vunit(k%4,None,iss,0,k)
                vunit(None,None,None,1,NV+k+1,side=k)
            done=2*NV
            a(f"v_add_u32 v{VSC}, {done*256}, v{VSC}")
        if True:
            if cur.skip:
                group(0,iss); done+=4
                a(f"v_add_u32 v{VSC}, 1024, v{VSC}")
        assert (n-done-tail)%4==0
        a(f"s_mov_b32 s60, {(n-done-tail)//4}")
        if align: a.flush(); a.raw(f".p2align {align}")
        a.label(f"L_ph{p}")
        group(0,iss)
        a(f"v_add_u32 v{VSC}, 1024, v{VSC}")
        a("s_sub_u32 s60, s60, 1")
        a("s_cmp_lg_u32 s60, 0")
        a(f"s_cbranch_scc1 L_ph{p}")
        if tail:
            if prepub: pubaddr('B')
            if not tlate: ticket_req()
            if dl[4]!=cur.d: retarget(dl[4],iss)
            def iss1(h):
                if tlate and h==16+TQ: ticket_req()
                iss(h)
            group(0,iss1)
            def iss2(h):
                if h<16:
                    if tlate and h==TQ: ticket_req()
                    issue_static(h,None)
                else: issue_pool(h)
            group(4,iss2)
            st(5)
            a(f"s_cmp_eq_u32 s88, {INV}")
            a("s_cbranch_scc1 L_pool_end")
            a.label("L_pool")
            ex=lambda c: 1 if (not satom and any(c+gr-1<A<=c+cur.d-1 for A in (TQ,TQ+16))) else 0
            for j in range(2):
                for i in range(4):
                    arrive(4*j+i,issue_pool,ex(4*j+i)); dots1(RING+j*16,i,1,D+2*j)
            reduce(1,D,T,4)
            a(f"v_cvt_pk_bf16_f32 v{T+4}, v{T}, v{T+1}")
            a(f"v_cvt_pk_bf16_f32 v{T+5}, v{T+2}, v{T+3}")
            a(f"v_lshlrev_b32 v{T}, 16, v{T+4}"); a(f"v_and_b32 v{T+1}, 0xffff0000, v{T+4}")
            a(f"v_lshlrev_b32 v{T+2}, 16, v{T+5}"); a(f"v_and_b32 v{T+3}, 0xffff0000, v{T+5}")
            a(f"v_max3_f32 v{T+4}, v{T}, v{T+1}, v{T+2}")
            a(f"v_max_f32 v{T+4}, v{T+4}, v{T+3}")
            a(f"v_cmp_gt_f32 vcc, v{T+4}, v{VM}")
            a("s_cmp_eq_u64 vcc, 0")
            a("s_cbranch_scc1 L_norescale")
            a(f"v_max_f32 v{VM}, v{VM}, v{T+4}")
            xrow(VM,"v_max_f32")
            a(f"v_mul_f32 v{T+4}, s62, v{VM}")
            a(f"v_sub_f32 v{T+5}, v{VMC}, v{T+4}")
            a(f"v_exp_f32 v{T+5}, v{T+5}")
            a(f"v_mov_b32 v{VMC}, v{T+4}")
            a(f"v_mul_f32 v{VL}, v{VL}, v{T+5}")
            for i in range(8): a(f"v_mul_f32 v{ACC+i}, v{ACC+i}, v{T+5}")
            a.label("L_norescale")
            pcalc(T,AR)
            pvunit(2,issue_pool,ex)
            pcalc(T+2,AR)
            pvunit(3,issue_pool,ex)
            a(f"s_cmp_lg_u32 s88, {INV}")
            a("s_cbranch_scc1 L_pool")
            a.label("L_pool_end")
        if p==1:
            a(f"v_mov_b32 v{T}, {LGO}")
            a(f"s_mov_b32 s65, {SPIN}")
            a.label("L_go")
            a(f"ds_read_b32 v{T+1}, v{T}")
            a("s_waitcnt lgkmcnt(0)")
            a(f"v_readfirstlane_b32 s64, v{T+1}")
            a("s_cmp_lg_u32 s64, 0")
            a("s_cbranch_scc1 L_god")
            spin_tail("L_go",2)
            a.label("L_god")
        if kv=='V': publish(br)
        if p==2: lds_inc()
        if p<3: st(2+p)
        elif not tail: st(5)
    write_stamps(False)
    a("s_endpgm")
    WR=64; XR=16; HA=32; HC=40; T=56; DT=192; HD=16
    mark1=len(a.lines)
    a.label("L_helper")
    a(f"""
    s_setprio 3
    s_memrealtime s[92:93]
    s_lshr_b32 s31, s2, 4
    s_lshl_b32 s31, s31, 3
    s_and_b32 s60, s2, 7
    s_or_b32 s31, s31, s60           ; i = 0..127
    s_bfe_u32 s55, s2, 0x10003       ; branch
    s_mov_b32 s42, 896
    s_mov_b32 s43, 0x20000
    s_mov_b32 s47, 0x20000
    s_mov_b32 s50, 256
    s_mov_b32 s51, 0x20000
    s_and_b32 s60, s31, 31           ; cb
    s_lshr_b32 s61, s31, 5           ; ks
    s_mov_b32 s46, {448*8192}
    v_mul_u32_u24 v{T}, 56, v3
    s_mul_i32 s62, s61, 224
    s_mov_b32 s63, {28*8192}
    v_mul_lo_u32 v{T+1}, s63, v3
    v_lshl_add_u32 v{T+1}, v2, 4, v{T+1}
    s_mul_i32 s63, s61, {112*8192}
    s_lshl_b32 s64, s60, 8
    s_add_u32 s63, s63, s64
    """)
    after_kernarg()
    a(f"""
    s_mov_b32 s48, s26
    s_mov_b32 s49, s27
    s_cmp_lg_u32 s2, 0
    s_cbranch_scc1 L_nononce
    s_or_b32 s92, s92, 1
    v_mov_b32 v{T+4}, s92
    v_mov_b32 v{T+5}, s93
    v_lshlrev_b32 v{T+6}, 3, v0
    s_mov_b32 exec_hi, 0
    buffer_store_dwordx2 v[{T+4}:{T+5}], v{T+6}, s[48:51], 0 offen sc1
    s_mov_b64 exec, -1
    """)
    a.label("L_nononce")
    a("""
    s_lshr_b32 s56, s2, 3
    s_lshl_b32 s56, s56, 3
    s_cmp_eq_u32 s55, 0
    s_cselect_b32 s40, s4, s14
    s_cselect_b32 s41, s5, s15
    s_cselect_b32 s44, s10, s20
    s_cselect_b32 s45, s11, s21
    """)
    for i in range(28):
        a(f"buffer_load_dwordx4 v[{WR+4*i}:{WR+4*i+3}], v{T+1}, s[44:47], s63 offen {wflags}")
        if i<27: a("s_add_u32 s63, s63, 8192")
        if i==0:
            for k in range(7):
                a(f"buffer_load_dwordx2 v[{XR+2*k}:{XR+2*k+1}], v{T}, s[40:43], s62 offen offset:{8*k}")
    NOFF="s56" if nrep else "0"
    if bar0: a("s_barrier")
    if npos==0: a(f"buffer_load_dwordx2 v[{T+4}:{T+5}], off, s[48:51], {NOFF} sc1")
    selectors()
    a(f"""
    v_mov_b32 v{HC+4}, {LCNT}
    v_mov_b32 v{HC+6}, 0
    v_mov_b32 v{HC+7}, 0
    ds_write_b64 v{HC+4}, v[{HC+6}:{HC+7}]
    v_lshlrev_b32 v{T+2}, 4, v0
    v_and_b32 v{T+3}, 1, v3
    v_lshlrev_b32 v{T+3}, 4, v{T+3}
    v_lshl_add_u32 v{T+3}, v2, 5, v{T+3}     ; n*32+gb*16
    v_lshrrev_b32 v{T+6}, 5, v0
    v_lshlrev_b32 v{T+6}, 4, v{T+6}
    v_lshl_add_u32 v{T+6}, v{T+3}, 1, v{T+6} ; n*64+gb*32+hi*16
    s_lshl_b32 s63, s61, 15
    s_lshl_b32 s64, s60, 10
    s_add_u32 s63, s63, s64
    s_lshl_b32 s64, s55, 17
    s_add_u32 s63, s63, s64
    s_add_u32 s63, s63, {QP}
    """)
    for i in range(28):
        a(f"s_waitcnt vmcnt({27-i+(1 if i>=npos else 0)})")
        if i==npos-1: a(f"buffer_load_dwordx2 v[{T+4}:{T+5}], off, s[48:51], {NOFF} sc1")
        ar=HA+(i%2)*4
        for v in range(4):
            a(f"v_perm_b32 v{ar+v}, v{XR+i//2}, v{XR+i//2}, v{SEL[i%2][v]}")
        a(f"v_mfma_f32_16x16x32_bf16 v[{HC}:{HC+3}], v[{ar}:{ar+3}], v[{WR+4*i}:{WR+4*i+3}], {'0' if i==0 else 'v[%d:%d]'%(HC,HC+3)}")
    st(1)
    a(f"s_mov_b32 s65, {SPIN}")
    a.label("L_np")
    a("s_waitcnt vmcnt(0)")
    a(f"v_readfirstlane_b32 s92, v{T+4}"); a(f"v_readfirstlane_b32 s93, v{T+5}")
    a("s_cmp_lg_u32 s92, 0")
    a("s_cbranch_scc1 L_nd")
    a(f"buffer_load_dwordx2 v[{T+4}:{T+5}], off, s[48:51], {NOFF} sc1")
    spin_tail("L_np",0)
    a.label("L_nd")
    a("s_mov_b32 exec_lo, 0")
    a(f"v_mov_b32 v{HC}, v{HC+2}"); a(f"v_mov_b32 v{HC+1}, v{HC+3}")
    a("s_mov_b32 exec_lo, -1")
    a(f"v_mov_b32 v{HC+2}, v{T+4}"); a(f"v_mov_b32 v{HC+3}, v{T+5}")
    a(f"buffer_store_dwordx4 v[{HC}:{HC+3}], v{T+6}, s[36:39], s63 offen sc1")
    st(2)
    def gather(lbl,nk,base_expr,ldsoff,sleep):
        a(f"s_mov_b32 s65, {SPIN}")
        a.label(lbl)
        base_expr()
        for ks in range(4):
            for k in range(nk):
                r=DT+(ks*nk+k)*4
                a(f"buffer_load_dwordx4 v[{r}:{r+3}], v{T+2}, s[36:39], s64 offen offset:{k*1024} sc1")
            if ks<3: a("s_add_u32 s64, s64, 0x8000")
        a("s_mov_b64 s[66:67], 0")
        for j in range(4*nk):
            a(f"s_waitcnt vmcnt({4*nk-1-j})")
            a(f"v_cmp_ne_u64 vcc, s[92:93], v[{DT+j*4+2}:{DT+j*4+3}]")
            a("s_or_b64 s[66:67], s[66:67], vcc")
        a("s_cmp_eq_u64 s[66:67], 0")
        a(f"s_cbranch_scc1 {lbl}d")
        spin_tail(lbl,sleep)
        a.label(lbl+"d")
        def pr(j): return f"v[{DT+j*4}:{DT+j*4+1}]"
        for k in range(nk):
            a(f"v_pk_add_f32 {pr(k)}, {pr(k)}, {pr(nk+k)}")
            a(f"v_pk_add_f32 {pr(2*nk+k)}, {pr(2*nk+k)}, {pr(3*nk+k)}")
        for k in range(nk): a(f"v_pk_add_f32 {pr(k)}, {pr(k)}, {pr(2*nk+k)}")
        a(f"v_lshlrev_b32 v{T}, 2, v0")
        for k in range(nk): a(f"v_cvt_pk_bf16_f32 v{DT+k*4+2}, v{DT+k*4}, v{DT+k*4+1}")
        for k in range(nk): a(f"ds_write_b32 v{T}, v{DT+k*4+2} offset:{ldsoff+256*k}")
        a("s_waitcnt lgkmcnt(0)")
    def baseA(): a("s_lshr_b32 s64, s2, 5"); a("s_lshl_b32 s64, s64, 12"); a(f"s_add_u32 s64, s64, {QP}")
    def baseB(): a("s_lshr_b32 s64, s2, 4"); a("s_lshl_b32 s64, s64, 11"); a(f"s_add_u32 s64, s64, {QP+0x20000}")
    if gsleep: a(f"s_sleep {gsleep}")
    gather("L_ga",4,baseA,LQA,8)
    if est: st(3)
    a("s_barrier")
    a("s_setprio 0")
    st(4)
    for k in range(4): a(f"v_mov_b32 v{HC+k}, -1")
    a("s_lshl_b32 s52, s31, 14"); a("s_lshl_b32 s60, s55, 21"); a("s_add_u32 s52, s52, s60"); a(f"s_add_u32 s52, s52, {IN1D}")
    a("s_lshl_b32 s53, s31, 10"); a("s_lshl_b32 s60, s55, 17"); a("s_add_u32 s53, s53, s60"); a(f"s_add_u32 s53, s53, {IN1H}")
    a("s_lshl_b32 s54, s31, 11"); a("s_lshl_b32 s60, s55, 18"); a("s_add_u32 s54, s54, s60"); a(f"s_add_u32 s54, s54, {YO}")
    if noclear: a("s_branch L_c2")
    a(f"buffer_store_dwordx4 v[{HC}:{HC+3}], v{T+2}, s[36:39], s53 offen sc1")
    a(f"buffer_store_dwordx4 v[{HC}:{HC+3}], v{T+2}, s[36:39], s54 offen sc1")
    a(f"buffer_store_dwordx4 v[{HC}:{HC+3}], v{T+2}, s[36:39], s54 offen offset:1024 sc1")
    a("s_mov_b32 s63, s52")
    for k in range(4*W):
        if k==2*W:
            a("s_cmp_eq_u32 s55, 1"); a("s_cbranch_scc1 L_c2")
        a(f"buffer_store_dwordx4 v[{HC}:{HC+3}], v{T+2}, s[36:39], s63 offen offset:{(k%4)*1024} sc1")
        if k%4==3: a("s_add_u32 s63, s63, 4096")
    a.label("L_c2")
    a("s_lshl_b32 s63, s31, 8"); a(f"s_add_u32 s63, s63, {TK}")
    a("s_lshl_b32 s64, s2, 3"); a(f"s_add_u32 s64, s64, {RDY}")
    a("s_mov_b64 exec, 1")
    a(f"v_mov_b32 v{T}, 0")
    a(f"buffer_store_dword v{T}, off, s[36:39], s63 sc1")
    a("s_waitcnt vmcnt(0)")
    a(f"buffer_store_dwordx2 v[{T+4}:{T+5}], off, s[36:39], s64 sc1")
    a("s_mov_b64 exec, -1")
    def woloads():
        a(f"""
        s_cmp_eq_u32 s55, 1
        s_cselect_b32 s44, s22, s12
        s_cselect_b32 s45, s23, s13
        s_mov_b32 s46, {0 if nowo else 4096*896}
        s_mul_i32 s63, s31, {32*896}
        v_mul_u32_u24 v{T}, {8*896}, v3
        v_lshl_add_u32 v{T}, v2, 4, v{T}
        v_add_u32 v{T+1}, {4*896}, v{T}
        """)
        n=0
        for i in range(8):
            for blk in range(4):
                r=WR+(i*4+blk)*4
                a(f"buffer_load_dwordx4 v[{r}:{r+3}], v{T+i//4}, s[44:47], s63 offen offset:{(i%4)*896+blk*256} {wflags}")
                n+=1
                if n%wog==0:
                    a("s_waitcnt vmcnt(0)")
                    if wosleep: a(f"s_sleep {wosleep}")
    if not wolate: woloads()
    else: a("s_sleep 127")
    a(f"s_mov_b32 s64, {RDY}")
    a(f"s_mov_b32 s65, {SPIN}")
    if nordy: a("s_branch L_rdd")
    a.label("L_rd")
    a(f"buffer_load_dwordx4 v[{DT}:{DT+3}], v{T+2}, s[36:39], s64 offen sc1")
    a(f"buffer_load_dwordx4 v[{DT+4}:{DT+7}], v{T+2}, s[36:39], s64 offen offset:1024 sc1")
    a("s_mov_b64 s[66:67], 0")
    a("s_waitcnt vmcnt(0)")
    for j in range(4):
        a(f"v_cmp_ne_u64 vcc, s[92:93], v[{DT+j*2}:{DT+j*2+1}]")
        a("s_or_b64 s[66:67], s[66:67], vcc")
    a("s_cmp_eq_u64 s[66:67], 0")
    a("s_cbranch_scc1 L_rdd")
    spin_tail("L_rd",64)
    a.label("L_rdd")
    gather("L_gb",2,baseB,LQB,64)
    a(f"v_mov_b32 v{T}, {LGO}"); a(f"v_mov_b32 v{T+1}, 1")
    a(f"ds_write_b32 v{T}, v{T+1}")
    if not est: st(3)
    if wolate:
        a("s_waitcnt lgkmcnt(0)")
        woloads()
    a("s_bitcmp1_b32 s2, 3")
    a("s_cbranch_scc1 L_helper_B")
    def anysent(rs,tmp):
        h=len(rs)//2
        chains=[(tmp,rs[:h]),(tmp+3,rs[h:])]
        for t,c in chains: a(f"v_max_u32 v{t}, v{c[0]}, v{c[1]}")
        k=2
        while k<h:
            for t,c in chains:
                if k+1<h: a(f"v_max3_u32 v{t}, v{t}, v{c[k]}, v{c[k+1]}")
                else: a(f"v_max_u32 v{t}, v{t}, v{c[k]}")
            k+=2
        a(f"v_max_u32 v{tmp}, v{tmp}, v{tmp+3}")
        a(f"v_cmp_eq_u32 vcc, -1, v{tmp}")
        a("s_cmp_eq_u64 vcc, 0")
    O=224
    def poll(lbl,loads,rs):
        loads()
        a("s_waitcnt vmcnt(0)")
        a(f"s_mov_b32 s65, {SPIN}")
        a.label(lbl)
        anysent(rs,T+2)
        a(f"s_cbranch_scc1 {lbl}d")
        a("s_mov_b64 exec, vcc")
        loads()
        a("s_mov_b64 exec, -1")
        if psl is None: a("s_waitcnt vmcnt(0)")
        else: a("s_waitcnt vmcnt(48)")
        spin_tail(lbl,psl)
        a.label(lbl+"d")
    def helper(br):
        bri=0 if br=='A' else 1
        RP=(2 if br=='A' else 1)*W
        assert RP<=4
        a(f"v_mul_u32_u24 v{T+6}, {RP*8}, v2")
        a(f"v_mul_u32_u24 v{T+7}, {RP*128}, v2"); a(f"v_lshl_add_u32 v{T+7}, v3, 5, v{T+7}")
        a(f"v_lshrrev_b32 v{T+4}, 2, v0"); a(f"v_lshlrev_b32 v{T+4}, 11, v{T+4}")
        a(f"v_and_b32 v{T+1}, 3, v0"); a(f"v_lshl_add_u32 v{T+4}, v{T+1}, 4, v{T+4}")
        a("s_lshl_b32 s80, s31, 6"); a(f"s_add_u32 s80, s80, {YO+bri*0x40000}")
        for k in range(1,8): a(f"s_add_u32 s{80+k}, s{79+k}, 0x8000")
        a(f"""
        s_mov_b32 s40, s24
        s_mov_b32 s41, s25
        s_mov_b32 s42, 1792
        s_lshl_b32 s62, s31, 5
        s_add_u32 s62, s62, {bri*896}
        v_lshlrev_b32 v1, 3, v0
        """)
        a(f"v_mov_b32 v{T}, {LCNT}")
        a(f"s_mov_b32 s65, {SPIN}")
        a.label(f"L_ow{br}")
        a(f"ds_read_b32 v{T+1}, v{T}")
        a("s_waitcnt lgkmcnt(0)")
        a(f"v_readfirstlane_b32 s64, v{T+1}")
        a(f"s_cmp_ge_u32 s64, {3*W if thr==3 else 2*W+1}")
        a(f"s_cbranch_scc1 L_od{br}")
        spin_tail(f"L_ow{br}",2)
        a.label(f"L_od{br}")
        def l1loads():
            for k in range(RP//2):
                a(f"buffer_load_dwordx4 v[{HD+4*k}:{HD+4*k+3}], v{T+6}, s[36:39], s53 offen offset:{16*k} sc1")
            for k in range(RP):
                for h in range(2):
                    r=DT+k*8+h*4
                    a(f"buffer_load_dwordx4 v[{r}:{r+3}], v{T+7}, s[36:39], s52 offen offset:{k*128+16*h} sc1")
        poll(f"L_hp{br}",l1loads,[HD+k for k in range(RP*2)]+[DT+k for k in range(RP*8)])
        st(5)
        ROWRED=("row_ror:8","row_ror:4","row_ror:2","row_ror:1")
        OW=O; OO=O+4; OL=O+12; OP=O+16
        a(f"v_max_f32 v{T+2}, v{HD}, v{HD+2}")
        for k in range(2,RP): a(f"v_max_f32 v{T+2}, v{T+2}, v{HD+2*k}")
        for m in ROWRED: a(f"v_max_f32_dpp v{T+2}, v{T+2}, v{T+2} {m} {DPPF}")
        for k in range(RP): a(f"v_sub_f32 v{OW+k}, v{HD+2*k}, v{T+2}")
        for k in range(RP): a(f"v_exp_f32 v{OW+k}, v{OW+k}")
        a(f"v_mul_f32 v{OL}, v{OW}, v{HD+1}")
        for e in range(8): a(f"v_mul_f32 v{OO+e}, v{OW}, v{DT+e}")
        for k in range(1,RP):
            a(f"v_fmac_f32 v{OL}, v{OW+k}, v{HD+2*k+1}")
            for e in range(8): a(f"v_fmac_f32 v{OO+e}, v{OW+k}, v{DT+k*8+e}")
        for m in ROWRED:
            a(f"v_add_f32_dpp v{OL}, v{OL}, v{OL} {m} {DPPF}")
            if m==ROWRED[-1]: a(f"v_rcp_f32 v{OL}, v{OL}")
            for e in range(8): a(f"v_add_f32_dpp v{OO+e}, v{OO+e}, v{OO+e} {m} {DPPF}")
        for e in range(8): a(f"v_mul_f32 v{OO+e}, v{OO+e}, v{OL}")
        for e in range(4): a(f"v_cvt_pk_bf16_f32 v{OP+e}, v{OO+2*e}, v{OO+2*e+1}")
        def prm(i,v): a(f"v_perm_b32 v{HA+(i%2)*4+v}, v{OP+i//2}, v{OP+i//2}, v{SEL[i%2][v]}")
        for v in range(4): prm(0,v)
        for i in range(8):
            ar=HA+(i%2)*4
            for blk in range(4):
                r=WR+(i*4+blk)*4; c=HC+blk*4
                a(f"v_mfma_f32_16x16x32_bf16 v[{c}:{c+3}], v[{ar}:{ar+3}], v[{r}:{r+3}], {'0' if i==0 else 'v[%d:%d]'%(c,c+3)}")
                if i<7 and blk<2: prm(i+1,2*blk); prm(i+1,2*blk+1)
        a("s_mov_b32 exec_hi, 0")
        for blk in range(4):
            for k in range(4): a(f"v_min_u32 v{HC+blk*4+k}, -2, v{HC+blk*4+k}")
            a(f"buffer_store_dwordx4 v[{HC+blk*4}:{HC+blk*4+3}], v{T+3}, s[36:39], s54 offen offset:{blk*512} sc1")
        a("s_mov_b64 exec, -1")
        st(6)
        a("s_cmp_ge_u32 s31, 28")
        a(f"s_cbranch_scc1 L_he{br}")
        def l2loads():
            for k in range(8):
                a(f"buffer_load_dwordx4 v[{DT+4*k}:{DT+4*k+3}], v{T+4}, s[36:39], s{80+k} offen sc1")
        poll(f"L_yp{br}",l2loads,[DT+k for k in range(32)])
        for e in range(0,16,2): a(f"v_pk_add_f32 v[{O+e}:{O+e+1}], v[{DT+e}:{DT+e+1}], v[{DT+16+e}:{DT+17+e}]")
        for half in (8,4):
            for e in range(0,half,2): a(f"v_pk_add_f32 v[{O+e}:{O+e+1}], v[{O+e}:{O+e+1}], v[{O+half+e}:{O+half+e+1}]")
        for m in ("row_ror:8","row_ror:4"):
            for e in range(4): a(f"v_add_f32_dpp v{O+e}, v{O+e}, v{O+e} {m} {DPPF}")
        for sw in ("v_permlane16_swap_b32","v_permlane32_swap_b32"):
            for e in range(4): a(f"v_mov_b32 v{O+4+e}, v{O+e}")
            for e in range(4): a(f"{sw} v{O+e}, v{O+4+e}")
            for e in range(4): a(f"v_add_f32 v{O+e}, v{O+e}, v{O+4+e}")
        a(f"v_cvt_pk_bf16_f32 v{O+4}, v{O}, v{O+1}")
        a(f"v_cvt_pk_bf16_f32 v{O+5}, v{O+2}, v{O+3}")
        a("s_mov_b64 exec, 15")
        a(f"buffer_store_dwordx2 v[{O+4}:{O+5}], v1, s[40:43], s62 offen {osc}")
        a("s_mov_b64 exec, -1")
        a.label(f"L_he{br}")
        write_stamps(True)
        a("s_endpgm")
    helper('A')
    a.label("L_helper_B")
    helper('B')
    if hfirst:
        a.flush()
        a.lines=a.lines[:mark0]+a.lines[mark1:]+a.lines[mark0:mark1]
    a.label("L_done")
    a("s_endpgm")
    if report is not None:
        a.raw(".globl report_kernel"); a.raw(".p2align 8"); a.raw(".type report_kernel,@function"); a.raw("report_kernel:")
        a(f"""
        s_cmp_ge_u32 s2, 1
        s_cbranch_scc1 LR_done
        s_load_dwordx4 s[4:7], s[0:1], 88
        s_mov_b32 s38, {WS_USED}
        s_mov_b32 s39, 0x20000
        s_mov_b32 s42, 256
        s_mov_b32 s43, 0x20000
        v_lshlrev_b32 v1, 2, v0
        v_mov_b32 v2, 0
        v_mov_b32 v3, -1
        ds_write_b32 v1, v3            ; 0..255: mins
        ds_write_b32 v1, v2 offset:256 ; maxs
        ds_write_b32 v1, v2 offset:512 ; sums
        s_waitcnt lgkmcnt(0)
        s_mov_b32 s36, s6
        s_mov_b32 s37, s7
        s_mov_b32 s40, s4
        s_mov_b32 s41, s5
        v_lshlrev_b32 v4, 4, v0
        s_mov_b32 s8, 0
        buffer_load_dwordx4 v[8:11], v4, s[36:39], s8 offen
        s_waitcnt vmcnt(0)
        v_subrev_u32 v8, 100, v8
        v_mov_b32 v5, 252
        ds_min_u32 v5, v8
        s_waitcnt lgkmcnt(0)
        ds_read_b32 v6, v5
        s_waitcnt lgkmcnt(0)
        v_mul_u32_u24 v4, {(W+1)*32}, v0
        """)
        for i in range(4):
            for w in range(W+1):
                a(f"s_mov_b32 s8, {0x4000+i*64*(W+1)*32+w*32}")
                a("buffer_load_dwordx4 v[8:11], v4, s[36:39], s8 offen")
                a("buffer_load_dwordx4 v[12:15], v4, s[36:39], s8 offen offset:16")
                a("s_waitcnt vmcnt(0)")
                g=0 if w else 32
                for k in range(8):
                    a(f"v_sub_u32 v{8+k}, v{8+k}, v6")
                    a(f"ds_min_u32 v2, v{8+k} offset:{g+4*k}")
                    a(f"ds_max_u32 v2, v{8+k} offset:{256+g+4*k}")
                    a(f"ds_add_u32 v2, v{8+k} offset:{512+g+4*k}")
                a("s_waitcnt lgkmcnt(0)")
        picks=[(0,0),(256+4,0),(512+8,8+LW),(512+12,8+LW),(512+16,8+LW),(512+20,8+LW),(28,0),(256+28,0),(256+32+28,0),
               (512+4,8+LW),(512+24,8+LW),(512+32+0,8),(512+32+4,8),(256+32+4,0),(256+32+8,0),(512+32+12,8)]
        a("s_mov_b64 exec, 1")
        for k,(off,sh) in enumerate(picks):
            a(f"ds_read_b32 v8, v2 offset:{off}")
            a("s_waitcnt lgkmcnt(0)")
            a(f"v_lshrrev_b32 v8, {sh}, v8")
            a(f"buffer_store_dword v8, off, s[40:43], 0 offset:{4*k}")
            if report[0]==k: a("v_readfirstlane_b32 s10, v8")
        if report[0]<0: a("s_mov_b32 s10, 0")
        a(f"s_mul_i32 s10, s10, {report[1]}")
        a("s_min_u32 s10, s10, 200000")
        a("s_memrealtime s[12:13]"); a("s_waitcnt lgkmcnt(0)")
        a.label("LR_spin")
        a("s_memrealtime s[14:15]"); a("s_waitcnt lgkmcnt(0)")
        a("s_sub_u32 s16, s14, s12"); a("s_cmp_lt_u32 s16, s10"); a("s_cbranch_scc1 LR_spin")
        a.label("LR_done")
        a("s_endpgm")
    a.raw('.section .rodata,"a"')
    for nm,nv in ((NAME,256+16*NV),)+((("report_kernel",16),) if report is not None else ()):
        a.raw(".p2align 6"); a.raw(f".amdhsa_kernel {nm}")
        a.raw(f"  .amdhsa_next_free_vgpr {nv}"); a.raw("  .amdhsa_next_free_sgpr 96"); a.raw(f"  .amdhsa_accum_offset {min(nv,256)}")
        a.raw("  .amdhsa_float_denorm_mode_32 3")
        a.raw("  .amdhsa_group_segment_fixed_size 0"); a.raw("  .amdhsa_kernarg_size 104"); a.raw("  .amdhsa_user_sgpr_count 2")
        a.raw("  .amdhsa_user_sgpr_kernarg_segment_ptr 1"); a.raw("  .amdhsa_system_sgpr_workgroup_id_x 1"); a.raw(".end_amdhsa_kernel")
    return a.text()

def make(cfgs, listfile="list.txt"):
    import build
    lines=[]
    for c in cfgs:
        lab="_".join(f"{k}{str(v).replace(' ','').replace(',','.').strip('()[]')}" for k,v in c.items() if k!='stamp') or "base"
        fn="k_"+lab+".s"
        open(fn,"w").write(gen(**c))
        co=build.build(fn)
        W=c.get('W',2)
        lines.append(f"{lab} {co} {256*W if c.get('stamp') else 0} {NAME}:256:{(W+1)*64}:{c.get('lds',90112)}")
    open(listfile,"w").write("\n".join(lines)+"\n")
if __name__=="__main__":
    import json
    cfg=json.loads(sys.argv[2]) if len(sys.argv)>2 else {}
    open(sys.argv[1],"w").write(gen(**cfg))
```

```python
def emit(a,report,WS_USED,W,LW):
    a.raw(".globl report_kernel"); a.raw(".p2align 8"); a.raw(".type report_kernel,@function"); a.raw("report_kernel:")
    a(f"""
    s_cmp_ge_u32 s2, 1
    s_cbranch_scc1 LR_done
    s_load_dwordx4 s[4:7], s[0:1], 88
    s_mov_b32 s38, {WS_USED}
    s_mov_b32 s39, 0x20000
    s_mov_b32 s42, 256
    s_mov_b32 s43, 0x20000
    v_lshlrev_b32 v1, 2, v0
    v_mov_b32 v2, 0
    v_mov_b32 v3, -1
    ds_write_b32 v1, v3            ; 0..255: mins
    ds_write_b32 v1, v2 offset:256 ; maxs
    ds_write_b32 v1, v2 offset:512 ; sums
    s_waitcnt lgkmcnt(0)
    s_mov_b32 s36, s6
    s_mov_b32 s37, s7
    s_mov_b32 s40, s4
    s_mov_b32 s41, s5
    v_lshlrev_b32 v4, 4, v0
    s_mov_b32 s8, 0
    buffer_load_dwordx4 v[8:11], v4, s[36:39], s8 offen
    s_waitcnt vmcnt(0)
    v_subrev_u32 v8, 100, v8
    v_mov_b32 v5, 252
    ds_min_u32 v5, v8
    s_waitcnt lgkmcnt(0)
    ds_read_b32 v6, v5
    s_waitcnt lgkmcnt(0)
    v_mul_u32_u24 v4, {(W+1)*32}, v0
    """)
    for i in range(4):
        for w in range(W+1):
            a(f"s_mov_b32 s8, {0x4000+i*64*(W+1)*32+w*32}")
            a("buffer_load_dwordx4 v[8:11], v4, s[36:39], s8 offen")
            a("buffer_load_dwordx4 v[12:15], v4, s[36:39], s8 offen offset:16")
            a("s_waitcnt vmcnt(0)")
            g=0 if w else 32
            for k in range(8):
                a(f"v_sub_u32 v{8+k}, v{8+k}, v6")
                a(f"ds_min_u32 v2, v{8+k} offset:{g+4*k}")
                a(f"ds_max_u32 v2, v{8+k} offset:{256+g+4*k}")
                a(f"ds_add_u32 v2, v{8+k} offset:{512+g+4*k}")
            a("s_waitcnt lgkmcnt(0)")
    picks=[(0,0),(256+4,0),(512+8,8+LW),(512+12,8+LW),(512+16,8+LW),(512+20,8+LW),(28,0),(256+28,0),(256+32+28,0),
           (512+4,8+LW),(512+24,8+LW),(512+32+0,8),(512+32+4,8),(256+32+4,0),(256+32+8,0),(512+32+12,8)]
    a("s_mov_b64 exec, 1")
    for k,(off,sh) in enumerate(picks):
        a(f"ds_read_b32 v8, v2 offset:{off}")
        a("s_waitcnt lgkmcnt(0)")
        a(f"v_lshrrev_b32 v8, {sh}, v8")
        a(f"buffer_store_dword v8, off, s[40:43], 0 offset:{4*k}")
        if report[0]==k: a("v_readfirstlane_b32 s10, v8")
    if report[0]<0: a("s_mov_b32 s10, 0")
    a(f"s_mul_i32 s10, s10, {report[1]}")
    a("s_min_u32 s10, s10, 200000")
    a("s_memrealtime s[12:13]"); a("s_waitcnt lgkmcnt(0)")
    a.label("LR_spin")
    a("s_memrealtime s[14:15]"); a("s_waitcnt lgkmcnt(0)")
    a("s_sub_u32 s16, s14, s12"); a("s_cmp_lt_u32 s16, s10"); a("s_cbranch_scc1 LR_spin")
    a.label("LR_done")
    a("s_endpgm")
```

```python
import struct, math, sys
from asmlib import Asm
NAME="concat_heads__gqa_block_cached__mha_block_cached__decode_kernel"
HDR=open('concat_heads__gqa_block_cached__mha_block_cached__decode.s.ref').read().split('; Override')[0]
def f2u(x): return struct.unpack('<I',struct.pack('<f',x))[0]
QP=0x10000
TK=0x50000
RDY=0x58000
IN1D=0x80000
IN1H=0x280000
YO=0x2C0000
WS_USED=0x340000
LQA=0; LQB=1024; LQP=1536; LCNT=2048; LGO=2052; LSC=2304
DPPF="row_mask:0xf bank_mask:0xf"
INV=0x7f000000
W=2; LW=1

def gen(stamp=False, lds=68096, dl=10, NV=12, PK=128, blk=32, tq=3, gsleep=24, psl=1, spin=1<<20, mix=True, report=None,
        thr=2, boost=3, sep=False):
    SPIN=spin
    a=Asm()
    cm=lambda t: a.raw("    ; "+t)
    a.raw(HDR.rstrip())
    if report is None: a.raw(f"; @launch grid=(256,1,1) block=({(W+1)*64},1,1) lds={lds}")
    else:
        a.raw(f"; @launch kernel={NAME} grid=(256,1,1) block=({(W+1)*64},1,1) lds={lds}")
        a.raw("; @launch kernel=report_kernel grid=(1,1,1) block=(64,1,1) lds=1024")
    a.raw('.amdgcn_target "amdgcn-amd-amdhsa--gfx950"')
    a.raw(".text"); a.raw(f".globl {NAME}"); a.raw(".p2align 8"); a.raw(f".type {NAME},@function"); a.raw(f"{NAME}:")
    def st(k):
        if stamp:
            a("s_memrealtime s[68:69]"); a("s_waitcnt lgkmcnt(0)"); a(f"s_mov_b32 s{72+k}, s68")
    cm("256 workgroups x 3 waves: wave 0 = helper (q projection, combine, output projection), waves 1,2 stream K/V")
    a(f"""
    s_cmp_ge_u32 s2, 256
    s_cbranch_scc1 L_done
    s_load_dwordx16 s[4:19], s[0:1], 0
    s_load_dwordx8 s[20:27], s[0:1], 64
    s_load_dwordx2 s[28:29], s[0:1], 96
    v_lshrrev_b32 v1, 6, v0
    v_and_b32 v0, 63, v0
    v_readfirstlane_b32 s30, v1
    v_and_b32 v2, 15, v0
    v_lshrrev_b32 v3, 4, v0
    s_mov_b32 s38, {WS_USED}
    s_mov_b32 s39, 0x20000
    s_lshr_b32 s48, s2, 4
    s_lshl_b32 s48, s48, 3
    s_and_b32 s49, s2, 7
    s_or_b32 s48, s48, s49
    s_bfe_u32 s55, s2, 0x10003
    s_lshr_b32 s96, s2, 4
    """)
    if mix and sep: a("s_and_b32 s49, s2, 15"); a("s_xor_b32 s96, s96, s49")
    a("s_cmp_eq_u32 s30, 0"); a("s_cbranch_scc0 L_stream")
    def selectors():
        a("""
        v_and_b32 v4, 1, v0
        v_cmp_eq_u32 vcc, 1, v4
        v_mov_b32 v5, 0x0c0c0100
        v_mov_b32 v6, 0x01000c0c
        v_cndmask_b32 v5, v5, v6, vcc
        v_mov_b32 v6, 0x0c0c0302
        v_mov_b32 v7, 0x03020c0c
        v_cndmask_b32 v6, v6, v7, vcc
        v_bfe_u32 v4, v0, 1, 2
        v_mov_b32 v7, 0x0c0c0c0c
        """)
        for v in range(4):
            a(f"v_cmp_eq_u32 vcc, {v}, v4")
            a(f"v_cndmask_b32 v{8+v}, v7, v5, vcc")
            a(f"v_cndmask_b32 v{12+v}, v7, v6, vcc")
    SEL=[[8,9,10,11],[12,13,14,15]]
    def after_kernarg():
        a("s_waitcnt lgkmcnt(0)")
        if stamp:
            for k in range(8): a(f"s_mov_b32 s{72+k}, 0")
        st(0)
        a("s_mov_b32 s36, s28"); a("s_mov_b32 s37, s29")
    def write_stamps(helper):
        if not stamp: return
        st(7)
        a("s_getreg_b32 s66, hwreg(HW_REG_XCC_ID)")
        a("s_mov_b64 exec, 1")
        a("v_mov_b32 v4, 0")
        if not helper:
            a("v_mov_b32 v20, s72"); a("v_mov_b32 v21, s79"); a("v_mov_b32 v22, s66"); a("v_mov_b32 v23, 0")
            a(f"s_lshl_b32 s64, s2, {LW}"); a("s_add_u32 s64, s64, s31"); a("s_lshl_b32 s64, s64, 4")
            a("buffer_store_dwordx4 v[20:23], v4, s[36:39], s64 offen")
        for k in range(8): a(f"v_mov_b32 v{40+k}, s{72+k}")
        a(f"s_mul_i32 s64, s2, {W+1}"); a("s_add_u32 s64, s64, s30"); a("s_lshl_b32 s64, s64, 5"); a("s_add_u32 s64, s64, 0x4000")
        a("buffer_store_dwordx4 v[40:43], v4, s[36:39], s64 offen")
        a("buffer_store_dwordx4 v[44:47], v4, s[36:39], s64 offen offset:16")
    def spin_tail(lbl,sleep):
        if sleep: a(f"s_sleep {sleep}")
        a("s_sub_u32 s65, s65, 1"); a("s_cmp_lg_u32 s65, 0")
        a(f"s_cbranch_scc1 {lbl}")
    def lds_wait(lbl,tmp,addr,val,sleep):
        a(f"v_mov_b32 v{tmp}, {addr}")
        a(f"s_mov_b32 s65, {SPIN}")
        a.label(lbl)
        a(f"ds_read_b32 v{tmp+1}, v{tmp}")
        a("s_waitcnt lgkmcnt(0)")
        a(f"v_readfirstlane_b32 s64, v{tmp+1}")
        a(f"s_cmp_ge_u32 s64, {val}")
        a(f"s_cbranch_scc1 {lbl}d")
        spin_tail(lbl,sleep)
        a.label(lbl+"d")

    WR=64; XR=16; HA=32; HC=40; T=56; DT=192; HD=16; O=224
    cm("---------------- helper wave: s48 = index 0..127 inside the branch, s55 = branch (0 = A, 1 = B)")
    a(f"""
    s_setprio 3
    s_memrealtime s[92:93]
    s_mov_b32 s42, 896
    s_mov_b32 s43, 0x20000
    s_mov_b32 s47, 0x20000
    s_mov_b32 s82, 256
    s_mov_b32 s83, 0x20000
    s_and_b32 s60, s48, 31
    s_lshr_b32 s61, s48, 5
    s_mov_b32 s46, {448*8192}
    v_mul_u32_u24 v{T}, 56, v3
    s_mul_i32 s62, s61, 224
    s_mov_b32 s63, {28*8192}
    v_mul_lo_u32 v{T+1}, s63, v3
    v_lshl_add_u32 v{T+1}, v2, 4, v{T+1}
    s_mul_i32 s63, s61, {112*8192}
    s_lshl_b32 s64, s60, 8
    s_add_u32 s63, s63, s64
    s_and_b32 s56, s2, 0xf8
    """)
    after_kernarg()
    cm("workgroup 0 publishes this launch's nonce (tags every hand-off through d_ws) in the zeroed d_debug")
    a(f"""
    s_mov_b32 s80, s26
    s_mov_b32 s81, s27
    s_cmp_lg_u32 s2, 0
    s_cbranch_scc1 L_nononce
    s_or_b32 s92, s92, 1
    v_mov_b32 v{T+4}, s92
    v_mov_b32 v{T+5}, s93
    v_lshlrev_b32 v{T+6}, 3, v0
    s_mov_b32 exec_hi, 0
    buffer_store_dwordx2 v[{T+4}:{T+5}], v{T+6}, s[80:83], 0 offen sc1
    s_mov_b64 exec, -1
    """)
    a.label("L_nononce")
    cm("partial q: 112 rows x 128 columns of wq")
    a("""
    s_cmp_eq_u32 s55, 0
    s_cselect_b32 s40, s4, s14
    s_cselect_b32 s41, s5, s15
    s_cselect_b32 s44, s10, s20
    s_cselect_b32 s45, s11, s21
    """)
    for i in range(28):
        a(f"buffer_load_dwordx4 v[{WR+4*i}:{WR+4*i+3}], v{T+1}, s[44:47], s63 offen nt")
        if i<27: a("s_add_u32 s63, s63, 8192")
        if i==0:
            for k in range(7):
                a(f"buffer_load_dwordx2 v[{XR+2*k}:{XR+2*k+1}], v{T}, s[40:43], s62 offen offset:{8*k}")
    a("s_barrier")
    a(f"buffer_load_dwordx2 v[{T+4}:{T+5}], off, s[80:83], s56 sc1")
    selectors()
    a(f"""
    v_mov_b32 v{HC+4}, {LCNT}
    v_mov_b32 v{HC+6}, 0
    v_mov_b32 v{HC+7}, 0
    ds_write_b64 v{HC+4}, v[{HC+6}:{HC+7}]
    v_lshlrev_b32 v{T+2}, 4, v0
    v_and_b32 v{T+3}, 1, v3
    v_lshlrev_b32 v{T+3}, 4, v{T+3}
    v_lshl_add_u32 v{T+3}, v2, 5, v{T+3}
    v_lshrrev_b32 v{T+6}, 5, v0
    v_lshlrev_b32 v{T+6}, 4, v{T+6}
    v_lshl_add_u32 v{T+6}, v{T+3}, 1, v{T+6}
    s_lshl_b32 s63, s61, 15
    s_lshl_b32 s64, s60, 10
    s_add_u32 s63, s63, s64
    s_lshl_b32 s64, s55, 17
    s_add_u32 s63, s63, s64
    s_add_u32 s63, s63, {QP}
    """)
    for i in range(28):
        a(f"s_waitcnt vmcnt({28-i})")
        ar=HA+(i%2)*4
        for v in range(4):
            a(f"v_perm_b32 v{ar+v}, v{XR+i//2}, v{XR+i//2}, v{SEL[i%2][v]}")
        a(f"v_mfma_f32_16x16x32_bf16 v[{HC}:{HC+3}], v[{ar}:{ar+3}], v[{WR+4*i}:{WR+4*i+3}], {'0' if i==0 else 'v[%d:%d]'%(HC,HC+3)}")
    st(1)
    a(f"s_mov_b32 s65, {SPIN}")
    a.label("L_np")
    a("s_waitcnt vmcnt(0)")
    a(f"v_readfirstlane_b32 s92, v{T+4}"); a(f"v_readfirstlane_b32 s93, v{T+5}")
    a("s_cmp_lg_u32 s92, 0")
    a("s_cbranch_scc1 L_nd")
    a(f"buffer_load_dwordx2 v[{T+4}:{T+5}], off, s[80:83], s56 sc1")
    spin_tail("L_np",0)
    a.label("L_nd")
    a("s_mov_b32 exec_lo, 0")
    a(f"v_mov_b32 v{HC}, v{HC+2}"); a(f"v_mov_b32 v{HC+1}, v{HC+3}")
    a("s_mov_b32 exec_lo, -1")
    a(f"v_mov_b32 v{HC+2}, v{T+4}"); a(f"v_mov_b32 v{HC+3}, v{T+5}")
    a(f"buffer_store_dwordx4 v[{HC}:{HC+3}], v{T+6}, s[36:39], s63 offen sc1")
    st(2)
    def gather(lbl,bases,ldsoff,sleep):
        a(f"s_mov_b32 s65, {SPIN}")
        a.label(lbl)
        bases()
        for ks in range(4):
            for k in range(4):
                r=DT+(ks*4+k)*4
                a(f"buffer_load_dwordx4 v[{r}:{r+3}], v{T+2}, s[36:39], s{62+k//2} offen offset:{(k%2)*1024} sc1")
            if ks<3: a("s_add_u32 s62, s62, 0x8000"); a("s_add_u32 s63, s63, 0x8000")
        a("s_mov_b64 s[66:67], 0")
        for j in range(16):
            a(f"s_waitcnt vmcnt({15-j})")
            a(f"v_cmp_ne_u64 vcc, s[92:93], v[{DT+j*4+2}:{DT+j*4+3}]")
            a("s_or_b64 s[66:67], s[66:67], vcc")
        a("s_cmp_eq_u64 s[66:67], 0")
        a(f"s_cbranch_scc1 {lbl}d")
        spin_tail(lbl,sleep)
        a.label(lbl+"d")
        def pr(j): return f"v[{DT+j*4}:{DT+j*4+1}]"
        for k in range(4):
            a(f"v_pk_add_f32 {pr(k)}, {pr(k)}, {pr(4+k)}")
            a(f"v_pk_add_f32 {pr(8+k)}, {pr(8+k)}, {pr(12+k)}")
        for k in range(4): a(f"v_pk_add_f32 {pr(k)}, {pr(k)}, {pr(8+k)}")
        a(f"v_lshlrev_b32 v{T}, 2, v0")
        for k in range(4): a(f"v_cvt_pk_bf16_f32 v{DT+k*4+2}, v{DT+k*4}, v{DT+k*4+1}")
        for k in range(4): a(f"ds_write_b32 v{T}, v{DT+k*4+2} offset:{ldsoff+256*k}")
        a("s_waitcnt lgkmcnt(0)")
    def baseA():
        a("s_lshr_b32 s62, s2, 5"); a("s_lshl_b32 s62, s62, 12"); a(f"s_add_u32 s62, s62, {QP}"); a("s_add_u32 s63, s62, 2048")
    def baseB():
        a("s_lshr_b32 s62, s2, 4"); a("s_lshl_b32 s62, s62, 11"); a(f"s_add_u32 s62, s62, {QP+0x20000}")
        a("s_lshl_b32 s63, s96, 11"); a(f"s_add_u32 s63, s63, {QP+0x20000}")
    cm("gather the two A q heads of this workgroup (back off first: the other producers finish at about the same time)")
    if gsleep: a(f"s_sleep {gsleep}")
    gather("L_ga",baseA,LQA,8)
    a("s_barrier")
    a("s_setprio 0")
    st(4)
    cm("fill the inboxes this wave will poll with the sentinel, zero a ticket counter, then publish 'ready'")
    for k in range(4): a(f"v_mov_b32 v{HC+k}, -1")
    a("s_lshl_b32 s60, s55, 7"); a("s_add_u32 s60, s60, s48")
    a("s_lshl_b32 s52, s60, 13"); a(f"s_add_u32 s52, s52, {IN1D}")
    a("s_lshl_b32 s53, s60, 9"); a(f"s_add_u32 s53, s53, {IN1H}")
    a("s_lshl_b32 s54, s60, 11"); a(f"s_add_u32 s54, s54, {YO}")
    a(f"buffer_store_dwordx4 v[{HC}:{HC+3}], v{T+2}, s[36:39], s54 offen sc1")
    a(f"buffer_store_dwordx4 v[{HC}:{HC+3}], v{T+2}, s[36:39], s54 offen offset:1024 sc1")
    a("s_add_u32 s63, s52, 4096")
    for k in range(8):
        a(f"buffer_store_dwordx4 v[{HC}:{HC+3}], v{T+2}, s[36:39], {'s52' if k<4 else 's63'} offen offset:{(k%4)*1024} sc1")
    a("s_mov_b32 exec_hi, 0")
    a(f"buffer_store_dwordx4 v[{HC}:{HC+3}], v{T+2}, s[36:39], s53 offen sc1")
    a("s_lshl_b32 s63, s48, 8"); a(f"s_add_u32 s63, s63, {TK}")
    a("s_lshl_b32 s64, s2, 3"); a(f"s_add_u32 s64, s64, {RDY}")
    a("s_mov_b64 exec, 1")
    a(f"v_mov_b32 v{T}, 0")
    a(f"buffer_store_dword v{T}, off, s[36:39], s63 sc1")
    a("s_waitcnt vmcnt(0)")
    a(f"buffer_store_dwordx2 v[{T+4}:{T+5}], off, s[36:39], s64 sc1")
    a("s_mov_b64 exec, -1")
    cm("32 rows of wo stay in registers until the end")
    a(f"""
    s_cmp_eq_u32 s55, 1
    s_cselect_b32 s44, s22, s12
    s_cselect_b32 s45, s23, s13
    s_mov_b32 s46, {4096*896}
    s_mul_i32 s63, s48, {32*896}
    v_bfrev_b32 v{T+7}, v3
    v_lshrrev_b32 v{T+7}, 30, v{T+7}
    v_mul_u32_u24 v{T}, 896, v{T+7}
    v_lshl_add_u32 v{T}, v2, 4, v{T}
    """)
    for i in range(8):
        for bk in range(4):
            r=WR+(i*4+bk)*4
            a(f"buffer_load_dwordx4 v[{r}:{r+3}], v{T}, s[44:47], s63 offen offset:{bk*256} nt")
        if i<7: a(f"s_add_u32 s63, s63, {4*896}")
    a("s_waitcnt vmcnt(0)")
    cm("every workgroup ready?")
    a(f"s_mov_b32 s64, {RDY}")
    a(f"s_mov_b32 s65, {SPIN}")
    a.label("L_rd")
    a(f"buffer_load_dwordx4 v[{DT}:{DT+3}], v{T+2}, s[36:39], s64 offen sc1")
    a(f"buffer_load_dwordx4 v[{DT+4}:{DT+7}], v{T+2}, s[36:39], s64 offen offset:1024 sc1")
    a("s_mov_b64 s[66:67], 0")
    a("s_waitcnt vmcnt(0)")
    for j in range(4):
        a(f"v_cmp_ne_u64 vcc, s[92:93], v[{DT+j*2}:{DT+j*2+1}]")
        a("s_or_b64 s[66:67], s[66:67], vcc")
    a("s_cmp_eq_u64 s[66:67], 0")
    a("s_cbranch_scc1 L_rdd")
    spin_tail("L_rd",64)
    a.label("L_rdd")
    cm("q of the B head streamed statically and of the B head of the dynamic pool")
    gather("L_gb",baseB,LQB,64)
    a(f"v_mov_b32 v{T}, {LGO}"); a(f"v_mov_b32 v{T+1}, 1")
    a(f"ds_write_b32 v{T}, v{T+1}")
    st(3)
    def anysent(rs,tmp):
        h=len(rs)//2
        chains=[(tmp,rs[:h]),(tmp+3,rs[h:])]
        for t,c in chains: a(f"v_max_u32 v{t}, v{c[0]}, v{c[1]}")
        k=2
        while k<h:
            for t,c in chains:
                if k+1<h: a(f"v_max3_u32 v{t}, v{t}, v{c[k]}, v{c[k+1]}")
                else: a(f"v_max_u32 v{t}, v{t}, v{c[k]}")
            k+=2
        a(f"v_max_u32 v{tmp}, v{tmp}, v{tmp+3}")
        a(f"v_cmp_eq_u32 vcc, -1, v{tmp}")
        a("s_cmp_eq_u64 vcc, 0")
    def poll(lbl,loads,rs):
        loads()
        a("s_waitcnt vmcnt(0)")
        a(f"s_mov_b32 s65, {SPIN}")
        a.label(lbl)
        anysent(rs,T+2)
        a(f"s_cbranch_scc1 {lbl}d")
        a("s_mov_b64 exec, vcc")
        loads()
        a("s_mov_b64 exec, -1")
        a("s_waitcnt vmcnt(48)")
        spin_tail(lbl,psl)
        a.label(lbl+"d")
    a(f"v_lshlrev_b32 v1, 1, v{T+7}"); a(f"v_and_b32 v{T+5}, 3, v0"); a(f"v_lshl_add_u32 v1, v{T+5}, 3, v1")
    a(f"v_lshlrev_b32 v{T+7}, 4, v0")
    a(f"v_lshrrev_b32 v{T+4}, 2, v0"); a(f"v_lshlrev_b32 v{T+4}, 11, v{T+4}")
    a(f"v_lshl_add_u32 v{T+4}, v{T+5}, 4, v{T+4}")
    a(f"v_lshrrev_b32 v{T+6}, 3, v0"); a(f"v_lshlrev_b32 v{T+6}, 6, v{T+6}")
    a("s_lshl_b32 s84, s48, 6"); a("s_lshl_b32 s60, s55, 18"); a("s_add_u32 s84, s84, s60"); a(f"s_add_u32 s84, s84, {YO}")
    for k in range(1,8): a(f"s_add_u32 s{84+k}, s{83+k}, 0x8000")
    a("""
    s_mov_b32 s40, s24
    s_mov_b32 s41, s25
    s_mov_b32 s42, 1792
    s_lshl_b32 s62, s48, 5
    s_mul_i32 s60, s55, 896
    s_add_u32 s62, s62, s60
    s_add_u32 s57, s52, 4096
    """)
    cm("wait until this workgroup's streaming waves are done, then combine the softmax records for 32 output rows")
    lds_wait("L_ow",T,LCNT,thr,2)
    OW=O; OO=O+8; OL=O+12; OX=O+13; OB=O+16
    def allred(reg,op):
        a(f"{op}_dpp v{reg}, v{reg}, v{reg} row_ror:8 {DPPF}")
        for sw in ("v_permlane16_swap_b32","v_permlane32_swap_b32"):
            a(f"v_mov_b32 v{OX}, v{reg}"); a(f"{sw} v{reg}, v{OX}"); a(f"{op} v{reg}, v{reg}, v{OX}")
    def scatter4(r):
        a(f"v_permlane32_swap_b32 v{r}, v{r+1}"); a(f"v_permlane32_swap_b32 v{r+2}, v{r+3}")
        a(f"v_add_f32 v{r}, v{r}, v{r+1}"); a(f"v_add_f32 v{r+2}, v{r+2}, v{r+3}")
        a(f"v_permlane16_swap_b32 v{r}, v{r+2}")
        a(f"v_add_f32 v{r}, v{r}, v{r+2}")
    def level1(J,sfx):
        def l1loads():
            for k in range(J//2):
                a(f"buffer_load_dwordx4 v[{HD+4*k}:{HD+4*k+3}], v{T+6}, s[36:39], s53 offen offset:{16*k} sc1")
            for j in range(J):
                a(f"buffer_load_dwordx4 v[{DT+4*j}:{DT+4*j+3}], v{T+7}, s[36:39], {'s52' if j<4 else 's57'} offen offset:{(j%4)*1024} sc1")
        poll("L_hp"+sfx,l1loads,[HD+k for k in range(J*2)]+[DT+k for k in range(J*4)])
        st(5)
        a(f"v_max_f32 v{T+2}, v{HD}, v{HD+2}")
        for k in range(2,J,2): a(f"v_max3_f32 v{T+2}, v{T+2}, v{HD+2*k}, v{HD+2*k+2}")
        allred(T+2,"v_max_f32")
        for k in range(J): a(f"v_sub_f32 v{OW+k}, v{HD+2*k}, v{T+2}")
        for k in range(J): a(f"v_exp_f32 v{OW+k}, v{OW+k}")
        a(f"v_mul_f32 v{OL}, v{OW}, v{HD+1}")
        for e in range(4): a(f"v_mul_f32 v{OO+e}, v{OW}, v{DT+e}")
        for k in range(1,J):
            a(f"v_fmac_f32 v{OL}, v{OW+k}, v{HD+2*k+1}")
            for e in range(4): a(f"v_fmac_f32 v{OO+e}, v{OW+k}, v{DT+k*4+e}")
    if sep: level1(8,"")
    else:
        a("s_cmp_eq_u32 s55, 0"); a("s_cbranch_scc1 L_l1A")
        level1(4,"B")
        a("s_branch L_l1j")
        a.label("L_l1A")
        level1(8,"A")
        a.label("L_l1j")
    a(f"v_add_f32_dpp v{OL}, v{OL}, v{OL} row_ror:8 {DPPF}")
    a(f"v_permlane32_swap_b32 v{OO}, v{OO+1}"); a(f"v_permlane32_swap_b32 v{OO+2}, v{OO+3}")
    a(f"v_mov_b32 v{OX}, v{OL}")
    a(f"v_add_f32 v{OO}, v{OO}, v{OO+1}"); a(f"v_add_f32 v{OO+2}, v{OO+2}, v{OO+3}")
    a(f"v_permlane16_swap_b32 v{OL}, v{OX}")
    a(f"v_add_f32 v{OL}, v{OL}, v{OX}")
    a(f"v_permlane16_swap_b32 v{OO}, v{OO+2}")
    a(f"v_mov_b32 v{OX}, v{OL}")
    a(f"v_add_f32 v{OO}, v{OO}, v{OO+2}")
    a(f"v_permlane32_swap_b32 v{OL}, v{OX}")
    a(f"v_add_f32 v{OL}, v{OL}, v{OX}")
    a(f"v_add_f32_dpp v{OO}, v{OO}, v{OO} row_ror:8 {DPPF}")
    a(f"v_rcp_f32 v{OL}, v{OL}")
    a(f"v_mul_f32 v{OO}, v{OO}, v{OL}")
    a(f"v_cvt_pk_bf16_f32 v{OO}, v{OO}, v{OO}")
    for i in range(8): a(f"v_mov_b32_dpp v{OB+i}, v{OO} row_newbcast:{i} {DPPF}")
    def prm(i,v): a(f"v_perm_b32 v{HA+(i%2)*4+v}, v{OB+i}, v{OB+i}, v{SEL[0][v]}")
    for v in range(4): prm(0,v)
    for i in range(8):
        ar=HA+(i%2)*4
        for bk in range(4):
            r=WR+(i*4+bk)*4; c=HC+bk*4
            a(f"v_mfma_f32_16x16x32_bf16 v[{c}:{c+3}], v[{ar}:{ar+3}], v[{r}:{r+3}], {'0' if i==0 else 'v[%d:%d]'%(c,c+3)}")
            if i<7 and bk<2: prm(i+1,2*bk); prm(i+1,2*bk+1)
    a("s_mov_b32 exec_hi, 0")
    for bk in range(4):
        for k in range(4): a(f"v_min_u32 v{HC+bk*4+k}, -2, v{HC+bk*4+k}")
        a(f"buffer_store_dwordx4 v[{HC+bk*4}:{HC+bk*4+3}], v{T+3}, s[36:39], s54 offen offset:{bk*512} sc1")
    a("s_mov_b64 exec, -1")
    st(6)
    cm("28 helpers per branch sum the 128 partial rows for 16 output columns each")
    a("s_cmp_ge_u32 s48, 28")
    a("s_cbranch_scc1 L_he")
    def l2loads():
        for k in range(8):
            a(f"buffer_load_dwordx4 v[{DT+4*k}:{DT+4*k+3}], v{T+4}, s[36:39], s{84+k} offen sc1")
    poll("L_yp",l2loads,[DT+k for k in range(32)])
    for e in range(0,16,2): a(f"v_pk_add_f32 v[{O+e}:{O+e+1}], v[{DT+e}:{DT+e+1}], v[{DT+16+e}:{DT+17+e}]")
    for half in (8,4):
        for e in range(0,half,2): a(f"v_pk_add_f32 v[{O+e}:{O+e+1}], v[{O+e}:{O+e+1}], v[{O+half+e}:{O+half+e+1}]")
    scatter4(O)
    for m in ("row_ror:8","row_ror:4"): a(f"v_add_f32_dpp v{O}, v{O}, v{O} {m} {DPPF}")
    a(f"v_cvt_pk_bf16_f32 v{O}, v{O}, v{O}")
    a("s_mov_b32 exec_lo, 0x000f000f"); a("s_mov_b32 exec_hi, 0x000f000f")
    a(f"buffer_store_short v{O}, v1, s[40:43], s62 offen")
    a("s_mov_b64 exec, -1")
    a.label("L_he")
    write_stamps(True)
    a("s_endpgm")

    VOFF=1; VSC=4; VM=5; VL=6; VMC=7
    Q=16; PA=24; ACC=32; AR=40; D=48; T=52; PKR=60; VOFF2=62; VTK=63
    RING=64
    STEP=4096*W
    NA=(1<<19)//STEP; NB=((1<<20)-PK*1024)//STEP
    NT=16*PK//8
    TQ=min(tq,16-dl)
    vq=[]
    BB=(blk*1024).bit_length()-1
    assert PK%blk==0 and NB%4==0 and NV%4==0
    a.label("L_stream")
    cm("---------------- streaming waves")
    a(f"""
    s_sub_u32 s31, s30, 1
    v_lshlrev_b32 v{VOFF}, 9, v3
    v_lshl_add_u32 v{VOFF}, v2, 4, v{VOFF}
    s_mov_b32 s34, 0x200000
    s_mov_b32 s35, 0x20000
    s_mov_b32 s42, 0x200000
    s_mov_b32 s43, 0x20000
    s_lshl_b32 s61, s31, 12
    s_lshl_b32 s49, s55, {BB}
    s_lshl_b32 s60, s48, 20
    s_add_u32 s60, s60, s49
    """)
    def adv(r):
        a(f"s_bitset1_b32 {r}, {BB}"); a(f"s_add_u32 {r}, {r}, {STEP}"); a(f"s_bitset0_b32 {r}, {BB}")
    after_kernarg()
    a("s_add_u32 s32, s6, s60"); a("s_addc_u32 s33, s7, 0")
    a("s_add_u32 s40, s8, s60"); a("s_addc_u32 s41, s9, 0")
    a("s_barrier")
    OFFS=[0,256,2048,2304]
    PH=[('A','K',NA),('A','V',NA),('B','K',NB),('B','V',NB)]
    ends=[NA,2*NA-NV,2*NA-NV+NB]
    def ld(base,i,srd,soff,voff=VOFF,rf='v'):
        r=base+i*4
        a(f"buffer_load_dwordx4 {rf}[{r}:{r+3}], v{voff}, {srd}, {soff} offen offset:{OFFS[i]} nt")
    def issue_static(h,p):
        h%=16
        ld(RING+(h//4)*16,h%4,"s[32:35]","s52"); vq.append(h)
        if h%4==3:
            adv("s52")
            if p is not None and p<3:
                a("s_add_u32 s53, s53, 1")
                a(f"s_cmp_eq_u32 s53, {ends[p]}")
                b=(40,56,58)[p]
                a(f"s_cselect_b32 s32, s{b}, s32"); a(f"s_cselect_b32 s33, s{b+1}, s33"); a(f"s_cselect_b32 s52, {'s94' if p==0 else 's61'}, s52")
    def ticket_req():
        a("s_mov_b64 exec, 1")
        a(f"v_mov_b32 v{VTK}, 1")
        a(f"buffer_atomic_add v{VTK}, off, s[36:39], s91 sc0 sc1"); vq.append('A')
        a("s_mov_b64 exec, -1")
    def ticket_use():
        assert 'A' not in vq
        a(f"v_readfirstlane_b32 s90, v{VTK}")
        a("s_and_b32 s88, s90, 7"); a("s_lshl_b32 s88, s88, 21")
        a("s_lshr_b32 s89, s90, 3"); a("s_lshl_b32 s89, s89, 13")
        a("s_add_u32 s88, s88, s89"); a(f"s_add_u32 s88, s88, {2*NB*STEP}")
        a(f"s_cmp_lt_u32 s90, {NT}")
        a(f"s_cselect_b32 s88, s88, {INV}")
    def issue_pool(h):
        h%=16
        if h==0: ticket_use()
        if h==TQ: ticket_req()
        k=h//4
        ld(RING+k*16,h%4,"s[80:83]" if k<2 else "s[84:87]","s88",VOFF if k%2==0 else VOFF2); vq.append(h)
    def setup2():
        selectors()
        a(f"""
        s_lshl_b32 s60, s48, 21
        s_add_u32 s60, s60, s49
        s_add_u32 s56, s16, s60
        s_addc_u32 s57, s17, 0
        s_add_u32 s58, s18, s60
        s_addc_u32 s59, s19, 0
        s_lshl_b32 s60, s96, 24
        s_add_u32 s80, s16, s60
        s_addc_u32 s81, s17, 0
        s_mov_b32 s82, 0x1000000
        s_mov_b32 s83, 0x20000
        s_add_u32 s84, s18, s60
        s_addc_u32 s85, s19, 0
        s_mov_b32 s86, 0x1000000
        s_mov_b32 s87, 0x20000
        s_lshl_b32 s91, s96, 8
        s_add_u32 s91, s91, {TK}
        s_mov_b32 s62, {f2u(math.log2(math.e)/16.0)}
        s_lshl_b32 s63, s31, 15
        s_add_u32 s63, s63, {LSC}
        v_add_u32 v{VOFF2}, 0x1000, v{VOFF}
        """)
    cm(f"while q is being computed: first {NV} V units of branch A go to AGPRs, then the K ring starts; {dl} loads in flight")
    n=0
    a("s_mov_b32 s94, s61")
    for k in range(NV):
        for i in range(4):
            if n>=dl: a(f"s_waitcnt vmcnt({dl-1})")
            ld(k*16,i,"s[40:43]","s94",rf='a'); n+=1
            if n==dl: setup2()
        adv("s94")
    a("s_mov_b32 s52, s61")
    a(f"s_mov_b32 s53, {dl//4}")
    for h in range(dl):
        if n>=dl: a(f"s_waitcnt vmcnt({dl-1})")
        issue_static(h,None); n+=1
        if n==dl: setup2()
    st(6)
    a("s_barrier")
    st(1)
    def arrive(c,iss):
        k=vq.index(c%16)
        a(f"s_waitcnt vmcnt({len(vq)-1-k})")
        del vq[:k+1]
        if sum(1 for x in vq if isinstance(x,int))<dl: iss(c+dl)
    def do_boost(iss):
        for h in range(dl,dl+boost): iss(h)
    def loop_begin(lbl):
        vq[:]=[x for x in vq if x!='S']
        a.label(lbl)
        return list(vq)
    def dots1(base,i,nh,dbase):
        s_=i//2
        for e4 in range(4):
            e=(i%2)*4+e4
            for h in range(nh):
                d=dbase+s_*nh+h
                a(f"v_dot2_f32_bf16 v{d}, v{base+i*4+e4}, v{Q+h*8+e}, {'0' if e==0 else 'v%d'%d}")
    def reduce(nh,dbase,tb,ns=2):
        for s_ in range(ns):
            if nh==2:
                a(f"v_add_f32_dpp v{tb+s_}, v{dbase+s_*2}, v{dbase+s_*2} row_ror:8 row_mask:0xf bank_mask:0x3")
                a(f"v_add_f32_dpp v{tb+s_}, v{dbase+s_*2+1}, v{dbase+s_*2+1} row_ror:8 row_mask:0xf bank_mask:0xc")
            else:
                a(f"v_add_f32_dpp v{tb+s_}, v{dbase+s_}, v{dbase+s_} row_ror:8 {DPPF}")
        for m in ("row_half_mirror","quad_perm:[1,0,3,2]","quad_perm:[2,3,0,1]"):
            for s_ in range(ns):
                a(f"v_add_f32_dpp v{tb+s_}, v{tb+s_}, v{tb+s_} {m} {DPPF}")
    def kunit(j,jl,nh,iss):
        for i in range(4):
            arrive(4*j+i,iss); dots1(RING+j*16,i,nh,D)
        reduce(nh,D,T)
        a(f"v_max3_f32 v{VM}, v{VM}, v{T}, v{T+1}")
        a(f"v_cvt_pk_bf16_f32 v{T+2}, v{T}, v{T+1}")
        a(f"ds_write_b32 v{VSC}, v{T+2} offset:{jl*256}")
    def pcalc(t0,ar):
        a(f"v_fma_f32 v{t0}, v{t0}, s62, -v{VMC}")
        a(f"v_fma_f32 v{t0+1}, v{t0+1}, s62, -v{VMC}")
        a(f"v_exp_f32 v{t0}, v{t0}")
        a(f"v_exp_f32 v{t0+1}, v{t0+1}")
        a(f"v_add_f32 v{VL}, v{VL}, v{t0}")
        a(f"v_add_f32 v{VL}, v{VL}, v{t0+1}")
        a(f"v_cvt_pk_bf16_f32 v{t0}, v{t0}, v{t0+1}")
        for s_ in range(2):
            for v in range(4):
                a(f"v_perm_b32 v{ar+s_*4+v}, v{t0}, v{t0}, v{SEL[s_][v]}")
    def pvunit(j,iss):
        for i in range(4):
            arrive(4*j+i,iss)
            r=RING+j*16+i*4; c=ACC+(i%2)*4; ar=AR+(i//2)*4
            a(f"v_mfma_f32_16x16x32_bf16 v[{c}:{c+3}], v[{ar}:{ar+3}], v[{r}:{r+3}], v[{c}:{c+3}]")
    def vunit(j,jl,iss,par=None,nxt=None,side=None):
        if par is None: par=j%2
        if nxt is None: nxt=jl+1
        pk=PKR+par
        a("s_waitcnt lgkmcnt(0)")
        a(f"v_lshlrev_b32 v{T}, 16, v{pk}")
        a(f"v_and_b32 v{T+1}, 0xffff0000, v{pk}")
        a(f"ds_read_b32 v{PKR+1-par}, v{VSC} offset:{nxt*256}")
        pcalc(T,AR)
        if side is None: pvunit(j,iss)
        else:
            for i in range(4):
                r=side*16+i*4; c=ACC+(i%2)*4; ar=AR+(i//2)*4
                a(f"v_mfma_f32_16x16x32_bf16 v[{c}:{c+3}], v[{ar}:{ar+3}], a[{r}:{r+3}], v[{c}:{c+3}]")
    def xrow(reg,op):
        a(f"v_mov_b32 v{T+7}, v{reg}")
        a(f"v_permlane16_swap_b32 v{reg}, v{T+7}")
        a(f"{op} v{reg}, v{reg}, v{T+7}")
        a(f"v_mov_b32 v{T+7}, v{reg}")
        a(f"v_permlane32_swap_b32 v{reg}, v{T+7}")
        a(f"{op} v{reg}, v{reg}, v{T+7}")
    def pubvec():
        a(f"v_lshrrev_b32 v{PA}, 5, v0"); a(f"v_lshlrev_b32 v{PA}, 16, v{PA}")
        a(f"v_lshrrev_b32 v{PA+1}, 2, v2"); a(f"v_lshl_add_u32 v{PA}, v{PA+1}, 13, v{PA}")
        a(f"v_and_b32 v{PA+1}, 3, v2"); a(f"v_lshl_add_u32 v{PA}, v{PA+1}, 5, v{PA}")
        a(f"v_and_b32 v{PA+1}, 1, v3"); a(f"v_lshl_add_u32 v{PA}, v{PA+1}, 4, v{PA}")
        a(f"v_lshlrev_b32 v{PA+1}, 9, v0")
        a(f"v_mov_b32 v{PA+2}, {LCNT}"); a(f"v_mov_b32 v{PA+3}, 1")
    def pubaddr(kind):
        if kind=='A':
            a("s_lshr_b32 s64, s2, 5"); a("s_lshl_b32 s64, s64, 4")
            a("s_and_b32 s65, s2, 31"); a("s_lshl_b32 s65, s65, 1"); a("s_add_u32 s65, s65, s31")
        else:
            if kind=='B': a("s_lshr_b32 s64, s2, 4"); a("s_lshl_b32 s64, s64, 3")
            else: a("s_lshl_b32 s64, s96, 3")
            a("s_add_u32 s64, s64, 128")
            a("s_and_b32 s65, s2, 15"); a("s_lshl_b32 s65, s65, 1"); a("s_add_u32 s65, s65, s31")
            if kind=='P': a("s_add_u32 s65, s65, 32")
        a("s_lshl_b32 s44, s64, 13"); a("s_lshl_b32 s45, s65, 7"); a("s_add_u32 s44, s44, s45")
        a(f"s_add_u32 s44, s44, {IN1D}")
        a("s_add_u32 s45, s44, 0x8000")
        a("s_lshl_b32 s46, s64, 9"); a("s_and_b32 s47, s65, 7"); a("s_lshl_b32 s47, s47, 6"); a("s_add_u32 s46, s46, s47")
        a("s_and_b32 s47, s65, 0x38"); a("s_add_u32 s46, s46, s47")
        a(f"s_add_u32 s46, s46, {IN1H}")
    def publish(kind):
        xrow(VL,"v_add_f32")
        a(f"v_min_u32 v{T+2}, -2, v{VMC}"); a(f"v_min_u32 v{T+3}, -2, v{VL}")
        for i in range(8): a(f"v_min_u32 v{ACC+i}, -2, v{ACC+i}")
        if kind!='A': a("s_mov_b32 exec_hi, 0")
        a(f"buffer_store_dwordx4 v[{ACC}:{ACC+3}], v{PA}, s[36:39], s44 offen sc1")
        a(f"buffer_store_dwordx4 v[{ACC+4}:{ACC+7}], v{PA}, s[36:39], s45 offen sc1")
        a(f"s_mov_b64 exec, {0xffff if kind=='A' else 0xff}")
        a(f"buffer_store_dwordx2 v[{T+2}:{T+3}], v{PA+1}, s[36:39], s46 offen sc1")
        vq.extend('SSS')
        if kind=='P':
            a("s_mov_b64 exec, 1")
            a(f"ds_add_u32 v{PA+2}, v{PA+3}")
        a("s_mov_b64 exec, -1")
    def loadq(lq,nh):
        a(f"v_lshlrev_b32 v{T}, 4, v2")
        for h in range(nh):
            a(f"ds_read_b128 v[{Q+h*8}:{Q+h*8+3}], v{T} offset:{lq+h*512}")
            a(f"ds_read_b128 v[{Q+h*8+4}:{Q+h*8+7}], v{T} offset:{lq+h*512+256}")
    for p,(br,kv,n) in enumerate(PH):
        nh=2 if br=='A' else 1
        iss=lambda h,p=p: issue_static(h,p)
        cm(f"---- branch {br}, {'scores = q.K (bf16-rounded, kept in LDS) and running max' if kv=='K' else 'p = exp2(c*s - c*max), o += p.V'}")
        a(f"v_lshlrev_b32 v{VSC}, 2, v0")
        a(f"v_add_u32 v{VSC}, s63, v{VSC}")
        done=0; tail=0
        if kv=='K':
            loadq(LQA if br=='A' else LQB,nh)
            a(f"v_mov_b32 v{VM}, 0xff800000")
            a("s_waitcnt lgkmcnt(0)")
        else:
            a(f"ds_read_b32 v{PKR}, v{VSC} offset:{NV*256 if p==1 else 0}")
            if p==3: loadq(LQP,1)
            xrow(VM,"v_max_f32")
            a(f"v_cvt_pk_bf16_f32 v{VM}, v{VM}, v{VM}")
            a(f"v_and_b32 v{VM}, 0xffff0000, v{VM}")
            a(f"v_mul_f32 v{VMC}, s62, v{VM}")
            a(f"v_mov_b32 v{VL}, 0")
            for i in range(8): a(f"v_mov_b32 v{ACC+i}, 0")
            if p==1: pubvec()
            pubaddr(br)
            if p==3: tail=8
        def group(jl0,iss):
            for j in range(4):
                if kv=='K': kunit(j,jl0+j,nh,iss)
                else: vunit(j,jl0+j,iss)
        if p==1 and NV:
            for k in range(NV):
                vunit(k%4,None,iss,0,k)
                vunit(None,None,None,1,NV+k+1,side=k)
            done=2*NV
            a(f"v_add_u32 v{VSC}, {done*256}, v{VSC}")
        if done==0 and len(vq)!=dl:
            group(0,iss); done=4
            a(f"v_add_u32 v{VSC}, 1024, v{VSC}")
        assert (n-done-tail)%4==0
        a(f"s_mov_b32 s60, {(n-done-tail)//4}")
        q0=loop_begin(f"L_ph{p}")
        group(0,iss)
        assert vq==q0,(vq,q0)
        a(f"v_add_u32 v{VSC}, 1024, v{VSC}")
        a("s_sub_u32 s60, s60, 1")
        a("s_cmp_lg_u32 s60, 0")
        a(f"s_cbranch_scc1 L_ph{p}")
        if p<3: do_boost(lambda h: issue_static(h,p+1))
        if p==1:
            lds_wait("L_go",T,LGO,1,2)
            publish('A')
        if tail:
            def iss1(h):
                if h==16+TQ: ticket_req()
                iss(h)
            group(0,iss1)
            group(4,lambda h: issue_static(h,None) if h<16 else issue_pool(h))
            if sep:
                do_boost(issue_pool)
                publish('B')
            st(5)
            cm("---- dynamic pool: 16-key blocks of branch B handed out by ticket, online softmax")
            if sep:
                pubaddr('P')
                a(f"v_mov_b32 v{VM}, 0xff800000"); a(f"v_mov_b32 v{VMC}, 0xff800000"); a(f"v_mov_b32 v{VL}, 0")
                for i in range(8): a(f"v_mov_b32 v{ACC+i}, 0")
            a(f"s_cmp_eq_u32 s88, {INV}")
            a("s_cbranch_scc1 L_pool_end")
            def block(sfx):
                for j in range(2):
                    for i in range(4):
                        arrive(4*j+i,issue_pool); dots1(RING+j*16,i,1,D+2*j)
                reduce(1,D,T,4)
                a(f"v_cvt_pk_bf16_f32 v{T+4}, v{T}, v{T+1}")
                a(f"v_cvt_pk_bf16_f32 v{T+5}, v{T+2}, v{T+3}")
                a(f"v_lshlrev_b32 v{T}, 16, v{T+4}"); a(f"v_and_b32 v{T+1}, 0xffff0000, v{T+4}")
                a(f"v_lshlrev_b32 v{T+2}, 16, v{T+5}"); a(f"v_and_b32 v{T+3}, 0xffff0000, v{T+5}")
                a(f"v_max3_f32 v{T+4}, v{T}, v{T+1}, v{T+2}")
                a(f"v_max_f32 v{T+4}, v{T+4}, v{T+3}")
                a(f"v_cmp_gt_f32 vcc, v{T+4}, v{VM}")
                a("s_cmp_eq_u64 vcc, 0")
                a(f"s_cbranch_scc1 L_norescale{sfx}")
                a(f"v_max_f32 v{VM}, v{VM}, v{T+4}")
                xrow(VM,"v_max_f32")
                a(f"v_mul_f32 v{T+4}, s62, v{VM}")
                a(f"v_sub_f32 v{T+5}, v{VMC}, v{T+4}")
                a(f"v_exp_f32 v{T+5}, v{T+5}")
                a(f"v_mov_b32 v{VMC}, v{T+4}")
                a(f"v_mul_f32 v{VL}, v{VL}, v{T+5}")
                for i in range(8): a(f"v_mul_f32 v{ACC+i}, v{ACC+i}, v{T+5}")
                a.label(f"L_norescale{sfx}")
                pcalc(T,AR)
                pvunit(2,issue_pool)
                pcalc(T+2,AR)
                pvunit(3,issue_pool)
            if sep:
                block("0")
                a(f"s_cmp_eq_u32 s88, {INV}")
                a("s_cbranch_scc1 L_pool_end")
            q0=loop_begin("L_pool")
            block("")
            assert vq==q0,(vq,q0)
            a(f"s_cmp_lg_u32 s88, {INV}")
            a("s_cbranch_scc1 L_pool")
            a.label("L_pool_end")
            publish('P')
        if p<3: st(2+p)
    write_stamps(False)
    a.label("L_done")
    a("s_endpgm")
    if report is not None:
        import rep; rep.emit(a,report,WS_USED,W,LW)
    a.raw('.section .rodata,"a"')
    for nm,nv in ((NAME,256+16*NV),)+((("report_kernel",16),) if report is not None else ()):
        a.raw(".p2align 6"); a.raw(f".amdhsa_kernel {nm}")
        a.raw(f"  .amdhsa_next_free_vgpr {nv}"); a.raw("  .amdhsa_next_free_sgpr 98"); a.raw(f"  .amdhsa_accum_offset {min(nv,256)}")
        a.raw("  .amdhsa_float_denorm_mode_32 3")
        a.raw("  .amdhsa_group_segment_fixed_size 0"); a.raw("  .amdhsa_kernarg_size 104"); a.raw("  .amdhsa_user_sgpr_count 2")
        a.raw("  .amdhsa_user_sgpr_kernarg_segment_ptr 1"); a.raw("  .amdhsa_system_sgpr_workgroup_id_x 1"); a.raw(".end_amdhsa_kernel")
    return a.text()

def make(cfgs, listfile="list.txt"):
    import build
    lines=[]
    for c in cfgs:
        lab="g13_"+"_".join(f"{k}{str(v).replace(' ','').replace(',','.').strip('()[]')}" for k,v in c.items() if k!='stamp')
        fn="k_"+lab+".s"
        open(fn,"w").write(gen(**c))
        co=build.build(fn)
        lines.append(f"{lab} {co} {256*W if c.get('stamp') else 0} {NAME}:256:{(W+1)*64}:{c.get('lds',68096)}")
    open(listfile,"w").write("\n".join(lines)+"\n")
if __name__=="__main__":
    import json
    cfg=json.loads(sys.argv[2]) if len(sys.argv)>2 else {}
    open(sys.argv[1],"w").write(gen(**cfg))
```

```python
def emit(a,report,WS_USED,W,LW):
    a.raw(".globl report_kernel"); a.raw(".p2align 8"); a.raw(".type report_kernel,@function"); a.raw("report_kernel:")
    a(f"""
    s_cmp_ge_u32 s2, 1
    s_cbranch_scc1 LR_done
    s_load_dwordx4 s[4:7], s[0:1], 88
    s_mov_b32 s38, {WS_USED}
    s_mov_b32 s39, 0x20000
    s_mov_b32 s42, 256
    s_mov_b32 s43, 0x20000
    v_lshlrev_b32 v1, 2, v0
    v_mov_b32 v2, 0
    v_mov_b32 v3, -1
    ds_write_b32 v1, v3            ; 0..255: mins
    ds_write_b32 v1, v2 offset:256 ; maxs
    ds_write_b32 v1, v2 offset:512 ; sums
    s_waitcnt lgkmcnt(0)
    s_mov_b32 s36, s6
    s_mov_b32 s37, s7
    s_mov_b32 s40, s4
    s_mov_b32 s41, s5
    v_lshlrev_b32 v4, 4, v0
    s_mov_b32 s8, 0
    buffer_load_dwordx4 v[8:11], v4, s[36:39], s8 offen
    s_waitcnt vmcnt(0)
    v_subrev_u32 v8, 100, v8
    v_mov_b32 v5, 252
    ds_min_u32 v5, v8
    s_waitcnt lgkmcnt(0)
    ds_read_b32 v6, v5
    s_waitcnt lgkmcnt(0)
    v_mul_u32_u24 v4, {(W+1)*32}, v0
    """)
    for i in range(4):
        for w in range(W+1):
            a(f"s_mov_b32 s8, {0x4000+i*64*(W+1)*32+w*32}")
            a("buffer_load_dwordx4 v[8:11], v4, s[36:39], s8 offen")
            a("buffer_load_dwordx4 v[12:15], v4, s[36:39], s8 offen offset:16")
            a("s_waitcnt vmcnt(0)")
            g=0 if w else 32
            for k in range(8):
                a(f"v_sub_u32 v{8+k}, v{8+k}, v6")
                a(f"ds_min_u32 v2, v{8+k} offset:{g+4*k}")
                a(f"ds_max_u32 v2, v{8+k} offset:{256+g+4*k}")
                a(f"ds_add_u32 v2, v{8+k} offset:{512+g+4*k}")
            a("s_waitcnt lgkmcnt(0)")
    picks=[(0,0),(256+4,0),(512+8,8+LW),(512+12,8+LW),(512+16,8+LW),(512+20,8+LW),(28,0),(256+28,0),(256+32+28,0),
           (512+4,8+LW),(512+24,8+LW),(512+32+0,8),(512+32+4,8),(256+32+4,0),(256+32+8,0),(512+32+12,8)]
    a("s_mov_b64 exec, 1")
    for k,(off,sh) in enumerate(picks):
        a(f"ds_read_b32 v8, v2 offset:{off}")
        a("s_waitcnt lgkmcnt(0)")
        a(f"v_lshrrev_b32 v8, {sh}, v8")
        a(f"buffer_store_dword v8, off, s[40:43], 0 offset:{4*k}")
        if report[0]==k: a("v_readfirstlane_b32 s10, v8")
    if report[0]<0: a("s_mov_b32 s10, 0")
    if report[0]==99:
        a("s_mov_b64 exec, -1")
        a("v_lshlrev_b32 v4, 5, v0")
        a("buffer_load_dwordx4 v[8:11], v4, s[36:39], 0 offen")
        a("s_waitcnt vmcnt(0)")
        a("v_sub_u32 v10, v10, v0"); a("v_and_b32 v10, 7, v10")
        a("v_readfirstlane_b32 s11, v10")
        a("v_cmp_eq_u32 vcc, s11, v10")
        a("s_bcnt1_i32_b64 s10, vcc")
    a(f"s_mul_i32 s10, s10, {report[1]}")
    a("s_min_u32 s10, s10, 200000")
    a("s_memrealtime s[12:13]"); a("s_waitcnt lgkmcnt(0)")
    a.label("LR_spin")
    a("s_memrealtime s[14:15]"); a("s_waitcnt lgkmcnt(0)")
    a("s_sub_u32 s16, s14, s12"); a("s_cmp_lt_u32 s16, s10"); a("s_cbranch_scc1 LR_spin")
    a.label("LR_done")
    a("s_endpgm")
```

```python
import struct, math, sys
from asmlib import Asm
NAME="concat_heads__gqa_block_cached__mha_block_cached__decode_kernel"
HDR=open('concat_heads__gqa_block_cached__mha_block_cached__decode.s.ref').read().split('; Override')[0]
def f2u(x): return struct.unpack('<I',struct.pack('<f',x))[0]
QP=0x10000
TK=0x50000
RDY=0x58000
IN1D=0x80000
IN1H=0x280000
YO=0x2C0000
WS_USED=0x340000
LQA=0; LQB=1024; LQP=1536; LCNT=2048; LGO=2052; LSC=2304
DPPF="row_mask:0xf bank_mask:0xf"
INV=0x7f000000
W=2; LW=1

def gen(stamp=False, lds=68096, dl=10, NV=12, PK=128, blk=32, tq=3, gsleep=24, psl=1, spin=1<<20, mix=True, report=None,
        thr=2, boost=0, sep=False, clr=2, cfl='sc1', wsoff=0, bar0=28, est=False, smodel=False, dlp=12, pm=20):
    SPIN=spin
    a=Asm()
    cm=lambda t: a.raw("    ; "+t)
    a.raw(HDR.rstrip())
    if report is None: a.raw(f"; @launch grid=(256,1,1) block=({(W+1)*64},1,1) lds={lds}")
    else:
        a.raw(f"; @launch kernel={NAME} grid=(256,1,1) block=({(W+1)*64},1,1) lds={lds}")
        a.raw("; @launch kernel=report_kernel grid=(1,1,1) block=(64,1,1) lds=1024")
    a.raw('.amdgcn_target "amdgcn-amd-amdhsa--gfx950"')
    a.raw(".text"); a.raw(f".globl {NAME}"); a.raw(".p2align 8"); a.raw(f".type {NAME},@function"); a.raw(f"{NAME}:")
    def st(k):
        if stamp:
            a("s_memrealtime s[68:69]"); a("s_waitcnt lgkmcnt(0)"); a(f"s_mov_b32 s{72+k}, s68")
    cm("256 workgroups x 3 waves: wave 0 = helper (q projection, combine, output projection), waves 1,2 stream K/V")
    a(f"""
    s_cmp_ge_u32 s2, 256
    s_cbranch_scc1 L_done
    s_load_dwordx16 s[4:19], s[0:1], 0
    s_load_dwordx8 s[20:27], s[0:1], 64
    s_load_dwordx2 s[28:29], s[0:1], 96
    v_lshrrev_b32 v1, 6, v0
    v_and_b32 v0, 63, v0
    v_readfirstlane_b32 s30, v1
    v_and_b32 v2, 15, v0
    v_lshrrev_b32 v3, 4, v0
    s_mov_b32 s38, {WS_USED}
    s_mov_b32 s39, 0x20000
    s_lshr_b32 s48, s2, 4
    s_lshl_b32 s48, s48, 3
    s_and_b32 s49, s2, 7
    s_or_b32 s48, s48, s49
    s_bfe_u32 s55, s2, 0x10003
    s_lshr_b32 s96, s2, 4
    """)
    if mix and sep: a("s_and_b32 s49, s2, 15"); a("s_xor_b32 s96, s96, s49")
    a("s_cmp_eq_u32 s30, 0"); a("s_cbranch_scc0 L_stream")
    def selectors():
        a("""
        v_and_b32 v4, 1, v0
        v_cmp_eq_u32 vcc, 1, v4
        v_mov_b32 v5, 0x0c0c0100
        v_mov_b32 v6, 0x01000c0c
        v_cndmask_b32 v5, v5, v6, vcc
        v_mov_b32 v6, 0x0c0c0302
        v_mov_b32 v7, 0x03020c0c
        v_cndmask_b32 v6, v6, v7, vcc
        v_bfe_u32 v4, v0, 1, 2
        v_mov_b32 v7, 0x0c0c0c0c
        """)
        for v in range(4):
            a(f"v_cmp_eq_u32 vcc, {v}, v4")
            a(f"v_cndmask_b32 v{8+v}, v7, v5, vcc")
            a(f"v_cndmask_b32 v{12+v}, v7, v6, vcc")
    SEL=[[8,9,10,11],[12,13,14,15]]
    def after_kernarg():
        a("s_waitcnt lgkmcnt(0)")
        if stamp:
            for k in range(8): a(f"s_mov_b32 s{72+k}, 0")
        st(0)
        if wsoff: a(f"s_add_u32 s36, s28, {wsoff}"); a("s_addc_u32 s37, s29, 0")
        else: a("s_mov_b32 s36, s28"); a("s_mov_b32 s37, s29")
    def write_stamps(helper):
        if not stamp: return
        st(7)
        a("s_mov_b32 s36, s28"); a("s_mov_b32 s37, s29")
        a("s_getreg_b32 s66, hwreg(HW_REG_XCC_ID)")
        a("s_mov_b64 exec, 1")
        a("v_mov_b32 v4, 0")
        if not helper:
            a("v_mov_b32 v20, s72"); a("v_mov_b32 v21, s79"); a("v_mov_b32 v22, s66"); a("v_mov_b32 v23, 0")
            a(f"s_lshl_b32 s64, s2, {LW}"); a("s_add_u32 s64, s64, s31"); a("s_lshl_b32 s64, s64, 4")
            a("buffer_store_dwordx4 v[20:23], v4, s[36:39], s64 offen")
        for k in range(8): a(f"v_mov_b32 v{40+k}, s{72+k}")
        a(f"s_mul_i32 s64, s2, {W+1}"); a("s_add_u32 s64, s64, s30"); a("s_lshl_b32 s64, s64, 5"); a("s_add_u32 s64, s64, 0x4000")
        a("buffer_store_dwordx4 v[40:43], v4, s[36:39], s64 offen")
        a("buffer_store_dwordx4 v[44:47], v4, s[36:39], s64 offen offset:16")
    def spin_tail(lbl,sleep):
        if sleep: a(f"s_sleep {sleep}")
        a("s_sub_u32 s65, s65, 1"); a("s_cmp_lg_u32 s65, 0")
        a(f"s_cbranch_scc1 {lbl}")
    def lds_wait(lbl,tmp,addr,val,sleep):
        a(f"v_mov_b32 v{tmp}, {addr}")
        a(f"s_mov_b32 s65, {SPIN}")
        a.label(lbl)
        a(f"ds_read_b32 v{tmp+1}, v{tmp}")
        a("s_waitcnt lgkmcnt(0)")
        a(f"v_readfirstlane_b32 s64, v{tmp+1}")
        a(f"s_cmp_ge_u32 s64, {val}")
        a(f"s_cbranch_scc1 {lbl}d")
        spin_tail(lbl,sleep)
        a.label(lbl+"d")

    WR=64; XR=16; HA=32; HC=40; T=56; DT=192; HD=16; O=224
    cm("---------------- helper wave: s48 = index 0..127 inside the branch, s55 = branch (0 = A, 1 = B)")
    a(f"""
    s_setprio 3
    s_memrealtime s[92:93]
    s_mov_b32 s42, 896
    s_mov_b32 s43, 0x20000
    s_mov_b32 s47, 0x20000
    s_mov_b32 s82, 256
    s_mov_b32 s83, 0x20000
    s_and_b32 s60, s48, 31
    s_lshr_b32 s61, s48, 5
    s_mov_b32 s46, {448*8192}
    v_mul_u32_u24 v{T}, 56, v3
    s_mul_i32 s62, s61, 224
    s_mov_b32 s63, {28*8192}
    v_mul_lo_u32 v{T+1}, s63, v3
    v_lshl_add_u32 v{T+1}, v2, 4, v{T+1}
    s_mul_i32 s63, s61, {112*8192}
    s_lshl_b32 s64, s60, 8
    s_add_u32 s63, s63, s64
    s_and_b32 s56, s2, 0xf8
    """)
    after_kernarg()
    cm("workgroup 0 publishes this launch's nonce (tags every hand-off through d_ws) in the zeroed d_debug")
    a(f"""
    s_mov_b32 s80, s26
    s_mov_b32 s81, s27
    s_cmp_lg_u32 s2, 0
    s_cbranch_scc1 L_nononce
    s_or_b32 s92, s92, 1
    v_mov_b32 v{T+4}, s92
    v_mov_b32 v{T+5}, s93
    v_lshlrev_b32 v{T+6}, 3, v0
    s_mov_b32 exec_hi, 0
    buffer_store_dwordx2 v[{T+4}:{T+5}], v{T+6}, s[80:83], 0 offen sc1
    s_mov_b64 exec, -1
    """)
    a.label("L_nononce")
    cm("partial q: 112 rows x 128 columns of wq")
    a("""
    s_cmp_eq_u32 s55, 0
    s_cselect_b32 s40, s4, s14
    s_cselect_b32 s41, s5, s15
    s_cselect_b32 s44, s10, s20
    s_cselect_b32 s45, s11, s21
    """)
    for i in range(28):
        a(f"buffer_load_dwordx4 v[{WR+4*i}:{WR+4*i+3}], v{T+1}, s[44:47], s63 offen nt")
        if i<27: a("s_add_u32 s63, s63, 8192")
        if i==0:
            for k in range(7):
                a(f"buffer_load_dwordx2 v[{XR+2*k}:{XR+2*k+1}], v{T}, s[40:43], s62 offen offset:{8*k}")
        if i+1==bar0: a("s_barrier")
    a(f"buffer_load_dwordx2 v[{T+4}:{T+5}], off, s[80:83], s56 sc1")
    selectors()
    a(f"""
    v_mov_b32 v{HC+4}, {LCNT}
    v_mov_b32 v{HC+6}, 0
    v_mov_b32 v{HC+7}, 0
    ds_write_b64 v{HC+4}, v[{HC+6}:{HC+7}]
    v_lshlrev_b32 v{T+2}, 4, v0
    v_and_b32 v{T+3}, 1, v3
    v_lshlrev_b32 v{T+3}, 4, v{T+3}
    v_lshl_add_u32 v{T+3}, v2, 5, v{T+3}
    v_lshrrev_b32 v{T+6}, 5, v0
    v_lshlrev_b32 v{T+6}, 4, v{T+6}
    v_lshl_add_u32 v{T+6}, v{T+3}, 1, v{T+6}
    s_lshl_b32 s63, s61, 15
    s_lshl_b32 s64, s60, 10
    s_add_u32 s63, s63, s64
    s_lshl_b32 s64, s55, 17
    s_add_u32 s63, s63, s64
    s_add_u32 s63, s63, {QP}
    """)
    for i in range(28):
        a(f"s_waitcnt vmcnt({28-i})")
        ar=HA+(i%2)*4
        for v in range(4):
            a(f"v_perm_b32 v{ar+v}, v{XR+i//2}, v{XR+i//2}, v{SEL[i%2][v]}")
        a(f"v_mfma_f32_16x16x32_bf16 v[{HC}:{HC+3}], v[{ar}:{ar+3}], v[{WR+4*i}:{WR+4*i+3}], {'0' if i==0 else 'v[%d:%d]'%(HC,HC+3)}")
    st(1)
    a(f"s_mov_b32 s65, {SPIN}")
    a.label("L_np")
    a("s_waitcnt vmcnt(0)")
    a(f"v_readfirstlane_b32 s92, v{T+4}"); a(f"v_readfirstlane_b32 s93, v{T+5}")
    a("s_cmp_lg_u32 s92, 0")
    a("s_cbranch_scc1 L_nd")
    a(f"buffer_load_dwordx2 v[{T+4}:{T+5}], off, s[80:83], s56 sc1")
    spin_tail("L_np",0)
    a.label("L_nd")
    a("s_mov_b32 exec_lo, 0")
    a(f"v_mov_b32 v{HC}, v{HC+2}"); a(f"v_mov_b32 v{HC+1}, v{HC+3}")
    a("s_mov_b32 exec_lo, -1")
    a(f"v_mov_b32 v{HC+2}, v{T+4}"); a(f"v_mov_b32 v{HC+3}, v{T+5}")
    a(f"buffer_store_dwordx4 v[{HC}:{HC+3}], v{T+6}, s[36:39], s63 offen sc1")
    st(2)
    def gather(lbl,bases,ldsoff,sleep):
        a(f"s_mov_b32 s65, {SPIN}")
        a.label(lbl)
        bases()
        for ks in range(4):
            for k in range(4):
                r=DT+(ks*4+k)*4
                a(f"buffer_load_dwordx4 v[{r}:{r+3}], v{T+2}, s[36:39], s{62+k//2} offen offset:{(k%2)*1024} sc1")
            if ks<3: a("s_add_u32 s62, s62, 0x8000"); a("s_add_u32 s63, s63, 0x8000")
        a("s_mov_b64 s[66:67], 0")
        for j in range(16):
            a(f"s_waitcnt vmcnt({15-j})")
            a(f"v_cmp_ne_u64 vcc, s[92:93], v[{DT+j*4+2}:{DT+j*4+3}]")
            a("s_or_b64 s[66:67], s[66:67], vcc")
        a("s_cmp_eq_u64 s[66:67], 0")
        a(f"s_cbranch_scc1 {lbl}d")
        spin_tail(lbl,sleep)
        a.label(lbl+"d")
        def pr(j): return f"v[{DT+j*4}:{DT+j*4+1}]"
        for k in range(4):
            a(f"v_pk_add_f32 {pr(k)}, {pr(k)}, {pr(4+k)}")
            a(f"v_pk_add_f32 {pr(8+k)}, {pr(8+k)}, {pr(12+k)}")
        for k in range(4): a(f"v_pk_add_f32 {pr(k)}, {pr(k)}, {pr(8+k)}")
        a(f"v_lshlrev_b32 v{T}, 2, v0")
        for k in range(4): a(f"v_cvt_pk_bf16_f32 v{DT+k*4+2}, v{DT+k*4}, v{DT+k*4+1}")
        for k in range(4): a(f"ds_write_b32 v{T}, v{DT+k*4+2} offset:{ldsoff+256*k}")
        a("s_waitcnt lgkmcnt(0)")
    def baseA():
        a("s_lshr_b32 s62, s2, 5"); a("s_lshl_b32 s62, s62, 12"); a(f"s_add_u32 s62, s62, {QP}"); a("s_add_u32 s63, s62, 2048")
    def baseB():
        a("s_lshr_b32 s62, s2, 4"); a("s_lshl_b32 s62, s62, 11"); a(f"s_add_u32 s62, s62, {QP+0x20000}")
        a("s_lshl_b32 s63, s96, 11"); a(f"s_add_u32 s63, s63, {QP+0x20000}")
    cm("gather the two A q heads of this workgroup (back off first: the other producers finish at about the same time)")
    if gsleep: a(f"s_sleep {gsleep}")
    gather("L_ga",baseA,LQA,8)
    if est: st(5)
    a("s_barrier")
    a("s_setprio 0")
    st(4)
    cm("fill the inboxes this wave will poll with the sentinel, zero a ticket counter, then publish 'ready'")
    for k in range(4): a(f"v_mov_b32 v{HC+k}, -1")
    a("s_lshl_b32 s60, s55, 7"); a("s_add_u32 s60, s60, s48")
    a("s_lshl_b32 s52, s60, 13"); a(f"s_add_u32 s52, s52, {IN1D}")
    a("s_lshl_b32 s53, s60, 9"); a(f"s_add_u32 s53, s53, {IN1H}")
    a("s_lshl_b32 s54, s60, 11"); a(f"s_add_u32 s54, s54, {YO}")
    if clr:
        a(f"buffer_store_dwordx4 v[{HC}:{HC+3}], v{T+2}, s[36:39], s54 offen {cfl}")
        a("s_mov_b32 exec_hi, 0xffff")
        a(f"buffer_store_dwordx4 v[{HC}:{HC+3}], v{T+2}, s[36:39], s54 offen offset:1024 {cfl}")
        a("s_mov_b32 exec_hi, 0")
        a(f"buffer_store_dwordx4 v[{HC}:{HC+3}], v{T+2}, s[36:39], s53 offen {cfl}")
        a("s_mov_b32 exec_hi, -1")
        a("s_add_u32 s63, s52, 4096")
        if clr==1: a("s_cmp_eq_u32 s55, 0"); a("s_cbranch_scc1 L_c2")
        for k in range(8):
            if k==4 and not sep: a("s_cmp_eq_u32 s55, 1"); a("s_cbranch_scc1 L_c2")
            a(f"buffer_store_dwordx4 v[{HC}:{HC+3}], v{T+2}, s[36:39], {'s52' if k<4 else 's63'} offen offset:{(k%4)*1024} {cfl}")
        a.label("L_c2")
    a("s_lshl_b32 s63, s48, 8"); a(f"s_add_u32 s63, s63, {TK}")
    a("s_lshl_b32 s64, s2, 3"); a(f"s_add_u32 s64, s64, {RDY}")
    a("s_mov_b64 exec, 1")
    a(f"v_mov_b32 v{T}, 0")
    a(f"buffer_store_dword v{T}, off, s[36:39], s63 sc1")
    a("s_waitcnt vmcnt(0)")
    a(f"buffer_store_dwordx2 v[{T+4}:{T+5}], off, s[36:39], s64 sc1")
    a("s_mov_b64 exec, -1")
    cm("32 rows of wo stay in registers until the end")
    a(f"""
    s_cmp_eq_u32 s55, 1
    s_cselect_b32 s44, s22, s12
    s_cselect_b32 s45, s23, s13
    s_mov_b32 s46, {4096*896}
    s_mul_i32 s63, s48, {32*896}
    v_bfrev_b32 v{T+7}, v3
    v_lshrrev_b32 v{T+7}, 30, v{T+7}
    v_mul_u32_u24 v{T}, 896, v{T+7}
    v_lshl_add_u32 v{T}, v2, 4, v{T}
    """)
    for i in range(8):
        for bk in range(4):
            r=WR+(i*4+bk)*4
            a(f"buffer_load_dwordx4 v[{r}:{r+3}], v{T}, s[44:47], s63 offen offset:{bk*256} nt")
        if i<7: a(f"s_add_u32 s63, s63, {4*896}")
    a("s_waitcnt vmcnt(0)")
    cm("every workgroup ready?")
    a(f"s_mov_b32 s64, {RDY}")
    a(f"s_mov_b32 s65, {SPIN}")
    a.label("L_rd")
    a(f"buffer_load_dwordx4 v[{DT}:{DT+3}], v{T+2}, s[36:39], s64 offen sc1")
    a(f"buffer_load_dwordx4 v[{DT+4}:{DT+7}], v{T+2}, s[36:39], s64 offen offset:1024 sc1")
    a("s_mov_b64 s[66:67], 0")
    a("s_waitcnt vmcnt(0)")
    for j in range(4):
        a(f"v_cmp_ne_u64 vcc, s[92:93], v[{DT+j*2}:{DT+j*2+1}]")
        a("s_or_b64 s[66:67], s[66:67], vcc")
    a("s_cmp_eq_u64 s[66:67], 0")
    a("s_cbranch_scc1 L_rdd")
    spin_tail("L_rd",64)
    a.label("L_rdd")
    cm("q of the B head streamed statically and of the B head of the dynamic pool")
    gather("L_gb",baseB,LQB,64)
    a(f"v_mov_b32 v{T}, {LGO}"); a(f"v_mov_b32 v{T+1}, 1")
    a(f"ds_write_b32 v{T}, v{T+1}")
    st(3)
    def anysent(rs,tmp):
        h=len(rs)//2
        chains=[(tmp,rs[:h]),(tmp+3,rs[h:])]
        for t,c in chains: a(f"v_max_u32 v{t}, v{c[0]}, v{c[1]}")
        k=2
        while k<h:
            for t,c in chains:
                if k+1<h: a(f"v_max3_u32 v{t}, v{t}, v{c[k]}, v{c[k+1]}")
                else: a(f"v_max_u32 v{t}, v{t}, v{c[k]}")
            k+=2
        a(f"v_max_u32 v{tmp}, v{tmp}, v{tmp+3}")
        a(f"v_cmp_eq_u32 vcc, -1, v{tmp}")
        a("s_cmp_eq_u64 vcc, 0")
    def poll(lbl,loads,rs):
        loads()
        a("s_waitcnt vmcnt(0)")
        a(f"s_mov_b32 s65, {SPIN}")
        a.label(lbl)
        anysent(rs,T+2)
        a(f"s_cbranch_scc1 {lbl}d")
        a("s_mov_b64 exec, vcc")
        loads()
        a("s_mov_b64 exec, -1")
        a("s_waitcnt vmcnt(48)")
        spin_tail(lbl,psl)
        a.label(lbl+"d")
    a(f"v_lshlrev_b32 v1, 1, v{T+7}"); a(f"v_and_b32 v{T+5}, 3, v0"); a(f"v_lshl_add_u32 v1, v{T+5}, 3, v1")
    a(f"v_lshlrev_b32 v{T+7}, 4, v0")
    a(f"v_lshrrev_b32 v{T+4}, 2, v0"); a(f"v_lshlrev_b32 v{T+4}, 11, v{T+4}")
    a(f"v_lshl_add_u32 v{T+4}, v{T+5}, 4, v{T+4}")
    a(f"v_lshrrev_b32 v{T+6}, 3, v0"); a(f"v_lshlrev_b32 v{T+6}, 6, v{T+6}")
    a("s_lshl_b32 s84, s48, 6"); a("s_lshl_b32 s60, s55, 18"); a("s_add_u32 s84, s84, s60"); a(f"s_add_u32 s84, s84, {YO}")
    for k in range(1,8): a(f"s_add_u32 s{84+k}, s{83+k}, 0x8000")
    a("""
    s_mov_b32 s40, s24
    s_mov_b32 s41, s25
    s_mov_b32 s42, 1792
    s_lshl_b32 s62, s48, 5
    s_mul_i32 s60, s55, 896
    s_add_u32 s62, s62, s60
    s_add_u32 s57, s52, 4096
    """)
    cm("wait until this workgroup's streaming waves are done, then combine the softmax records for 32 output rows")
    lds_wait("L_ow",T,LCNT,thr,2)
    OW=O; OO=O+8; OL=O+12; OX=O+13; OB=O+16
    def allred(reg,op):
        a(f"{op}_dpp v{reg}, v{reg}, v{reg} row_ror:8 {DPPF}")
        for sw in ("v_permlane16_swap_b32","v_permlane32_swap_b32"):
            a(f"v_mov_b32 v{OX}, v{reg}"); a(f"{sw} v{reg}, v{OX}"); a(f"{op} v{reg}, v{reg}, v{OX}")
    def scatter4(r):
        a(f"v_permlane32_swap_b32 v{r}, v{r+1}"); a(f"v_permlane32_swap_b32 v{r+2}, v{r+3}")
        a(f"v_add_f32 v{r}, v{r}, v{r+1}"); a(f"v_add_f32 v{r+2}, v{r+2}, v{r+3}")
        a(f"v_permlane16_swap_b32 v{r}, v{r+2}")
        a(f"v_add_f32 v{r}, v{r}, v{r+2}")
    def level1(J,sfx):
        def l1loads():
            for k in range(J//2):
                a(f"buffer_load_dwordx4 v[{HD+4*k}:{HD+4*k+3}], v{T+6}, s[36:39], s53 offen offset:{16*k} sc1")
            for j in range(J):
                a(f"buffer_load_dwordx4 v[{DT+4*j}:{DT+4*j+3}], v{T+7}, s[36:39], {'s52' if j<4 else 's57'} offen offset:{(j%4)*1024} sc1")
        poll("L_hp"+sfx,l1loads,[HD+k for k in range(J*2)]+[DT+k for k in range(J*4)])
        if not est: st(5)
        a(f"v_max_f32 v{T+2}, v{HD}, v{HD+2}")
        for k in range(2,J,2): a(f"v_max3_f32 v{T+2}, v{T+2}, v{HD+2*k}, v{HD+2*k+2}")
        allred(T+2,"v_max_f32")
        for k in range(J): a(f"v_sub_f32 v{OW+k}, v{HD+2*k}, v{T+2}")
        for k in range(J): a(f"v_exp_f32 v{OW+k}, v{OW+k}")
        a(f"v_mul_f32 v{OL}, v{OW}, v{HD+1}")
        for e in range(4): a(f"v_mul_f32 v{OO+e}, v{OW}, v{DT+e}")
        for k in range(1,J):
            a(f"v_fmac_f32 v{OL}, v{OW+k}, v{HD+2*k+1}")
            for e in range(4): a(f"v_fmac_f32 v{OO+e}, v{OW+k}, v{DT+k*4+e}")
    if sep: level1(8,"")
    else:
        a("s_cmp_eq_u32 s55, 0"); a("s_cbranch_scc1 L_l1A")
        level1(4,"B")
        a("s_branch L_l1j")
        a.label("L_l1A")
        level1(8,"A")
        a.label("L_l1j")
    a(f"v_add_f32_dpp v{OL}, v{OL}, v{OL} row_ror:8 {DPPF}")
    a(f"v_permlane32_swap_b32 v{OO}, v{OO+1}"); a(f"v_permlane32_swap_b32 v{OO+2}, v{OO+3}")
    a(f"v_mov_b32 v{OX}, v{OL}")
    a(f"v_add_f32 v{OO}, v{OO}, v{OO+1}"); a(f"v_add_f32 v{OO+2}, v{OO+2}, v{OO+3}")
    a(f"v_permlane16_swap_b32 v{OL}, v{OX}")
    a(f"v_add_f32 v{OL}, v{OL}, v{OX}")
    a(f"v_permlane16_swap_b32 v{OO}, v{OO+2}")
    a(f"v_mov_b32 v{OX}, v{OL}")
    a(f"v_add_f32 v{OO}, v{OO}, v{OO+2}")
    a(f"v_permlane32_swap_b32 v{OL}, v{OX}")
    a(f"v_add_f32 v{OL}, v{OL}, v{OX}")
    a(f"v_add_f32_dpp v{OO}, v{OO}, v{OO} row_ror:8 {DPPF}")
    a(f"v_rcp_f32 v{OL}, v{OL}")
    a(f"v_mul_f32 v{OO}, v{OO}, v{OL}")
    a(f"v_cvt_pk_bf16_f32 v{OO}, v{OO}, v{OO}")
    for i in range(8): a(f"v_mov_b32_dpp v{OB+i}, v{OO} row_newbcast:{i} {DPPF}")
    def prm(i,v): a(f"v_perm_b32 v{HA+(i%2)*4+v}, v{OB+i}, v{OB+i}, v{SEL[0][v]}")
    for v in range(4): prm(0,v)
    for i in range(8):
        ar=HA+(i%2)*4
        for bk in range(4):
            r=WR+(i*4+bk)*4; c=HC+bk*4
            a(f"v_mfma_f32_16x16x32_bf16 v[{c}:{c+3}], v[{ar}:{ar+3}], v[{r}:{r+3}], {'0' if i==0 else 'v[%d:%d]'%(c,c+3)}")
            if i<7 and bk<2: prm(i+1,2*bk); prm(i+1,2*bk+1)
    a("s_mov_b32 exec_hi, 0")
    for bk in range(4):
        for k in range(4): a(f"v_min_u32 v{HC+bk*4+k}, -2, v{HC+bk*4+k}")
        a(f"buffer_store_dwordx4 v[{HC+bk*4}:{HC+bk*4+3}], v{T+3}, s[36:39], s54 offen offset:{bk*512} sc1")
    a("s_mov_b64 exec, -1")
    st(6)
    cm("28 helpers per branch sum the 128 partial rows for 16 output columns each")
    a("s_cmp_ge_u32 s48, 28")
    a("s_cbranch_scc1 L_he")
    def l2loads():
        for k in range(8):
            a(f"buffer_load_dwordx4 v[{DT+4*k}:{DT+4*k+3}], v{T+4}, s[36:39], s{84+k} offen sc1")
    poll("L_yp",l2loads,[DT+k for k in range(32)])
    for e in range(0,16,2): a(f"v_pk_add_f32 v[{O+e}:{O+e+1}], v[{DT+e}:{DT+e+1}], v[{DT+16+e}:{DT+17+e}]")
    for half in (8,4):
        for e in range(0,half,2): a(f"v_pk_add_f32 v[{O+e}:{O+e+1}], v[{O+e}:{O+e+1}], v[{O+half+e}:{O+half+e+1}]")
    scatter4(O)
    for m in ("row_ror:8","row_ror:4"): a(f"v_add_f32_dpp v{O}, v{O}, v{O} {m} {DPPF}")
    a(f"v_cvt_pk_bf16_f32 v{O}, v{O}, v{O}")
    a("s_mov_b32 exec_lo, 0x000f000f"); a("s_mov_b32 exec_hi, 0x000f000f")
    a(f"buffer_store_short v{O}, v1, s[40:43], s62 offen")
    a("s_mov_b64 exec, -1")
    a.label("L_he")
    write_stamps(True)
    a("s_endpgm")

    VOFF=1; VSC=4; VM=5; VL=6; VMC=7
    Q=16; PA=24; ACC=32; AR=40; D=48; T=52; PKR=60; VOFF2=62; VTK=63
    RING=64
    STEP=4096*W
    NA=(1<<19)//STEP; NB=((1<<20)-PK*1024)//STEP
    NT=16*PK//8
    if dlp is None: dlp=dl
    TQ=min(tq,16-dlp)
    cd=[dl]
    vq=[]
    BB=(blk*1024).bit_length()-1
    assert PK%blk==0 and NB%4==0 and NV%4==0 and (2*PK)%(8<<(pm&7))==0
    a.label("L_stream")
    cm("---------------- streaming waves")
    a(f"""
    s_sub_u32 s31, s30, 1
    v_lshlrev_b32 v{VOFF}, 9, v3
    v_lshl_add_u32 v{VOFF}, v2, 4, v{VOFF}
    s_mov_b32 s34, 0x200000
    s_mov_b32 s35, 0x20000
    s_mov_b32 s42, 0x200000
    s_mov_b32 s43, 0x20000
    s_lshl_b32 s61, s31, 12
    s_lshl_b32 s49, s55, {BB}
    s_lshl_b32 s60, s48, 20
    s_add_u32 s60, s60, s49
    """)
    def adv(r):
        a(f"s_bitset1_b32 {r}, {BB}"); a(f"s_add_u32 {r}, {r}, {STEP}"); a(f"s_bitset0_b32 {r}, {BB}")
    after_kernarg()
    a("s_add_u32 s32, s6, s60"); a("s_addc_u32 s33, s7, 0")
    a("s_add_u32 s40, s8, s60"); a("s_addc_u32 s41, s9, 0")
    if bar0: a("s_barrier")
    if est: st(2)
    OFFS=[0,256,2048,2304]
    PH=[('A','K',NA),('A','V',NA),('B','K',NB),('B','V',NB)]
    ends=[NA,2*NA-NV,2*NA-NV+NB]
    def ld(base,i,srd,soff,voff=VOFF,rf='v'):
        r=base+i*4
        a(f"buffer_load_dwordx4 {rf}[{r}:{r+3}], v{voff}, {srd}, {soff} offen offset:{OFFS[i]} nt")
    def issue_static(h,p):
        h%=16
        ld(RING+(h//4)*16,h%4,"s[32:35]","s52"); vq.append(h)
        if h%4==3:
            adv("s52")
            if p is not None and p<3:
                a("s_add_u32 s53, s53, 1")
                a(f"s_cmp_eq_u32 s53, {ends[p]}")
                b=(40,56,58)[p]
                a(f"s_cselect_b32 s32, s{b}, s32"); a(f"s_cselect_b32 s33, s{b+1}, s33"); a(f"s_cselect_b32 s52, {'s94' if p==0 else 's61'}, s52")
    def ticket_req():
        a("s_mov_b64 exec, 1")
        a(f"v_mov_b32 v{VTK}, 1")
        a(f"buffer_atomic_add v{VTK}, off, s[36:39], s91 sc0 sc1"); vq.append('A')
        a("s_mov_b64 exec, -1")
    def ticket_use():
        assert 'A' not in vq
        a(f"v_readfirstlane_b32 s90, v{VTK}")
        lo=pm&7
        if pm&8:
            a(f"s_lshr_b32 s89, s90, {lo+3}"); a("s_add_u32 s89, s89, s96"); a(f"s_lshr_b32 s88, s90, {lo}"); a("s_add_u32 s88, s88, s89"); a("s_and_b32 s88, s88, 7")
        else: a(f"s_bfe_u32 s88, s90, {lo|(3<<16)}")
        a("s_lshl_b32 s88, s88, 21")
        a(f"s_lshr_b32 s89, s90, {lo+3}"); a(f"s_lshl_b32 s89, s89, {13+lo}"); a("s_add_u32 s88, s88, s89")
        if lo:
            if pm&16: a("s_add_u32 s89, s90, s96"); a(f"s_and_b32 s89, s89, {(1<<lo)-1}")
            else: a(f"s_and_b32 s89, s90, {(1<<lo)-1}")
            a("s_lshl_b32 s89, s89, 13"); a("s_add_u32 s88, s88, s89")
        a(f"s_add_u32 s88, s88, {2*NB*STEP}")
        a(f"s_cmp_lt_u32 s90, {NT}")
        a(f"s_cselect_b32 s88, s88, {INV}")
    def issue_pool(h):
        h%=16
        if h==0: ticket_use()
        if h==TQ: ticket_req()
        k=h//4
        ld(RING+k*16,h%4,"s[80:83]" if k<2 else "s[84:87]","s88",VOFF if k%2==0 else VOFF2); vq.append(h)
    def setup2():
        selectors()
        a(f"""
        s_lshl_b32 s60, s48, 21
        s_add_u32 s60, s60, s49
        s_add_u32 s56, s16, s60
        s_addc_u32 s57, s17, 0
        s_add_u32 s58, s18, s60
        s_addc_u32 s59, s19, 0
        s_lshl_b32 s60, s96, 24
        s_add_u32 s80, s16, s60
        s_addc_u32 s81, s17, 0
        s_mov_b32 s82, 0x1000000
        s_mov_b32 s83, 0x20000
        s_add_u32 s84, s18, s60
        s_addc_u32 s85, s19, 0
        s_mov_b32 s86, 0x1000000
        s_mov_b32 s87, 0x20000
        s_lshl_b32 s91, s96, 8
        s_add_u32 s91, s91, {TK}
        s_mov_b32 s62, {f2u(math.log2(math.e)/16.0)}
        s_lshl_b32 s63, s31, 15
        s_add_u32 s63, s63, {LSC}
        v_add_u32 v{VOFF2}, 0x1000, v{VOFF}
        """)
    cm(f"while q is being computed: first {NV} V units of branch A go to AGPRs, then the K ring starts; {dl} loads in flight")
    n=0
    a("s_mov_b32 s94, s61")
    for k in range(NV):
        for i in range(4):
            if n>=dl: a(f"s_waitcnt vmcnt({dl-1})")
            if est and n==dl: st(4)
            ld(k*16,i,"s[40:43]","s94",rf='a'); n+=1
            if n==dl: setup2()
        adv("s94")
    a("s_mov_b32 s52, s61")
    a(f"s_mov_b32 s53, {dl//4}")
    for h in range(dl):
        if n>=dl: a(f"s_waitcnt vmcnt({dl-1})")
        issue_static(h,None); n+=1
        if n==dl: setup2()
    st(6)
    a("s_barrier")
    st(1)
    def arrive(c,iss):
        k=vq.index(c%16)
        a(f"s_waitcnt vmcnt({len(vq)-1-k})")
        del vq[:k+1]
        if sum(1 for x in vq if isinstance(x,int))<cd[0]: iss(c+cd[0])
    def do_boost(iss):
        for h in range(dl,dl+boost): iss(h)
    def loop_begin(lbl):
        vq[:]=[x for x in vq if x!='S']
        a.label(lbl)
        return list(vq)
    def dots1(base,i,nh,dbase):
        s_=i//2
        for e4 in range(4):
            e=(i%2)*4+e4
            for h in range(nh):
                d=dbase+s_*nh+h
                a(f"v_dot2_f32_bf16 v{d}, v{base+i*4+e4}, v{Q+h*8+e}, {'0' if e==0 else 'v%d'%d}")
    def reduce(nh,dbase,tb,ns=2):
        for s_ in range(ns):
            if nh==2:
                a(f"v_add_f32_dpp v{tb+s_}, v{dbase+s_*2}, v{dbase+s_*2} row_ror:8 row_mask:0xf bank_mask:0x3")
                a(f"v_add_f32_dpp v{tb+s_}, v{dbase+s_*2+1}, v{dbase+s_*2+1} row_ror:8 row_mask:0xf bank_mask:0xc")
            else:
                a(f"v_add_f32_dpp v{tb+s_}, v{dbase+s_}, v{dbase+s_} row_ror:8 {DPPF}")
        for m in ("row_half_mirror","quad_perm:[1,0,3,2]","quad_perm:[2,3,0,1]"):
            for s_ in range(ns):
                a(f"v_add_f32_dpp v{tb+s_}, v{tb+s_}, v{tb+s_} {m} {DPPF}")
    def kunit(j,jl,nh,iss):
        for i in range(4):
            arrive(4*j+i,iss); dots1(RING+j*16,i,nh,D)
        reduce(nh,D,T)
        a(f"v_max3_f32 v{VM}, v{VM}, v{T}, v{T+1}")
        a(f"v_cvt_pk_bf16_f32 v{T+2}, v{T}, v{T+1}")
        a(f"ds_write_b32 v{VSC}, v{T+2} offset:{jl*256}")
    def pcalc(t0,ar):
        a(f"v_fma_f32 v{t0}, v{t0}, s62, -v{VMC}")
        a(f"v_fma_f32 v{t0+1}, v{t0+1}, s62, -v{VMC}")
        a(f"v_exp_f32 v{t0}, v{t0}")
        a(f"v_exp_f32 v{t0+1}, v{t0+1}")
        a(f"v_add_f32 v{VL}, v{VL}, v{t0}")
        a(f"v_add_f32 v{VL}, v{VL}, v{t0+1}")
        a(f"v_cvt_pk_bf16_f32 v{t0}, v{t0}, v{t0+1}")
        for s_ in range(2):
            for v in range(4):
                a(f"v_perm_b32 v{ar+s_*4+v}, v{t0}, v{t0}, v{SEL[s_][v]}")
    def pvunit(j,iss):
        for i in range(4):
            arrive(4*j+i,iss)
            r=RING+j*16+i*4; c=ACC+(i%2)*4; ar=AR+(i//2)*4
            a(f"v_mfma_f32_16x16x32_bf16 v[{c}:{c+3}], v[{ar}:{ar+3}], v[{r}:{r+3}], v[{c}:{c+3}]")
    def vunit(j,jl,iss,par=None,nxt=None,side=None):
        if par is None: par=j%2
        if nxt is None: nxt=jl+1
        pk=PKR+par
        a("s_waitcnt lgkmcnt(0)")
        a(f"v_lshlrev_b32 v{T}, 16, v{pk}")
        a(f"v_and_b32 v{T+1}, 0xffff0000, v{pk}")
        a(f"ds_read_b32 v{PKR+1-par}, v{VSC} offset:{nxt*256}")
        pcalc(T,AR)
        if side is None: pvunit(j,iss)
        else:
            for i in range(4):
                r=side*16+i*4; c=ACC+(i%2)*4; ar=AR+(i//2)*4
                a(f"v_mfma_f32_16x16x32_bf16 v[{c}:{c+3}], v[{ar}:{ar+3}], a[{r}:{r+3}], v[{c}:{c+3}]")
    def xrow(reg,op):
        a(f"v_mov_b32 v{T+7}, v{reg}")
        a(f"v_permlane16_swap_b32 v{reg}, v{T+7}")
        a(f"{op} v{reg}, v{reg}, v{T+7}")
        a(f"v_mov_b32 v{T+7}, v{reg}")
        a(f"v_permlane32_swap_b32 v{reg}, v{T+7}")
        a(f"{op} v{reg}, v{reg}, v{T+7}")
    def pubvec():
        a(f"v_lshrrev_b32 v{PA}, 5, v0"); a(f"v_lshlrev_b32 v{PA}, 16, v{PA}")
        a(f"v_lshrrev_b32 v{PA+1}, 2, v2"); a(f"v_lshl_add_u32 v{PA}, v{PA+1}, 13, v{PA}")
        a(f"v_and_b32 v{PA+1}, 3, v2"); a(f"v_lshl_add_u32 v{PA}, v{PA+1}, 5, v{PA}")
        a(f"v_and_b32 v{PA+1}, 1, v3"); a(f"v_lshl_add_u32 v{PA}, v{PA+1}, 4, v{PA}")
        a(f"v_lshlrev_b32 v{PA+1}, 9, v0")
        a(f"v_mov_b32 v{PA+2}, {LCNT}"); a(f"v_mov_b32 v{PA+3}, 1")
    def pubaddr(kind):
        if kind=='A':
            a("s_lshr_b32 s64, s2, 5"); a("s_lshl_b32 s64, s64, 4")
            a("s_and_b32 s65, s2, 31"); a("s_lshl_b32 s65, s65, 1"); a("s_add_u32 s65, s65, s31")
        else:
            if kind=='B': a("s_lshr_b32 s64, s2, 4"); a("s_lshl_b32 s64, s64, 3")
            else: a("s_lshl_b32 s64, s96, 3")
            a("s_add_u32 s64, s64, 128")
            a("s_and_b32 s65, s2, 15"); a("s_lshl_b32 s65, s65, 1"); a("s_add_u32 s65, s65, s31")
            if kind=='P': a("s_add_u32 s65, s65, 32")
        a("s_lshl_b32 s44, s64, 13"); a("s_lshl_b32 s45, s65, 7"); a("s_add_u32 s44, s44, s45")
        a(f"s_add_u32 s44, s44, {IN1D}")
        a("s_add_u32 s45, s44, 0x8000")
        a("s_lshl_b32 s46, s64, 9"); a("s_and_b32 s47, s65, 7"); a("s_lshl_b32 s47, s47, 6"); a("s_add_u32 s46, s46, s47")
        a("s_and_b32 s47, s65, 0x38"); a("s_add_u32 s46, s46, s47")
        a(f"s_add_u32 s46, s46, {IN1H}")
    def publish(kind):
        xrow(VL,"v_add_f32")
        a(f"v_min_u32 v{T+2}, -2, v{VMC}"); a(f"v_min_u32 v{T+3}, -2, v{VL}")
        for i in range(8): a(f"v_min_u32 v{ACC+i}, -2, v{ACC+i}")
        if kind!='A': a("s_mov_b32 exec_hi, 0")
        a(f"buffer_store_dwordx4 v[{ACC}:{ACC+3}], v{PA}, s[36:39], s44 offen sc1")
        a(f"buffer_store_dwordx4 v[{ACC+4}:{ACC+7}], v{PA}, s[36:39], s45 offen sc1")
        a(f"s_mov_b64 exec, {0xffff if kind=='A' else 0xff}")
        a(f"buffer_store_dwordx2 v[{T+2}:{T+3}], v{PA+1}, s[36:39], s46 offen sc1")
        if smodel: vq.extend('SSS')
        if kind=='P':
            a("s_mov_b64 exec, 1")
            a(f"ds_add_u32 v{PA+2}, v{PA+3}")
        a("s_mov_b64 exec, -1")
    def loadq(lq,nh):
        a(f"v_lshlrev_b32 v{T}, 4, v2")
        for h in range(nh):
            a(f"ds_read_b128 v[{Q+h*8}:{Q+h*8+3}], v{T} offset:{lq+h*512}")
            a(f"ds_read_b128 v[{Q+h*8+4}:{Q+h*8+7}], v{T} offset:{lq+h*512+256}")
    for p,(br,kv,n) in enumerate(PH):
        nh=2 if br=='A' else 1
        iss=lambda h,p=p: issue_static(h,p)
        cm(f"---- branch {br}, {'scores = q.K (bf16-rounded, kept in LDS) and running max' if kv=='K' else 'p = exp2(c*s - c*max), o += p.V'}")
        a(f"v_lshlrev_b32 v{VSC}, 2, v0")
        a(f"v_add_u32 v{VSC}, s63, v{VSC}")
        done=0; tail=0
        if kv=='K':
            loadq(LQA if br=='A' else LQB,nh)
            a(f"v_mov_b32 v{VM}, 0xff800000")
            a("s_waitcnt lgkmcnt(0)")
        else:
            a(f"ds_read_b32 v{PKR}, v{VSC} offset:{NV*256 if p==1 else 0}")
            if p==3: loadq(LQP,1)
            xrow(VM,"v_max_f32")
            a(f"v_cvt_pk_bf16_f32 v{VM}, v{VM}, v{VM}")
            a(f"v_and_b32 v{VM}, 0xffff0000, v{VM}")
            a(f"v_mul_f32 v{VMC}, s62, v{VM}")
            a(f"v_mov_b32 v{VL}, 0")
            for i in range(8): a(f"v_mov_b32 v{ACC+i}, 0")
            if p==1: pubvec()
            pubaddr(br)
            if p==3: tail=8
        def group(jl0,iss):
            for j in range(4):
                if kv=='K': kunit(j,jl0+j,nh,iss)
                else: vunit(j,jl0+j,iss)
        if p==1 and NV:
            for k in range(NV):
                vunit(k%4,None,iss,0,k)
                vunit(None,None,None,1,NV+k+1,side=k)
            done=2*NV
            a(f"v_add_u32 v{VSC}, {done*256}, v{VSC}")
        if done==0 and len(vq)!=dl:
            group(0,iss); done=4
            a(f"v_add_u32 v{VSC}, 1024, v{VSC}")
        assert (n-done-tail)%4==0
        a(f"s_mov_b32 s60, {(n-done-tail)//4}")
        q0=loop_begin(f"L_ph{p}")
        group(0,iss)
        assert vq==q0,(vq,q0)
        a(f"v_add_u32 v{VSC}, 1024, v{VSC}")
        a("s_sub_u32 s60, s60, 1")
        a("s_cmp_lg_u32 s60, 0")
        a(f"s_cbranch_scc1 L_ph{p}")
        if p<3: do_boost(lambda h: issue_static(h,p+1))
        if p==1:
            lds_wait("L_go",T,LGO,1,2)
            publish('A')
        if tail:
            def iss1(h):
                if h==16+TQ: ticket_req()
                iss(h)
            for h in range(dl,dlp): iss(h)
            cd[0]=dlp
            group(0,iss1)
            group(4,lambda h: issue_static(h,None) if h<16 else issue_pool(h))
            if sep:
                do_boost(issue_pool)
                publish('B')
            st(5)
            cm("---- dynamic pool: 16-key blocks of branch B handed out by ticket, online softmax")
            if sep:
                pubaddr('P')
                a(f"v_mov_b32 v{VM}, 0xff800000"); a(f"v_mov_b32 v{VMC}, 0xff800000"); a(f"v_mov_b32 v{VL}, 0")
                for i in range(8): a(f"v_mov_b32 v{ACC+i}, 0")
            a(f"s_cmp_eq_u32 s88, {INV}")
            a("s_cbranch_scc1 L_pool_end")
            def block(sfx):
                for j in range(2):
                    for i in range(4):
                        arrive(4*j+i,issue_pool); dots1(RING+j*16,i,1,D+2*j)
                reduce(1,D,T,4)
                a(f"v_cvt_pk_bf16_f32 v{T+4}, v{T}, v{T+1}")
                a(f"v_cvt_pk_bf16_f32 v{T+5}, v{T+2}, v{T+3}")
                a(f"v_lshlrev_b32 v{T}, 16, v{T+4}"); a(f"v_and_b32 v{T+1}, 0xffff0000, v{T+4}")
                a(f"v_lshlrev_b32 v{T+2}, 16, v{T+5}"); a(f"v_and_b32 v{T+3}, 0xffff0000, v{T+5}")
                a(f"v_max3_f32 v{T+4}, v{T}, v{T+1}, v{T+2}")
                a(f"v_max_f32 v{T+4}, v{T+4}, v{T+3}")
                a(f"v_cmp_gt_f32 vcc, v{T+4}, v{VM}")
                a("s_cmp_eq_u64 vcc, 0")
                a(f"s_cbranch_scc1 L_norescale{sfx}")
                a(f"v_max_f32 v{VM}, v{VM}, v{T+4}")
                xrow(VM,"v_max_f32")
                a(f"v_mul_f32 v{T+4}, s62, v{VM}")
                a(f"v_sub_f32 v{T+5}, v{VMC}, v{T+4}")
                a(f"v_exp_f32 v{T+5}, v{T+5}")
                a(f"v_mov_b32 v{VMC}, v{T+4}")
                a(f"v_mul_f32 v{VL}, v{VL}, v{T+5}")
                for i in range(8): a(f"v_mul_f32 v{ACC+i}, v{ACC+i}, v{T+5}")
                a.label(f"L_norescale{sfx}")
                pcalc(T,AR)
                pvunit(2,issue_pool)
                pcalc(T+2,AR)
                pvunit(3,issue_pool)
            if sep:
                block("0")
                a(f"s_cmp_eq_u32 s88, {INV}")
                a("s_cbranch_scc1 L_pool_end")
            q0=loop_begin("L_pool")
            block("")
            assert vq==q0,(vq,q0)
            a(f"s_cmp_lg_u32 s88, {INV}")
            a("s_cbranch_scc1 L_pool")
            a.label("L_pool_end")
            publish('P')
        if p<3 and not (est and p!=1): st(2+p)
    write_stamps(False)
    a.label("L_done")
    a("s_endpgm")
    if report is not None:
        import rep; rep.emit(a,report,WS_USED,W,LW)
    a.raw('.section .rodata,"a"')
    for nm,nv in ((NAME,256+16*NV),)+((("report_kernel",16),) if report is not None else ()):
        a.raw(".p2align 6"); a.raw(f".amdhsa_kernel {nm}")
        a.raw(f"  .amdhsa_next_free_vgpr {nv}"); a.raw("  .amdhsa_next_free_sgpr 98"); a.raw(f"  .amdhsa_accum_offset {min(nv,256)}")
        a.raw("  .amdhsa_float_denorm_mode_32 3")
        a.raw("  .amdhsa_group_segment_fixed_size 0"); a.raw("  .amdhsa_kernarg_size 104"); a.raw("  .amdhsa_user_sgpr_count 2")
        a.raw("  .amdhsa_user_sgpr_kernarg_segment_ptr 1"); a.raw("  .amdhsa_system_sgpr_workgroup_id_x 1"); a.raw(".end_amdhsa_kernel")
    return a.text()

def make(cfgs, listfile="list.txt"):
    import build
    lines=[]
    for c in cfgs:
        lab="g13_"+"_".join(f"{k}{str(v).replace(' ','').replace(',','.').strip('()[]')}" for k,v in c.items() if k!='stamp')
        fn="k_"+lab+".s"
        open(fn,"w").write(gen(**c))
        co=build.build(fn)
        lines.append(f"{lab} {co} {256*W if c.get('stamp') else 0} {NAME}:256:{(W+1)*64}:{c.get('lds',68096)}")
    open(listfile,"w").write("\n".join(lines)+"\n")
if __name__=="__main__":
    import json
    cfg=json.loads(sys.argv[2]) if len(sys.argv)>2 else {}
    open(sys.argv[1],"w").write(gen(**cfg))
```

```python
import struct, math, sys
from asmlib import Asm
NAME="concat_heads__gqa_block_cached__mha_block_cached__decode_kernel"
HDR=open('concat_heads__gqa_block_cached__mha_block_cached__decode.s.ref').read().split('; Override')[0]
def f2u(x): return struct.unpack('<I',struct.pack('<f',x))[0]
QP=0x10000
TK=0x50000
RDY=0x58000
IN1H=0x60000
IN1D=0x80000
YO=0x180000
WS_USED=0x200000
LQA=0; LQB=1024; LCNT=1536; LGO=1540; LMRG=1544; LDMP=2048; LSC=2048+2*2560
DPPF="row_mask:0xf bank_mask:0xf"
INV=0x7f000000
W=2; LW=1

def gen(stamp=False, lds=72960, dl=10, NV=12, PK=128, blk=32, tq=3, gsleep=24, psl=1, spin=1<<20, mix=True, report=None,
        thr=2, boost=0, sep=False, clr=2, cfl='sc1', wsoff=0, bar0=28, est=False, smodel=False, dlp=12, pm=20, shh=0):
    SPIN=spin
    a=Asm()
    cm=lambda t: a.raw("    ; "+t)
    a.raw(HDR.rstrip())
    if report is None: a.raw(f"; @launch grid=(256,1,1) block=({(W+1)*64},1,1) lds={lds}")
    else:
        a.raw(f"; @launch kernel={NAME} grid=(256,1,1) block=({(W+1)*64},1,1) lds={lds}")
        a.raw("; @launch kernel=report_kernel grid=(1,1,1) block=(64,1,1) lds=1024")
    a.raw('.amdgcn_target "amdgcn-amd-amdhsa--gfx950"')
    a.raw(".text"); a.raw(f".globl {NAME}"); a.raw(".p2align 8"); a.raw(f".type {NAME},@function"); a.raw(f"{NAME}:")
    def st(k):
        if stamp:
            a("s_memrealtime s[68:69]"); a("s_waitcnt lgkmcnt(0)"); a(f"s_mov_b32 s{72+k}, s68")
    for t in """Decode attention for both branches in one launch, HBM-bound (805 MB of K/V read once, nt loads).
    256 workgroups x 3 waves, one per CU.  Waves 1,2 stream; wave 0 is a helper.
    Streaming waves: A_k, A_v, B_k, B_v (static shares), then a dynamic pool of 16-key blocks of B (atomic tickets)
      K pass : 4 rows x 256 B per load, v_dot2 + DPP row reduction, scores rounded to bf16 (as the reference does), kept in LDS
      V pass : p = exp2(c*s - c*max) with the true max of the pass, o += p.V by MFMA with a diagonal A operand
      about 10 loads in flight per wave: enough to saturate HBM without oversubscribing the fabric
    Helper: q = x.wq (4 k-slices, MFMA) -> nonce-tagged granules in d_ws -> gathered per workgroup;
      at the end combines the (m, l, o) records of a head for 32 rows, multiplies with wo, and 28 helpers per branch
      add the 128 partial rows.  Records use sentinel-filled inboxes, cleared in this launch and announced via RDY.""".split("\n"):
        cm(t.strip())
    a(f"""
    s_cmp_ge_u32 s2, 256
    s_cbranch_scc1 L_done
    s_load_dwordx16 s[4:19], s[0:1], 0
    s_load_dwordx8 s[20:27], s[0:1], 64
    s_load_dwordx2 s[28:29], s[0:1], 96
    v_lshrrev_b32 v1, 6, v0
    v_and_b32 v0, 63, v0
    v_readfirstlane_b32 s30, v1
    v_and_b32 v2, 15, v0
    v_lshrrev_b32 v3, 4, v0
    s_mov_b32 s38, {WS_USED}
    s_mov_b32 s39, 0x20000
    s_lshr_b32 s48, s2, 4
    s_lshl_b32 s48, s48, 3
    s_and_b32 s49, s2, 7
    s_or_b32 s48, s48, s49
    s_bfe_u32 s55, s2, 0x10003
    s_lshr_b32 s96, s2, 4
    """)
    a("s_cmp_eq_u32 s30, 0"); a("s_cbranch_scc0 L_stream")
    def selectors():
        a("""
        v_and_b32 v4, 1, v0
        v_cmp_eq_u32 vcc, 1, v4
        v_mov_b32 v5, 0x0c0c0100
        v_mov_b32 v6, 0x01000c0c
        v_cndmask_b32 v5, v5, v6, vcc
        v_mov_b32 v6, 0x0c0c0302
        v_mov_b32 v7, 0x03020c0c
        v_cndmask_b32 v6, v6, v7, vcc
        v_bfe_u32 v4, v0, 1, 2
        v_mov_b32 v7, 0x0c0c0c0c
        """)
        for v in range(4):
            a(f"v_cmp_eq_u32 vcc, {v}, v4")
            a(f"v_cndmask_b32 v{8+v}, v7, v5, vcc")
            a(f"v_cndmask_b32 v{12+v}, v7, v6, vcc")
    SEL=[[8,9,10,11],[12,13,14,15]]
    def after_kernarg():
        a("s_waitcnt lgkmcnt(0)")
        if stamp:
            for k in range(8): a(f"s_mov_b32 s{72+k}, 0")
        st(0)
        if wsoff: a(f"s_add_u32 s36, s28, {wsoff}"); a("s_addc_u32 s37, s29, 0")
        else: a("s_mov_b32 s36, s28"); a("s_mov_b32 s37, s29")
    def write_stamps(helper):
        if not stamp: return
        st(7)
        a("s_mov_b32 s36, s28"); a("s_mov_b32 s37, s29")
        a("s_getreg_b32 s66, hwreg(HW_REG_XCC_ID)")
        a("s_mov_b64 exec, 1")
        a("v_mov_b32 v4, 0")
        if not helper:
            a("v_mov_b32 v20, s72"); a("v_mov_b32 v21, s79"); a("v_mov_b32 v22, s66"); a("s_getreg_b32 s67, hwreg(HW_REG_HW_ID)"); a("v_mov_b32 v23, s67")
            a(f"s_lshl_b32 s64, s2, {LW}"); a("s_add_u32 s64, s64, s31"); a("s_lshl_b32 s64, s64, 4")
            a("buffer_store_dwordx4 v[20:23], v4, s[36:39], s64 offen")
        for k in range(8): a(f"v_mov_b32 v{40+k}, s{72+k}")
        a(f"s_mul_i32 s64, s2, {W+1}"); a("s_add_u32 s64, s64, s30"); a("s_lshl_b32 s64, s64, 5"); a("s_add_u32 s64, s64, 0x4000")
        a("buffer_store_dwordx4 v[40:43], v4, s[36:39], s64 offen")
        a("buffer_store_dwordx4 v[44:47], v4, s[36:39], s64 offen offset:16")
    def spin_tail(lbl,sleep):
        if sleep: a(f"s_sleep {sleep}")
        a("s_sub_u32 s65, s65, 1"); a("s_cmp_lg_u32 s65, 0")
        a(f"s_cbranch_scc1 {lbl}")
    def lds_wait(lbl,tmp,addr,val,sleep):
        a(f"v_mov_b32 v{tmp}, {addr}")
        a(f"s_mov_b32 s65, {SPIN}")
        a.label(lbl)
        a(f"ds_read_b32 v{tmp+1}, v{tmp}")
        a("s_waitcnt lgkmcnt(0)")
        a(f"v_readfirstlane_b32 s64, v{tmp+1}")
        a(f"s_cmp_ge_u32 s64, {val}")
        a(f"s_cbranch_scc1 {lbl}d")
        spin_tail(lbl,sleep)
        a.label(lbl+"d")

    WR=64; XR=16; HA=32; HC=40; T=56; DT=192; HD=16; O=224
    cm("---------------- helper wave: s48 = index 0..127 inside the branch, s55 = branch (0 = A, 1 = B)")
    a(f"""
    s_setprio 3
    s_memrealtime s[92:93]
    s_mov_b32 s42, 896
    s_mov_b32 s43, 0x20000
    s_mov_b32 s47, 0x20000
    s_mov_b32 s82, 256
    s_mov_b32 s83, 0x20000
    s_and_b32 s60, s48, 31
    s_lshr_b32 s61, s48, 5
    s_mov_b32 s46, {448*8192}
    v_mul_u32_u24 v{T}, 56, v3
    s_mul_i32 s62, s61, 224
    s_mov_b32 s63, {28*8192}
    v_mul_lo_u32 v{T+1}, s63, v3
    v_lshl_add_u32 v{T+1}, v2, 4, v{T+1}
    s_mul_i32 s63, s61, {112*8192}
    s_lshl_b32 s64, s60, 8
    s_add_u32 s63, s63, s64
    s_and_b32 s56, s2, 0xf8
    """)
    after_kernarg()
    cm("workgroup 0 publishes this launch's nonce (tags every hand-off through d_ws) in the zeroed d_debug")
    a(f"""
    s_mov_b32 s80, s26
    s_mov_b32 s81, s27
    s_cmp_lg_u32 s2, 0
    s_cbranch_scc1 L_nononce
    s_or_b32 s92, s92, 1
    v_mov_b32 v{T+4}, s92
    v_mov_b32 v{T+5}, s93
    v_lshlrev_b32 v{T+6}, 3, v0
    s_mov_b32 exec_hi, 0
    buffer_store_dwordx2 v[{T+4}:{T+5}], v{T+6}, s[80:83], 0 offen sc1
    s_mov_b64 exec, -1
    """)
    a.label("L_nononce")
    cm("partial q: 112 rows x 128 columns of wq")
    a("""
    s_cmp_eq_u32 s55, 0
    s_cselect_b32 s40, s4, s14
    s_cselect_b32 s41, s5, s15
    s_cselect_b32 s44, s10, s20
    s_cselect_b32 s45, s11, s21
    """)
    for i in range(28):
        a(f"buffer_load_dwordx4 v[{WR+4*i}:{WR+4*i+3}], v{T+1}, s[44:47], s63 offen nt")
        if i<27: a("s_add_u32 s63, s63, 8192")
        if i==0:
            for k in range(7):
                a(f"buffer_load_dwordx2 v[{XR+2*k}:{XR+2*k+1}], v{T}, s[40:43], s62 offen offset:{8*k}")
        if i+1==bar0: a("s_barrier")
    a(f"buffer_load_dwordx2 v[{T+4}:{T+5}], off, s[80:83], s56 sc1")
    selectors()
    a(f"""
    v_mov_b32 v{HC+4}, {LCNT}
    v_mov_b32 v{HC+6}, 0
    v_mov_b32 v{HC+7}, 0
    ds_write_b64 v{HC+4}, v[{HC+6}:{HC+7}]
    ds_write_b32 v{HC+4}, v{HC+6} offset:8
    v_lshlrev_b32 v{T+2}, 4, v0
    v_and_b32 v{T+3}, 1, v3
    v_lshlrev_b32 v{T+3}, 4, v{T+3}
    v_lshl_add_u32 v{T+3}, v2, 5, v{T+3}
    v_lshrrev_b32 v{T+6}, 5, v0
    v_lshlrev_b32 v{T+6}, 4, v{T+6}
    v_lshl_add_u32 v{T+6}, v{T+3}, 1, v{T+6}
    s_lshl_b32 s63, s61, 15
    s_lshl_b32 s64, s60, 10
    s_add_u32 s63, s63, s64
    s_lshl_b32 s64, s55, 17
    s_add_u32 s63, s63, s64
    s_add_u32 s63, s63, {QP}
    """)
    for i in range(28):
        a(f"s_waitcnt vmcnt({28-i})")
        ar=HA+(i%2)*4
        for v in range(4):
            a(f"v_perm_b32 v{ar+v}, v{XR+i//2}, v{XR+i//2}, v{SEL[i%2][v]}")
        a(f"v_mfma_f32_16x16x32_bf16 v[{HC}:{HC+3}], v[{ar}:{ar+3}], v[{WR+4*i}:{WR+4*i+3}], {'0' if i==0 else 'v[%d:%d]'%(HC,HC+3)}")
    st(1)
    a(f"s_mov_b32 s65, {SPIN}")
    a.label("L_np")
    a("s_waitcnt vmcnt(0)")
    a(f"v_readfirstlane_b32 s92, v{T+4}"); a(f"v_readfirstlane_b32 s93, v{T+5}")
    a("s_cmp_lg_u32 s92, 0")
    a("s_cbranch_scc1 L_nd")
    a(f"buffer_load_dwordx2 v[{T+4}:{T+5}], off, s[80:83], s56 sc1")
    spin_tail("L_np",0)
    a.label("L_nd")
    a("s_mov_b32 exec_lo, 0")
    a(f"v_mov_b32 v{HC}, v{HC+2}"); a(f"v_mov_b32 v{HC+1}, v{HC+3}")
    a("s_mov_b32 exec_lo, -1")
    a(f"v_mov_b32 v{HC+2}, v{T+4}"); a(f"v_mov_b32 v{HC+3}, v{T+5}")
    a(f"buffer_store_dwordx4 v[{HC}:{HC+3}], v{T+6}, s[36:39], s63 offen sc1")
    st(2)
    def gather(lbl,nk,base,ldsoff,sleep):
        a(f"s_mov_b32 s65, {SPIN}")
        a.label(lbl)
        base()
        for ks in range(4):
            for k in range(nk):
                r=DT+(ks*nk+k)*4
                a(f"buffer_load_dwordx4 v[{r}:{r+3}], v{T+2}, s[36:39], s62 offen offset:{k*1024} sc1")
            if ks<3: a("s_add_u32 s62, s62, 0x8000")
        a("s_mov_b64 s[66:67], 0")
        for j in range(4*nk):
            a(f"s_waitcnt vmcnt({4*nk-1-j})")
            a(f"v_cmp_ne_u64 vcc, s[92:93], v[{DT+j*4+2}:{DT+j*4+3}]")
            a("s_or_b64 s[66:67], s[66:67], vcc")
        a("s_cmp_eq_u64 s[66:67], 0")
        a(f"s_cbranch_scc1 {lbl}d")
        spin_tail(lbl,sleep)
        a.label(lbl+"d")
        def pr(j): return f"v[{DT+j*4}:{DT+j*4+1}]"
        for k in range(nk):
            a(f"v_pk_add_f32 {pr(k)}, {pr(k)}, {pr(nk+k)}")
            a(f"v_pk_add_f32 {pr(2*nk+k)}, {pr(2*nk+k)}, {pr(3*nk+k)}")
        for k in range(nk): a(f"v_pk_add_f32 {pr(k)}, {pr(k)}, {pr(2*nk+k)}")
        a(f"v_lshlrev_b32 v{T}, 2, v0")
        for k in range(nk): a(f"v_cvt_pk_bf16_f32 v{DT+k*4+2}, v{DT+k*4}, v{DT+k*4+1}")
        for k in range(nk): a(f"ds_write_b32 v{T}, v{DT+k*4+2} offset:{ldsoff+256*k}")
        a("s_waitcnt lgkmcnt(0)")
    def baseA(): a("s_lshr_b32 s62, s2, 5"); a("s_lshl_b32 s62, s62, 12"); a(f"s_add_u32 s62, s62, {QP}")
    def baseB(): a("s_lshl_b32 s62, s96, 11"); a(f"s_add_u32 s62, s62, {QP+0x20000}")
    cm("gather the two A q heads of this workgroup (back off first: the other producers finish at about the same time)")
    if gsleep: a(f"s_sleep {gsleep}")
    gather("L_ga",4,baseA,LQA,8)
    if est: st(5)
    a("s_barrier")
    a("s_setprio 0")
    st(4)
    cm("fill the inboxes this wave will poll with the sentinel, zero a ticket counter, then publish 'ready'")
    for k in range(4): a(f"v_mov_b32 v{HC+k}, -1")
    a("s_lshl_b32 s60, s55, 7"); a("s_add_u32 s60, s60, s48")
    a("s_lshl_b32 s52, s60, 12"); a(f"s_add_u32 s52, s52, {IN1D}")
    if shh==0: a("s_mov_b32 s53, s60"); a("s_mov_b32 s57, 0")
    elif shh==3: a("s_and_b32 s53, s60, 0xf8"); a("s_and_b32 s57, s60, 7")
    else:
        a("s_and_b32 s57, s60, 7"); a(f"s_cmp_eq_u32 s55, {0 if shh==1 else 1}"); a("s_cselect_b32 s57, s57, 0"); a("s_sub_u32 s53, s60, s57")
    a("s_lshl_b32 s53, s53, 8"); a(f"s_add_u32 s53, s53, {IN1H}")
    a("s_lshl_b32 s54, s60, 11"); a(f"s_add_u32 s54, s54, {YO}")
    for k in range(4):
        a(f"buffer_store_dwordx4 v[{HC}:{HC+3}], v{T+2}, s[36:39], s52 offen offset:{k*1024} sc1")
    a(f"buffer_store_dwordx4 v[{HC}:{HC+3}], v{T+2}, s[36:39], s54 offen sc1")
    a("s_mov_b32 exec_hi, 0xffff")
    a(f"buffer_store_dwordx4 v[{HC}:{HC+3}], v{T+2}, s[36:39], s54 offen offset:1024 sc1")
    a("s_mov_b64 exec, 0xffff")
    a("s_cmp_eq_u32 s57, 0"); a(f"s_cselect_b32 s63, s53, {INV}")
    a(f"buffer_store_dwordx4 v[{HC}:{HC+3}], v{T+2}, s[36:39], s63 offen sc1")
    a("s_lshl_b32 s63, s60, 8"); a(f"s_add_u32 s63, s63, {TK}")
    a("s_cmp_lt_u32 s60, 16"); a(f"s_cselect_b32 s63, s63, {INV}")
    a("s_lshl_b32 s64, s2, 3"); a(f"s_add_u32 s64, s64, {RDY}")
    a("s_mov_b64 exec, 1")
    a(f"v_mov_b32 v{T}, 0")
    a(f"buffer_store_dword v{T}, off, s[36:39], s63 sc1")
    a("s_waitcnt vmcnt(0)")
    a(f"buffer_store_dwordx2 v[{T+4}:{T+5}], off, s[36:39], s64 sc1")
    a("s_mov_b64 exec, -1")
    cm("32 rows of wo stay in registers until the end")
    a(f"""
    s_cmp_eq_u32 s55, 1
    s_cselect_b32 s44, s22, s12
    s_cselect_b32 s45, s23, s13
    s_mov_b32 s46, {4096*896}
    s_mul_i32 s63, s48, {32*896}
    v_bfrev_b32 v{T+7}, v3
    v_lshrrev_b32 v{T+7}, 30, v{T+7}
    v_mul_u32_u24 v{T}, 896, v{T+7}
    v_lshl_add_u32 v{T}, v2, 4, v{T}
    """)
    a("s_mov_b32 s66, 0x00ff00ff"); a("s_mov_b32 s67, 0x00ff00ff")
    for i in range(8):
        for bk in range(4):
            r=WR+(i*4+bk)*4
            if bk==3: a("s_mov_b64 exec, s[66:67]")
            a(f"buffer_load_dwordx4 v[{r}:{r+3}], v{T}, s[44:47], s63 offen offset:{bk*256} nt")
        a("s_mov_b64 exec, -1")
        if i<7: a(f"s_add_u32 s63, s63, {4*896}")
    a("s_waitcnt vmcnt(0)")
    cm("every workgroup ready?")
    a(f"s_mov_b32 s64, {RDY}")
    a(f"s_mov_b32 s65, {SPIN}")
    a.label("L_rd")
    a(f"buffer_load_dwordx4 v[{DT}:{DT+3}], v{T+2}, s[36:39], s64 offen sc1")
    a(f"buffer_load_dwordx4 v[{DT+4}:{DT+7}], v{T+2}, s[36:39], s64 offen offset:1024 sc1")
    a("s_mov_b64 s[66:67], 0")
    a("s_waitcnt vmcnt(0)")
    for j in range(4):
        a(f"v_cmp_ne_u64 vcc, s[92:93], v[{DT+j*2}:{DT+j*2+1}]")
        a("s_or_b64 s[66:67], s[66:67], vcc")
    a("s_cmp_eq_u64 s[66:67], 0")
    a("s_cbranch_scc1 L_rdd")
    spin_tail("L_rd",64)
    a.label("L_rdd")
    cm("q of this workgroup's B head")
    gather("L_gb",2,baseB,LQB,64)
    a(f"v_mov_b32 v{T}, {LGO}"); a(f"v_mov_b32 v{T+1}, 1")
    a(f"ds_write_b32 v{T}, v{T+1}")
    st(3)
    def anysent(rs,tmp):
        h=len(rs)//2
        chains=[(tmp,rs[:h]),(tmp+3,rs[h:])]
        for t,c in chains: a(f"v_max_u32 v{t}, v{c[0]}, v{c[1]}")
        k=2
        while k<h:
            for t,c in chains:
                if k+1<h: a(f"v_max3_u32 v{t}, v{t}, v{c[k]}, v{c[k+1]}")
                else: a(f"v_max_u32 v{t}, v{t}, v{c[k]}")
            k+=2
        a(f"v_max_u32 v{tmp}, v{tmp}, v{tmp+3}")
        a(f"v_cmp_eq_u32 vcc, -1, v{tmp}")
        a("s_cmp_eq_u64 vcc, 0")
    def poll(lbl,loads,rs):
        loads()
        a("s_waitcnt vmcnt(0)")
        a(f"s_mov_b32 s65, {SPIN}")
        a.label(lbl)
        anysent(rs,T+2)
        a(f"s_cbranch_scc1 {lbl}d")
        a("s_mov_b64 exec, vcc")
        loads()
        a("s_mov_b64 exec, -1")
        a("s_waitcnt vmcnt(48)")
        spin_tail(lbl,psl)
        a.label(lbl+"d")
    a(f"v_lshlrev_b32 v1, 1, v{T+7}"); a(f"v_and_b32 v{T+5}, 3, v0"); a(f"v_lshl_add_u32 v1, v{T+5}, 3, v1")
    a(f"v_lshlrev_b32 v{T+7}, 4, v0")
    a(f"v_lshrrev_b32 v{T+4}, 2, v0"); a(f"v_lshlrev_b32 v{T+4}, 11, v{T+4}")
    a(f"v_lshl_add_u32 v{T+4}, v{T+5}, 4, v{T+4}")
    a(f"v_lshrrev_b32 v{T+6}, 3, v0"); a(f"v_lshlrev_b32 v{T+6}, 5, v{T+6}")
    a("s_lshl_b32 s84, s48, 6"); a("s_lshl_b32 s60, s55, 18"); a("s_add_u32 s84, s84, s60"); a(f"s_add_u32 s84, s84, {YO}")
    for k in range(1,8): a(f"s_add_u32 s{84+k}, s{83+k}, 0x8000")
    a("""
    s_mov_b32 s40, s24
    s_mov_b32 s41, s25
    s_mov_b32 s42, 1792
    s_lshl_b32 s62, s48, 5
    s_mul_i32 s60, s55, 896
    s_add_u32 s62, s62, s60
    """)
    cm("wait until this workgroup's streaming waves are done, then combine the softmax records for 32 output rows")
    lds_wait("L_ow",T,LCNT,thr,2)
    OW=O; OO=O+8; OL=O+12; OX=O+13; OB=O+16
    def allred(reg,op):
        a(f"{op}_dpp v{reg}, v{reg}, v{reg} row_ror:8 {DPPF}")
        for sw in ("v_permlane16_swap_b32","v_permlane32_swap_b32"):
            a(f"v_mov_b32 v{OX}, v{reg}"); a(f"{sw} v{reg}, v{OX}"); a(f"{op} v{reg}, v{reg}, v{OX}")
    def scatter4(r):
        a(f"v_permlane32_swap_b32 v{r}, v{r+1}"); a(f"v_permlane32_swap_b32 v{r+2}, v{r+3}")
        a(f"v_add_f32 v{r}, v{r}, v{r+1}"); a(f"v_add_f32 v{r+2}, v{r+2}, v{r+3}")
        a(f"v_permlane16_swap_b32 v{r}, v{r+2}")
        a(f"v_add_f32 v{r}, v{r}, v{r+2}")
    def level1(J,sfx):
        def l1loads():
            for k in range(J//2):
                a(f"buffer_load_dwordx4 v[{HD+4*k}:{HD+4*k+3}], v{T+6}, s[36:39], s53 offen offset:{16*k} sc1")
            for j in range(J):
                a(f"buffer_load_dwordx4 v[{DT+4*j}:{DT+4*j+3}], v{T+7}, s[36:39], {'s52' if j<4 else 's57'} offen offset:{(j%4)*1024} sc1")
        poll("L_hp"+sfx,l1loads,[HD+k for k in range(J*2)]+[DT+k for k in range(J*4)])
        if not est: st(5)
        a(f"v_max_f32 v{T+2}, v{HD}, v{HD+2}")
        for k in range(2,J,2): a(f"v_max3_f32 v{T+2}, v{T+2}, v{HD+2*k}, v{HD+2*k+2}")
        allred(T+2,"v_max_f32")
        for k in range(J): a(f"v_sub_f32 v{OW+k}, v{HD+2*k}, v{T+2}")
        for k in range(J): a(f"v_exp_f32 v{OW+k}, v{OW+k}")
        a(f"v_mul_f32 v{OL}, v{OW}, v{HD+1}")
        for e in range(4): a(f"v_mul_f32 v{OO+e}, v{OW}, v{DT+e}")
        for k in range(1,J):
            a(f"v_fmac_f32 v{OL}, v{OW+k}, v{HD+2*k+1}")
            for e in range(4): a(f"v_fmac_f32 v{OO+e}, v{OW+k}, v{DT+k*4+e}")
    level1(4,"")
    a(f"v_add_f32_dpp v{OL}, v{OL}, v{OL} row_ror:8 {DPPF}")
    a(f"v_permlane32_swap_b32 v{OO}, v{OO+1}"); a(f"v_permlane32_swap_b32 v{OO+2}, v{OO+3}")
    a(f"v_mov_b32 v{OX}, v{OL}")
    a(f"v_add_f32 v{OO}, v{OO}, v{OO+1}"); a(f"v_add_f32 v{OO+2}, v{OO+2}, v{OO+3}")
    a(f"v_permlane16_swap_b32 v{OL}, v{OX}")
    a(f"v_add_f32 v{OL}, v{OL}, v{OX}")
    a(f"v_permlane16_swap_b32 v{OO}, v{OO+2}")
    a(f"v_mov_b32 v{OX}, v{OL}")
    a(f"v_add_f32 v{OO}, v{OO}, v{OO+2}")
    a(f"v_permlane32_swap_b32 v{OL}, v{OX}")
    a(f"v_add_f32 v{OL}, v{OL}, v{OX}")
    a(f"v_add_f32_dpp v{OO}, v{OO}, v{OO} row_ror:8 {DPPF}")
    a(f"v_rcp_f32 v{OL}, v{OL}")
    a(f"v_mul_f32 v{OO}, v{OO}, v{OL}")
    a(f"v_cvt_pk_bf16_f32 v{OO}, v{OO}, v{OO}")
    for i in range(8): a(f"v_mov_b32_dpp v{OB+i}, v{OO} row_newbcast:{i} {DPPF}")
    def prm(i,v): a(f"v_perm_b32 v{HA+(i%2)*4+v}, v{OB+i}, v{OB+i}, v{SEL[0][v]}")
    for v in range(4): prm(0,v)
    for i in range(8):
        ar=HA+(i%2)*4
        for bk in range(4):
            r=WR+(i*4+bk)*4; c=HC+bk*4
            a(f"v_mfma_f32_16x16x32_bf16 v[{c}:{c+3}], v[{ar}:{ar+3}], v[{r}:{r+3}], {'0' if i==0 else 'v[%d:%d]'%(c,c+3)}")
            if i<7 and bk<2: prm(i+1,2*bk); prm(i+1,2*bk+1)
    a("s_mov_b32 exec_hi, 0")
    for bk in range(4):
        for k in range(4): a(f"v_min_u32 v{HC+bk*4+k}, -2, v{HC+bk*4+k}")
        if bk==3: a("s_mov_b32 exec_lo, 0x00ff00ff")
        a(f"buffer_store_dwordx4 v[{HC+bk*4}:{HC+bk*4+3}], v{T+3}, s[36:39], s54 offen offset:{bk*512} sc1")
    a("s_mov_b64 exec, -1")
    st(6)
    cm("28 helpers per branch sum the 128 partial rows for 16 output columns each")
    a("s_cmp_ge_u32 s48, 28")
    a("s_cbranch_scc1 L_he")
    def l2loads():
        for k in range(8):
            a(f"buffer_load_dwordx4 v[{DT+4*k}:{DT+4*k+3}], v{T+4}, s[36:39], s{84+k} offen sc1")
    poll("L_yp",l2loads,[DT+k for k in range(32)])
    for e in range(0,16,2): a(f"v_pk_add_f32 v[{O+e}:{O+e+1}], v[{DT+e}:{DT+e+1}], v[{DT+16+e}:{DT+17+e}]")
    for half in (8,4):
        for e in range(0,half,2): a(f"v_pk_add_f32 v[{O+e}:{O+e+1}], v[{O+e}:{O+e+1}], v[{O+half+e}:{O+half+e+1}]")
    scatter4(O)
    for m in ("row_ror:8","row_ror:4"): a(f"v_add_f32_dpp v{O}, v{O}, v{O} {m} {DPPF}")
    a(f"v_cvt_pk_bf16_f32 v{O}, v{O}, v{O}")
    a("s_mov_b32 exec_lo, 0x000f000f"); a("s_mov_b32 exec_hi, 0x000f000f")
    a(f"buffer_store_short v{O}, v1, s[40:43], s62 offen")
    a("s_mov_b64 exec, -1")
    a.label("L_he")
    write_stamps(True)
    a("s_endpgm")

    VOFF=1; VSC=4; VM=5; VL=6; VMC=7
    Q=16; PA=24; ACC=32; AR=40; D=48; T=52; PKR=60; VOFF2=62; VTK=63
    RING=64
    STEP=4096*W
    NA=(1<<19)//STEP; NB=((1<<20)-PK*1024)//STEP
    NT=16*PK//8
    if dlp is None: dlp=dl
    TQ=min(tq,16-dlp)
    cd=[dl]
    vq=[]
    BB=(blk*1024).bit_length()-1
    assert PK%blk==0 and NB%4==0 and NV%4==0 and (2*PK)%(8<<(pm&7))==0
    a.label("L_stream")
    cm("---------------- streaming waves")
    a(f"""
    s_sub_u32 s31, s30, 1
    v_lshlrev_b32 v{VOFF}, 9, v3
    v_lshl_add_u32 v{VOFF}, v2, 4, v{VOFF}
    s_mov_b32 s34, 0x200000
    s_mov_b32 s35, 0x20000
    s_mov_b32 s42, 0x200000
    s_mov_b32 s43, 0x20000
    s_lshl_b32 s61, s31, 12
    s_lshl_b32 s49, s55, {BB}
    s_lshl_b32 s60, s48, 20
    s_add_u32 s60, s60, s49
    """)
    def adv(r):
        a(f"s_bitset1_b32 {r}, {BB}"); a(f"s_add_u32 {r}, {r}, {STEP}"); a(f"s_bitset0_b32 {r}, {BB}")
    after_kernarg()
    a("s_add_u32 s32, s6, s60"); a("s_addc_u32 s33, s7, 0")
    a("s_add_u32 s40, s8, s60"); a("s_addc_u32 s41, s9, 0")
    if bar0: a("s_barrier")
    if est: st(2)
    OFFS=[0,256,2048,2304]
    PH=[('A','K',NA),('A','V',NA),('B','K',NB),('B','V',NB)]
    ends=[NA,2*NA-NV,2*NA-NV+NB]
    def ld(base,i,srd,soff,voff=VOFF,rf='v'):
        r=base+i*4
        a(f"buffer_load_dwordx4 {rf}[{r}:{r+3}], v{voff}, {srd}, {soff} offen offset:{OFFS[i]} nt")
    def issue_static(h,p):
        h%=16
        ld(RING+(h//4)*16,h%4,"s[32:35]","s52"); vq.append(h)
        if h%4==3:
            adv("s52")
            if p is not None and p<3:
                a("s_add_u32 s53, s53, 1")
                a(f"s_cmp_eq_u32 s53, {ends[p]}")
                b=(40,56,58)[p]
                a(f"s_cselect_b32 s32, s{b}, s32"); a(f"s_cselect_b32 s33, s{b+1}, s33"); a(f"s_cselect_b32 s52, {'s94' if p==0 else 's61'}, s52")
    def ticket_req():
        a("s_mov_b64 exec, 1")
        a(f"v_mov_b32 v{VTK}, 1")
        a(f"buffer_atomic_add v{VTK}, off, s[36:39], s91 sc0 sc1"); vq.append('A')
        a("s_mov_b64 exec, -1")
    def ticket_use():
        assert 'A' not in vq
        a(f"v_readfirstlane_b32 s90, v{VTK}")
        lo=pm&7
        if pm&8:
            a(f"s_lshr_b32 s89, s90, {lo+3}"); a("s_add_u32 s89, s89, s96"); a(f"s_lshr_b32 s88, s90, {lo}"); a("s_add_u32 s88, s88, s89"); a("s_and_b32 s88, s88, 7")
        else: a(f"s_bfe_u32 s88, s90, {lo|(3<<16)}")
        a("s_lshl_b32 s88, s88, 21")
        a(f"s_lshr_b32 s89, s90, {lo+3}"); a(f"s_lshl_b32 s89, s89, {13+lo}"); a("s_add_u32 s88, s88, s89")
        if lo:
            if pm&16: a("s_add_u32 s89, s90, s96"); a(f"s_and_b32 s89, s89, {(1<<lo)-1}")
            else: a(f"s_and_b32 s89, s90, {(1<<lo)-1}")
            a("s_lshl_b32 s89, s89, 13"); a("s_add_u32 s88, s88, s89")
        a(f"s_add_u32 s88, s88, {2*NB*STEP}")
        a(f"s_cmp_lt_u32 s90, {NT}")
        a(f"s_cselect_b32 s88, s88, {INV}")
    def issue_pool(h):
        h%=16
        if h==0: ticket_use()
        if h==TQ: ticket_req()
        k=h//4
        ld(RING+k*16,h%4,"s[80:83]" if k<2 else "s[84:87]","s88",VOFF if k%2==0 else VOFF2); vq.append(h)
    def setup2():
        selectors()
        a(f"""
        s_lshl_b32 s60, s48, 21
        s_add_u32 s60, s60, s49
        s_add_u32 s56, s16, s60
        s_addc_u32 s57, s17, 0
        s_add_u32 s58, s18, s60
        s_addc_u32 s59, s19, 0
        s_lshl_b32 s60, s96, 24
        s_add_u32 s80, s16, s60
        s_addc_u32 s81, s17, 0
        s_mov_b32 s82, 0x1000000
        s_mov_b32 s83, 0x20000
        s_add_u32 s84, s18, s60
        s_addc_u32 s85, s19, 0
        s_mov_b32 s86, 0x1000000
        s_mov_b32 s87, 0x20000
        s_lshl_b32 s91, s96, 8
        s_add_u32 s91, s91, {TK}
        s_mov_b32 s62, {f2u(math.log2(math.e)/16.0)}
        s_lshl_b32 s63, s31, 15
        s_add_u32 s63, s63, {LSC}
        v_add_u32 v{VOFF2}, 0x1000, v{VOFF}
        """)
    cm(f"while q is being computed: first {NV} V units of branch A go to AGPRs, then the K ring starts; {dl} loads in flight")
    n=0
    a("s_mov_b32 s94, s61")
    for k in range(NV):
        for i in range(4):
            if n>=dl: a(f"s_waitcnt vmcnt({dl-1})")
            if est and n==dl: st(4)
            ld(k*16,i,"s[40:43]","s94",rf='a'); n+=1
            if n==dl: setup2()
        adv("s94")
    a("s_mov_b32 s52, s61")
    a(f"s_mov_b32 s53, {dl//4}")
    for h in range(dl):
        if n>=dl: a(f"s_waitcnt vmcnt({dl-1})")
        issue_static(h,None); n+=1
        if n==dl: setup2()
    st(6)
    a("s_barrier")
    st(1)
    def arrive(c,iss):
        k=vq.index(c%16)
        a(f"s_waitcnt vmcnt({len(vq)-1-k})")
        del vq[:k+1]
        if sum(1 for x in vq if isinstance(x,int))<cd[0]: iss(c+cd[0])
    def do_boost(iss):
        for h in range(dl,dl+boost): iss(h)
    def loop_begin(lbl):
        vq[:]=[x for x in vq if x!='S']
        a.label(lbl)
        return list(vq)
    def dots1(base,i,nh,dbase):
        s_=i//2
        for e4 in range(4):
            e=(i%2)*4+e4
            for h in range(nh):
                d=dbase+s_*nh+h
                a(f"v_dot2_f32_bf16 v{d}, v{base+i*4+e4}, v{Q+h*8+e}, {'0' if e==0 else 'v%d'%d}")
    def reduce(nh,dbase,tb,ns=2):
        for s_ in range(ns):
            if nh==2:
                a(f"v_add_f32_dpp v{tb+s_}, v{dbase+s_*2}, v{dbase+s_*2} row_ror:8 row_mask:0xf bank_mask:0x3")
                a(f"v_add_f32_dpp v{tb+s_}, v{dbase+s_*2+1}, v{dbase+s_*2+1} row_ror:8 row_mask:0xf bank_mask:0xc")
            else:
                a(f"v_add_f32_dpp v{tb+s_}, v{dbase+s_}, v{dbase+s_} row_ror:8 {DPPF}")
        for m in ("row_half_mirror","quad_perm:[1,0,3,2]","quad_perm:[2,3,0,1]"):
            for s_ in range(ns):
                a(f"v_add_f32_dpp v{tb+s_}, v{tb+s_}, v{tb+s_} {m} {DPPF}")
    def kunit(j,jl,nh,iss):
        for i in range(4):
            arrive(4*j+i,iss); dots1(RING+j*16,i,nh,D)
        reduce(nh,D,T)
        a(f"v_max3_f32 v{VM}, v{VM}, v{T}, v{T+1}")
        a(f"v_cvt_pk_bf16_f32 v{T+2}, v{T}, v{T+1}")
        a(f"ds_write_b32 v{VSC}, v{T+2} offset:{jl*256}")
    def pcalc(t0,ar):
        a(f"v_fma_f32 v{t0}, v{t0}, s62, -v{VMC}")
        a(f"v_fma_f32 v{t0+1}, v{t0+1}, s62, -v{VMC}")
        a(f"v_exp_f32 v{t0}, v{t0}")
        a(f"v_exp_f32 v{t0+1}, v{t0+1}")
        a(f"v_add_f32 v{VL}, v{VL}, v{t0}")
        a(f"v_add_f32 v{VL}, v{VL}, v{t0+1}")
        a(f"v_cvt_pk_bf16_f32 v{t0}, v{t0}, v{t0+1}")
        for s_ in range(2):
            for v in range(4):
                a(f"v_perm_b32 v{ar+s_*4+v}, v{t0}, v{t0}, v{SEL[s_][v]}")
    def pvunit(j,iss):
        for i in range(4):
            arrive(4*j+i,iss)
            r=RING+j*16+i*4; c=ACC+(i%2)*4; ar=AR+(i//2)*4
            a(f"v_mfma_f32_16x16x32_bf16 v[{c}:{c+3}], v[{ar}:{ar+3}], v[{r}:{r+3}], v[{c}:{c+3}]")
    def vunit(j,jl,iss,par=None,nxt=None,side=None):
        if par is None: par=j%2
        if nxt is None: nxt=jl+1
        pk=PKR+par
        a("s_waitcnt lgkmcnt(0)")
        a(f"v_lshlrev_b32 v{T}, 16, v{pk}")
        a(f"v_and_b32 v{T+1}, 0xffff0000, v{pk}")
        a(f"ds_read_b32 v{PKR+1-par}, v{VSC} offset:{nxt*256}")
        pcalc(T,AR)
        if side is None: pvunit(j,iss)
        else:
            for i in range(4):
                r=side*16+i*4; c=ACC+(i%2)*4; ar=AR+(i//2)*4
                a(f"v_mfma_f32_16x16x32_bf16 v[{c}:{c+3}], v[{ar}:{ar+3}], a[{r}:{r+3}], v[{c}:{c+3}]")
    def xrow(reg,op):
        a(f"v_mov_b32 v{T+7}, v{reg}")
        a(f"v_permlane16_swap_b32 v{reg}, v{T+7}")
        a(f"{op} v{reg}, v{reg}, v{T+7}")
        a(f"v_mov_b32 v{T+7}, v{reg}")
        a(f"v_permlane32_swap_b32 v{reg}, v{T+7}")
        a(f"{op} v{reg}, v{reg}, v{T+7}")
    def pubvec():
        a(f"v_lshrrev_b32 v{PA}, 5, v0"); a(f"v_lshlrev_b32 v{PA}, 15, v{PA}")
        a(f"v_lshrrev_b32 v{PA+1}, 2, v2"); a(f"v_lshl_add_u32 v{PA}, v{PA+1}, 12, v{PA}")
        a(f"v_and_b32 v{PA+1}, 3, v2"); a(f"v_lshl_add_u32 v{PA}, v{PA+1}, 5, v{PA}")
        a(f"v_and_b32 v{PA+1}, 1, v3"); a(f"v_lshl_add_u32 v{PA}, v{PA+1}, 4, v{PA}")
        a(f"v_lshlrev_b32 v{PA+1}, 8, v0")
        a(f"v_mov_b32 v{PA+2}, {LCNT}"); a(f"v_mov_b32 v{PA+3}, 1")
    def pubaddr(kind):
        if kind=='A':
            a("s_lshr_b32 s64, s2, 5"); a("s_lshl_b32 s64, s64, 4")
            a("s_and_b32 s65, s2, 31")
        else:
            a("s_lshl_b32 s64, s96, 3"); a("s_add_u32 s64, s64, 128")
            a("s_and_b32 s65, s2, 15"); a("s_lshl_b32 s65, s65, 1"); a("s_add_u32 s65, s65, s31")
        a("s_lshl_b32 s44, s64, 12"); a("s_lshl_b32 s45, s65, 7"); a("s_add_u32 s44, s44, s45")
        a(f"s_add_u32 s44, s44, {IN1D}")
        a("s_add_u32 s45, s44, 0x4000")
        a("s_lshl_b32 s46, s64, 8"); a("s_and_b32 s47, s65, 7"); a("s_lshl_b32 s47, s47, 5"); a("s_add_u32 s46, s46, s47")
        a("s_and_b32 s47, s65, 0x18"); a("s_add_u32 s46, s46, s47")
        a(f"s_add_u32 s46, s46, {IN1H}")
    def mergeA():
        xrow(VL,"v_add_f32")
        a("s_mul_i32 s64, s31, 2560"); a(f"s_add_u32 s64, s64, {LDMP}")
        a(f"v_lshlrev_b32 v{T+4}, 4, v0"); a(f"v_lshlrev_b32 v{T+5}, 3, v0")
        a(f"v_add_u32 v{T}, s64, v{T+4}"); a(f"v_add_u32 v{T+1}, s64, v{T+5}")
        a(f"ds_write_b128 v{T}, v[{ACC}:{ACC+3}]")
        a(f"ds_write_b128 v{T}, v[{ACC+4}:{ACC+7}] offset:1024")
        a(f"ds_write_b64 v{T+1}, v[{VL}:{VMC}] offset:2048")
        a("s_waitcnt lgkmcnt(0)")
        a("s_mov_b64 exec, 1")
        a(f"ds_add_rtn_u32 v{T+2}, v{PA+2}, v{PA+3} offset:{LMRG-LCNT}")
        a("s_mov_b64 exec, -1")
        a(f"s_sub_u32 s64, {2*LDMP+2560}, s64")
        a(f"v_add_u32 v{T}, s64, v{T+4}"); a(f"v_add_u32 v{T+1}, s64, v{T+5}")
        a("s_waitcnt lgkmcnt(0)")
        a(f"v_readfirstlane_b32 s64, v{T+2}")
        a("s_cmp_eq_u32 s64, 0")
        a("s_cbranch_scc1 L_nopub")
        a(f"ds_read_b64 v[{T+2}:{T+3}], v{T+1} offset:2048")
        a(f"ds_read_b128 v[{AR}:{AR+3}], v{T}")
        a(f"ds_read_b128 v[{AR+4}:{AR+7}], v{T} offset:1024")
        a("s_waitcnt lgkmcnt(2)")
        a(f"v_max_f32 v{T+4}, v{VMC}, v{T+3}")
        a(f"v_sub_f32 v{T+5}, v{VMC}, v{T+4}"); a(f"v_sub_f32 v{T+6}, v{T+3}, v{T+4}")
        a(f"v_exp_f32 v{T+5}, v{T+5}"); a(f"v_exp_f32 v{T+6}, v{T+6}")
        a(f"v_mov_b32 v{VMC}, v{T+4}")
        a(f"v_mul_f32 v{VL}, v{VL}, v{T+5}"); a(f"v_fmac_f32 v{VL}, v{T+2}, v{T+6}")
        for d,sr in ((T,T+5),(T+1,T+6)):
            a(f"v_mov_b32_dpp v{d}, v{sr} row_newbcast:0 row_mask:0x3 bank_mask:0xf")
            a(f"v_mov_b32_dpp v{d}, v{sr} row_newbcast:8 row_mask:0xc bank_mask:0xf")
        for i in range(8): a(f"v_mul_f32 v{ACC+i}, v{ACC+i}, v{T}")
        a("s_waitcnt lgkmcnt(0)")
        for i in range(8): a(f"v_fmac_f32 v{ACC+i}, v{AR+i}, v{T+1}")
        publish('A')
        a.label("L_nopub")
    def publish(kind):
        if kind!='A': xrow(VL,"v_add_f32")
        a(f"v_min_u32 v{T+2}, -2, v{VMC}"); a(f"v_min_u32 v{T+3}, -2, v{VL}")
        for i in range(8): a(f"v_min_u32 v{ACC+i}, -2, v{ACC+i}")
        if kind!='A': a("s_mov_b32 exec_hi, 0")
        a(f"buffer_store_dwordx4 v[{ACC}:{ACC+3}], v{PA}, s[36:39], s44 offen sc1")
        a(f"buffer_store_dwordx4 v[{ACC+4}:{ACC+7}], v{PA}, s[36:39], s45 offen sc1")
        a(f"s_mov_b64 exec, {(0x101 if shh&1 else 0xffff) if kind=='A' else (1 if shh&2 else 0xff)}")
        a(f"buffer_store_dwordx2 v[{T+2}:{T+3}], v{PA+1}, s[36:39], s46 offen sc1")
        if kind!='A':
            a("s_mov_b64 exec, 1")
            a(f"ds_add_u32 v{PA+2}, v{PA+3}")
        a("s_mov_b64 exec, -1")
    def loadq(lq,nh):
        a(f"v_lshlrev_b32 v{T}, 4, v2")
        for h in range(nh):
            a(f"ds_read_b128 v[{Q+h*8}:{Q+h*8+3}], v{T} offset:{lq+h*512}")
            a(f"ds_read_b128 v[{Q+h*8+4}:{Q+h*8+7}], v{T} offset:{lq+h*512+256}")
    for p,(br,kv,n) in enumerate(PH):
        nh=2 if br=='A' else 1
        iss=lambda h,p=p: issue_static(h,p)
        cm(f"---- branch {br}, {'scores = q.K (bf16-rounded, kept in LDS) and running max' if kv=='K' else 'p = exp2(c*s - c*max), o += p.V'}")
        a(f"v_lshlrev_b32 v{VSC}, 2, v0")
        a(f"v_add_u32 v{VSC}, s63, v{VSC}")
        done=0; tail=0
        if kv=='K':
            loadq(LQA if br=='A' else LQB,nh)
            a(f"v_mov_b32 v{VM}, 0xff800000")
            a("s_waitcnt lgkmcnt(0)")
        else:
            a(f"ds_read_b32 v{PKR}, v{VSC} offset:{NV*256 if p==1 else 0}")
            xrow(VM,"v_max_f32")
            a(f"v_cvt_pk_bf16_f32 v{VM}, v{VM}, v{VM}")
            a(f"v_and_b32 v{VM}, 0xffff0000, v{VM}")
            a(f"v_mul_f32 v{VMC}, s62, v{VM}")
            a(f"v_mov_b32 v{VL}, 0")
            for i in range(8): a(f"v_mov_b32 v{ACC+i}, 0")
            if p==1: pubvec()
            pubaddr(br)
            if p==3: tail=8
        def group(jl0,iss):
            for j in range(4):
                if kv=='K': kunit(j,jl0+j,nh,iss)
                else: vunit(j,jl0+j,iss)
        if p==1 and NV:
            for k in range(NV):
                vunit(k%4,None,iss,0,k)
                vunit(None,None,None,1,NV+k+1,side=k)
            done=2*NV
            a(f"v_add_u32 v{VSC}, {done*256}, v{VSC}")
        if done==0 and len(vq)!=dl:
            group(0,iss); done=4
            a(f"v_add_u32 v{VSC}, 1024, v{VSC}")
        assert (n-done-tail)%4==0
        a(f"s_mov_b32 s60, {(n-done-tail)//4}")
        q0=loop_begin(f"L_ph{p}")
        group(0,iss)
        assert vq==q0,(vq,q0)
        a(f"v_add_u32 v{VSC}, 1024, v{VSC}")
        a("s_sub_u32 s60, s60, 1")
        a("s_cmp_lg_u32 s60, 0")
        a(f"s_cbranch_scc1 L_ph{p}")
        if p<3: do_boost(lambda h: issue_static(h,p+1))
        if p==1:
            lds_wait("L_go",T,LGO,1,2)
            mergeA()
        if tail:
            def iss1(h):
                if h==16+TQ: ticket_req()
                iss(h)
            for h in range(dl,dlp): iss(h)
            cd[0]=dlp
            group(0,iss1)
            group(4,lambda h: issue_static(h,None) if h<16 else issue_pool(h))
            st(5)
            cm("---- dynamic pool: 16-key blocks of branch B handed out by ticket, online softmax")
            a(f"s_cmp_eq_u32 s88, {INV}")
            a("s_cbranch_scc1 L_pool_end")
            def block(sfx):
                for j in range(2):
                    for i in range(4):
                        arrive(4*j+i,issue_pool); dots1(RING+j*16,i,1,D+2*j)
                reduce(1,D,T,4)
                a(f"v_cvt_pk_bf16_f32 v{T+4}, v{T}, v{T+1}")
                a(f"v_cvt_pk_bf16_f32 v{T+5}, v{T+2}, v{T+3}")
                a(f"v_lshlrev_b32 v{T}, 16, v{T+4}"); a(f"v_and_b32 v{T+1}, 0xffff0000, v{T+4}")
                a(f"v_lshlrev_b32 v{T+2}, 16, v{T+5}"); a(f"v_and_b32 v{T+3}, 0xffff0000, v{T+5}")
                a(f"v_max3_f32 v{T+4}, v{T}, v{T+1}, v{T+2}")
                a(f"v_max_f32 v{T+4}, v{T+4}, v{T+3}")
                a(f"v_cmp_gt_f32 vcc, v{T+4}, v{VM}")
                a("s_cmp_eq_u64 vcc, 0")
                a(f"s_cbranch_scc1 L_norescale{sfx}")
                a(f"v_max_f32 v{VM}, v{VM}, v{T+4}")
                xrow(VM,"v_max_f32")
                a(f"v_mul_f32 v{T+4}, s62, v{VM}")
                a(f"v_sub_f32 v{T+5}, v{VMC}, v{T+4}")
                a(f"v_exp_f32 v{T+5}, v{T+5}")
                a(f"v_mov_b32 v{VMC}, v{T+4}")
                a(f"v_mul_f32 v{VL}, v{VL}, v{T+5}")
                for i in range(8): a(f"v_mul_f32 v{ACC+i}, v{ACC+i}, v{T+5}")
                a.label(f"L_norescale{sfx}")
                pcalc(T,AR)
                pvunit(2,issue_pool)
                pcalc(T+2,AR)
                pvunit(3,issue_pool)
            q0=loop_begin("L_pool")
            block("")
            assert vq==q0,(vq,q0)
            a(f"s_cmp_lg_u32 s88, {INV}")
            a("s_cbranch_scc1 L_pool")
            a.label("L_pool_end")
            publish('B')
        if p<3 and not (est and p!=1): st(2+p)
    write_stamps(False)
    a.label("L_done")
    a("s_endpgm")
    if report is not None:
        import rep; rep.emit(a,report,WS_USED,W,LW)
    a.raw('.section .rodata,"a"')
    for nm,nv in ((NAME,256+16*NV),)+((("report_kernel",16),) if report is not None else ()):
        a.raw(".p2align 6"); a.raw(f".amdhsa_kernel {nm}")
        a.raw(f"  .amdhsa_next_free_vgpr {nv}"); a.raw("  .amdhsa_next_free_sgpr 98"); a.raw(f"  .amdhsa_accum_offset {min(nv,256)}")
        a.raw("  .amdhsa_float_denorm_mode_32 3")
        a.raw("  .amdhsa_group_segment_fixed_size 0"); a.raw("  .amdhsa_kernarg_size 104"); a.raw("  .amdhsa_user_sgpr_count 2")
        a.raw("  .amdhsa_user_sgpr_kernarg_segment_ptr 1"); a.raw("  .amdhsa_system_sgpr_workgroup_id_x 1"); a.raw(".end_amdhsa_kernel")
    return a.text()

def make(cfgs, listfile="list.txt"):
    import build
    lines=[]
    for c in cfgs:
        lab="g16_"+"_".join(f"{k}{str(v).replace(' ','').replace(',','.').strip('()[]')}" for k,v in c.items() if k!='stamp')
        fn="k_"+lab+".s"
        open(fn,"w").write(gen(**c))
        co=build.build(fn)
        lines.append(f"{lab} {co} {256*W if c.get('stamp') else 0} {NAME}:256:{(W+1)*64}:{c.get('lds',72960)}")
    open(listfile,"w").write("\n".join(lines)+"\n")
if __name__=="__main__":
    import json
    cfg=json.loads(sys.argv[2]) if len(sys.argv)>2 else {}
    open(sys.argv[1],"w").write(gen(**cfg))
```

```python
import struct, math, sys
from asmlib import Asm
NAME="concat_heads__gqa_block_cached__mha_block_cached__decode_kernel"
HDR=open('concat_heads__gqa_block_cached__mha_block_cached__decode.s.ref').read().split('; Override')[0]
def f2u(x): return struct.unpack('<I',struct.pack('<f',x))[0]
QP=0x10000
TK=0x50000
RDY=0x58000
IN1H=0x60000
IN1D=0x80000
YO=0x180000
WS_USED=0x200000
LQA=0; LQB=1024; LCNT=1536; LGO=1540; LMRG=1544; LDMP=2048; LSC=2048+2*2560
DPPF="row_mask:0xf bank_mask:0xf"
INV=0x7f000000
W=2; LW=1

def gen(stamp=False, lds=72960, dl=10, NV=12, PK=128, blk=32, tq=3, gsleep=24, psl=1, spin=1<<20, mix=True, report=None,
        thr=2, boost=0, sep=False, clr=2, cfl='sc1', wsoff=0, bar0=28, est=False, smodel=False, dlp=12, pm=20):
    SPIN=spin
    a=Asm()
    cm=lambda t: a.raw("    ; "+t)
    a.raw(HDR.rstrip())
    if report is None: a.raw(f"; @launch grid=(256,1,1) block=({(W+1)*64},1,1) lds={lds}")
    else:
        a.raw(f"; @launch kernel={NAME} grid=(256,1,1) block=({(W+1)*64},1,1) lds={lds}")
        a.raw("; @launch kernel=report_kernel grid=(1,1,1) block=(64,1,1) lds=1024")
    a.raw('.amdgcn_target "amdgcn-amd-amdhsa--gfx950"')
    a.raw(".text"); a.raw(f".globl {NAME}"); a.raw(".p2align 8"); a.raw(f".type {NAME},@function"); a.raw(f"{NAME}:")
    def st(k):
        if stamp:
            a("s_memrealtime s[68:69]"); a("s_waitcnt lgkmcnt(0)"); a(f"s_mov_b32 s{72+k}, s68")
    cm("256 workgroups x 3 waves: wave 0 = helper (q projection, combine, output projection), waves 1,2 stream K/V")
    a(f"""
    s_cmp_ge_u32 s2, 256
    s_cbranch_scc1 L_done
    s_load_dwordx16 s[4:19], s[0:1], 0
    s_load_dwordx8 s[20:27], s[0:1], 64
    s_load_dwordx2 s[28:29], s[0:1], 96
    v_lshrrev_b32 v1, 6, v0
    v_and_b32 v0, 63, v0
    v_readfirstlane_b32 s30, v1
    v_and_b32 v2, 15, v0
    v_lshrrev_b32 v3, 4, v0
    s_mov_b32 s38, {WS_USED}
    s_mov_b32 s39, 0x20000
    s_lshr_b32 s48, s2, 4
    s_lshl_b32 s48, s48, 3
    s_and_b32 s49, s2, 7
    s_or_b32 s48, s48, s49
    s_bfe_u32 s55, s2, 0x10003
    s_lshr_b32 s96, s2, 4
    """)
    a("s_cmp_eq_u32 s30, 0"); a("s_cbranch_scc0 L_stream")
    def selectors():
        a("""
        v_and_b32 v4, 1, v0
        v_cmp_eq_u32 vcc, 1, v4
        v_mov_b32 v5, 0x0c0c0100
        v_mov_b32 v6, 0x01000c0c
        v_cndmask_b32 v5, v5, v6, vcc
        v_mov_b32 v6, 0x0c0c0302
        v_mov_b32 v7, 0x03020c0c
        v_cndmask_b32 v6, v6, v7, vcc
        v_bfe_u32 v4, v0, 1, 2
        v_mov_b32 v7, 0x0c0c0c0c
        """)
        for v in range(4):
            a(f"v_cmp_eq_u32 vcc, {v}, v4")
            a(f"v_cndmask_b32 v{8+v}, v7, v5, vcc")
            a(f"v_cndmask_b32 v{12+v}, v7, v6, vcc")
    SEL=[[8,9,10,11],[12,13,14,15]]
    def after_kernarg():
        a("s_waitcnt lgkmcnt(0)")
        if stamp:
            for k in range(8): a(f"s_mov_b32 s{72+k}, 0")
        st(0)
        if wsoff: a(f"s_add_u32 s36, s28, {wsoff}"); a("s_addc_u32 s37, s29, 0")
        else: a("s_mov_b32 s36, s28"); a("s_mov_b32 s37, s29")
    def write_stamps(helper):
        if not stamp: return
        st(7)
        a("s_mov_b32 s36, s28"); a("s_mov_b32 s37, s29")
        a("s_getreg_b32 s66, hwreg(HW_REG_XCC_ID)")
        a("s_mov_b64 exec, 1")
        a("v_mov_b32 v4, 0")
        if not helper:
            a("v_mov_b32 v20, s72"); a("v_mov_b32 v21, s79"); a("v_mov_b32 v22, s66"); a("v_mov_b32 v23, 0")
            a(f"s_lshl_b32 s64, s2, {LW}"); a("s_add_u32 s64, s64, s31"); a("s_lshl_b32 s64, s64, 4")
            a("buffer_store_dwordx4 v[20:23], v4, s[36:39], s64 offen")
        for k in range(8): a(f"v_mov_b32 v{40+k}, s{72+k}")
        a(f"s_mul_i32 s64, s2, {W+1}"); a("s_add_u32 s64, s64, s30"); a("s_lshl_b32 s64, s64, 5"); a("s_add_u32 s64, s64, 0x4000")
        a("buffer_store_dwordx4 v[40:43], v4, s[36:39], s64 offen")
        a("buffer_store_dwordx4 v[44:47], v4, s[36:39], s64 offen offset:16")
    def spin_tail(lbl,sleep):
        if sleep: a(f"s_sleep {sleep}")
        a("s_sub_u32 s65, s65, 1"); a("s_cmp_lg_u32 s65, 0")
        a(f"s_cbranch_scc1 {lbl}")
    def lds_wait(lbl,tmp,addr,val,sleep):
        a(f"v_mov_b32 v{tmp}, {addr}")
        a(f"s_mov_b32 s65, {SPIN}")
        a.label(lbl)
        a(f"ds_read_b32 v{tmp+1}, v{tmp}")
        a("s_waitcnt lgkmcnt(0)")
        a(f"v_readfirstlane_b32 s64, v{tmp+1}")
        a(f"s_cmp_ge_u32 s64, {val}")
        a(f"s_cbranch_scc1 {lbl}d")
        spin_tail(lbl,sleep)
        a.label(lbl+"d")

    WR=64; XR=16; HA=32; HC=40; T=56; DT=192; HD=16; O=224
    cm("---------------- helper wave: s48 = index 0..127 inside the branch, s55 = branch (0 = A, 1 = B)")
    a(f"""
    s_setprio 3
    s_memrealtime s[92:93]
    s_mov_b32 s42, 896
    s_mov_b32 s43, 0x20000
    s_mov_b32 s47, 0x20000
    s_mov_b32 s82, 256
    s_mov_b32 s83, 0x20000
    s_and_b32 s60, s48, 31
    s_lshr_b32 s61, s48, 5
    s_mov_b32 s46, {448*8192}
    v_mul_u32_u24 v{T}, 56, v3
    s_mul_i32 s62, s61, 224
    s_mov_b32 s63, {28*8192}
    v_mul_lo_u32 v{T+1}, s63, v3
    v_lshl_add_u32 v{T+1}, v2, 4, v{T+1}
    s_mul_i32 s63, s61, {112*8192}
    s_lshl_b32 s64, s60, 8
    s_add_u32 s63, s63, s64
    s_and_b32 s56, s2, 0xf8
    """)
    after_kernarg()
    cm("workgroup 0 publishes this launch's nonce (tags every hand-off through d_ws) in the zeroed d_debug")
    a(f"""
    s_mov_b32 s80, s26
    s_mov_b32 s81, s27
    s_cmp_lg_u32 s2, 0
    s_cbranch_scc1 L_nononce
    s_or_b32 s92, s92, 1
    v_mov_b32 v{T+4}, s92
    v_mov_b32 v{T+5}, s93
    v_lshlrev_b32 v{T+6}, 3, v0
    s_mov_b32 exec_hi, 0
    buffer_store_dwordx2 v[{T+4}:{T+5}], v{T+6}, s[80:83], 0 offen sc1
    s_mov_b64 exec, -1
    """)
    a.label("L_nononce")
    cm("partial q: 112 rows x 128 columns of wq")
    a("""
    s_cmp_eq_u32 s55, 0
    s_cselect_b32 s40, s4, s14
    s_cselect_b32 s41, s5, s15
    s_cselect_b32 s44, s10, s20
    s_cselect_b32 s45, s11, s21
    """)
    for i in range(28):
        a(f"buffer_load_dwordx4 v[{WR+4*i}:{WR+4*i+3}], v{T+1}, s[44:47], s63 offen nt")
        if i<27: a("s_add_u32 s63, s63, 8192")
        if i==0:
            for k in range(7):
                a(f"buffer_load_dwordx2 v[{XR+2*k}:{XR+2*k+1}], v{T}, s[40:43], s62 offen offset:{8*k}")
        if i+1==bar0: a("s_barrier")
    a(f"buffer_load_dwordx2 v[{T+4}:{T+5}], off, s[80:83], s56 sc1")
    selectors()
    a(f"""
    v_mov_b32 v{HC+4}, {LCNT}
    v_mov_b32 v{HC+6}, 0
    v_mov_b32 v{HC+7}, 0
    ds_write_b64 v{HC+4}, v[{HC+6}:{HC+7}]
    ds_write_b32 v{HC+4}, v{HC+6} offset:8
    v_lshlrev_b32 v{T+2}, 4, v0
    v_and_b32 v{T+3}, 1, v3
    v_lshlrev_b32 v{T+3}, 4, v{T+3}
    v_lshl_add_u32 v{T+3}, v2, 5, v{T+3}
    v_lshrrev_b32 v{T+6}, 5, v0
    v_lshlrev_b32 v{T+6}, 4, v{T+6}
    v_lshl_add_u32 v{T+6}, v{T+3}, 1, v{T+6}
    s_lshl_b32 s63, s61, 15
    s_lshl_b32 s64, s60, 10
    s_add_u32 s63, s63, s64
    s_lshl_b32 s64, s55, 17
    s_add_u32 s63, s63, s64
    s_add_u32 s63, s63, {QP}
    """)
    for i in range(28):
        a(f"s_waitcnt vmcnt({28-i})")
        ar=HA+(i%2)*4
        for v in range(4):
            a(f"v_perm_b32 v{ar+v}, v{XR+i//2}, v{XR+i//2}, v{SEL[i%2][v]}")
        a(f"v_mfma_f32_16x16x32_bf16 v[{HC}:{HC+3}], v[{ar}:{ar+3}], v[{WR+4*i}:{WR+4*i+3}], {'0' if i==0 else 'v[%d:%d]'%(HC,HC+3)}")
    st(1)
    a(f"s_mov_b32 s65, {SPIN}")
    a.label("L_np")
    a("s_waitcnt vmcnt(0)")
    a(f"v_readfirstlane_b32 s92, v{T+4}"); a(f"v_readfirstlane_b32 s93, v{T+5}")
    a("s_cmp_lg_u32 s92, 0")
    a("s_cbranch_scc1 L_nd")
    a(f"buffer_load_dwordx2 v[{T+4}:{T+5}], off, s[80:83], s56 sc1")
    spin_tail("L_np",0)
    a.label("L_nd")
    a("s_mov_b32 exec_lo, 0")
    a(f"v_mov_b32 v{HC}, v{HC+2}"); a(f"v_mov_b32 v{HC+1}, v{HC+3}")
    a("s_mov_b32 exec_lo, -1")
    a(f"v_mov_b32 v{HC+2}, v{T+4}"); a(f"v_mov_b32 v{HC+3}, v{T+5}")
    a(f"buffer_store_dwordx4 v[{HC}:{HC+3}], v{T+6}, s[36:39], s63 offen sc1")
    st(2)
    def gather(lbl,nk,base,ldsoff,sleep):
        a(f"s_mov_b32 s65, {SPIN}")
        a.label(lbl)
        base()
        for ks in range(4):
            for k in range(nk):
                r=DT+(ks*nk+k)*4
                a(f"buffer_load_dwordx4 v[{r}:{r+3}], v{T+2}, s[36:39], s62 offen offset:{k*1024} sc1")
            if ks<3: a("s_add_u32 s62, s62, 0x8000")
        a("s_mov_b64 s[66:67], 0")
        for j in range(4*nk):
            a(f"s_waitcnt vmcnt({4*nk-1-j})")
            a(f"v_cmp_ne_u64 vcc, s[92:93], v[{DT+j*4+2}:{DT+j*4+3}]")
            a("s_or_b64 s[66:67], s[66:67], vcc")
        a("s_cmp_eq_u64 s[66:67], 0")
        a(f"s_cbranch_scc1 {lbl}d")
        spin_tail(lbl,sleep)
        a.label(lbl+"d")
        def pr(j): return f"v[{DT+j*4}:{DT+j*4+1}]"
        for k in range(nk):
            a(f"v_pk_add_f32 {pr(k)}, {pr(k)}, {pr(nk+k)}")
            a(f"v_pk_add_f32 {pr(2*nk+k)}, {pr(2*nk+k)}, {pr(3*nk+k)}")
        for k in range(nk): a(f"v_pk_add_f32 {pr(k)}, {pr(k)}, {pr(2*nk+k)}")
        a(f"v_lshlrev_b32 v{T}, 2, v0")
        for k in range(nk): a(f"v_cvt_pk_bf16_f32 v{DT+k*4+2}, v{DT+k*4}, v{DT+k*4+1}")
        for k in range(nk): a(f"ds_write_b32 v{T}, v{DT+k*4+2} offset:{ldsoff+256*k}")
        a("s_waitcnt lgkmcnt(0)")
    def baseA(): a("s_lshr_b32 s62, s2, 5"); a("s_lshl_b32 s62, s62, 12"); a(f"s_add_u32 s62, s62, {QP}")
    def baseB(): a("s_lshl_b32 s62, s96, 11"); a(f"s_add_u32 s62, s62, {QP+0x20000}")
    cm("gather the two A q heads of this workgroup (back off first: the other producers finish at about the same time)")
    if gsleep: a(f"s_sleep {gsleep}")
    gather("L_ga",4,baseA,LQA,8)
    if est: st(5)
    a("s_barrier")
    a("s_setprio 0")
    st(4)
    cm("fill the inboxes this wave will poll with the sentinel, zero a ticket counter, then publish 'ready'")
    for k in range(4): a(f"v_mov_b32 v{HC+k}, -1")
    a("s_lshl_b32 s60, s55, 7"); a("s_add_u32 s60, s60, s48")
    a("s_lshl_b32 s52, s60, 12"); a(f"s_add_u32 s52, s52, {IN1D}")
    a("s_lshl_b32 s53, s60, 8"); a(f"s_add_u32 s53, s53, {IN1H}")
    a("s_lshl_b32 s54, s60, 11"); a(f"s_add_u32 s54, s54, {YO}")
    for k in range(4):
        a(f"buffer_store_dwordx4 v[{HC}:{HC+3}], v{T+2}, s[36:39], s52 offen offset:{k*1024} sc1")
    a(f"buffer_store_dwordx4 v[{HC}:{HC+3}], v{T+2}, s[36:39], s54 offen sc1")
    a("s_mov_b32 exec_hi, 0xffff")
    a(f"buffer_store_dwordx4 v[{HC}:{HC+3}], v{T+2}, s[36:39], s54 offen offset:1024 sc1")
    a("s_mov_b64 exec, 0xffff")
    a(f"buffer_store_dwordx4 v[{HC}:{HC+3}], v{T+2}, s[36:39], s53 offen sc1")
    a("s_lshl_b32 s63, s48, 8"); a(f"s_add_u32 s63, s63, {TK}")
    a("s_lshl_b32 s64, s2, 3"); a(f"s_add_u32 s64, s64, {RDY}")
    a("s_mov_b64 exec, 1")
    a(f"v_mov_b32 v{T}, 0")
    a(f"buffer_store_dword v{T}, off, s[36:39], s63 sc1")
    a("s_waitcnt vmcnt(0)")
    a(f"buffer_store_dwordx2 v[{T+4}:{T+5}], off, s[36:39], s64 sc1")
    a("s_mov_b64 exec, -1")
    cm("32 rows of wo stay in registers until the end")
    a(f"""
    s_cmp_eq_u32 s55, 1
    s_cselect_b32 s44, s22, s12
    s_cselect_b32 s45, s23, s13
    s_mov_b32 s46, {4096*896}
    s_mul_i32 s63, s48, {32*896}
    v_bfrev_b32 v{T+7}, v3
    v_lshrrev_b32 v{T+7}, 30, v{T+7}
    v_mul_u32_u24 v{T}, 896, v{T+7}
    v_lshl_add_u32 v{T}, v2, 4, v{T}
    """)
    a("s_mov_b32 s66, 0x00ff00ff"); a("s_mov_b32 s67, 0x00ff00ff")
    for i in range(8):
        for bk in range(4):
            r=WR+(i*4+bk)*4
            if bk==3: a("s_mov_b64 exec, s[66:67]")
            a(f"buffer_load_dwordx4 v[{r}:{r+3}], v{T}, s[44:47], s63 offen offset:{bk*256} nt")
        a("s_mov_b64 exec, -1")
        if i<7: a(f"s_add_u32 s63, s63, {4*896}")
    a("s_waitcnt vmcnt(0)")
    cm("every workgroup ready?")
    a(f"s_mov_b32 s64, {RDY}")
    a(f"s_mov_b32 s65, {SPIN}")
    a.label("L_rd")
    a(f"buffer_load_dwordx4 v[{DT}:{DT+3}], v{T+2}, s[36:39], s64 offen sc1")
    a(f"buffer_load_dwordx4 v[{DT+4}:{DT+7}], v{T+2}, s[36:39], s64 offen offset:1024 sc1")
    a("s_mov_b64 s[66:67], 0")
    a("s_waitcnt vmcnt(0)")
    for j in range(4):
        a(f"v_cmp_ne_u64 vcc, s[92:93], v[{DT+j*2}:{DT+j*2+1}]")
        a("s_or_b64 s[66:67], s[66:67], vcc")
    a("s_cmp_eq_u64 s[66:67], 0")
    a("s_cbranch_scc1 L_rdd")
    spin_tail("L_rd",64)
    a.label("L_rdd")
    cm("q of this workgroup's B head")
    gather("L_gb",2,baseB,LQB,64)
    a(f"v_mov_b32 v{T}, {LGO}"); a(f"v_mov_b32 v{T+1}, 1")
    a(f"ds_write_b32 v{T}, v{T+1}")
    st(3)
    def anysent(rs,tmp):
        h=len(rs)//2
        chains=[(tmp,rs[:h]),(tmp+3,rs[h:])]
        for t,c in chains: a(f"v_max_u32 v{t}, v{c[0]}, v{c[1]}")
        k=2
        while k<h:
            for t,c in chains:
                if k+1<h: a(f"v_max3_u32 v{t}, v{t}, v{c[k]}, v{c[k+1]}")
                else: a(f"v_max_u32 v{t}, v{t}, v{c[k]}")
            k+=2
        a(f"v_max_u32 v{tmp}, v{tmp}, v{tmp+3}")
        a(f"v_cmp_eq_u32 vcc, -1, v{tmp}")
        a("s_cmp_eq_u64 vcc, 0")
    def poll(lbl,loads,rs):
        loads()
        a("s_waitcnt vmcnt(0)")
        a(f"s_mov_b32 s65, {SPIN}")
        a.label(lbl)
        anysent(rs,T+2)
        a(f"s_cbranch_scc1 {lbl}d")
        a("s_mov_b64 exec, vcc")
        loads()
        a("s_mov_b64 exec, -1")
        a("s_waitcnt vmcnt(48)")
        spin_tail(lbl,psl)
        a.label(lbl+"d")
    a(f"v_lshlrev_b32 v1, 1, v{T+7}"); a(f"v_and_b32 v{T+5}, 3, v0"); a(f"v_lshl_add_u32 v1, v{T+5}, 3, v1")
    a(f"v_lshlrev_b32 v{T+7}, 4, v0")
    a(f"v_lshrrev_b32 v{T+4}, 2, v0"); a(f"v_lshlrev_b32 v{T+4}, 11, v{T+4}")
    a(f"v_lshl_add_u32 v{T+4}, v{T+5}, 4, v{T+4}")
    a(f"v_lshrrev_b32 v{T+6}, 3, v0"); a(f"v_lshlrev_b32 v{T+6}, 5, v{T+6}")
    a("s_lshl_b32 s84, s48, 6"); a("s_lshl_b32 s60, s55, 18"); a("s_add_u32 s84, s84, s60"); a(f"s_add_u32 s84, s84, {YO}")
    for k in range(1,8): a(f"s_add_u32 s{84+k}, s{83+k}, 0x8000")
    a("""
    s_mov_b32 s40, s24
    s_mov_b32 s41, s25
    s_mov_b32 s42, 1792
    s_lshl_b32 s62, s48, 5
    s_mul_i32 s60, s55, 896
    s_add_u32 s62, s62, s60
    """)
    cm("wait until this workgroup's streaming waves are done, then combine the softmax records for 32 output rows")
    lds_wait("L_ow",T,LCNT,thr,2)
    OW=O; OO=O+8; OL=O+12; OX=O+13; OB=O+16
    def allred(reg,op):
        a(f"{op}_dpp v{reg}, v{reg}, v{reg} row_ror:8 {DPPF}")
        for sw in ("v_permlane16_swap_b32","v_permlane32_swap_b32"):
            a(f"v_mov_b32 v{OX}, v{reg}"); a(f"{sw} v{reg}, v{OX}"); a(f"{op} v{reg}, v{reg}, v{OX}")
    def scatter4(r):
        a(f"v_permlane32_swap_b32 v{r}, v{r+1}"); a(f"v_permlane32_swap_b32 v{r+2}, v{r+3}")
        a(f"v_add_f32 v{r}, v{r}, v{r+1}"); a(f"v_add_f32 v{r+2}, v{r+2}, v{r+3}")
        a(f"v_permlane16_swap_b32 v{r}, v{r+2}")
        a(f"v_add_f32 v{r}, v{r}, v{r+2}")
    def level1(J,sfx):
        def l1loads():
            for k in range(J//2):
                a(f"buffer_load_dwordx4 v[{HD+4*k}:{HD+4*k+3}], v{T+6}, s[36:39], s53 offen offset:{16*k} sc1")
            for j in range(J):
                a(f"buffer_load_dwordx4 v[{DT+4*j}:{DT+4*j+3}], v{T+7}, s[36:39], {'s52' if j<4 else 's57'} offen offset:{(j%4)*1024} sc1")
        poll("L_hp"+sfx,l1loads,[HD+k for k in range(J*2)]+[DT+k for k in range(J*4)])
        if not est: st(5)
        a(f"v_max_f32 v{T+2}, v{HD}, v{HD+2}")
        for k in range(2,J,2): a(f"v_max3_f32 v{T+2}, v{T+2}, v{HD+2*k}, v{HD+2*k+2}")
        allred(T+2,"v_max_f32")
        for k in range(J): a(f"v_sub_f32 v{OW+k}, v{HD+2*k}, v{T+2}")
        for k in range(J): a(f"v_exp_f32 v{OW+k}, v{OW+k}")
        a(f"v_mul_f32 v{OL}, v{OW}, v{HD+1}")
        for e in range(4): a(f"v_mul_f32 v{OO+e}, v{OW}, v{DT+e}")
        for k in range(1,J):
            a(f"v_fmac_f32 v{OL}, v{OW+k}, v{HD+2*k+1}")
            for e in range(4): a(f"v_fmac_f32 v{OO+e}, v{OW+k}, v{DT+k*4+e}")
    level1(4,"")
    a(f"v_add_f32_dpp v{OL}, v{OL}, v{OL} row_ror:8 {DPPF}")
    a(f"v_permlane32_swap_b32 v{OO}, v{OO+1}"); a(f"v_permlane32_swap_b32 v{OO+2}, v{OO+3}")
    a(f"v_mov_b32 v{OX}, v{OL}")
    a(f"v_add_f32 v{OO}, v{OO}, v{OO+1}"); a(f"v_add_f32 v{OO+2}, v{OO+2}, v{OO+3}")
    a(f"v_permlane16_swap_b32 v{OL}, v{OX}")
    a(f"v_add_f32 v{OL}, v{OL}, v{OX}")
    a(f"v_permlane16_swap_b32 v{OO}, v{OO+2}")
    a(f"v_mov_b32 v{OX}, v{OL}")
    a(f"v_add_f32 v{OO}, v{OO}, v{OO+2}")
    a(f"v_permlane32_swap_b32 v{OL}, v{OX}")
    a(f"v_add_f32 v{OL}, v{OL}, v{OX}")
    a(f"v_add_f32_dpp v{OO}, v{OO}, v{OO} row_ror:8 {DPPF}")
    a(f"v_rcp_f32 v{OL}, v{OL}")
    a(f"v_mul_f32 v{OO}, v{OO}, v{OL}")
    a(f"v_cvt_pk_bf16_f32 v{OO}, v{OO}, v{OO}")
    for i in range(8): a(f"v_mov_b32_dpp v{OB+i}, v{OO} row_newbcast:{i} {DPPF}")
    def prm(i,v): a(f"v_perm_b32 v{HA+(i%2)*4+v}, v{OB+i}, v{OB+i}, v{SEL[0][v]}")
    for v in range(4): prm(0,v)
    for i in range(8):
        ar=HA+(i%2)*4
        for bk in range(4):
            r=WR+(i*4+bk)*4; c=HC+bk*4
            a(f"v_mfma_f32_16x16x32_bf16 v[{c}:{c+3}], v[{ar}:{ar+3}], v[{r}:{r+3}], {'0' if i==0 else 'v[%d:%d]'%(c,c+3)}")
            if i<7 and bk<2: prm(i+1,2*bk); prm(i+1,2*bk+1)
    a("s_mov_b32 exec_hi, 0")
    for bk in range(4):
        for k in range(4): a(f"v_min_u32 v{HC+bk*4+k}, -2, v{HC+bk*4+k}")
        if bk==3: a("s_mov_b32 exec_lo, 0x00ff00ff")
        a(f"buffer_store_dwordx4 v[{HC+bk*4}:{HC+bk*4+3}], v{T+3}, s[36:39], s54 offen offset:{bk*512} sc1")
    a("s_mov_b64 exec, -1")
    st(6)
    cm("28 helpers per branch sum the 128 partial rows for 16 output columns each")
    a("s_cmp_ge_u32 s48, 28")
    a("s_cbranch_scc1 L_he")
    def l2loads():
        for k in range(8):
            a(f"buffer_load_dwordx4 v[{DT+4*k}:{DT+4*k+3}], v{T+4}, s[36:39], s{84+k} offen sc1")
    poll("L_yp",l2loads,[DT+k for k in range(32)])
    for e in range(0,16,2): a(f"v_pk_add_f32 v[{O+e}:{O+e+1}], v[{DT+e}:{DT+e+1}], v[{DT+16+e}:{DT+17+e}]")
    for half in (8,4):
        for e in range(0,half,2): a(f"v_pk_add_f32 v[{O+e}:{O+e+1}], v[{O+e}:{O+e+1}], v[{O+half+e}:{O+half+e+1}]")
    scatter4(O)
    for m in ("row_ror:8","row_ror:4"): a(f"v_add_f32_dpp v{O}, v{O}, v{O} {m} {DPPF}")
    a(f"v_cvt_pk_bf16_f32 v{O}, v{O}, v{O}")
    a("s_mov_b32 exec_lo, 0x000f000f"); a("s_mov_b32 exec_hi, 0x000f000f")
    a(f"buffer_store_short v{O}, v1, s[40:43], s62 offen")
    a("s_mov_b64 exec, -1")
    a.label("L_he")
    write_stamps(True)
    a("s_endpgm")

    VOFF=1; VSC=4; VM=5; VL=6; VMC=7
    Q=16; PA=24; ACC=32; AR=40; D=48; T=52; PKR=60; VOFF2=62; VTK=63
    RING=64
    STEP=4096*W
    NA=(1<<19)//STEP; NB=((1<<20)-PK*1024)//STEP
    NT=16*PK//8
    if dlp is None: dlp=dl
    TQ=min(tq,16-dlp)
    cd=[dl]
    vq=[]
    BB=(blk*1024).bit_length()-1
    assert PK%blk==0 and NB%4==0 and NV%4==0 and (2*PK)%(8<<(pm&7))==0
    a.label("L_stream")
    cm("---------------- streaming waves")
    a(f"""
    s_sub_u32 s31, s30, 1
    v_lshlrev_b32 v{VOFF}, 9, v3
    v_lshl_add_u32 v{VOFF}, v2, 4, v{VOFF}
    s_mov_b32 s34, 0x200000
    s_mov_b32 s35, 0x20000
    s_mov_b32 s42, 0x200000
    s_mov_b32 s43, 0x20000
    s_lshl_b32 s61, s31, 12
    s_lshl_b32 s49, s55, {BB}
    s_lshl_b32 s60, s48, 20
    s_add_u32 s60, s60, s49
    """)
    def adv(r):
        a(f"s_bitset1_b32 {r}, {BB}"); a(f"s_add_u32 {r}, {r}, {STEP}"); a(f"s_bitset0_b32 {r}, {BB}")
    after_kernarg()
    a("s_add_u32 s32, s6, s60"); a("s_addc_u32 s33, s7, 0")
    a("s_add_u32 s40, s8, s60"); a("s_addc_u32 s41, s9, 0")
    if bar0: a("s_barrier")
    if est: st(2)
    OFFS=[0,256,2048,2304]
    PH=[('A','K',NA),('A','V',NA),('B','K',NB),('B','V',NB)]
    ends=[NA,2*NA-NV,2*NA-NV+NB]
    def ld(base,i,srd,soff,voff=VOFF,rf='v'):
        r=base+i*4
        a(f"buffer_load_dwordx4 {rf}[{r}:{r+3}], v{voff}, {srd}, {soff} offen offset:{OFFS[i]} nt")
    def issue_static(h,p):
        h%=16
        ld(RING+(h//4)*16,h%4,"s[32:35]","s52"); vq.append(h)
        if h%4==3:
            adv("s52")
            if p is not None and p<3:
                a("s_add_u32 s53, s53, 1")
                a(f"s_cmp_eq_u32 s53, {ends[p]}")
                b=(40,56,58)[p]
                a(f"s_cselect_b32 s32, s{b}, s32"); a(f"s_cselect_b32 s33, s{b+1}, s33"); a(f"s_cselect_b32 s52, {'s94' if p==0 else 's61'}, s52")
    def ticket_req():
        a("s_mov_b64 exec, 1")
        a(f"v_mov_b32 v{VTK}, 1")
        a(f"buffer_atomic_add v{VTK}, off, s[36:39], s91 sc0 sc1"); vq.append('A')
        a("s_mov_b64 exec, -1")
    def ticket_use():
        assert 'A' not in vq
        a(f"v_readfirstlane_b32 s90, v{VTK}")
        lo=pm&7
        if pm&8:
            a(f"s_lshr_b32 s89, s90, {lo+3}"); a("s_add_u32 s89, s89, s96"); a(f"s_lshr_b32 s88, s90, {lo}"); a("s_add_u32 s88, s88, s89"); a("s_and_b32 s88, s88, 7")
        else: a(f"s_bfe_u32 s88, s90, {lo|(3<<16)}")
        a("s_lshl_b32 s88, s88, 21")
        a(f"s_lshr_b32 s89, s90, {lo+3}"); a(f"s_lshl_b32 s89, s89, {13+lo}"); a("s_add_u32 s88, s88, s89")
        if lo:
            if pm&16: a("s_add_u32 s89, s90, s96"); a(f"s_and_b32 s89, s89, {(1<<lo)-1}")
            else: a(f"s_and_b32 s89, s90, {(1<<lo)-1}")
            a("s_lshl_b32 s89, s89, 13"); a("s_add_u32 s88, s88, s89")
        a(f"s_add_u32 s88, s88, {2*NB*STEP}")
        a(f"s_cmp_lt_u32 s90, {NT}")
        a(f"s_cselect_b32 s88, s88, {INV}")
    def issue_pool(h):
        h%=16
        if h==0: ticket_use()
        if h==TQ: ticket_req()
        k=h//4
        ld(RING+k*16,h%4,"s[80:83]" if k<2 else "s[84:87]","s88",VOFF if k%2==0 else VOFF2); vq.append(h)
    def setup2():
        selectors()
        a(f"""
        s_lshl_b32 s60, s48, 21
        s_add_u32 s60, s60, s49
        s_add_u32 s56, s16, s60
        s_addc_u32 s57, s17, 0
        s_add_u32 s58, s18, s60
        s_addc_u32 s59, s19, 0
        s_lshl_b32 s60, s96, 24
        s_add_u32 s80, s16, s60
        s_addc_u32 s81, s17, 0
        s_mov_b32 s82, 0x1000000
        s_mov_b32 s83, 0x20000
        s_add_u32 s84, s18, s60
        s_addc_u32 s85, s19, 0
        s_mov_b32 s86, 0x1000000
        s_mov_b32 s87, 0x20000
        s_lshl_b32 s91, s96, 8
        s_add_u32 s91, s91, {TK}
        s_mov_b32 s62, {f2u(math.log2(math.e)/16.0)}
        s_lshl_b32 s63, s31, 15
        s_add_u32 s63, s63, {LSC}
        v_add_u32 v{VOFF2}, 0x1000, v{VOFF}
        """)
    cm(f"while q is being computed: first {NV} V units of branch A go to AGPRs, then the K ring starts; {dl} loads in flight")
    n=0
    a("s_mov_b32 s94, s61")
    for k in range(NV):
        for i in range(4):
            if n>=dl: a(f"s_waitcnt vmcnt({dl-1})")
            if est and n==dl: st(4)
            ld(k*16,i,"s[40:43]","s94",rf='a'); n+=1
            if n==dl: setup2()
        adv("s94")
    a("s_mov_b32 s52, s61")
    a(f"s_mov_b32 s53, {dl//4}")
    for h in range(dl):
        if n>=dl: a(f"s_waitcnt vmcnt({dl-1})")
        issue_static(h,None); n+=1
        if n==dl: setup2()
    st(6)
    a("s_barrier")
    st(1)
    def arrive(c,iss):
        k=vq.index(c%16)
        a(f"s_waitcnt vmcnt({len(vq)-1-k})")
        del vq[:k+1]
        if sum(1 for x in vq if isinstance(x,int))<cd[0]: iss(c+cd[0])
    def do_boost(iss):
        for h in range(dl,dl+boost): iss(h)
    def loop_begin(lbl):
        vq[:]=[x for x in vq if x!='S']
        a.label(lbl)
        return list(vq)
    def dots1(base,i,nh,dbase):
        s_=i//2
        for e4 in range(4):
            e=(i%2)*4+e4
            for h in range(nh):
                d=dbase+s_*nh+h
                a(f"v_dot2_f32_bf16 v{d}, v{base+i*4+e4}, v{Q+h*8+e}, {'0' if e==0 else 'v%d'%d}")
    def reduce(nh,dbase,tb,ns=2):
        for s_ in range(ns):
            if nh==2:
                a(f"v_add_f32_dpp v{tb+s_}, v{dbase+s_*2}, v{dbase+s_*2} row_ror:8 row_mask:0xf bank_mask:0x3")
                a(f"v_add_f32_dpp v{tb+s_}, v{dbase+s_*2+1}, v{dbase+s_*2+1} row_ror:8 row_mask:0xf bank_mask:0xc")
            else:
                a(f"v_add_f32_dpp v{tb+s_}, v{dbase+s_}, v{dbase+s_} row_ror:8 {DPPF}")
        for m in ("row_half_mirror","quad_perm:[1,0,3,2]","quad_perm:[2,3,0,1]"):
            for s_ in range(ns):
                a(f"v_add_f32_dpp v{tb+s_}, v{tb+s_}, v{tb+s_} {m} {DPPF}")
    def kunit(j,jl,nh,iss):
        for i in range(4):
            arrive(4*j+i,iss); dots1(RING+j*16,i,nh,D)
        reduce(nh,D,T)
        a(f"v_max3_f32 v{VM}, v{VM}, v{T}, v{T+1}")
        a(f"v_cvt_pk_bf16_f32 v{T+2}, v{T}, v{T+1}")
        a(f"ds_write_b32 v{VSC}, v{T+2} offset:{jl*256}")
    def pcalc(t0,ar):
        a(f"v_fma_f32 v{t0}, v{t0}, s62, -v{VMC}")
        a(f"v_fma_f32 v{t0+1}, v{t0+1}, s62, -v{VMC}")
        a(f"v_exp_f32 v{t0}, v{t0}")
        a(f"v_exp_f32 v{t0+1}, v{t0+1}")
        a(f"v_add_f32 v{VL}, v{VL}, v{t0}")
        a(f"v_add_f32 v{VL}, v{VL}, v{t0+1}")
        a(f"v_cvt_pk_bf16_f32 v{t0}, v{t0}, v{t0+1}")
        for s_ in range(2):
            for v in range(4):
                a(f"v_perm_b32 v{ar+s_*4+v}, v{t0}, v{t0}, v{SEL[s_][v]}")
    def pvunit(j,iss):
        for i in range(4):
            arrive(4*j+i,iss)
            r=RING+j*16+i*4; c=ACC+(i%2)*4; ar=AR+(i//2)*4
            a(f"v_mfma_f32_16x16x32_bf16 v[{c}:{c+3}], v[{ar}:{ar+3}], v[{r}:{r+3}], v[{c}:{c+3}]")
    def vunit(j,jl,iss,par=None,nxt=None,side=None):
        if par is None: par=j%2
        if nxt is None: nxt=jl+1
        pk=PKR+par
        a("s_waitcnt lgkmcnt(0)")
        a(f"v_lshlrev_b32 v{T}, 16, v{pk}")
        a(f"v_and_b32 v{T+1}, 0xffff0000, v{pk}")
        a(f"ds_read_b32 v{PKR+1-par}, v{VSC} offset:{nxt*256}")
        pcalc(T,AR)
        if side is None: pvunit(j,iss)
        else:
            for i in range(4):
                r=side*16+i*4; c=ACC+(i%2)*4; ar=AR+(i//2)*4
                a(f"v_mfma_f32_16x16x32_bf16 v[{c}:{c+3}], v[{ar}:{ar+3}], a[{r}:{r+3}], v[{c}:{c+3}]")
    def xrow(reg,op):
        a(f"v_mov_b32 v{T+7}, v{reg}")
        a(f"v_permlane16_swap_b32 v{reg}, v{T+7}")
        a(f"{op} v{reg}, v{reg}, v{T+7}")
        a(f"v_mov_b32 v{T+7}, v{reg}")
        a(f"v_permlane32_swap_b32 v{reg}, v{T+7}")
        a(f"{op} v{reg}, v{reg}, v{T+7}")
    def pubvec():
        a(f"v_lshrrev_b32 v{PA}, 5, v0"); a(f"v_lshlrev_b32 v{PA}, 15, v{PA}")
        a(f"v_lshrrev_b32 v{PA+1}, 2, v2"); a(f"v_lshl_add_u32 v{PA}, v{PA+1}, 12, v{PA}")
        a(f"v_and_b32 v{PA+1}, 3, v2"); a(f"v_lshl_add_u32 v{PA}, v{PA+1}, 5, v{PA}")
        a(f"v_and_b32 v{PA+1}, 1, v3"); a(f"v_lshl_add_u32 v{PA}, v{PA+1}, 4, v{PA}")
        a(f"v_lshlrev_b32 v{PA+1}, 8, v0")
        a(f"v_mov_b32 v{PA+2}, {LCNT}"); a(f"v_mov_b32 v{PA+3}, 1")
    def pubaddr(kind):
        if kind=='A':
            a("s_lshr_b32 s64, s2, 5"); a("s_lshl_b32 s64, s64, 4")
            a("s_and_b32 s65, s2, 31")
        else:
            a("s_lshl_b32 s64, s96, 3"); a("s_add_u32 s64, s64, 128")
            a("s_and_b32 s65, s2, 15"); a("s_lshl_b32 s65, s65, 1"); a("s_add_u32 s65, s65, s31")
        a("s_lshl_b32 s44, s64, 12"); a("s_lshl_b32 s45, s65, 7"); a("s_add_u32 s44, s44, s45")
        a(f"s_add_u32 s44, s44, {IN1D}")
        a("s_add_u32 s45, s44, 0x4000")
        a("s_lshl_b32 s46, s64, 8"); a("s_and_b32 s47, s65, 7"); a("s_lshl_b32 s47, s47, 5"); a("s_add_u32 s46, s46, s47")
        a("s_and_b32 s47, s65, 0x18"); a("s_add_u32 s46, s46, s47")
        a(f"s_add_u32 s46, s46, {IN1H}")
    def mergeA():
        xrow(VL,"v_add_f32")
        a("s_mul_i32 s64, s31, 2560"); a(f"s_add_u32 s64, s64, {LDMP}")
        a(f"v_lshlrev_b32 v{T+4}, 4, v0"); a(f"v_lshlrev_b32 v{T+5}, 3, v0")
        a(f"v_add_u32 v{T}, s64, v{T+4}"); a(f"v_add_u32 v{T+1}, s64, v{T+5}")
        a(f"ds_write_b128 v{T}, v[{ACC}:{ACC+3}]")
        a(f"ds_write_b128 v{T}, v[{ACC+4}:{ACC+7}] offset:1024")
        a(f"ds_write_b64 v{T+1}, v[{VL}:{VMC}] offset:2048")
        a("s_waitcnt lgkmcnt(0)")
        a("s_mov_b64 exec, 1")
        a(f"ds_add_rtn_u32 v{T+2}, v{PA+2}, v{PA+3} offset:{LMRG-LCNT}")
        a("s_mov_b64 exec, -1")
        a(f"s_sub_u32 s64, {2*LDMP+2560}, s64")
        a(f"v_add_u32 v{T}, s64, v{T+4}"); a(f"v_add_u32 v{T+1}, s64, v{T+5}")
        a("s_waitcnt lgkmcnt(0)")
        a(f"v_readfirstlane_b32 s64, v{T+2}")
        a("s_cmp_eq_u32 s64, 0")
        a("s_cbranch_scc1 L_nopub")
        a(f"ds_read_b64 v[{T+2}:{T+3}], v{T+1} offset:2048")
        a(f"ds_read_b128 v[{AR}:{AR+3}], v{T}")
        a(f"ds_read_b128 v[{AR+4}:{AR+7}], v{T} offset:1024")
        a("s_waitcnt lgkmcnt(2)")
        a(f"v_max_f32 v{T+4}, v{VMC}, v{T+3}")
        a(f"v_sub_f32 v{T+5}, v{VMC}, v{T+4}"); a(f"v_sub_f32 v{T+6}, v{T+3}, v{T+4}")
        a(f"v_exp_f32 v{T+5}, v{T+5}"); a(f"v_exp_f32 v{T+6}, v{T+6}")
        a(f"v_mov_b32 v{VMC}, v{T+4}")
        a(f"v_mul_f32 v{VL}, v{VL}, v{T+5}"); a(f"v_fmac_f32 v{VL}, v{T+2}, v{T+6}")
        for d,sr in ((T,T+5),(T+1,T+6)):
            a(f"v_mov_b32_dpp v{d}, v{sr} row_newbcast:0 row_mask:0x3 bank_mask:0xf")
            a(f"v_mov_b32_dpp v{d}, v{sr} row_newbcast:8 row_mask:0xc bank_mask:0xf")
        for i in range(8): a(f"v_mul_f32 v{ACC+i}, v{ACC+i}, v{T}")
        a("s_waitcnt lgkmcnt(0)")
        for i in range(8): a(f"v_fmac_f32 v{ACC+i}, v{AR+i}, v{T+1}")
        publish('A')
        a.label("L_nopub")
    def publish(kind):
        if kind!='A': xrow(VL,"v_add_f32")
        a(f"v_min_u32 v{T+2}, -2, v{VMC}"); a(f"v_min_u32 v{T+3}, -2, v{VL}")
        for i in range(8): a(f"v_min_u32 v{ACC+i}, -2, v{ACC+i}")
        if kind!='A': a("s_mov_b32 exec_hi, 0")
        a(f"buffer_store_dwordx4 v[{ACC}:{ACC+3}], v{PA}, s[36:39], s44 offen sc1")
        a(f"buffer_store_dwordx4 v[{ACC+4}:{ACC+7}], v{PA}, s[36:39], s45 offen sc1")
        a(f"s_mov_b64 exec, {0xffff if kind=='A' else 0xff}")
        a(f"buffer_store_dwordx2 v[{T+2}:{T+3}], v{PA+1}, s[36:39], s46 offen sc1")
        if kind!='A':
            a("s_mov_b64 exec, 1")
            a(f"ds_add_u32 v{PA+2}, v{PA+3}")
        a("s_mov_b64 exec, -1")
    def loadq(lq,nh):
        a(f"v_lshlrev_b32 v{T}, 4, v2")
        for h in range(nh):
            a(f"ds_read_b128 v[{Q+h*8}:{Q+h*8+3}], v{T} offset:{lq+h*512}")
            a(f"ds_read_b128 v[{Q+h*8+4}:{Q+h*8+7}], v{T} offset:{lq+h*512+256}")
    for p,(br,kv,n) in enumerate(PH):
        nh=2 if br=='A' else 1
        iss=lambda h,p=p: issue_static(h,p)
        cm(f"---- branch {br}, {'scores = q.K (bf16-rounded, kept in LDS) and running max' if kv=='K' else 'p = exp2(c*s - c*max), o += p.V'}")
        a(f"v_lshlrev_b32 v{VSC}, 2, v0")
        a(f"v_add_u32 v{VSC}, s63, v{VSC}")
        done=0; tail=0
        if kv=='K':
            loadq(LQA if br=='A' else LQB,nh)
            a(f"v_mov_b32 v{VM}, 0xff800000")
            a("s_waitcnt lgkmcnt(0)")
        else:
            a(f"ds_read_b32 v{PKR}, v{VSC} offset:{NV*256 if p==1 else 0}")
            xrow(VM,"v_max_f32")
            a(f"v_cvt_pk_bf16_f32 v{VM}, v{VM}, v{VM}")
            a(f"v_and_b32 v{VM}, 0xffff0000, v{VM}")
            a(f"v_mul_f32 v{VMC}, s62, v{VM}")
            a(f"v_mov_b32 v{VL}, 0")
            for i in range(8): a(f"v_mov_b32 v{ACC+i}, 0")
            if p==1: pubvec()
            pubaddr(br)
            if p==3: tail=8
        def group(jl0,iss):
            for j in range(4):
                if kv=='K': kunit(j,jl0+j,nh,iss)
                else: vunit(j,jl0+j,iss)
        if p==1 and NV:
            for k in range(NV):
                vunit(k%4,None,iss,0,k)
                vunit(None,None,None,1,NV+k+1,side=k)
            done=2*NV
            a(f"v_add_u32 v{VSC}, {done*256}, v{VSC}")
        if done==0 and len(vq)!=dl:
            group(0,iss); done=4
            a(f"v_add_u32 v{VSC}, 1024, v{VSC}")
        assert (n-done-tail)%4==0
        a(f"s_mov_b32 s60, {(n-done-tail)//4}")
        q0=loop_begin(f"L_ph{p}")
        group(0,iss)
        assert vq==q0,(vq,q0)
        a(f"v_add_u32 v{VSC}, 1024, v{VSC}")
        a("s_sub_u32 s60, s60, 1")
        a("s_cmp_lg_u32 s60, 0")
        a(f"s_cbranch_scc1 L_ph{p}")
        if p<3: do_boost(lambda h: issue_static(h,p+1))
        if p==1:
            lds_wait("L_go",T,LGO,1,2)
            mergeA()
        if tail:
            def iss1(h):
                if h==16+TQ: ticket_req()
                iss(h)
            for h in range(dl,dlp): iss(h)
            cd[0]=dlp
            group(0,iss1)
            group(4,lambda h: issue_static(h,None) if h<16 else issue_pool(h))
            st(5)
            cm("---- dynamic pool: 16-key blocks of branch B handed out by ticket, online softmax")
            a(f"s_cmp_eq_u32 s88, {INV}")
            a("s_cbranch_scc1 L_pool_end")
            def block(sfx):
                for j in range(2):
                    for i in range(4):
                        arrive(4*j+i,issue_pool); dots1(RING+j*16,i,1,D+2*j)
                reduce(1,D,T,4)
                a(f"v_cvt_pk_bf16_f32 v{T+4}, v{T}, v{T+1}")
                a(f"v_cvt_pk_bf16_f32 v{T+5}, v{T+2}, v{T+3}")
                a(f"v_lshlrev_b32 v{T}, 16, v{T+4}"); a(f"v_and_b32 v{T+1}, 0xffff0000, v{T+4}")
                a(f"v_lshlrev_b32 v{T+2}, 16, v{T+5}"); a(f"v_and_b32 v{T+3}, 0xffff0000, v{T+5}")
                a(f"v_max3_f32 v{T+4}, v{T}, v{T+1}, v{T+2}")
                a(f"v_max_f32 v{T+4}, v{T+4}, v{T+3}")
                a(f"v_cmp_gt_f32 vcc, v{T+4}, v{VM}")
                a("s_cmp_eq_u64 vcc, 0")
                a(f"s_cbranch_scc1 L_norescale{sfx}")
                a(f"v_max_f32 v{VM}, v{VM}, v{T+4}")
                xrow(VM,"v_max_f32")
                a(f"v_mul_f32 v{T+4}, s62, v{VM}")
                a(f"v_sub_f32 v{T+5}, v{VMC}, v{T+4}")
                a(f"v_exp_f32 v{T+5}, v{T+5}")
                a(f"v_mov_b32 v{VMC}, v{T+4}")
                a(f"v_mul_f32 v{VL}, v{VL}, v{T+5}")
                for i in range(8): a(f"v_mul_f32 v{ACC+i}, v{ACC+i}, v{T+5}")
                a.label(f"L_norescale{sfx}")
                pcalc(T,AR)
                pvunit(2,issue_pool)
                pcalc(T+2,AR)
                pvunit(3,issue_pool)
            q0=loop_begin("L_pool")
            block("")
            assert vq==q0,(vq,q0)
            a(f"s_cmp_lg_u32 s88, {INV}")
            a("s_cbranch_scc1 L_pool")
            a.label("L_pool_end")
            publish('B')
        if p<3 and not (est and p!=1): st(2+p)
    write_stamps(False)
    a.label("L_done")
    a("s_endpgm")
    if report is not None:
        import rep; rep.emit(a,report,WS_USED,W,LW)
    a.raw('.section .rodata,"a"')
    for nm,nv in ((NAME,256+16*NV),)+((("report_kernel",16),) if report is not None else ()):
        a.raw(".p2align 6"); a.raw(f".amdhsa_kernel {nm}")
        a.raw(f"  .amdhsa_next_free_vgpr {nv}"); a.raw("  .amdhsa_next_free_sgpr 98"); a.raw(f"  .amdhsa_accum_offset {min(nv,256)}")
        a.raw("  .amdhsa_float_denorm_mode_32 3")
        a.raw("  .amdhsa_group_segment_fixed_size 0"); a.raw("  .amdhsa_kernarg_size 104"); a.raw("  .amdhsa_user_sgpr_count 2")
        a.raw("  .amdhsa_user_sgpr_kernarg_segment_ptr 1"); a.raw("  .amdhsa_system_sgpr_workgroup_id_x 1"); a.raw(".end_amdhsa_kernel")
    return a.text()

def make(cfgs, listfile="list.txt"):
    import build
    lines=[]
    for c in cfgs:
        lab="g14_"+"_".join(f"{k}{str(v).replace(' ','').replace(',','.').strip('()[]')}" for k,v in c.items() if k!='stamp')
        fn="k_"+lab+".s"
        open(fn,"w").write(gen(**c))
        co=build.build(fn)
        lines.append(f"{lab} {co} {256*W if c.get('stamp') else 0} {NAME}:256:{(W+1)*64}:{c.get('lds',72960)}")
    open(listfile,"w").write("\n".join(lines)+"\n")
if __name__=="__main__":
    import json
    cfg=json.loads(sys.argv[2]) if len(sys.argv)>2 else {}
    open(sys.argv[1],"w").write(gen(**cfg))
```

```python
import struct, math, sys
from asmlib import Asm
NAME="concat_heads__gqa_block_cached__mha_block_cached__decode_kernel"
HDR=open('concat_heads__gqa_block_cached__mha_block_cached__decode.s.ref').read().split('; Override')[0]
def f2u(x): return struct.unpack('<I',struct.pack('<f',x))[0]
QP=0x10000
TK=0x50000
RDY=0x58000
IN1H=0x60000
IN1D=0x80000
YO=0x180000
WS_USED=0x200000
LQA=0; LQB=1024; LCNT=1536; LGO=1540; LMRG=1544; LDMP=2048; LSC=2048+2*2560
DPPF="row_mask:0xf bank_mask:0xf"
INV=0x7f000000
W=2; LW=1

def gen(stamp=False, lds=72960, dl=10, NV=12, PK=128, blk=32, tq=3, gsleep=24, psl=1, spin=1<<20, mix=True, report=None,
        thr=2, boost=0, sep=False, clr=2, cfl='sc1', wsoff=0, bar0=28, est=False, smodel=False, dlp=12, pm=20, shh=0, align=0, pad=0, ax=True):
    SPIN=spin
    a=Asm()
    cm=lambda t: a.raw("    ; "+t)
    a.raw(HDR.rstrip())
    if report is None: a.raw(f"; @launch grid=(256,1,1) block=({(W+1)*64},1,1) lds={lds}")
    else:
        a.raw(f"; @launch kernel={NAME} grid=(256,1,1) block=({(W+1)*64},1,1) lds={lds}")
        a.raw("; @launch kernel=report_kernel grid=(1,1,1) block=(64,1,1) lds=1024")
    a.raw('.amdgcn_target "amdgcn-amd-amdhsa--gfx950"')
    a.raw(".text"); a.raw(f".globl {NAME}"); a.raw(".p2align 8"); a.raw(f".type {NAME},@function"); a.raw(f"{NAME}:")
    def st(k):
        if stamp:
            a("s_memrealtime s[68:69]"); a("s_waitcnt lgkmcnt(0)"); a(f"s_mov_b32 s{72+k}, s68")
    for t in """Decode attention for both branches in one launch, HBM-bound (805 MB of K/V read once, nt loads).
    256 workgroups x 3 waves, one per CU.  Waves 1,2 stream; wave 0 is a helper.
    Streaming waves: A_k, A_v, B_k, B_v (static shares), then a dynamic pool of 16-key blocks of B (atomic tickets)
      K pass : 4 rows x 256 B per load, v_dot2 + DPP row reduction, scores rounded to bf16 (as the reference does), kept in LDS
      V pass : p = exp2(c*s - c*max) with the true max of the pass, o += p.V by MFMA with a diagonal A operand
      about 10 loads in flight per wave: enough to saturate HBM without oversubscribing the fabric
    Helper: q = x.wq (4 k-slices, MFMA) -> nonce-tagged granules in d_ws -> gathered per workgroup;
      at the end combines the (m, l, o) records of a head for 32 rows, multiplies with wo, and 28 helpers per branch
      add the 128 partial rows.  Records use sentinel-filled inboxes, cleared in this launch and announced via RDY.""".split("\n"):
        cm(t.strip())
    a(f"""
    s_cmp_ge_u32 s2, 256
    s_cbranch_scc1 L_done
    s_load_dwordx16 s[4:19], s[0:1], 0
    s_load_dwordx8 s[20:27], s[0:1], 64
    s_load_dwordx2 s[28:29], s[0:1], 96
    v_lshrrev_b32 v1, 6, v0
    v_and_b32 v0, 63, v0
    v_readfirstlane_b32 s30, v1
    v_and_b32 v2, 15, v0
    v_lshrrev_b32 v3, 4, v0
    s_mov_b32 s38, {WS_USED}
    s_mov_b32 s39, 0x20000
    s_lshr_b32 s48, s2, 4
    s_lshl_b32 s48, s48, 3
    s_and_b32 s49, s2, 7
    s_or_b32 s48, s48, s49
    s_bfe_u32 s55, s2, 0x10003
    s_lshr_b32 s96, s2, 4
    s_lshr_b32 s97, s2, 5
    """)
    if ax: a("s_xor_b32 s97, s97, s49")
    a("s_cmp_eq_u32 s30, 0"); a("s_cbranch_scc0 L_stream")
    def selectors():
        a("""
        v_and_b32 v4, 1, v0
        v_cmp_eq_u32 vcc, 1, v4
        v_mov_b32 v5, 0x0c0c0100
        v_mov_b32 v6, 0x01000c0c
        v_cndmask_b32 v5, v5, v6, vcc
        v_mov_b32 v6, 0x0c0c0302
        v_mov_b32 v7, 0x03020c0c
        v_cndmask_b32 v6, v6, v7, vcc
        v_bfe_u32 v4, v0, 1, 2
        v_mov_b32 v7, 0x0c0c0c0c
        """)
        for v in range(4):
            a(f"v_cmp_eq_u32 vcc, {v}, v4")
            a(f"v_cndmask_b32 v{8+v}, v7, v5, vcc")
            a(f"v_cndmask_b32 v{12+v}, v7, v6, vcc")
    SEL=[[8,9,10,11],[12,13,14,15]]
    def after_kernarg():
        a("s_waitcnt lgkmcnt(0)")
        if stamp:
            for k in range(8): a(f"s_mov_b32 s{72+k}, 0")
        st(0)
        if wsoff: a(f"s_add_u32 s36, s28, {wsoff}"); a("s_addc_u32 s37, s29, 0")
        else: a("s_mov_b32 s36, s28"); a("s_mov_b32 s37, s29")
    def write_stamps(helper):
        if not stamp: return
        st(7)
        a("s_mov_b32 s36, s28"); a("s_mov_b32 s37, s29")
        a("s_getreg_b32 s66, hwreg(HW_REG_XCC_ID)")
        a("s_mov_b64 exec, 1")
        a("v_mov_b32 v4, 0")
        if not helper:
            a("v_mov_b32 v20, s72"); a("v_mov_b32 v21, s79"); a("v_mov_b32 v22, s66"); a("s_getreg_b32 s67, hwreg(HW_REG_HW_ID)"); a("v_mov_b32 v23, s67")
            a(f"s_lshl_b32 s64, s2, {LW}"); a("s_add_u32 s64, s64, s31"); a("s_lshl_b32 s64, s64, 4")
            a("buffer_store_dwordx4 v[20:23], v4, s[36:39], s64 offen")
        for k in range(8): a(f"v_mov_b32 v{40+k}, s{72+k}")
        a(f"s_mul_i32 s64, s2, {W+1}"); a("s_add_u32 s64, s64, s30"); a("s_lshl_b32 s64, s64, 5"); a("s_add_u32 s64, s64, 0x4000")
        a("buffer_store_dwordx4 v[40:43], v4, s[36:39], s64 offen")
        a("buffer_store_dwordx4 v[44:47], v4, s[36:39], s64 offen offset:16")
    def spin_tail(lbl,sleep):
        if sleep: a(f"s_sleep {sleep}")
        a("s_sub_u32 s65, s65, 1"); a("s_cmp_lg_u32 s65, 0")
        a(f"s_cbranch_scc1 {lbl}")
    def lds_wait(lbl,tmp,addr,val,sleep):
        a(f"v_mov_b32 v{tmp}, {addr}")
        a(f"s_mov_b32 s65, {SPIN}")
        a.label(lbl)
        a(f"ds_read_b32 v{tmp+1}, v{tmp}")
        a("s_waitcnt lgkmcnt(0)")
        a(f"v_readfirstlane_b32 s64, v{tmp+1}")
        a(f"s_cmp_ge_u32 s64, {val}")
        a(f"s_cbranch_scc1 {lbl}d")
        spin_tail(lbl,sleep)
        a.label(lbl+"d")

    WR=64; XR=16; HA=32; HC=40; T=56; DT=192; HD=16; O=224
    cm("---------------- helper wave: s48 = index 0..127 inside the branch, s55 = branch (0 = A, 1 = B)")
    a(f"""
    s_setprio 3
    s_memrealtime s[92:93]
    s_mov_b32 s42, 896
    s_mov_b32 s43, 0x20000
    s_mov_b32 s47, 0x20000
    s_mov_b32 s82, 256
    s_mov_b32 s83, 0x20000
    s_and_b32 s60, s48, 31
    s_lshr_b32 s61, s48, 5
    s_mov_b32 s46, {448*8192}
    v_mul_u32_u24 v{T}, 56, v3
    s_mul_i32 s62, s61, 224
    s_mov_b32 s63, {28*8192}
    v_mul_lo_u32 v{T+1}, s63, v3
    v_lshl_add_u32 v{T+1}, v2, 4, v{T+1}
    s_mul_i32 s63, s61, {112*8192}
    s_lshl_b32 s64, s60, 8
    s_add_u32 s63, s63, s64
    s_and_b32 s56, s2, 0xf8
    """)
    after_kernarg()
    cm("workgroup 0 publishes this launch's nonce (tags every hand-off through d_ws) in the zeroed d_debug")
    a(f"""
    s_mov_b32 s80, s26
    s_mov_b32 s81, s27
    s_cmp_lg_u32 s2, 0
    s_cbranch_scc1 L_nononce
    s_or_b32 s92, s92, 1
    v_mov_b32 v{T+4}, s92
    v_mov_b32 v{T+5}, s93
    v_lshlrev_b32 v{T+6}, 3, v0
    s_mov_b32 exec_hi, 0
    buffer_store_dwordx2 v[{T+4}:{T+5}], v{T+6}, s[80:83], 0 offen sc1
    s_mov_b64 exec, -1
    """)
    a.label("L_nononce")
    cm("partial q: 112 rows x 128 columns of wq")
    a("""
    s_cmp_eq_u32 s55, 0
    s_cselect_b32 s40, s4, s14
    s_cselect_b32 s41, s5, s15
    s_cselect_b32 s44, s10, s20
    s_cselect_b32 s45, s11, s21
    """)
    for i in range(28):
        a(f"buffer_load_dwordx4 v[{WR+4*i}:{WR+4*i+3}], v{T+1}, s[44:47], s63 offen nt")
        if i<27: a("s_add_u32 s63, s63, 8192")
        if i==0:
            for k in range(7):
                a(f"buffer_load_dwordx2 v[{XR+2*k}:{XR+2*k+1}], v{T}, s[40:43], s62 offen offset:{8*k}")
        if i+1==bar0: a("s_barrier")
    a(f"buffer_load_dwordx2 v[{T+4}:{T+5}], off, s[80:83], s56 sc1")
    selectors()
    a(f"""
    v_mov_b32 v{HC+4}, {LCNT}
    v_mov_b32 v{HC+6}, 0
    v_mov_b32 v{HC+7}, 0
    ds_write_b64 v{HC+4}, v[{HC+6}:{HC+7}]
    ds_write_b32 v{HC+4}, v{HC+6} offset:8
    v_lshlrev_b32 v{T+2}, 4, v0
    v_and_b32 v{T+3}, 1, v3
    v_lshlrev_b32 v{T+3}, 4, v{T+3}
    v_lshl_add_u32 v{T+3}, v2, 5, v{T+3}
    v_lshrrev_b32 v{T+6}, 5, v0
    v_lshlrev_b32 v{T+6}, 4, v{T+6}
    v_lshl_add_u32 v{T+6}, v{T+3}, 1, v{T+6}
    s_lshl_b32 s63, s61, 15
    s_lshl_b32 s64, s60, 10
    s_add_u32 s63, s63, s64
    s_lshl_b32 s64, s55, 17
    s_add_u32 s63, s63, s64
    s_add_u32 s63, s63, {QP}
    """)
    for i in range(28):
        a(f"s_waitcnt vmcnt({28-i})")
        ar=HA+(i%2)*4
        for v in range(4):
            a(f"v_perm_b32 v{ar+v}, v{XR+i//2}, v{XR+i//2}, v{SEL[i%2][v]}")
        a(f"v_mfma_f32_16x16x32_bf16 v[{HC}:{HC+3}], v[{ar}:{ar+3}], v[{WR+4*i}:{WR+4*i+3}], {'0' if i==0 else 'v[%d:%d]'%(HC,HC+3)}")
    st(1)
    a(f"s_mov_b32 s65, {SPIN}")
    a.label("L_np")
    a("s_waitcnt vmcnt(0)")
    a(f"v_readfirstlane_b32 s92, v{T+4}"); a(f"v_readfirstlane_b32 s93, v{T+5}")
    a("s_cmp_lg_u32 s92, 0")
    a("s_cbranch_scc1 L_nd")
    a(f"buffer_load_dwordx2 v[{T+4}:{T+5}], off, s[80:83], s56 sc1")
    spin_tail("L_np",0)
    a.label("L_nd")
    a("s_mov_b32 exec_lo, 0")
    a(f"v_mov_b32 v{HC}, v{HC+2}"); a(f"v_mov_b32 v{HC+1}, v{HC+3}")
    a("s_mov_b32 exec_lo, -1")
    a(f"v_mov_b32 v{HC+2}, v{T+4}"); a(f"v_mov_b32 v{HC+3}, v{T+5}")
    a(f"buffer_store_dwordx4 v[{HC}:{HC+3}], v{T+6}, s[36:39], s63 offen sc1")
    st(2)
    def gather(lbl,nk,base,ldsoff,sleep):
        a(f"s_mov_b32 s65, {SPIN}")
        a.label(lbl)
        base()
        for ks in range(4):
            for k in range(nk):
                r=DT+(ks*nk+k)*4
                a(f"buffer_load_dwordx4 v[{r}:{r+3}], v{T+2}, s[36:39], s62 offen offset:{k*1024} sc1")
            if ks<3: a("s_add_u32 s62, s62, 0x8000")
        a("s_mov_b64 s[66:67], 0")
        for j in range(4*nk):
            a(f"s_waitcnt vmcnt({4*nk-1-j})")
            a(f"v_cmp_ne_u64 vcc, s[92:93], v[{DT+j*4+2}:{DT+j*4+3}]")
            a("s_or_b64 s[66:67], s[66:67], vcc")
        a("s_cmp_eq_u64 s[66:67], 0")
        a(f"s_cbranch_scc1 {lbl}d")
        spin_tail(lbl,sleep)
        a.label(lbl+"d")
        def pr(j): return f"v[{DT+j*4}:{DT+j*4+1}]"
        for k in range(nk):
            a(f"v_pk_add_f32 {pr(k)}, {pr(k)}, {pr(nk+k)}")
            a(f"v_pk_add_f32 {pr(2*nk+k)}, {pr(2*nk+k)}, {pr(3*nk+k)}")
        for k in range(nk): a(f"v_pk_add_f32 {pr(k)}, {pr(k)}, {pr(2*nk+k)}")
        a(f"v_lshlrev_b32 v{T}, 2, v0")
        for k in range(nk): a(f"v_cvt_pk_bf16_f32 v{DT+k*4+2}, v{DT+k*4}, v{DT+k*4+1}")
        for k in range(nk): a(f"ds_write_b32 v{T}, v{DT+k*4+2} offset:{ldsoff+256*k}")
        a("s_waitcnt lgkmcnt(0)")
    def baseA(): a("s_lshl_b32 s62, s97, 12"); a(f"s_add_u32 s62, s62, {QP}")
    def baseB(): a("s_lshl_b32 s62, s96, 11"); a(f"s_add_u32 s62, s62, {QP+0x20000}")
    cm("gather the two A q heads of this workgroup (back off first: the other producers finish at about the same time)")
    if gsleep: a(f"s_sleep {gsleep}")
    gather("L_ga",4,baseA,LQA,8)
    if est: st(5)
    a("s_barrier")
    a("s_setprio 0")
    st(4)
    cm("fill the inboxes this wave will poll with the sentinel, zero a ticket counter, then publish 'ready'")
    for k in range(4): a(f"v_mov_b32 v{HC+k}, -1")
    a("s_lshl_b32 s60, s55, 7"); a("s_add_u32 s60, s60, s48")
    a("s_lshl_b32 s52, s60, 12"); a(f"s_add_u32 s52, s52, {IN1D}")
    if shh==0: a("s_mov_b32 s53, s60"); a("s_mov_b32 s57, 0")
    elif shh==3: a("s_and_b32 s53, s60, 0xf8"); a("s_and_b32 s57, s60, 7")
    else:
        a("s_and_b32 s57, s60, 7"); a(f"s_cmp_eq_u32 s55, {0 if shh==1 else 1}"); a("s_cselect_b32 s57, s57, 0"); a("s_sub_u32 s53, s60, s57")
    a("s_lshl_b32 s53, s53, 8"); a(f"s_add_u32 s53, s53, {IN1H}")
    a("s_lshl_b32 s54, s60, 11"); a(f"s_add_u32 s54, s54, {YO}")
    for k in range(4):
        a(f"buffer_store_dwordx4 v[{HC}:{HC+3}], v{T+2}, s[36:39], s52 offen offset:{k*1024} sc1")
    a(f"buffer_store_dwordx4 v[{HC}:{HC+3}], v{T+2}, s[36:39], s54 offen sc1")
    a("s_mov_b32 exec_hi, 0xffff")
    a(f"buffer_store_dwordx4 v[{HC}:{HC+3}], v{T+2}, s[36:39], s54 offen offset:1024 sc1")
    a("s_mov_b64 exec, 0xffff")
    a("s_cmp_eq_u32 s57, 0"); a(f"s_cselect_b32 s63, s53, {INV}")
    a(f"buffer_store_dwordx4 v[{HC}:{HC+3}], v{T+2}, s[36:39], s63 offen sc1")
    a("s_lshl_b32 s63, s60, 8"); a(f"s_add_u32 s63, s63, {TK}")
    a("s_cmp_lt_u32 s60, 16"); a(f"s_cselect_b32 s63, s63, {INV}")
    a("s_lshl_b32 s64, s2, 3"); a(f"s_add_u32 s64, s64, {RDY}")
    a("s_mov_b64 exec, 1")
    a(f"v_mov_b32 v{T}, 0")
    a(f"buffer_store_dword v{T}, off, s[36:39], s63 sc1")
    a("s_waitcnt vmcnt(0)")
    a(f"buffer_store_dwordx2 v[{T+4}:{T+5}], off, s[36:39], s64 sc1")
    a("s_mov_b64 exec, -1")
    cm("32 rows of wo stay in registers until the end")
    a(f"""
    s_cmp_eq_u32 s55, 1
    s_cselect_b32 s44, s22, s12
    s_cselect_b32 s45, s23, s13
    s_mov_b32 s46, {4096*896}
    s_mul_i32 s63, s48, {32*896}
    v_bfrev_b32 v{T+7}, v3
    v_lshrrev_b32 v{T+7}, 30, v{T+7}
    v_mul_u32_u24 v{T}, 896, v{T+7}
    v_lshl_add_u32 v{T}, v2, 4, v{T}
    """)
    a("s_mov_b32 s66, 0x00ff00ff"); a("s_mov_b32 s67, 0x00ff00ff")
    for i in range(8):
        for bk in range(4):
            r=WR+(i*4+bk)*4
            if bk==3: a("s_mov_b64 exec, s[66:67]")
            a(f"buffer_load_dwordx4 v[{r}:{r+3}], v{T}, s[44:47], s63 offen offset:{bk*256} nt")
        a("s_mov_b64 exec, -1")
        if i<7: a(f"s_add_u32 s63, s63, {4*896}")
    a("s_waitcnt vmcnt(0)")
    cm("every workgroup ready?")
    a(f"s_mov_b32 s64, {RDY}")
    a(f"s_mov_b32 s65, {SPIN}")
    a.label("L_rd")
    a(f"buffer_load_dwordx4 v[{DT}:{DT+3}], v{T+2}, s[36:39], s64 offen sc1")
    a(f"buffer_load_dwordx4 v[{DT+4}:{DT+7}], v{T+2}, s[36:39], s64 offen offset:1024 sc1")
    a("s_mov_b64 s[66:67], 0")
    a("s_waitcnt vmcnt(0)")
    for j in range(4):
        a(f"v_cmp_ne_u64 vcc, s[92:93], v[{DT+j*2}:{DT+j*2+1}]")
        a("s_or_b64 s[66:67], s[66:67], vcc")
    a("s_cmp_eq_u64 s[66:67], 0")
    a("s_cbranch_scc1 L_rdd")
    spin_tail("L_rd",64)
    a.label("L_rdd")
    cm("q of this workgroup's B head")
    gather("L_gb",2,baseB,LQB,64)
    a(f"v_mov_b32 v{T}, {LGO}"); a(f"v_mov_b32 v{T+1}, 1")
    a(f"ds_write_b32 v{T}, v{T+1}")
    st(3)
    def anysent(rs,tmp):
        h=len(rs)//2
        chains=[(tmp,rs[:h]),(tmp+3,rs[h:])]
        for t,c in chains: a(f"v_max_u32 v{t}, v{c[0]}, v{c[1]}")
        k=2
        while k<h:
            for t,c in chains:
                if k+1<h: a(f"v_max3_u32 v{t}, v{t}, v{c[k]}, v{c[k+1]}")
                else: a(f"v_max_u32 v{t}, v{t}, v{c[k]}")
            k+=2
        a(f"v_max_u32 v{tmp}, v{tmp}, v{tmp+3}")
        a(f"v_cmp_eq_u32 vcc, -1, v{tmp}")
        a("s_cmp_eq_u64 vcc, 0")
    def poll(lbl,loads,rs):
        loads()
        a("s_waitcnt vmcnt(0)")
        a(f"s_mov_b32 s65, {SPIN}")
        a.label(lbl)
        anysent(rs,T+2)
        a(f"s_cbranch_scc1 {lbl}d")
        a("s_mov_b64 exec, vcc")
        loads()
        a("s_mov_b64 exec, -1")
        a("s_waitcnt vmcnt(48)")
        spin_tail(lbl,psl)
        a.label(lbl+"d")
    a(f"v_lshlrev_b32 v1, 1, v{T+7}"); a(f"v_and_b32 v{T+5}, 3, v0"); a(f"v_lshl_add_u32 v1, v{T+5}, 3, v1")
    a(f"v_lshlrev_b32 v{T+7}, 4, v0")
    a(f"v_lshrrev_b32 v{T+4}, 2, v0"); a(f"v_lshlrev_b32 v{T+4}, 11, v{T+4}")
    a(f"v_lshl_add_u32 v{T+4}, v{T+5}, 4, v{T+4}")
    a(f"v_lshrrev_b32 v{T+6}, 3, v0"); a(f"v_lshlrev_b32 v{T+6}, 5, v{T+6}")
    a("s_lshl_b32 s84, s48, 6"); a("s_lshl_b32 s60, s55, 18"); a("s_add_u32 s84, s84, s60"); a(f"s_add_u32 s84, s84, {YO}")
    for k in range(1,8): a(f"s_add_u32 s{84+k}, s{83+k}, 0x8000")
    a("""
    s_mov_b32 s40, s24
    s_mov_b32 s41, s25
    s_mov_b32 s42, 1792
    s_lshl_b32 s62, s48, 5
    s_mul_i32 s60, s55, 896
    s_add_u32 s62, s62, s60
    """)
    cm("wait until this workgroup's streaming waves are done, then combine the softmax records for 32 output rows")
    lds_wait("L_ow",T,LCNT,thr,2)
    OW=O; OO=O+8; OL=O+12; OX=O+13; OB=O+16
    def allred(reg,op):
        a(f"{op}_dpp v{reg}, v{reg}, v{reg} row_ror:8 {DPPF}")
        for sw in ("v_permlane16_swap_b32","v_permlane32_swap_b32"):
            a(f"v_mov_b32 v{OX}, v{reg}"); a(f"{sw} v{reg}, v{OX}"); a(f"{op} v{reg}, v{reg}, v{OX}")
    def scatter4(r):
        a(f"v_permlane32_swap_b32 v{r}, v{r+1}"); a(f"v_permlane32_swap_b32 v{r+2}, v{r+3}")
        a(f"v_add_f32 v{r}, v{r}, v{r+1}"); a(f"v_add_f32 v{r+2}, v{r+2}, v{r+3}")
        a(f"v_permlane16_swap_b32 v{r}, v{r+2}")
        a(f"v_add_f32 v{r}, v{r}, v{r+2}")
    def level1(J,sfx):
        def l1loads():
            for k in range(J//2):
                a(f"buffer_load_dwordx4 v[{HD+4*k}:{HD+4*k+3}], v{T+6}, s[36:39], s53 offen offset:{16*k} sc1")
            for j in range(J):
                a(f"buffer_load_dwordx4 v[{DT+4*j}:{DT+4*j+3}], v{T+7}, s[36:39], {'s52' if j<4 else 's57'} offen offset:{(j%4)*1024} sc1")
        poll("L_hp"+sfx,l1loads,[HD+k for k in range(J*2)]+[DT+k for k in range(J*4)])
        if not est: st(5)
        a(f"v_max_f32 v{T+2}, v{HD}, v{HD+2}")
        for k in range(2,J,2): a(f"v_max3_f32 v{T+2}, v{T+2}, v{HD+2*k}, v{HD+2*k+2}")
        allred(T+2,"v_max_f32")
        for k in range(J): a(f"v_sub_f32 v{OW+k}, v{HD+2*k}, v{T+2}")
        for k in range(J): a(f"v_exp_f32 v{OW+k}, v{OW+k}")
        a(f"v_mul_f32 v{OL}, v{OW}, v{HD+1}")
        for e in range(4): a(f"v_mul_f32 v{OO+e}, v{OW}, v{DT+e}")
        for k in range(1,J):
            a(f"v_fmac_f32 v{OL}, v{OW+k}, v{HD+2*k+1}")
            for e in range(4): a(f"v_fmac_f32 v{OO+e}, v{OW+k}, v{DT+k*4+e}")
    level1(4,"")
    a(f"v_add_f32_dpp v{OL}, v{OL}, v{OL} row_ror:8 {DPPF}")
    a(f"v_permlane32_swap_b32 v{OO}, v{OO+1}"); a(f"v_permlane32_swap_b32 v{OO+2}, v{OO+3}")
    a(f"v_mov_b32 v{OX}, v{OL}")
    a(f"v_add_f32 v{OO}, v{OO}, v{OO+1}"); a(f"v_add_f32 v{OO+2}, v{OO+2}, v{OO+3}")
    a(f"v_permlane16_swap_b32 v{OL}, v{OX}")
    a(f"v_add_f32 v{OL}, v{OL}, v{OX}")
    a(f"v_permlane16_swap_b32 v{OO}, v{OO+2}")
    a(f"v_mov_b32 v{OX}, v{OL}")
    a(f"v_add_f32 v{OO}, v{OO}, v{OO+2}")
    a(f"v_permlane32_swap_b32 v{OL}, v{OX}")
    a(f"v_add_f32 v{OL}, v{OL}, v{OX}")
    a(f"v_add_f32_dpp v{OO}, v{OO}, v{OO} row_ror:8 {DPPF}")
    a(f"v_rcp_f32 v{OL}, v{OL}")
    a(f"v_mul_f32 v{OO}, v{OO}, v{OL}")
    a(f"v_cvt_pk_bf16_f32 v{OO}, v{OO}, v{OO}")
    for i in range(8): a(f"v_mov_b32_dpp v{OB+i}, v{OO} row_newbcast:{i} {DPPF}")
    def prm(i,v): a(f"v_perm_b32 v{HA+(i%2)*4+v}, v{OB+i}, v{OB+i}, v{SEL[0][v]}")
    for v in range(4): prm(0,v)
    for i in range(8):
        ar=HA+(i%2)*4
        for bk in range(4):
            r=WR+(i*4+bk)*4; c=HC+bk*4
            a(f"v_mfma_f32_16x16x32_bf16 v[{c}:{c+3}], v[{ar}:{ar+3}], v[{r}:{r+3}], {'0' if i==0 else 'v[%d:%d]'%(c,c+3)}")
            if i<7 and bk<2: prm(i+1,2*bk); prm(i+1,2*bk+1)
    a("s_mov_b32 exec_hi, 0")
    for bk in range(4):
        for k in range(4): a(f"v_min_u32 v{HC+bk*4+k}, -2, v{HC+bk*4+k}")
        if bk==3: a("s_mov_b32 exec_lo, 0x00ff00ff")
        a(f"buffer_store_dwordx4 v[{HC+bk*4}:{HC+bk*4+3}], v{T+3}, s[36:39], s54 offen offset:{bk*512} sc1")
    a("s_mov_b64 exec, -1")
    st(6)
    cm("28 helpers per branch sum the 128 partial rows for 16 output columns each")
    a("s_cmp_ge_u32 s48, 28")
    a("s_cbranch_scc1 L_he")
    def l2loads():
        for k in range(8):
            a(f"buffer_load_dwordx4 v[{DT+4*k}:{DT+4*k+3}], v{T+4}, s[36:39], s{84+k} offen sc1")
    poll("L_yp",l2loads,[DT+k for k in range(32)])
    for e in range(0,16,2): a(f"v_pk_add_f32 v[{O+e}:{O+e+1}], v[{DT+e}:{DT+e+1}], v[{DT+16+e}:{DT+17+e}]")
    for half in (8,4):
        for e in range(0,half,2): a(f"v_pk_add_f32 v[{O+e}:{O+e+1}], v[{O+e}:{O+e+1}], v[{O+half+e}:{O+half+e+1}]")
    scatter4(O)
    for m in ("row_ror:8","row_ror:4"): a(f"v_add_f32_dpp v{O}, v{O}, v{O} {m} {DPPF}")
    a(f"v_cvt_pk_bf16_f32 v{O}, v{O}, v{O}")
    a("s_mov_b32 exec_lo, 0x000f000f"); a("s_mov_b32 exec_hi, 0x000f000f")
    a(f"buffer_store_short v{O}, v1, s[40:43], s62 offen")
    a("s_mov_b64 exec, -1")
    a.label("L_he")
    write_stamps(True)
    a("s_endpgm")

    VOFF=1; VSC=4; VM=5; VL=6; VMC=7
    Q=16; PA=24; ACC=32; AR=40; D=48; T=52; PKR=60; VOFF2=62; VTK=63
    RING=64
    STEP=4096*W
    NA=(1<<19)//STEP; NB=((1<<20)-PK*1024)//STEP
    NT=16*PK//8
    if dlp is None: dlp=dl
    TQ=min(tq,16-dlp)
    cd=[dl]
    vq=[]
    BB=(blk*1024).bit_length()-1
    assert PK%blk==0 and NB%4==0 and NV%4==0 and (2*PK)%(8<<(pm&7))==0
    for k in range(pad): a.raw("    s_nop 0")
    a.label("L_stream")
    cm("---------------- streaming waves")
    a(f"""
    s_sub_u32 s31, s30, 1
    v_lshlrev_b32 v{VOFF}, 9, v3
    v_lshl_add_u32 v{VOFF}, v2, 4, v{VOFF}
    s_mov_b32 s34, 0x200000
    s_mov_b32 s35, 0x20000
    s_mov_b32 s42, 0x200000
    s_mov_b32 s43, 0x20000
    s_lshl_b32 s61, s31, 12
    s_lshl_b32 s49, s55, {BB}
    s_and_b32 s60, s48, 15
    s_lshl_b32 s60, s60, 20
    s_add_u32 s60, s60, s49
    s_lshl_b32 s64, s97, 24
    s_add_u32 s60, s60, s64
    """)
    def adv(r):
        a(f"s_bitset1_b32 {r}, {BB}"); a(f"s_add_u32 {r}, {r}, {STEP}"); a(f"s_bitset0_b32 {r}, {BB}")
    after_kernarg()
    a("s_add_u32 s32, s6, s60"); a("s_addc_u32 s33, s7, 0")
    a("s_add_u32 s40, s8, s60"); a("s_addc_u32 s41, s9, 0")
    if bar0: a("s_barrier")
    if est: st(2)
    OFFS=[0,256,2048,2304]
    PH=[('A','K',NA),('A','V',NA),('B','K',NB),('B','V',NB)]
    ends=[NA,2*NA-NV,2*NA-NV+NB]
    def ld(base,i,srd,soff,voff=VOFF,rf='v'):
        r=base+i*4
        a(f"buffer_load_dwordx4 {rf}[{r}:{r+3}], v{voff}, {srd}, {soff} offen offset:{OFFS[i]} nt")
    def issue_static(h,p):
        h%=16
        ld(RING+(h//4)*16,h%4,"s[32:35]","s52"); vq.append(h)
        if h%4==3:
            adv("s52")
            if p is not None and p<3:
                a("s_add_u32 s53, s53, 1")
                a(f"s_cmp_eq_u32 s53, {ends[p]}")
                b=(40,56,58)[p]
                a(f"s_cselect_b32 s32, s{b}, s32"); a(f"s_cselect_b32 s33, s{b+1}, s33"); a(f"s_cselect_b32 s52, {'s94' if p==0 else 's61'}, s52")
    def ticket_req():
        a("s_mov_b64 exec, 1")
        a(f"v_mov_b32 v{VTK}, 1")
        a(f"buffer_atomic_add v{VTK}, off, s[36:39], s91 sc0 sc1"); vq.append('A')
        a("s_mov_b64 exec, -1")
    def ticket_use():
        assert 'A' not in vq
        a(f"v_readfirstlane_b32 s90, v{VTK}")
        lo=pm&7
        if pm&8:
            a(f"s_lshr_b32 s89, s90, {lo+3}"); a("s_add_u32 s89, s89, s96"); a(f"s_lshr_b32 s88, s90, {lo}"); a("s_add_u32 s88, s88, s89"); a("s_and_b32 s88, s88, 7")
        else: a(f"s_bfe_u32 s88, s90, {lo|(3<<16)}")
        a("s_lshl_b32 s88, s88, 21")
        a(f"s_lshr_b32 s89, s90, {lo+3}"); a(f"s_lshl_b32 s89, s89, {13+lo}"); a("s_add_u32 s88, s88, s89")
        if lo:
            if pm&16: a("s_add_u32 s89, s90, s96"); a(f"s_and_b32 s89, s89, {(1<<lo)-1}")
            else: a(f"s_and_b32 s89, s90, {(1<<lo)-1}")
            a("s_lshl_b32 s89, s89, 13"); a("s_add_u32 s88, s88, s89")
        a(f"s_add_u32 s88, s88, {2*NB*STEP}")
        a(f"s_cmp_lt_u32 s90, {NT}")
        a(f"s_cselect_b32 s88, s88, {INV}")
    def issue_pool(h):
        h%=16
        if h==0: ticket_use()
        if h==TQ: ticket_req()
        k=h//4
        ld(RING+k*16,h%4,"s[80:83]" if k<2 else "s[84:87]","s88",VOFF if k%2==0 else VOFF2); vq.append(h)
    def setup2():
        selectors()
        a(f"""
        s_lshl_b32 s60, s48, 21
        s_add_u32 s60, s60, s49
        s_add_u32 s56, s16, s60
        s_addc_u32 s57, s17, 0
        s_add_u32 s58, s18, s60
        s_addc_u32 s59, s19, 0
        s_lshl_b32 s60, s96, 24
        s_add_u32 s80, s16, s60
        s_addc_u32 s81, s17, 0
        s_mov_b32 s82, 0x1000000
        s_mov_b32 s83, 0x20000
        s_add_u32 s84, s18, s60
        s_addc_u32 s85, s19, 0
        s_mov_b32 s86, 0x1000000
        s_mov_b32 s87, 0x20000
        s_lshl_b32 s91, s96, 8
        s_add_u32 s91, s91, {TK}
        s_mov_b32 s62, {f2u(math.log2(math.e)/16.0)}
        s_lshl_b32 s63, s31, 15
        s_add_u32 s63, s63, {LSC}
        v_add_u32 v{VOFF2}, 0x1000, v{VOFF}
        """)
    cm(f"while q is being computed: first {NV} V units of branch A go to AGPRs, then the K ring starts; {dl} loads in flight")
    n=0
    a("s_mov_b32 s94, s61")
    for k in range(NV):
        for i in range(4):
            if n>=dl: a(f"s_waitcnt vmcnt({dl-1})")
            if est and n==dl: st(4)
            ld(k*16,i,"s[40:43]","s94",rf='a'); n+=1
            if n==dl: setup2()
        adv("s94")
    a("s_mov_b32 s52, s61")
    a(f"s_mov_b32 s53, {dl//4}")
    for h in range(dl):
        if n>=dl: a(f"s_waitcnt vmcnt({dl-1})")
        issue_static(h,None); n+=1
        if n==dl: setup2()
    st(6)
    a("s_barrier")
    st(1)
    def arrive(c,iss):
        k=vq.index(c%16)
        a(f"s_waitcnt vmcnt({len(vq)-1-k})")
        del vq[:k+1]
        if sum(1 for x in vq if isinstance(x,int))<cd[0]: iss(c+cd[0])
    def do_boost(iss):
        for h in range(dl,dl+boost): iss(h)
    def loop_begin(lbl):
        vq[:]=[x for x in vq if x!='S']
        if align: a.flush(); a.raw(f".p2align {align}")
        a.label(lbl)
        return list(vq)
    def dots1(base,i,nh,dbase):
        s_=i//2
        for e4 in range(4):
            e=(i%2)*4+e4
            for h in range(nh):
                d=dbase+s_*nh+h
                a(f"v_dot2_f32_bf16 v{d}, v{base+i*4+e4}, v{Q+h*8+e}, {'0' if e==0 else 'v%d'%d}")
    def reduce(nh,dbase,tb,ns=2):
        for s_ in range(ns):
            if nh==2:
                a(f"v_add_f32_dpp v{tb+s_}, v{dbase+s_*2}, v{dbase+s_*2} row_ror:8 row_mask:0xf bank_mask:0x3")
                a(f"v_add_f32_dpp v{tb+s_}, v{dbase+s_*2+1}, v{dbase+s_*2+1} row_ror:8 row_mask:0xf bank_mask:0xc")
            else:
                a(f"v_add_f32_dpp v{tb+s_}, v{dbase+s_}, v{dbase+s_} row_ror:8 {DPPF}")
        for m in ("row_half_mirror","quad_perm:[1,0,3,2]","quad_perm:[2,3,0,1]"):
            for s_ in range(ns):
                a(f"v_add_f32_dpp v{tb+s_}, v{tb+s_}, v{tb+s_} {m} {DPPF}")
    def kunit(j,jl,nh,iss):
        for i in range(4):
            arrive(4*j+i,iss); dots1(RING+j*16,i,nh,D)
        reduce(nh,D,T)
        a(f"v_max3_f32 v{VM}, v{VM}, v{T}, v{T+1}")
        a(f"v_cvt_pk_bf16_f32 v{T+2}, v{T}, v{T+1}")
        a(f"ds_write_b32 v{VSC}, v{T+2} offset:{jl*256}")
    def pcalc(t0,ar):
        a(f"v_fma_f32 v{t0}, v{t0}, s62, -v{VMC}")
        a(f"v_fma_f32 v{t0+1}, v{t0+1}, s62, -v{VMC}")
        a(f"v_exp_f32 v{t0}, v{t0}")
        a(f"v_exp_f32 v{t0+1}, v{t0+1}")
        a(f"v_add_f32 v{VL}, v{VL}, v{t0}")
        a(f"v_add_f32 v{VL}, v{VL}, v{t0+1}")
        a(f"v_cvt_pk_bf16_f32 v{t0}, v{t0}, v{t0+1}")
        for s_ in range(2):
            for v in range(4):
                a(f"v_perm_b32 v{ar+s_*4+v}, v{t0}, v{t0}, v{SEL[s_][v]}")
    def pvunit(j,iss):
        for i in range(4):
            arrive(4*j+i,iss)
            r=RING+j*16+i*4; c=ACC+(i%2)*4; ar=AR+(i//2)*4
            a(f"v_mfma_f32_16x16x32_bf16 v[{c}:{c+3}], v[{ar}:{ar+3}], v[{r}:{r+3}], v[{c}:{c+3}]")
    def vunit(j,jl,iss,par=None,nxt=None,side=None):
        if par is None: par=j%2
        if nxt is None: nxt=jl+1
        pk=PKR+par
        a("s_waitcnt lgkmcnt(0)")
        a(f"v_lshlrev_b32 v{T}, 16, v{pk}")
        a(f"v_and_b32 v{T+1}, 0xffff0000, v{pk}")
        a(f"ds_read_b32 v{PKR+1-par}, v{VSC} offset:{nxt*256}")
        pcalc(T,AR)
        if side is None: pvunit(j,iss)
        else:
            for i in range(4):
                r=side*16+i*4; c=ACC+(i%2)*4; ar=AR+(i//2)*4
                a(f"v_mfma_f32_16x16x32_bf16 v[{c}:{c+3}], v[{ar}:{ar+3}], a[{r}:{r+3}], v[{c}:{c+3}]")
    def xrow(reg,op):
        a(f"v_mov_b32 v{T+7}, v{reg}")
        a(f"v_permlane16_swap_b32 v{reg}, v{T+7}")
        a(f"{op} v{reg}, v{reg}, v{T+7}")
        a(f"v_mov_b32 v{T+7}, v{reg}")
        a(f"v_permlane32_swap_b32 v{reg}, v{T+7}")
        a(f"{op} v{reg}, v{reg}, v{T+7}")
    def pubvec():
        a(f"v_lshrrev_b32 v{PA}, 5, v0"); a(f"v_lshlrev_b32 v{PA}, 15, v{PA}")
        a(f"v_lshrrev_b32 v{PA+1}, 2, v2"); a(f"v_lshl_add_u32 v{PA}, v{PA+1}, 12, v{PA}")
        a(f"v_and_b32 v{PA+1}, 3, v2"); a(f"v_lshl_add_u32 v{PA}, v{PA+1}, 5, v{PA}")
        a(f"v_and_b32 v{PA+1}, 1, v3"); a(f"v_lshl_add_u32 v{PA}, v{PA+1}, 4, v{PA}")
        a(f"v_lshlrev_b32 v{PA+1}, 8, v0")
        a(f"v_mov_b32 v{PA+2}, {LCNT}"); a(f"v_mov_b32 v{PA+3}, 1")
    def pubaddr(kind):
        if kind=='A':
            a("s_lshl_b32 s64, s97, 4")
            a("s_and_b32 s65, s2, 31")
        else:
            a("s_lshl_b32 s64, s96, 3"); a("s_add_u32 s64, s64, 128")
            a("s_and_b32 s65, s2, 15"); a("s_lshl_b32 s65, s65, 1"); a("s_add_u32 s65, s65, s31")
        a("s_lshl_b32 s44, s64, 12"); a("s_lshl_b32 s45, s65, 7"); a("s_add_u32 s44, s44, s45")
        a(f"s_add_u32 s44, s44, {IN1D}")
        a("s_add_u32 s45, s44, 0x4000")
        a("s_lshl_b32 s46, s64, 8"); a("s_and_b32 s47, s65, 7"); a("s_lshl_b32 s47, s47, 5"); a("s_add_u32 s46, s46, s47")
        a("s_and_b32 s47, s65, 0x18"); a("s_add_u32 s46, s46, s47")
        a(f"s_add_u32 s46, s46, {IN1H}")
    def mergeA():
        xrow(VL,"v_add_f32")
        a("s_mul_i32 s64, s31, 2560"); a(f"s_add_u32 s64, s64, {LDMP}")
        a(f"v_lshlrev_b32 v{T+4}, 4, v0"); a(f"v_lshlrev_b32 v{T+5}, 3, v0")
        a(f"v_add_u32 v{T}, s64, v{T+4}"); a(f"v_add_u32 v{T+1}, s64, v{T+5}")
        a(f"ds_write_b128 v{T}, v[{ACC}:{ACC+3}]")
        a(f"ds_write_b128 v{T}, v[{ACC+4}:{ACC+7}] offset:1024")
        a(f"ds_write_b64 v{T+1}, v[{VL}:{VMC}] offset:2048")
        a("s_waitcnt lgkmcnt(0)")
        a("s_mov_b64 exec, 1")
        a(f"ds_add_rtn_u32 v{T+2}, v{PA+2}, v{PA+3} offset:{LMRG-LCNT}")
        a("s_mov_b64 exec, -1")
        a(f"s_sub_u32 s64, {2*LDMP+2560}, s64")
        a(f"v_add_u32 v{T}, s64, v{T+4}"); a(f"v_add_u32 v{T+1}, s64, v{T+5}")
        a("s_waitcnt lgkmcnt(0)")
        a(f"v_readfirstlane_b32 s64, v{T+2}")
        a("s_cmp_eq_u32 s64, 0")
        a("s_cbranch_scc1 L_nopub")
        a(f"ds_read_b64 v[{T+2}:{T+3}], v{T+1} offset:2048")
        a(f"ds_read_b128 v[{AR}:{AR+3}], v{T}")
        a(f"ds_read_b128 v[{AR+4}:{AR+7}], v{T} offset:1024")
        a("s_waitcnt lgkmcnt(2)")
        a(f"v_max_f32 v{T+4}, v{VMC}, v{T+3}")
        a(f"v_sub_f32 v{T+5}, v{VMC}, v{T+4}"); a(f"v_sub_f32 v{T+6}, v{T+3}, v{T+4}")
        a(f"v_exp_f32 v{T+5}, v{T+5}"); a(f"v_exp_f32 v{T+6}, v{T+6}")
        a(f"v_mov_b32 v{VMC}, v{T+4}")
        a(f"v_mul_f32 v{VL}, v{VL}, v{T+5}"); a(f"v_fmac_f32 v{VL}, v{T+2}, v{T+6}")
        for d,sr in ((T,T+5),(T+1,T+6)):
            a(f"v_mov_b32_dpp v{d}, v{sr} row_newbcast:0 row_mask:0x3 bank_mask:0xf")
            a(f"v_mov_b32_dpp v{d}, v{sr} row_newbcast:8 row_mask:0xc bank_mask:0xf")
        for i in range(8): a(f"v_mul_f32 v{ACC+i}, v{ACC+i}, v{T}")
        a("s_waitcnt lgkmcnt(0)")
        for i in range(8): a(f"v_fmac_f32 v{ACC+i}, v{AR+i}, v{T+1}")
        publish('A')
        a.label("L_nopub")
    def publish(kind):
        if kind!='A': xrow(VL,"v_add_f32")
        a(f"v_min_u32 v{T+2}, -2, v{VMC}"); a(f"v_min_u32 v{T+3}, -2, v{VL}")
        for i in range(8): a(f"v_min_u32 v{ACC+i}, -2, v{ACC+i}")
        if kind!='A': a("s_mov_b32 exec_hi, 0")
        a(f"buffer_store_dwordx4 v[{ACC}:{ACC+3}], v{PA}, s[36:39], s44 offen sc1")
        a(f"buffer_store_dwordx4 v[{ACC+4}:{ACC+7}], v{PA}, s[36:39], s45 offen sc1")
        a(f"s_mov_b64 exec, {(0x101 if shh&1 else 0xffff) if kind=='A' else (1 if shh&2 else 0xff)}")
        a(f"buffer_store_dwordx2 v[{T+2}:{T+3}], v{PA+1}, s[36:39], s46 offen sc1")
        if kind!='A':
            a("s_mov_b64 exec, 1")
            a(f"ds_add_u32 v{PA+2}, v{PA+3}")
        a("s_mov_b64 exec, -1")
    def loadq(lq,nh):
        a(f"v_lshlrev_b32 v{T}, 4, v2")
        for h in range(nh):
            a(f"ds_read_b128 v[{Q+h*8}:{Q+h*8+3}], v{T} offset:{lq+h*512}")
            a(f"ds_read_b128 v[{Q+h*8+4}:{Q+h*8+7}], v{T} offset:{lq+h*512+256}")
    for p,(br,kv,n) in enumerate(PH):
        nh=2 if br=='A' else 1
        iss=lambda h,p=p: issue_static(h,p)
        cm(f"---- branch {br}, {'scores = q.K (bf16-rounded, kept in LDS) and running max' if kv=='K' else 'p = exp2(c*s - c*max), o += p.V'}")
        a(f"v_lshlrev_b32 v{VSC}, 2, v0")
        a(f"v_add_u32 v{VSC}, s63, v{VSC}")
        done=0; tail=0
        if kv=='K':
            loadq(LQA if br=='A' else LQB,nh)
            a(f"v_mov_b32 v{VM}, 0xff800000")
            a("s_waitcnt lgkmcnt(0)")
        else:
            a(f"ds_read_b32 v{PKR}, v{VSC} offset:{NV*256 if p==1 else 0}")
            xrow(VM,"v_max_f32")
            a(f"v_cvt_pk_bf16_f32 v{VM}, v{VM}, v{VM}")
            a(f"v_and_b32 v{VM}, 0xffff0000, v{VM}")
            a(f"v_mul_f32 v{VMC}, s62, v{VM}")
            a(f"v_mov_b32 v{VL}, 0")
            for i in range(8): a(f"v_mov_b32 v{ACC+i}, 0")
            if p==1: pubvec()
            pubaddr(br)
            if p==3: tail=8
        def group(jl0,iss):
            for j in range(4):
                if kv=='K': kunit(j,jl0+j,nh,iss)
                else: vunit(j,jl0+j,iss)
        if p==1 and NV:
            for k in range(NV):
                vunit(k%4,None,iss,0,k)
                vunit(None,None,None,1,NV+k+1,side=k)
            done=2*NV
            a(f"v_add_u32 v{VSC}, {done*256}, v{VSC}")
        if done==0 and len(vq)!=dl:
            group(0,iss); done=4
            a(f"v_add_u32 v{VSC}, 1024, v{VSC}")
        assert (n-done-tail)%4==0
        a(f"s_mov_b32 s60, {(n-done-tail)//4}")
        q0=loop_begin(f"L_ph{p}")
        group(0,iss)
        assert vq==q0,(vq,q0)
        a(f"v_add_u32 v{VSC}, 1024, v{VSC}")
        a("s_sub_u32 s60, s60, 1")
        a("s_cmp_lg_u32 s60, 0")
        a(f"s_cbranch_scc1 L_ph{p}")
        if p<3: do_boost(lambda h: issue_static(h,p+1))
        if p==1:
            lds_wait("L_go",T,LGO,1,2)
            mergeA()
        if tail:
            def iss1(h):
                if h==16+TQ: ticket_req()
                iss(h)
            for h in range(dl,dlp): iss(h)
            cd[0]=dlp
            group(0,iss1)
            group(4,lambda h: issue_static(h,None) if h<16 else issue_pool(h))
            st(5)
            cm("---- dynamic pool: 16-key blocks of branch B handed out by ticket, online softmax")
            a(f"s_cmp_eq_u32 s88, {INV}")
            a("s_cbranch_scc1 L_pool_end")
            def block(sfx):
                for j in range(2):
                    for i in range(4):
                        arrive(4*j+i,issue_pool); dots1(RING+j*16,i,1,D+2*j)
                reduce(1,D,T,4)
                a(f"v_cvt_pk_bf16_f32 v{T+4}, v{T}, v{T+1}")
                a(f"v_cvt_pk_bf16_f32 v{T+5}, v{T+2}, v{T+3}")
                a(f"v_lshlrev_b32 v{T}, 16, v{T+4}"); a(f"v_and_b32 v{T+1}, 0xffff0000, v{T+4}")
                a(f"v_lshlrev_b32 v{T+2}, 16, v{T+5}"); a(f"v_and_b32 v{T+3}, 0xffff0000, v{T+5}")
                a(f"v_max3_f32 v{T+4}, v{T}, v{T+1}, v{T+2}")
                a(f"v_max_f32 v{T+4}, v{T+4}, v{T+3}")
                a(f"v_cmp_gt_f32 vcc, v{T+4}, v{VM}")
                a("s_cmp_eq_u64 vcc, 0")
                a(f"s_cbranch_scc1 L_norescale{sfx}")
                a(f"v_max_f32 v{VM}, v{VM}, v{T+4}")
                xrow(VM,"v_max_f32")
                a(f"v_mul_f32 v{T+4}, s62, v{VM}")
                a(f"v_sub_f32 v{T+5}, v{VMC}, v{T+4}")
                a(f"v_exp_f32 v{T+5}, v{T+5}")
                a(f"v_mov_b32 v{VMC}, v{T+4}")
                a(f"v_mul_f32 v{VL}, v{VL}, v{T+5}")
                for i in range(8): a(f"v_mul_f32 v{ACC+i}, v{ACC+i}, v{T+5}")
                a.label(f"L_norescale{sfx}")
                pcalc(T,AR)
                pvunit(2,issue_pool)
                pcalc(T+2,AR)
                pvunit(3,issue_pool)
            q0=loop_begin("L_pool")
            block("")
            assert vq==q0,(vq,q0)
            a(f"s_cmp_lg_u32 s88, {INV}")
            a("s_cbranch_scc1 L_pool")
            a.label("L_pool_end")
            publish('B')
        if p<3 and not (est and p!=1): st(2+p)
    write_stamps(False)
    a.label("L_done")
    a("s_endpgm")
    if report is not None:
        import rep; rep.emit(a,report,WS_USED,W,LW)
    a.raw('.section .rodata,"a"')
    for nm,nv in ((NAME,256+16*NV),)+((("report_kernel",16),) if report is not None else ()):
        a.raw(".p2align 6"); a.raw(f".amdhsa_kernel {nm}")
        a.raw(f"  .amdhsa_next_free_vgpr {nv}"); a.raw("  .amdhsa_next_free_sgpr 98"); a.raw(f"  .amdhsa_accum_offset {min(nv,256)}")
        a.raw("  .amdhsa_float_denorm_mode_32 3")
        a.raw("  .amdhsa_group_segment_fixed_size 0"); a.raw("  .amdhsa_kernarg_size 104"); a.raw("  .amdhsa_user_sgpr_count 2")
        a.raw("  .amdhsa_user_sgpr_kernarg_segment_ptr 1"); a.raw("  .amdhsa_system_sgpr_workgroup_id_x 1"); a.raw(".end_amdhsa_kernel")
    return a.text()

def make(cfgs, listfile="list.txt"):
    import build
    lines=[]
    for c in cfgs:
        lab="g16_"+"_".join(f"{k}{str(v).replace(' ','').replace(',','.').strip('()[]')}" for k,v in c.items() if k!='stamp')
        fn="k_"+lab+".s"
        open(fn,"w").write(gen(**c))
        co=build.build(fn)
        lines.append(f"{lab} {co} {256*W if c.get('stamp') else 0} {NAME}:256:{(W+1)*64}:{c.get('lds',72960)}")
    open(listfile,"w").write("\n".join(lines)+"\n")
if __name__=="__main__":
    import json
    cfg=json.loads(sys.argv[2]) if len(sys.argv)>2 else {}
    open(sys.argv[1],"w").write(gen(**cfg))
```

```python
import struct, math, sys
from asmlib import Asm
NAME="concat_heads__gqa_block_cached__mha_block_cached__decode_kernel"
HDR=open('concat_heads__gqa_block_cached__mha_block_cached__decode.s.ref').read().split('; Override')[0]
def f2u(x): return struct.unpack('<I',struct.pack('<f',x))[0]
QP=0x10000
TK=0x50000
RDY=0x58000
IN1H=0x60000
IN1D=0x80000
YO=0x180000
WS_USED=0x200000
LQA=0; LQB=1024; LCNT=1536; LGO=1540; LMRG=1544; LDMP=2048; LSC=2048+2*2560
DPPF="row_mask:0xf bank_mask:0xf"
INV=0x7f000000
W=2; LW=1

def gen(stamp=False, lds=72960, dl=10, NV=12, PK=128, blk=32, tq=3, gsleep=24, psl=1, spin=1<<20, mix=True, report=None,
        thr=2, boost=0, sep=False, clr=2, cfl='sc1', wsoff=0, bar0=28, est=False, smodel=False, dlp=12, pm=20, shh=0, align=0, pad=0, ax=True, nr0=True):
    SPIN=spin
    a=Asm()
    cm=lambda t: a.raw("    ; "+t)
    a.raw(HDR.rstrip())
    if report is None: a.raw(f"; @launch grid=(256,1,1) block=({(W+1)*64},1,1) lds={lds}")
    else:
        a.raw(f"; @launch kernel={NAME} grid=(256,1,1) block=({(W+1)*64},1,1) lds={lds}")
        a.raw("; @launch kernel=report_kernel grid=(1,1,1) block=(64,1,1) lds=1024")
    a.raw('.amdgcn_target "amdgcn-amd-amdhsa--gfx950"')
    a.raw(".text"); a.raw(f".globl {NAME}"); a.raw(".p2align 8"); a.raw(f".type {NAME},@function"); a.raw(f"{NAME}:")
    def st(k):
        if stamp:
            a("s_memrealtime s[68:69]"); a("s_waitcnt lgkmcnt(0)"); a(f"s_mov_b32 s{72+k}, s68")
    for t in """Decode attention for both branches in one launch, HBM-bound (805 MB of K/V read once, nt loads).
    256 workgroups x 3 waves, one per CU.  Waves 1,2 stream; wave 0 is a helper.
    Streaming waves: A_k, A_v, B_k, B_v (static shares), then a dynamic pool of 16-key blocks of B (atomic tickets)
      K pass : 4 rows x 256 B per load, v_dot2 + DPP row reduction, scores rounded to bf16 (as the reference does), kept in LDS
      V pass : p = exp2(c*s - c*max) with the true max of the pass, o += p.V by MFMA with a diagonal A operand
      about 10 loads in flight per wave: enough to saturate HBM without oversubscribing the fabric
    Helper: q = x.wq (4 k-slices, MFMA) -> nonce-tagged granules in d_ws -> gathered per workgroup;
      at the end combines the (m, l, o) records of a head for 32 rows, multiplies with wo, and 28 helpers per branch
      add the 128 partial rows.  Records use sentinel-filled inboxes, cleared in this launch and announced via RDY.""".split("\n"):
        cm(t.strip())
    a(f"""
    s_cmp_ge_u32 s2, 256
    s_cbranch_scc1 L_done
    s_load_dwordx16 s[4:19], s[0:1], 0
    s_load_dwordx8 s[20:27], s[0:1], 64
    s_load_dwordx2 s[28:29], s[0:1], 96
    v_lshrrev_b32 v1, 6, v0
    v_and_b32 v0, 63, v0
    v_readfirstlane_b32 s30, v1
    v_and_b32 v2, 15, v0
    v_lshrrev_b32 v3, 4, v0
    s_mov_b32 s38, {WS_USED}
    s_mov_b32 s39, 0x20000
    s_lshr_b32 s48, s2, 4
    s_lshl_b32 s48, s48, 3
    s_and_b32 s49, s2, 7
    s_or_b32 s48, s48, s49
    s_bfe_u32 s55, s2, 0x10003
    s_lshr_b32 s96, s2, 4
    s_lshr_b32 s97, s2, 5
    """)
    if ax: a("s_xor_b32 s97, s97, s49")
    a("s_cmp_eq_u32 s30, 0"); a("s_cbranch_scc0 L_stream")
    def selectors():
        a("""
        v_and_b32 v4, 1, v0
        v_cmp_eq_u32 vcc, 1, v4
        v_mov_b32 v5, 0x0c0c0100
        v_mov_b32 v6, 0x01000c0c
        v_cndmask_b32 v5, v5, v6, vcc
        v_mov_b32 v6, 0x0c0c0302
        v_mov_b32 v7, 0x03020c0c
        v_cndmask_b32 v6, v6, v7, vcc
        v_bfe_u32 v4, v0, 1, 2
        v_mov_b32 v7, 0x0c0c0c0c
        """)
        for v in range(4):
            a(f"v_cmp_eq_u32 vcc, {v}, v4")
            a(f"v_cndmask_b32 v{8+v}, v7, v5, vcc")
            a(f"v_cndmask_b32 v{12+v}, v7, v6, vcc")
    SEL=[[8,9,10,11],[12,13,14,15]]
    def after_kernarg():
        a("s_waitcnt lgkmcnt(0)")
        if stamp:
            for k in range(8): a(f"s_mov_b32 s{72+k}, 0")
        st(0)
        if wsoff: a(f"s_add_u32 s36, s28, {wsoff}"); a("s_addc_u32 s37, s29, 0")
        else: a("s_mov_b32 s36, s28"); a("s_mov_b32 s37, s29")
    def write_stamps(helper):
        if not stamp: return
        st(7)
        a("s_mov_b32 s36, s28"); a("s_mov_b32 s37, s29")
        a("s_getreg_b32 s66, hwreg(HW_REG_XCC_ID)")
        a("s_mov_b64 exec, 1")
        a("v_mov_b32 v4, 0")
        if not helper:
            a("v_mov_b32 v20, s72"); a("v_mov_b32 v21, s79"); a("v_mov_b32 v22, s66"); a("s_getreg_b32 s67, hwreg(HW_REG_HW_ID)"); a("v_mov_b32 v23, s67")
            a(f"s_lshl_b32 s64, s2, {LW}"); a("s_add_u32 s64, s64, s31"); a("s_lshl_b32 s64, s64, 4")
            a("buffer_store_dwordx4 v[20:23], v4, s[36:39], s64 offen")
        for k in range(8): a(f"v_mov_b32 v{40+k}, s{72+k}")
        a(f"s_mul_i32 s64, s2, {W+1}"); a("s_add_u32 s64, s64, s30"); a("s_lshl_b32 s64, s64, 5"); a("s_add_u32 s64, s64, 0x4000")
        a("buffer_store_dwordx4 v[40:43], v4, s[36:39], s64 offen")
        a("buffer_store_dwordx4 v[44:47], v4, s[36:39], s64 offen offset:16")
    def spin_tail(lbl,sleep):
        if sleep: a(f"s_sleep {sleep}")
        a("s_sub_u32 s65, s65, 1"); a("s_cmp_lg_u32 s65, 0")
        a(f"s_cbranch_scc1 {lbl}")
    def lds_wait(lbl,tmp,addr,val,sleep):
        a(f"v_mov_b32 v{tmp}, {addr}")
        a(f"s_mov_b32 s65, {SPIN}")
        a.label(lbl)
        a(f"ds_read_b32 v{tmp+1}, v{tmp}")
        a("s_waitcnt lgkmcnt(0)")
        a(f"v_readfirstlane_b32 s64, v{tmp+1}")
        a(f"s_cmp_ge_u32 s64, {val}")
        a(f"s_cbranch_scc1 {lbl}d")
        spin_tail(lbl,sleep)
        a.label(lbl+"d")

    WR=64; XR=16; HA=32; HC=40; T=56; DT=192; HD=16; O=224
    cm("---------------- helper wave: s48 = index 0..127 inside the branch, s55 = branch (0 = A, 1 = B)")
    a(f"""
    s_setprio 3
    s_memrealtime s[92:93]
    s_mov_b32 s42, 896
    s_mov_b32 s43, 0x20000
    s_mov_b32 s47, 0x20000
    s_mov_b32 s82, 256
    s_mov_b32 s83, 0x20000
    s_and_b32 s60, s48, 31
    s_lshr_b32 s61, s48, 5
    s_mov_b32 s46, {448*8192}
    v_mul_u32_u24 v{T}, 56, v3
    s_mul_i32 s62, s61, 224
    s_mov_b32 s63, {28*8192}
    v_mul_lo_u32 v{T+1}, s63, v3
    v_lshl_add_u32 v{T+1}, v2, 4, v{T+1}
    s_mul_i32 s63, s61, {112*8192}
    s_lshl_b32 s64, s60, 8
    s_add_u32 s63, s63, s64
    s_and_b32 s56, s2, 0xf8
    """)
    after_kernarg()
    cm("workgroup 0 publishes this launch's nonce (tags every hand-off through d_ws) in the zeroed d_debug")
    a(f"""
    s_mov_b32 s80, s26
    s_mov_b32 s81, s27
    s_cmp_lg_u32 s2, 0
    s_cbranch_scc1 L_nononce
    s_or_b32 s92, s92, 1
    v_mov_b32 v{T+4}, s92
    v_mov_b32 v{T+5}, s93
    v_lshlrev_b32 v{T+6}, 3, v0
    s_mov_b32 exec_hi, 0
    buffer_store_dwordx2 v[{T+4}:{T+5}], v{T+6}, s[80:83], 0 offen sc1
    s_mov_b64 exec, -1
    """)
    a.label("L_nononce")
    cm("partial q: 112 rows x 128 columns of wq")
    a("""
    s_cmp_eq_u32 s55, 0
    s_cselect_b32 s40, s4, s14
    s_cselect_b32 s41, s5, s15
    s_cselect_b32 s44, s10, s20
    s_cselect_b32 s45, s11, s21
    """)
    for i in range(28):
        a(f"buffer_load_dwordx4 v[{WR+4*i}:{WR+4*i+3}], v{T+1}, s[44:47], s63 offen nt")
        if i<27: a("s_add_u32 s63, s63, 8192")
        if i==0:
            for k in range(7):
                a(f"buffer_load_dwordx2 v[{XR+2*k}:{XR+2*k+1}], v{T}, s[40:43], s62 offen offset:{8*k}")
        if i+1==bar0: a("s_barrier")
    a(f"buffer_load_dwordx2 v[{T+4}:{T+5}], off, s[80:83], s56 sc1")
    selectors()
    a(f"""
    v_mov_b32 v{HC+4}, {LCNT}
    v_mov_b32 v{HC+6}, 0
    v_mov_b32 v{HC+7}, 0
    ds_write_b64 v{HC+4}, v[{HC+6}:{HC+7}]
    ds_write_b32 v{HC+4}, v{HC+6} offset:8
    v_lshlrev_b32 v{T+2}, 4, v0
    v_and_b32 v{T+3}, 1, v3
    v_lshlrev_b32 v{T+3}, 4, v{T+3}
    v_lshl_add_u32 v{T+3}, v2, 5, v{T+3}
    v_lshrrev_b32 v{T+6}, 5, v0
    v_lshlrev_b32 v{T+6}, 4, v{T+6}
    v_lshl_add_u32 v{T+6}, v{T+3}, 1, v{T+6}
    s_lshl_b32 s63, s61, 15
    s_lshl_b32 s64, s60, 10
    s_add_u32 s63, s63, s64
    s_lshl_b32 s64, s55, 17
    s_add_u32 s63, s63, s64
    s_add_u32 s63, s63, {QP}
    """)
    for i in range(28):
        a(f"s_waitcnt vmcnt({28-i})")
        ar=HA+(i%2)*4
        for v in range(4):
            a(f"v_perm_b32 v{ar+v}, v{XR+i//2}, v{XR+i//2}, v{SEL[i%2][v]}")
        a(f"v_mfma_f32_16x16x32_bf16 v[{HC}:{HC+3}], v[{ar}:{ar+3}], v[{WR+4*i}:{WR+4*i+3}], {'0' if i==0 else 'v[%d:%d]'%(HC,HC+3)}")
    st(1)
    a(f"s_mov_b32 s65, {SPIN}")
    a.label("L_np")
    a("s_waitcnt vmcnt(0)")
    a(f"v_readfirstlane_b32 s92, v{T+4}"); a(f"v_readfirstlane_b32 s93, v{T+5}")
    a("s_cmp_lg_u32 s92, 0")
    a("s_cbranch_scc1 L_nd")
    a(f"buffer_load_dwordx2 v[{T+4}:{T+5}], off, s[80:83], s56 sc1")
    spin_tail("L_np",0)
    a.label("L_nd")
    a("s_mov_b32 exec_lo, 0")
    a(f"v_mov_b32 v{HC}, v{HC+2}"); a(f"v_mov_b32 v{HC+1}, v{HC+3}")
    a("s_mov_b32 exec_lo, -1")
    a(f"v_mov_b32 v{HC+2}, v{T+4}"); a(f"v_mov_b32 v{HC+3}, v{T+5}")
    a(f"buffer_store_dwordx4 v[{HC}:{HC+3}], v{T+6}, s[36:39], s63 offen sc1")
    st(2)
    def gather(lbl,nk,base,ldsoff,sleep):
        a(f"s_mov_b32 s65, {SPIN}")
        a.label(lbl)
        base()
        for ks in range(4):
            for k in range(nk):
                r=DT+(ks*nk+k)*4
                a(f"buffer_load_dwordx4 v[{r}:{r+3}], v{T+2}, s[36:39], s62 offen offset:{k*1024} sc1")
            if ks<3: a("s_add_u32 s62, s62, 0x8000")
        a("s_mov_b64 s[66:67], 0")
        for j in range(4*nk):
            a(f"s_waitcnt vmcnt({4*nk-1-j})")
            a(f"v_cmp_ne_u64 vcc, s[92:93], v[{DT+j*4+2}:{DT+j*4+3}]")
            a("s_or_b64 s[66:67], s[66:67], vcc")
        a("s_cmp_eq_u64 s[66:67], 0")
        a(f"s_cbranch_scc1 {lbl}d")
        spin_tail(lbl,sleep)
        a.label(lbl+"d")
        def pr(j): return f"v[{DT+j*4}:{DT+j*4+1}]"
        for k in range(nk):
            a(f"v_pk_add_f32 {pr(k)}, {pr(k)}, {pr(nk+k)}")
            a(f"v_pk_add_f32 {pr(2*nk+k)}, {pr(2*nk+k)}, {pr(3*nk+k)}")
        for k in range(nk): a(f"v_pk_add_f32 {pr(k)}, {pr(k)}, {pr(2*nk+k)}")
        a(f"v_lshlrev_b32 v{T}, 2, v0")
        for k in range(nk): a(f"v_cvt_pk_bf16_f32 v{DT+k*4+2}, v{DT+k*4}, v{DT+k*4+1}")
        for k in range(nk): a(f"ds_write_b32 v{T}, v{DT+k*4+2} offset:{ldsoff+256*k}")
        a("s_waitcnt lgkmcnt(0)")
    def baseA(): a("s_lshl_b32 s62, s97, 12"); a(f"s_add_u32 s62, s62, {QP}")
    def baseB(): a("s_lshl_b32 s62, s96, 11"); a(f"s_add_u32 s62, s62, {QP+0x20000}")
    cm("gather the two A q heads of this workgroup (back off first: the other producers finish at about the same time)")
    if gsleep: a(f"s_sleep {gsleep}")
    gather("L_ga",4,baseA,LQA,8)
    if est: st(5)
    a("s_barrier")
    a("s_setprio 0")
    st(4)
    cm("fill the inboxes this wave will poll with the sentinel, zero a ticket counter, then publish 'ready'")
    for k in range(4): a(f"v_mov_b32 v{HC+k}, -1")
    a("s_lshl_b32 s60, s55, 7"); a("s_add_u32 s60, s60, s48")
    a("s_lshl_b32 s52, s60, 12"); a(f"s_add_u32 s52, s52, {IN1D}")
    assert shh==0
    a("s_lshl_b32 s53, s60, 8"); a(f"s_add_u32 s53, s53, {IN1H}")
    a("s_lshl_b32 s54, s60, 11"); a(f"s_add_u32 s54, s54, {YO}")
    for k in range(4):
        a(f"buffer_store_dwordx4 v[{HC}:{HC+3}], v{T+2}, s[36:39], s52 offen offset:{k*1024} sc1")
    a(f"buffer_store_dwordx4 v[{HC}:{HC+3}], v{T+2}, s[36:39], s54 offen sc1")
    a("s_mov_b32 exec_hi, 0xffff")
    a(f"buffer_store_dwordx4 v[{HC}:{HC+3}], v{T+2}, s[36:39], s54 offen offset:1024 sc1")
    a("s_mov_b64 exec, 0xffff")
    a(f"buffer_store_dwordx4 v[{HC}:{HC+3}], v{T+2}, s[36:39], s53 offen sc1")
    a("s_lshl_b32 s63, s60, 8"); a(f"s_add_u32 s63, s63, {TK}")
    a("s_lshl_b32 s64, s2, 3"); a(f"s_add_u32 s64, s64, {RDY}")
    a("s_mov_b64 exec, 1")
    a(f"v_mov_b32 v{T}, 0")
    a("s_cmp_ge_u32 s60, 16"); a("s_cbranch_scc1 L_notk")
    a(f"buffer_store_dword v{T}, off, s[36:39], s63 sc1")
    a.label("L_notk")
    a("s_waitcnt vmcnt(0)")
    a(f"buffer_store_dwordx2 v[{T+4}:{T+5}], off, s[36:39], s64 sc1")
    a("s_mov_b64 exec, -1")
    cm("32 rows of wo stay in registers until the end")
    a(f"""
    s_cmp_eq_u32 s55, 1
    s_cselect_b32 s44, s22, s12
    s_cselect_b32 s45, s23, s13
    s_mov_b32 s46, {4096*896}
    s_mul_i32 s63, s48, {32*896}
    v_bfrev_b32 v{T+7}, v3
    v_lshrrev_b32 v{T+7}, 30, v{T+7}
    v_mul_u32_u24 v{T}, 896, v{T+7}
    v_lshl_add_u32 v{T}, v2, 4, v{T}
    """)
    a("s_mov_b32 s66, 0x00ff00ff"); a("s_mov_b32 s67, 0x00ff00ff")
    for i in range(8):
        for bk in range(4):
            r=WR+(i*4+bk)*4
            if bk==3: a("s_mov_b64 exec, s[66:67]")
            a(f"buffer_load_dwordx4 v[{r}:{r+3}], v{T}, s[44:47], s63 offen offset:{bk*256} nt")
        a("s_mov_b64 exec, -1")
        if i<7: a(f"s_add_u32 s63, s63, {4*896}")
    a("s_waitcnt vmcnt(0)")
    cm("every workgroup ready?")
    a(f"s_mov_b32 s64, {RDY}")
    a(f"s_mov_b32 s65, {SPIN}")
    a.label("L_rd")
    a(f"buffer_load_dwordx4 v[{DT}:{DT+3}], v{T+2}, s[36:39], s64 offen sc1")
    a(f"buffer_load_dwordx4 v[{DT+4}:{DT+7}], v{T+2}, s[36:39], s64 offen offset:1024 sc1")
    a("s_mov_b64 s[66:67], 0")
    a("s_waitcnt vmcnt(0)")
    for j in range(4):
        a(f"v_cmp_ne_u64 vcc, s[92:93], v[{DT+j*2}:{DT+j*2+1}]")
        a("s_or_b64 s[66:67], s[66:67], vcc")
    a("s_cmp_eq_u64 s[66:67], 0")
    a("s_cbranch_scc1 L_rdd")
    spin_tail("L_rd",64)
    a.label("L_rdd")
    cm("q of this workgroup's B head")
    gather("L_gb",2,baseB,LQB,64)
    a(f"v_mov_b32 v{T}, {LGO}"); a(f"v_mov_b32 v{T+1}, 1")
    a(f"ds_write_b32 v{T}, v{T+1}")
    st(3)
    def anysent(rs,tmp):
        h=len(rs)//2
        chains=[(tmp,rs[:h]),(tmp+3,rs[h:])]
        for t,c in chains: a(f"v_max_u32 v{t}, v{c[0]}, v{c[1]}")
        k=2
        while k<h:
            for t,c in chains:
                if k+1<h: a(f"v_max3_u32 v{t}, v{t}, v{c[k]}, v{c[k+1]}")
                else: a(f"v_max_u32 v{t}, v{t}, v{c[k]}")
            k+=2
        a(f"v_max_u32 v{tmp}, v{tmp}, v{tmp+3}")
        a(f"v_cmp_eq_u32 vcc, -1, v{tmp}")
        a("s_cmp_eq_u64 vcc, 0")
    def poll(lbl,loads,rs):
        loads()
        a("s_waitcnt vmcnt(0)")
        a(f"s_mov_b32 s65, {SPIN}")
        a.label(lbl)
        anysent(rs,T+2)
        a(f"s_cbranch_scc1 {lbl}d")
        a("s_mov_b64 exec, vcc")
        loads()
        a("s_mov_b64 exec, -1")
        a("s_waitcnt vmcnt(48)")
        spin_tail(lbl,psl)
        a.label(lbl+"d")
    a(f"v_lshlrev_b32 v1, 1, v{T+7}"); a(f"v_and_b32 v{T+5}, 3, v0"); a(f"v_lshl_add_u32 v1, v{T+5}, 3, v1")
    a(f"v_lshlrev_b32 v{T+7}, 4, v0")
    a(f"v_lshrrev_b32 v{T+4}, 2, v0"); a(f"v_lshlrev_b32 v{T+4}, 11, v{T+4}")
    a(f"v_lshl_add_u32 v{T+4}, v{T+5}, 4, v{T+4}")
    a(f"v_lshrrev_b32 v{T+6}, 3, v0"); a(f"v_lshlrev_b32 v{T+6}, 5, v{T+6}")
    a("s_lshl_b32 s84, s48, 6"); a("s_lshl_b32 s60, s55, 18"); a("s_add_u32 s84, s84, s60"); a(f"s_add_u32 s84, s84, {YO}")
    for k in range(1,8): a(f"s_add_u32 s{84+k}, s{83+k}, 0x8000")
    a("""
    s_mov_b32 s40, s24
    s_mov_b32 s41, s25
    s_mov_b32 s42, 1792
    s_lshl_b32 s62, s48, 5
    s_mul_i32 s60, s55, 896
    s_add_u32 s62, s62, s60
    """)
    cm("wait until this workgroup's streaming waves are done, then combine the softmax records for 32 output rows")
    lds_wait("L_ow",T,LCNT,thr,2)
    OW=O; OO=O+8; OL=O+12; OX=O+13; OB=O+16
    def allred(reg,op):
        a(f"{op}_dpp v{reg}, v{reg}, v{reg} row_ror:8 {DPPF}")
        for sw in ("v_permlane16_swap_b32","v_permlane32_swap_b32"):
            a(f"v_mov_b32 v{OX}, v{reg}"); a(f"{sw} v{reg}, v{OX}"); a(f"{op} v{reg}, v{reg}, v{OX}")
    def scatter4(r):
        a(f"v_permlane32_swap_b32 v{r}, v{r+1}"); a(f"v_permlane32_swap_b32 v{r+2}, v{r+3}")
        a(f"v_add_f32 v{r}, v{r}, v{r+1}"); a(f"v_add_f32 v{r+2}, v{r+2}, v{r+3}")
        a(f"v_permlane16_swap_b32 v{r}, v{r+2}")
        a(f"v_add_f32 v{r}, v{r}, v{r+2}")
    def level1(J,sfx):
        def l1loads():
            for k in range(J//2):
                a(f"buffer_load_dwordx4 v[{HD+4*k}:{HD+4*k+3}], v{T+6}, s[36:39], s53 offen offset:{16*k} sc1")
            for j in range(J):
                a(f"buffer_load_dwordx4 v[{DT+4*j}:{DT+4*j+3}], v{T+7}, s[36:39], {'s52' if j<4 else 's57'} offen offset:{(j%4)*1024} sc1")
        poll("L_hp"+sfx,l1loads,[HD+k for k in range(J*2)]+[DT+k for k in range(J*4)])
        if not est: st(5)
        a(f"v_max_f32 v{T+2}, v{HD}, v{HD+2}")
        for k in range(2,J,2): a(f"v_max3_f32 v{T+2}, v{T+2}, v{HD+2*k}, v{HD+2*k+2}")
        allred(T+2,"v_max_f32")
        for k in range(J): a(f"v_sub_f32 v{OW+k}, v{HD+2*k}, v{T+2}")
        for k in range(J): a(f"v_exp_f32 v{OW+k}, v{OW+k}")
        a(f"v_mul_f32 v{OL}, v{OW}, v{HD+1}")
        for e in range(4): a(f"v_mul_f32 v{OO+e}, v{OW}, v{DT+e}")
        for k in range(1,J):
            a(f"v_fmac_f32 v{OL}, v{OW+k}, v{HD+2*k+1}")
            for e in range(4): a(f"v_fmac_f32 v{OO+e}, v{OW+k}, v{DT+k*4+e}")
    level1(4,"")
    a(f"v_add_f32_dpp v{OL}, v{OL}, v{OL} row_ror:8 {DPPF}")
    a(f"v_permlane32_swap_b32 v{OO}, v{OO+1}"); a(f"v_permlane32_swap_b32 v{OO+2}, v{OO+3}")
    a(f"v_mov_b32 v{OX}, v{OL}")
    a(f"v_add_f32 v{OO}, v{OO}, v{OO+1}"); a(f"v_add_f32 v{OO+2}, v{OO+2}, v{OO+3}")
    a(f"v_permlane16_swap_b32 v{OL}, v{OX}")
    a(f"v_add_f32 v{OL}, v{OL}, v{OX}")
    a(f"v_permlane16_swap_b32 v{OO}, v{OO+2}")
    a(f"v_mov_b32 v{OX}, v{OL}")
    a(f"v_add_f32 v{OO}, v{OO}, v{OO+2}")
    a(f"v_permlane32_swap_b32 v{OL}, v{OX}")
    a(f"v_add_f32 v{OL}, v{OL}, v{OX}")
    a(f"v_add_f32_dpp v{OO}, v{OO}, v{OO} row_ror:8 {DPPF}")
    a(f"v_rcp_f32 v{OL}, v{OL}")
    a(f"v_mul_f32 v{OO}, v{OO}, v{OL}")
    a(f"v_cvt_pk_bf16_f32 v{OO}, v{OO}, v{OO}")
    for i in range(8): a(f"v_mov_b32_dpp v{OB+i}, v{OO} row_newbcast:{i} {DPPF}")
    def prm(i,v): a(f"v_perm_b32 v{HA+(i%2)*4+v}, v{OB+i}, v{OB+i}, v{SEL[0][v]}")
    for v in range(4): prm(0,v)
    for i in range(8):
        ar=HA+(i%2)*4
        for bk in range(4):
            r=WR+(i*4+bk)*4; c=HC+bk*4
            a(f"v_mfma_f32_16x16x32_bf16 v[{c}:{c+3}], v[{ar}:{ar+3}], v[{r}:{r+3}], {'0' if i==0 else 'v[%d:%d]'%(c,c+3)}")
            if i<7 and bk<2: prm(i+1,2*bk); prm(i+1,2*bk+1)
    a("s_mov_b32 exec_hi, 0")
    for bk in range(4):
        for k in range(4): a(f"v_min_u32 v{HC+bk*4+k}, -2, v{HC+bk*4+k}")
        if bk==3: a("s_mov_b32 exec_lo, 0x00ff00ff")
        a(f"buffer_store_dwordx4 v[{HC+bk*4}:{HC+bk*4+3}], v{T+3}, s[36:39], s54 offen offset:{bk*512} sc1")
    a("s_mov_b64 exec, -1")
    st(6)
    cm("28 helpers per branch sum the 128 partial rows for 16 output columns each")
    a("s_cmp_ge_u32 s48, 28")
    a("s_cbranch_scc1 L_he")
    def l2loads():
        for k in range(8):
            a(f"buffer_load_dwordx4 v[{DT+4*k}:{DT+4*k+3}], v{T+4}, s[36:39], s{84+k} offen sc1")
    poll("L_yp",l2loads,[DT+k for k in range(32)])
    for e in range(0,16,2): a(f"v_pk_add_f32 v[{O+e}:{O+e+1}], v[{DT+e}:{DT+e+1}], v[{DT+16+e}:{DT+17+e}]")
    for half in (8,4):
        for e in range(0,half,2): a(f"v_pk_add_f32 v[{O+e}:{O+e+1}], v[{O+e}:{O+e+1}], v[{O+half+e}:{O+half+e+1}]")
    scatter4(O)
    for m in ("row_ror:8","row_ror:4"): a(f"v_add_f32_dpp v{O}, v{O}, v{O} {m} {DPPF}")
    a(f"v_cvt_pk_bf16_f32 v{O}, v{O}, v{O}")
    a("s_mov_b32 exec_lo, 0x000f000f"); a("s_mov_b32 exec_hi, 0x000f000f")
    a(f"buffer_store_short v{O}, v1, s[40:43], s62 offen")
    a("s_mov_b64 exec, -1")
    a.label("L_he")
    write_stamps(True)
    a("s_endpgm")

    VOFF=1; VSC=4; VM=5; VL=6; VMC=7
    Q=16; PA=24; ACC=32; AR=40; D=48; T=52; PKR=60; VOFF2=62; VTK=63
    RING=64
    STEP=4096*W
    NA=(1<<19)//STEP; NB=((1<<20)-PK*1024)//STEP
    NT=16*PK//8
    if dlp is None: dlp=dl
    TQ=min(tq,16-dlp)
    cd=[dl]
    vq=[]
    BB=(blk*1024).bit_length()-1
    assert PK%blk==0 and NB%4==0 and NV%4==0 and (2*PK)%(8<<(pm&7))==0
    for k in range(pad): a.raw("    s_nop 0")
    a.label("L_stream")
    cm("---------------- streaming waves")
    a(f"""
    s_sub_u32 s31, s30, 1
    v_lshlrev_b32 v{VOFF}, 9, v3
    v_lshl_add_u32 v{VOFF}, v2, 4, v{VOFF}
    s_mov_b32 s34, 0x200000
    s_mov_b32 s35, 0x20000
    s_mov_b32 s42, 0x200000
    s_mov_b32 s43, 0x20000
    s_lshl_b32 s61, s31, 12
    s_lshl_b32 s49, s55, {BB}
    s_and_b32 s60, s48, 15
    s_lshl_b32 s60, s60, 20
    s_add_u32 s60, s60, s49
    s_lshl_b32 s64, s97, 24
    s_add_u32 s60, s60, s64
    """)
    def adv(r):
        a(f"s_bitset1_b32 {r}, {BB}"); a(f"s_add_u32 {r}, {r}, {STEP}"); a(f"s_bitset0_b32 {r}, {BB}")
    after_kernarg()
    a("s_add_u32 s32, s6, s60"); a("s_addc_u32 s33, s7, 0")
    a("s_add_u32 s40, s8, s60"); a("s_addc_u32 s41, s9, 0")
    if bar0: a("s_barrier")
    if est: st(2)
    OFFS=[0,256,2048,2304]
    PH=[('A','K',NA),('A','V',NA),('B','K',NB),('B','V',NB)]
    ends=[NA,2*NA-NV,2*NA-NV+NB]
    def ld(base,i,srd,soff,voff=VOFF,rf='v'):
        r=base+i*4
        a(f"buffer_load_dwordx4 {rf}[{r}:{r+3}], v{voff}, {srd}, {soff} offen offset:{OFFS[i]} nt")
    def issue_static(h,p):
        h%=16
        ld(RING+(h//4)*16,h%4,"s[32:35]","s52"); vq.append(h)
        if h%4==3:
            adv("s52")
            if p is not None and p<3:
                a("s_add_u32 s53, s53, 1")
                a(f"s_cmp_eq_u32 s53, {ends[p]}")
                b=(40,56,58)[p]
                a(f"s_cselect_b32 s32, s{b}, s32"); a(f"s_cselect_b32 s33, s{b+1}, s33"); a(f"s_cselect_b32 s52, {'s94' if p==0 else 's61'}, s52")
    def ticket_req():
        a("s_mov_b64 exec, 1")
        a(f"v_mov_b32 v{VTK}, 1")
        a(f"buffer_atomic_add v{VTK}, off, s[36:39], s91 sc0 sc1"); vq.append('A')
        a("s_mov_b64 exec, -1")
    def ticket_use():
        assert 'A' not in vq
        a(f"v_readfirstlane_b32 s90, v{VTK}")
        lo=pm&7
        if pm&8:
            a(f"s_lshr_b32 s89, s90, {lo+3}"); a("s_add_u32 s89, s89, s96"); a(f"s_lshr_b32 s88, s90, {lo}"); a("s_add_u32 s88, s88, s89"); a("s_and_b32 s88, s88, 7")
        else: a(f"s_bfe_u32 s88, s90, {lo|(3<<16)}")
        a("s_lshl_b32 s88, s88, 21")
        a(f"s_lshr_b32 s89, s90, {lo+3}"); a(f"s_lshl_b32 s89, s89, {13+lo}"); a("s_add_u32 s88, s88, s89")
        if lo:
            if pm&16: a("s_add_u32 s89, s90, s96"); a(f"s_and_b32 s89, s89, {(1<<lo)-1}")
            else: a(f"s_and_b32 s89, s90, {(1<<lo)-1}")
            a("s_lshl_b32 s89, s89, 13"); a("s_add_u32 s88, s88, s89")
        a(f"s_add_u32 s88, s88, {2*NB*STEP}")
        a(f"s_cmp_lt_u32 s90, {NT}")
        if nr0: a("s_cselect_b32 s88, s88, 0"); a("s_cselect_b32 s82, s82, 0"); a("s_cselect_b32 s86, s86, 0")
        else: a(f"s_cselect_b32 s88, s88, {INV}")
    def issue_pool(h):
        h%=16
        if h==0: ticket_use()
        if h==TQ: ticket_req()
        k=h//4
        ld(RING+k*16,h%4,"s[80:83]" if k<2 else "s[84:87]","s88",VOFF if k%2==0 else VOFF2); vq.append(h)
    def setup2():
        selectors()
        a(f"""
        s_lshl_b32 s60, s48, 21
        s_add_u32 s60, s60, s49
        s_add_u32 s56, s16, s60
        s_addc_u32 s57, s17, 0
        s_add_u32 s58, s18, s60
        s_addc_u32 s59, s19, 0
        s_lshl_b32 s60, s96, 24
        s_add_u32 s80, s16, s60
        s_addc_u32 s81, s17, 0
        s_mov_b32 s82, 0x1000000
        s_mov_b32 s83, 0x20000
        s_add_u32 s84, s18, s60
        s_addc_u32 s85, s19, 0
        s_mov_b32 s86, 0x1000000
        s_mov_b32 s87, 0x20000
        s_lshl_b32 s91, s96, 8
        s_add_u32 s91, s91, {TK}
        s_mov_b32 s62, {f2u(math.log2(math.e)/16.0)}
        s_lshl_b32 s63, s31, 15
        s_add_u32 s63, s63, {LSC}
        v_add_u32 v{VOFF2}, 0x1000, v{VOFF}
        """)
    cm(f"while q is being computed: first {NV} V units of branch A go to AGPRs, then the K ring starts; {dl} loads in flight")
    n=0
    a("s_mov_b32 s94, s61")
    for k in range(NV):
        for i in range(4):
            if n>=dl: a(f"s_waitcnt vmcnt({dl-1})")
            if est and n==dl: st(4)
            ld(k*16,i,"s[40:43]","s94",rf='a'); n+=1
            if n==dl: setup2()
        adv("s94")
    a("s_mov_b32 s52, s61")
    a(f"s_mov_b32 s53, {dl//4}")
    for h in range(dl):
        if n>=dl: a(f"s_waitcnt vmcnt({dl-1})")
        issue_static(h,None); n+=1
        if n==dl: setup2()
    st(6)
    a("s_barrier")
    st(1)
    def arrive(c,iss):
        k=vq.index(c%16)
        a(f"s_waitcnt vmcnt({len(vq)-1-k})")
        del vq[:k+1]
        if sum(1 for x in vq if isinstance(x,int))<cd[0]: iss(c+cd[0])
    def do_boost(iss):
        for h in range(dl,dl+boost): iss(h)
    def loop_begin(lbl):
        vq[:]=[x for x in vq if x!='S']
        if align: a.flush(); a.raw(f".p2align {align}")
        a.label(lbl)
        return list(vq)
    def dots1(base,i,nh,dbase):
        s_=i//2
        for e4 in range(4):
            e=(i%2)*4+e4
            for h in range(nh):
                d=dbase+s_*nh+h
                a(f"v_dot2_f32_bf16 v{d}, v{base+i*4+e4}, v{Q+h*8+e}, {'0' if e==0 else 'v%d'%d}")
    def reduce(nh,dbase,tb,ns=2):
        for s_ in range(ns):
            if nh==2:
                a(f"v_add_f32_dpp v{tb+s_}, v{dbase+s_*2}, v{dbase+s_*2} row_ror:8 row_mask:0xf bank_mask:0x3")
                a(f"v_add_f32_dpp v{tb+s_}, v{dbase+s_*2+1}, v{dbase+s_*2+1} row_ror:8 row_mask:0xf bank_mask:0xc")
            else:
                a(f"v_add_f32_dpp v{tb+s_}, v{dbase+s_}, v{dbase+s_} row_ror:8 {DPPF}")
        for m in ("row_half_mirror","quad_perm:[1,0,3,2]","quad_perm:[2,3,0,1]"):
            for s_ in range(ns):
                a(f"v_add_f32_dpp v{tb+s_}, v{tb+s_}, v{tb+s_} {m} {DPPF}")
    def kunit(j,jl,nh,iss):
        for i in range(4):
            arrive(4*j+i,iss); dots1(RING+j*16,i,nh,D)
        reduce(nh,D,T)
        a(f"v_max3_f32 v{VM}, v{VM}, v{T}, v{T+1}")
        a(f"v_cvt_pk_bf16_f32 v{T+2}, v{T}, v{T+1}")
        a(f"ds_write_b32 v{VSC}, v{T+2} offset:{jl*256}")
    def pcalc(t0,ar):
        a(f"v_fma_f32 v{t0}, v{t0}, s62, -v{VMC}")
        a(f"v_fma_f32 v{t0+1}, v{t0+1}, s62, -v{VMC}")
        a(f"v_exp_f32 v{t0}, v{t0}")
        a(f"v_exp_f32 v{t0+1}, v{t0+1}")
        a(f"v_add_f32 v{VL}, v{VL}, v{t0}")
        a(f"v_add_f32 v{VL}, v{VL}, v{t0+1}")
        a(f"v_cvt_pk_bf16_f32 v{t0}, v{t0}, v{t0+1}")
        for s_ in range(2):
            for v in range(4):
                a(f"v_perm_b32 v{ar+s_*4+v}, v{t0}, v{t0}, v{SEL[s_][v]}")
    def pvunit(j,iss):
        for i in range(4):
            arrive(4*j+i,iss)
            r=RING+j*16+i*4; c=ACC+(i%2)*4; ar=AR+(i//2)*4
            a(f"v_mfma_f32_16x16x32_bf16 v[{c}:{c+3}], v[{ar}:{ar+3}], v[{r}:{r+3}], v[{c}:{c+3}]")
    def vunit(j,jl,iss,par=None,nxt=None,side=None):
        if par is None: par=j%2
        if nxt is None: nxt=jl+1
        pk=PKR+par
        a("s_waitcnt lgkmcnt(0)")
        a(f"v_lshlrev_b32 v{T}, 16, v{pk}")
        a(f"v_and_b32 v{T+1}, 0xffff0000, v{pk}")
        a(f"ds_read_b32 v{PKR+1-par}, v{VSC} offset:{nxt*256}")
        pcalc(T,AR)
        if side is None: pvunit(j,iss)
        else:
            for i in range(4):
                r=side*16+i*4; c=ACC+(i%2)*4; ar=AR+(i//2)*4
                a(f"v_mfma_f32_16x16x32_bf16 v[{c}:{c+3}], v[{ar}:{ar+3}], a[{r}:{r+3}], v[{c}:{c+3}]")
    def xrow(reg,op):
        a(f"v_mov_b32 v{T+7}, v{reg}")
        a(f"v_permlane16_swap_b32 v{reg}, v{T+7}")
        a(f"{op} v{reg}, v{reg}, v{T+7}")
        a(f"v_mov_b32 v{T+7}, v{reg}")
        a(f"v_permlane32_swap_b32 v{reg}, v{T+7}")
        a(f"{op} v{reg}, v{reg}, v{T+7}")
    def pubvec():
        a(f"v_lshrrev_b32 v{PA}, 5, v0"); a(f"v_lshlrev_b32 v{PA}, 15, v{PA}")
        a(f"v_lshrrev_b32 v{PA+1}, 2, v2"); a(f"v_lshl_add_u32 v{PA}, v{PA+1}, 12, v{PA}")
        a(f"v_and_b32 v{PA+1}, 3, v2"); a(f"v_lshl_add_u32 v{PA}, v{PA+1}, 5, v{PA}")
        a(f"v_and_b32 v{PA+1}, 1, v3"); a(f"v_lshl_add_u32 v{PA}, v{PA+1}, 4, v{PA}")
        a(f"v_lshlrev_b32 v{PA+1}, 8, v0")
        a(f"v_mov_b32 v{PA+2}, {LCNT}"); a(f"v_mov_b32 v{PA+3}, 1")
    def pubaddr(kind):
        if kind=='A':
            a("s_lshl_b32 s64, s97, 4")
            a("s_and_b32 s65, s2, 31")
        else:
            a("s_lshl_b32 s64, s96, 3"); a("s_add_u32 s64, s64, 128")
            a("s_and_b32 s65, s2, 15"); a("s_lshl_b32 s65, s65, 1"); a("s_add_u32 s65, s65, s31")
        a("s_lshl_b32 s44, s64, 12"); a("s_lshl_b32 s45, s65, 7"); a("s_add_u32 s44, s44, s45")
        a(f"s_add_u32 s44, s44, {IN1D}")
        a("s_add_u32 s45, s44, 0x4000")
        a("s_lshl_b32 s46, s64, 8"); a("s_and_b32 s47, s65, 7"); a("s_lshl_b32 s47, s47, 5"); a("s_add_u32 s46, s46, s47")
        a("s_and_b32 s47, s65, 0x18"); a("s_add_u32 s46, s46, s47")
        a(f"s_add_u32 s46, s46, {IN1H}")
    def mergeA():
        xrow(VL,"v_add_f32")
        a("s_mul_i32 s64, s31, 2560"); a(f"s_add_u32 s64, s64, {LDMP}")
        a(f"v_lshlrev_b32 v{T+4}, 4, v0"); a(f"v_lshlrev_b32 v{T+5}, 3, v0")
        a(f"v_add_u32 v{T}, s64, v{T+4}"); a(f"v_add_u32 v{T+1}, s64, v{T+5}")
        a(f"ds_write_b128 v{T}, v[{ACC}:{ACC+3}]")
        a(f"ds_write_b128 v{T}, v[{ACC+4}:{ACC+7}] offset:1024")
        a(f"ds_write_b64 v{T+1}, v[{VL}:{VMC}] offset:2048")
        a("s_waitcnt lgkmcnt(0)")
        a("s_mov_b64 exec, 1")
        a(f"ds_add_rtn_u32 v{T+2}, v{PA+2}, v{PA+3} offset:{LMRG-LCNT}")
        a("s_mov_b64 exec, -1")
        a(f"s_sub_u32 s64, {2*LDMP+2560}, s64")
        a(f"v_add_u32 v{T}, s64, v{T+4}"); a(f"v_add_u32 v{T+1}, s64, v{T+5}")
        a("s_waitcnt lgkmcnt(0)")
        a(f"v_readfirstlane_b32 s64, v{T+2}")
        a("s_cmp_eq_u32 s64, 0")
        a("s_cbranch_scc1 L_nopub")
        a(f"ds_read_b64 v[{T+2}:{T+3}], v{T+1} offset:2048")
        a(f"ds_read_b128 v[{AR}:{AR+3}], v{T}")
        a(f"ds_read_b128 v[{AR+4}:{AR+7}], v{T} offset:1024")
        a("s_waitcnt lgkmcnt(2)")
        a(f"v_max_f32 v{T+4}, v{VMC}, v{T+3}")
        a(f"v_sub_f32 v{T+5}, v{VMC}, v{T+4}"); a(f"v_sub_f32 v{T+6}, v{T+3}, v{T+4}")
        a(f"v_exp_f32 v{T+5}, v{T+5}"); a(f"v_exp_f32 v{T+6}, v{T+6}")
        a(f"v_mov_b32 v{VMC}, v{T+4}")
        a(f"v_mul_f32 v{VL}, v{VL}, v{T+5}"); a(f"v_fmac_f32 v{VL}, v{T+2}, v{T+6}")
        for d,sr in ((T,T+5),(T+1,T+6)):
            a(f"v_mov_b32_dpp v{d}, v{sr} row_newbcast:0 row_mask:0x3 bank_mask:0xf")
            a(f"v_mov_b32_dpp v{d}, v{sr} row_newbcast:8 row_mask:0xc bank_mask:0xf")
        for i in range(8): a(f"v_mul_f32 v{ACC+i}, v{ACC+i}, v{T}")
        a("s_waitcnt lgkmcnt(0)")
        for i in range(8): a(f"v_fmac_f32 v{ACC+i}, v{AR+i}, v{T+1}")
        publish('A')
        a.label("L_nopub")
    def publish(kind):
        if kind!='A': xrow(VL,"v_add_f32")
        a(f"v_min_u32 v{T+2}, -2, v{VMC}"); a(f"v_min_u32 v{T+3}, -2, v{VL}")
        for i in range(8): a(f"v_min_u32 v{ACC+i}, -2, v{ACC+i}")
        if kind!='A': a("s_mov_b32 exec_hi, 0")
        a(f"buffer_store_dwordx4 v[{ACC}:{ACC+3}], v{PA}, s[36:39], s44 offen sc1")
        a(f"buffer_store_dwordx4 v[{ACC+4}:{ACC+7}], v{PA}, s[36:39], s45 offen sc1")
        a(f"s_mov_b64 exec, {(0x101 if shh&1 else 0xffff) if kind=='A' else (1 if shh&2 else 0xff)}")
        a(f"buffer_store_dwordx2 v[{T+2}:{T+3}], v{PA+1}, s[36:39], s46 offen sc1")
        if kind!='A':
            a("s_mov_b64 exec, 1")
            a(f"ds_add_u32 v{PA+2}, v{PA+3}")
        a("s_mov_b64 exec, -1")
    def loadq(lq,nh):
        a(f"v_lshlrev_b32 v{T}, 4, v2")
        for h in range(nh):
            a(f"ds_read_b128 v[{Q+h*8}:{Q+h*8+3}], v{T} offset:{lq+h*512}")
            a(f"ds_read_b128 v[{Q+h*8+4}:{Q+h*8+7}], v{T} offset:{lq+h*512+256}")
    for p,(br,kv,n) in enumerate(PH):
        nh=2 if br=='A' else 1
        iss=lambda h,p=p: issue_static(h,p)
        cm(f"---- branch {br}, {'scores = q.K (bf16-rounded, kept in LDS) and running max' if kv=='K' else 'p = exp2(c*s - c*max), o += p.V'}")
        a(f"v_lshlrev_b32 v{VSC}, 2, v0")
        a(f"v_add_u32 v{VSC}, s63, v{VSC}")
        done=0; tail=0
        if kv=='K':
            loadq(LQA if br=='A' else LQB,nh)
            a(f"v_mov_b32 v{VM}, 0xff800000")
            a("s_waitcnt lgkmcnt(0)")
        else:
            a(f"ds_read_b32 v{PKR}, v{VSC} offset:{NV*256 if p==1 else 0}")
            xrow(VM,"v_max_f32")
            a(f"v_cvt_pk_bf16_f32 v{VM}, v{VM}, v{VM}")
            a(f"v_and_b32 v{VM}, 0xffff0000, v{VM}")
            a(f"v_mul_f32 v{VMC}, s62, v{VM}")
            a(f"v_mov_b32 v{VL}, 0")
            for i in range(8): a(f"v_mov_b32 v{ACC+i}, 0")
            if p==1: pubvec()
            pubaddr(br)
            if p==3: tail=8
        def group(jl0,iss):
            for j in range(4):
                if kv=='K': kunit(j,jl0+j,nh,iss)
                else: vunit(j,jl0+j,iss)
        if p==1 and NV:
            for k in range(NV):
                vunit(k%4,None,iss,0,k)
                vunit(None,None,None,1,NV+k+1,side=k)
            done=2*NV
            a(f"v_add_u32 v{VSC}, {done*256}, v{VSC}")
        if done==0 and len(vq)!=dl:
            group(0,iss); done=4
            a(f"v_add_u32 v{VSC}, 1024, v{VSC}")
        assert (n-done-tail)%4==0
        a(f"s_mov_b32 s60, {(n-done-tail)//4}")
        q0=loop_begin(f"L_ph{p}")
        group(0,iss)
        assert vq==q0,(vq,q0)
        a(f"v_add_u32 v{VSC}, 1024, v{VSC}")
        a("s_sub_u32 s60, s60, 1")
        a("s_cmp_lg_u32 s60, 0")
        a(f"s_cbranch_scc1 L_ph{p}")
        if p<3: do_boost(lambda h: issue_static(h,p+1))
        if p==1:
            lds_wait("L_go",T,LGO,1,2)
            mergeA()
        if tail:
            def iss1(h):
                if h==16+TQ: ticket_req()
                iss(h)
            for h in range(dl,dlp): iss(h)
            cd[0]=dlp
            group(0,iss1)
            group(4,lambda h: issue_static(h,None) if h<16 else issue_pool(h))
            st(5)
            cm("---- dynamic pool: 16-key blocks of branch B handed out by ticket, online softmax")
            a(f"s_cmp_eq_u32 s88, {0 if nr0 else INV}")
            a("s_cbranch_scc1 L_pool_end")
            def block(sfx):
                for j in range(2):
                    for i in range(4):
                        arrive(4*j+i,issue_pool); dots1(RING+j*16,i,1,D+2*j)
                reduce(1,D,T,4)
                a(f"v_cvt_pk_bf16_f32 v{T+4}, v{T}, v{T+1}")
                a(f"v_cvt_pk_bf16_f32 v{T+5}, v{T+2}, v{T+3}")
                a(f"v_lshlrev_b32 v{T}, 16, v{T+4}"); a(f"v_and_b32 v{T+1}, 0xffff0000, v{T+4}")
                a(f"v_lshlrev_b32 v{T+2}, 16, v{T+5}"); a(f"v_and_b32 v{T+3}, 0xffff0000, v{T+5}")
                a(f"v_max3_f32 v{T+4}, v{T}, v{T+1}, v{T+2}")
                a(f"v_max_f32 v{T+4}, v{T+4}, v{T+3}")
                a(f"v_cmp_gt_f32 vcc, v{T+4}, v{VM}")
                a("s_cmp_eq_u64 vcc, 0")
                a(f"s_cbranch_scc1 L_norescale{sfx}")
                a(f"v_max_f32 v{VM}, v{VM}, v{T+4}")
                xrow(VM,"v_max_f32")
                a(f"v_mul_f32 v{T+4}, s62, v{VM}")
                a(f"v_sub_f32 v{T+5}, v{VMC}, v{T+4}")
                a(f"v_exp_f32 v{T+5}, v{T+5}")
                a(f"v_mov_b32 v{VMC}, v{T+4}")
                a(f"v_mul_f32 v{VL}, v{VL}, v{T+5}")
                for i in range(8): a(f"v_mul_f32 v{ACC+i}, v{ACC+i}, v{T+5}")
                a.label(f"L_norescale{sfx}")
                pcalc(T,AR)
                pvunit(2,issue_pool)
                pcalc(T+2,AR)
                pvunit(3,issue_pool)
            q0=loop_begin("L_pool")
            block("")
            assert vq==q0,(vq,q0)
            a(f"s_cmp_lg_u32 s88, {0 if nr0 else INV}")
            a("s_cbranch_scc1 L_pool")
            a.label("L_pool_end")
            publish('B')
        if p<3 and not (est and p!=1): st(2+p)
    write_stamps(False)
    a.label("L_done")
    a("s_endpgm")
    if report is not None:
        import rep; rep.emit(a,report,WS_USED,W,LW)
    a.raw('.section .rodata,"a"')
    for nm,nv in ((NAME,256+16*NV),)+((("report_kernel",16),) if report is not None else ()):
        a.raw(".p2align 6"); a.raw(f".amdhsa_kernel {nm}")
        a.raw(f"  .amdhsa_next_free_vgpr {nv}"); a.raw("  .amdhsa_next_free_sgpr 98"); a.raw(f"  .amdhsa_accum_offset {min(nv,256)}")
        a.raw("  .amdhsa_float_denorm_mode_32 3")
        a.raw("  .amdhsa_group_segment_fixed_size 0"); a.raw("  .amdhsa_kernarg_size 104"); a.raw("  .amdhsa_user_sgpr_count 2")
        a.raw("  .amdhsa_user_sgpr_kernarg_segment_ptr 1"); a.raw("  .amdhsa_system_sgpr_workgroup_id_x 1"); a.raw(".end_amdhsa_kernel")
    return a.text()

def make(cfgs, listfile="list.txt"):
    import build
    lines=[]
    for c in cfgs:
        lab="g18_"+"_".join(f"{k}{str(v).replace(' ','').replace(',','.').strip('()[]')}" for k,v in c.items() if k!='stamp')
        fn="k_"+lab+".s"
        open(fn,"w").write(gen(**c))
        co=build.build(fn)
        lines.append(f"{lab} {co} {256*W if c.get('stamp') else 0} {NAME}:256:{(W+1)*64}:{c.get('lds',72960)}")
    open(listfile,"w").write("\n".join(lines)+"\n")
if __name__=="__main__":
    import json
    cfg=json.loads(sys.argv[2]) if len(sys.argv)>2 else {}
    open(sys.argv[1],"w").write(gen(**cfg))
```

```python
import struct, math, sys
from asmlib import Asm
NAME="concat_heads__gqa_block_cached__mha_block_cached__decode_kernel"
HDR=open('concat_heads__gqa_block_cached__mha_block_cached__decode.s.ref').read().split('; Override')[0]
def f2u(x): return struct.unpack('<I',struct.pack('<f',x))[0]
QP=0x10000
TK=0x50000
IN1H=0x60000
IN1D=0x80000
YO=0x180000
WS_USED=0x200000
LQA=0; LQB=1024; LCNT=1536; LGO=1540; LMRG=1544; LSIG=1548; LNON=1552; LDMP=2048; LSC=2048+3*2560
DPPF="row_mask:0xf bank_mask:0xf"
INV=0x7f000000
W=2; LW=1

def gen(stamp=False, lds=75520, dl=10, NV=12, PK=128, blk=32, tq=3, gsleep=24, psl=1, spin=1<<20, mix=True, report=None,
        thr=2, boost=0, sep=False, clr=2, cfl='sc1', wsoff=0, bar0=28, est=False, smodel=False, dlp=12, pm=20, shh=0, align=0, pad=0, ax=True, nr0=True, apub='help', pmask=True, asig=33, ph=True, warm=0, wfl='sc1', wthr=0):
    SPIN=spin
    a=Asm()
    cm=lambda t: a.raw("    ; "+t)
    a.raw(HDR.rstrip())
    if report is None: a.raw(f"; @launch grid=(256,1,1) block=({(W+1)*64},1,1) lds={lds}")
    else:
        a.raw(f"; @launch kernel={NAME} grid=(256,1,1) block=({(W+1)*64},1,1) lds={lds}")
        a.raw("; @launch kernel=report_kernel grid=(1,1,1) block=(64,1,1) lds=1024")
    a.raw('.amdgcn_target "amdgcn-amd-amdhsa--gfx950"')
    a.raw(".text"); a.raw(f".globl {NAME}"); a.raw(".p2align 8"); a.raw(f".type {NAME},@function"); a.raw(f"{NAME}:")
    def st(k):
        if stamp:
            a("s_memrealtime s[68:69]"); a("s_waitcnt lgkmcnt(0)"); a(f"s_mov_b32 s{72+k}, s68")
    for t in """Decode attention for both branches in one launch, HBM-bound (805 MB of K/V read once, nt loads).
    256 workgroups x 3 waves, one per CU.  Waves 1,2 stream; wave 0 is a helper.
    Streaming waves: A_k, A_v, B_k, B_v (static shares), then a dynamic pool of 16-key blocks of B (atomic tickets)
      K pass : 4 rows x 256 B per load, v_dot2 + DPP row reduction, scores rounded to bf16 (as the reference does), kept in LDS
      V pass : p = exp2(c*s - c*max) with the true max of the pass, o += p.V by MFMA with a diagonal A operand
      about 10 loads in flight per wave: enough to saturate HBM without oversubscribing the fabric
    Helper: q = x.wq (4 k-slices, MFMA) -> nonce-tagged granules in d_ws -> gathered per workgroup;
      at the end combines the (m, l, o) records of a head for 32 rows, multiplies with wo, and 28 helpers per branch
      add the 128 partial rows.  Every 16-byte granule handed over in d_ws carries this launch's nonce (64 bits, or 4 x 12 low mantissa bits).""".split("\n"):
        cm(t.strip())
    a(f"""
    s_cmp_ge_u32 s2, 256
    s_cbranch_scc1 L_done
    s_load_dwordx16 s[4:19], s[0:1], 0
    s_load_dwordx8 s[20:27], s[0:1], 64
    s_load_dwordx2 s[28:29], s[0:1], 96
    v_lshrrev_b32 v1, 6, v0
    v_and_b32 v0, 63, v0
    v_readfirstlane_b32 s30, v1
    v_and_b32 v2, 15, v0
    v_lshrrev_b32 v3, 4, v0
    s_mov_b32 s38, {WS_USED}
    s_mov_b32 s39, 0x20000
    s_lshr_b32 s48, s2, 4
    s_lshl_b32 s48, s48, 3
    s_and_b32 s49, s2, 7
    s_or_b32 s48, s48, s49
    s_bfe_u32 s55, s2, 0x10003
    s_lshr_b32 s96, s2, 4
    s_lshr_b32 s97, s2, 5
    """)
    if ax: a("s_xor_b32 s97, s97, s49")
    a("s_cmp_eq_u32 s30, 0"); a("s_cbranch_scc0 L_stream")
    def selectors():
        a("""
        v_and_b32 v4, 1, v0
        v_cmp_eq_u32 vcc, 1, v4
        v_mov_b32 v5, 0x0c0c0100
        v_mov_b32 v6, 0x01000c0c
        v_cndmask_b32 v5, v5, v6, vcc
        v_mov_b32 v6, 0x0c0c0302
        v_mov_b32 v7, 0x03020c0c
        v_cndmask_b32 v6, v6, v7, vcc
        v_bfe_u32 v4, v0, 1, 2
        v_mov_b32 v7, 0x0c0c0c0c
        """)
        for v in range(4):
            a(f"v_cmp_eq_u32 vcc, {v}, v4")
            a(f"v_cndmask_b32 v{8+v}, v7, v5, vcc")
            a(f"v_cndmask_b32 v{12+v}, v7, v6, vcc")
    SEL=[[8,9,10,11],[12,13,14,15]]
    def after_kernarg():
        a("s_waitcnt lgkmcnt(0)")
        if stamp:
            for k in range(8): a(f"s_mov_b32 s{72+k}, 0")
        st(0)
        if wsoff: a(f"s_add_u32 s36, s28, {wsoff}"); a("s_addc_u32 s37, s29, 0")
        else: a("s_mov_b32 s36, s28"); a("s_mov_b32 s37, s29")
    def write_stamps(helper):
        if not stamp: return
        st(7)
        a("s_mov_b32 s36, s28"); a("s_mov_b32 s37, s29")
        a("s_getreg_b32 s66, hwreg(HW_REG_XCC_ID)")
        a("s_mov_b64 exec, 1")
        a("v_mov_b32 v4, 0")
        if not helper:
            a("v_mov_b32 v20, s72"); a("v_mov_b32 v21, s79"); a("v_mov_b32 v22, s66"); a("s_getreg_b32 s67, hwreg(HW_REG_HW_ID)"); a("v_mov_b32 v23, s67")
            a(f"s_lshl_b32 s64, s2, {LW}"); a("s_add_u32 s64, s64, s31"); a("s_lshl_b32 s64, s64, 4")
            a("buffer_store_dwordx4 v[20:23], v4, s[36:39], s64 offen")
        for k in range(8): a(f"v_mov_b32 v{40+k}, s{72+k}")
        a(f"s_mul_i32 s64, s2, {W+1}"); a("s_add_u32 s64, s64, s30"); a("s_lshl_b32 s64, s64, 5"); a("s_add_u32 s64, s64, 0x4000")
        a("buffer_store_dwordx4 v[40:43], v4, s[36:39], s64 offen")
        a("buffer_store_dwordx4 v[44:47], v4, s[36:39], s64 offen offset:16")
    def spin_tail(lbl,sleep):
        if sleep: a(f"s_sleep {sleep}")
        a("s_sub_u32 s65, s65, 1"); a("s_cmp_lg_u32 s65, 0")
        a(f"s_cbranch_scc1 {lbl}")
    def lds_wait(lbl,tmp,addr,val,sleep):
        a(f"v_mov_b32 v{tmp}, {addr}")
        a(f"s_mov_b32 s65, {SPIN}")
        a.label(lbl)
        a(f"ds_read_b32 v{tmp+1}, v{tmp}")
        a("s_waitcnt lgkmcnt(0)")
        a(f"v_readfirstlane_b32 s64, v{tmp+1}")
        a(f"s_cmp_ge_u32 s64, {val}")
        a(f"s_cbranch_scc1 {lbl}d")
        spin_tail(lbl,sleep)
        a.label(lbl+"d")

    def tags(lo,hi):
        a(f"s_and_b32 s4, {lo}, 0x7ff")
        a(f"s_lshr_b32 s5, {lo}, 11")
        a(f"s_lshr_b32 s6, {lo}, 22"); a(f"s_lshl_b32 s7, {hi}, 10"); a("s_or_b32 s6, s6, s7")
        a(f"s_lshr_b32 s7, {hi}, 1")
        for k in (5,6,7): a(f"s_xor_b32 s{k}, s{k}, s4"); a(f"s_and_b32 s{k}, s{k}, 0x7ff")
        for k in range(4): a(f"s_sub_u32 s{8+k}, 0x800, s{4+k}")
    def enc(regs,vmask):
        for k,r in enumerate(regs): a(f"v_add_u32 v{r}, s{8+k%4}, v{r}")
        for k,r in enumerate(regs): a(f"v_and_or_b32 v{r}, v{r}, v{vmask}, s{4+k%4}")
    WR=64; XR=16; HA=32; HC=40; T=56; DT=192; HD=16; O=224
    cm("---------------- helper wave: s48 = index 0..127 inside the branch, s55 = branch (0 = A, 1 = B)")
    a(f"""
    s_setprio 3
    s_memrealtime s[92:93]
    s_mov_b32 s42, 896
    s_mov_b32 s43, 0x20000
    s_mov_b32 s47, 0x20000
    s_mov_b32 s82, 256
    s_mov_b32 s83, 0x20000
    s_and_b32 s60, s48, 31
    s_lshr_b32 s61, s48, 5
    s_mov_b32 s46, {448*8192}
    v_mul_u32_u24 v{T}, 56, v3
    s_mul_i32 s62, s61, 224
    s_mov_b32 s63, {28*8192}
    v_mul_lo_u32 v{T+1}, s63, v3
    v_lshl_add_u32 v{T+1}, v2, 4, v{T+1}
    s_mul_i32 s63, s61, {112*8192}
    s_lshl_b32 s64, s60, 8
    s_add_u32 s63, s63, s64
    s_and_b32 s56, s2, 0xf8
    """)
    after_kernarg()
    cm("workgroup 0 publishes this launch's nonce (tags every hand-off through d_ws) in the zeroed d_debug")
    a(f"""
    s_mov_b32 s80, s26
    s_mov_b32 s81, s27
    s_cmp_lg_u32 s2, 0
    s_cbranch_scc1 L_nononce
    s_or_b32 s92, s92, 1
    v_mov_b32 v{T+4}, s92
    v_mov_b32 v{T+5}, s93
    v_lshlrev_b32 v{T+6}, 3, v0
    s_mov_b32 exec_hi, 0
    buffer_store_dwordx2 v[{T+4}:{T+5}], v{T+6}, s[80:83], 0 offen sc1
    s_mov_b64 exec, -1
    """)
    a.label("L_nononce")
    cm("partial q: 112 rows x 128 columns of wq")
    a("""
    s_cmp_eq_u32 s55, 0
    s_cselect_b32 s40, s4, s14
    s_cselect_b32 s41, s5, s15
    s_cselect_b32 s44, s10, s20
    s_cselect_b32 s45, s11, s21
    """)
    for i in range(28):
        a(f"buffer_load_dwordx4 v[{WR+4*i}:{WR+4*i+3}], v{T+1}, s[44:47], s63 offen nt")
        if i<27: a("s_add_u32 s63, s63, 8192")
        if i==0:
            for k in range(7):
                a(f"buffer_load_dwordx2 v[{XR+2*k}:{XR+2*k+1}], v{T}, s[40:43], s62 offen offset:{8*k}")
        if i+1==bar0: a("s_barrier")
    a(f"buffer_load_dwordx2 v[{T+4}:{T+5}], off, s[80:83], s56 sc1")
    selectors()
    a(f"""
    v_mov_b32 v{HC+4}, {LCNT}
    v_mov_b32 v{HC+6}, 0
    v_mov_b32 v{HC+7}, 0
    ds_write_b64 v{HC+4}, v[{HC+6}:{HC+7}]
    ds_write_b64 v{HC+4}, v[{HC+6}:{HC+7}] offset:8
    v_lshlrev_b32 v{T+2}, 4, v0
    v_and_b32 v{T+3}, 1, v3
    v_lshlrev_b32 v{T+3}, 4, v{T+3}
    v_lshl_add_u32 v{T+3}, v2, 5, v{T+3}
    v_lshrrev_b32 v{T+6}, 5, v0
    v_lshlrev_b32 v{T+6}, 4, v{T+6}
    v_lshl_add_u32 v{T+6}, v{T+3}, 1, v{T+6}
    s_lshl_b32 s63, s61, 15
    s_lshl_b32 s64, s60, 10
    s_add_u32 s63, s63, s64
    s_lshl_b32 s64, s55, 17
    s_add_u32 s63, s63, s64
    s_add_u32 s63, s63, {QP}
    """)
    for i in range(28):
        a(f"s_waitcnt vmcnt({28-i})")
        ar=HA+(i%2)*4
        for v in range(4):
            a(f"v_perm_b32 v{ar+v}, v{XR+i//2}, v{XR+i//2}, v{SEL[i%2][v]}")
        a(f"v_mfma_f32_16x16x32_bf16 v[{HC}:{HC+3}], v[{ar}:{ar+3}], v[{WR+4*i}:{WR+4*i+3}], {'0' if i==0 else 'v[%d:%d]'%(HC,HC+3)}")
    st(1)
    a(f"s_mov_b32 s65, {SPIN}")
    a.label("L_np")
    a("s_waitcnt vmcnt(0)")
    a(f"v_readfirstlane_b32 s92, v{T+4}"); a(f"v_readfirstlane_b32 s93, v{T+5}")
    a("s_cmp_lg_u32 s92, 0")
    a("s_cbranch_scc1 L_nd")
    a(f"buffer_load_dwordx2 v[{T+4}:{T+5}], off, s[80:83], s56 sc1")
    spin_tail("L_np",0)
    a.label("L_nd")
    a("s_mov_b32 exec_lo, 0")
    a(f"v_mov_b32 v{HC}, v{HC+2}"); a(f"v_mov_b32 v{HC+1}, v{HC+3}")
    a("s_mov_b32 exec_lo, -1")
    a(f"v_mov_b32 v{HC+2}, v{T+4}"); a(f"v_mov_b32 v{HC+3}, v{T+5}")
    a(f"buffer_store_dwordx4 v[{HC}:{HC+3}], v{T+6}, s[36:39], s63 offen sc1")
    a(f"v_mov_b32 v{T}, {LNON}")
    a(f"ds_write_b64 v{T}, v[{T+4}:{T+5}]")
    st(2)
    def gather(lbl,nk,base,ldsoff,sleep):
        a(f"s_mov_b32 s65, {SPIN}")
        a.label(lbl)
        base()
        for ks in range(4):
            for k in range(nk):
                r=DT+(ks*nk+k)*4
                a(f"buffer_load_dwordx4 v[{r}:{r+3}], v{T+2}, s[36:39], s62 offen offset:{k*1024} sc1")
            if ks<3: a("s_add_u32 s62, s62, 0x8000")
        a("s_mov_b64 s[66:67], 0")
        for j in range(4*nk):
            a(f"s_waitcnt vmcnt({4*nk-1-j})")
            a(f"v_cmp_ne_u64 vcc, s[92:93], v[{DT+j*4+2}:{DT+j*4+3}]")
            a("s_or_b64 s[66:67], s[66:67], vcc")
        a("s_cmp_eq_u64 s[66:67], 0")
        a(f"s_cbranch_scc1 {lbl}d")
        spin_tail(lbl,sleep)
        a.label(lbl+"d")
        def pr(j): return f"v[{DT+j*4}:{DT+j*4+1}]"
        for k in range(nk):
            a(f"v_pk_add_f32 {pr(k)}, {pr(k)}, {pr(nk+k)}")
            a(f"v_pk_add_f32 {pr(2*nk+k)}, {pr(2*nk+k)}, {pr(3*nk+k)}")
        for k in range(nk): a(f"v_pk_add_f32 {pr(k)}, {pr(k)}, {pr(2*nk+k)}")
        a(f"v_lshlrev_b32 v{T}, 2, v0")
        for k in range(nk): a(f"v_cvt_pk_bf16_f32 v{DT+k*4+2}, v{DT+k*4}, v{DT+k*4+1}")
        for k in range(nk): a(f"ds_write_b32 v{T}, v{DT+k*4+2} offset:{ldsoff+256*k}")
        a("s_waitcnt lgkmcnt(0)")
    def baseA(): a("s_lshl_b32 s62, s97, 12"); a(f"s_add_u32 s62, s62, {QP}")
    def baseB(): a("s_lshl_b32 s62, s96, 11"); a(f"s_add_u32 s62, s62, {QP+0x20000}")
    cm("gather the two A q heads of this workgroup (back off first: the other producers finish at about the same time)")
    if gsleep: a(f"s_sleep {gsleep}")
    gather("L_ga",4,baseA,LQA,8)
    if est: st(5)
    a("s_barrier")
    a("s_setprio 0")
    st(4)
    cm("16 helpers initialise one ticket counter each: {0, 0, nonce} in one store")
    a("s_lshl_b32 s60, s55, 7"); a("s_add_u32 s60, s60, s48")
    a("s_lshl_b32 s52, s60, 12"); a(f"s_add_u32 s52, s52, {IN1D}")
    if ph: a("s_lshl_b32 s53, s60, 9")
    else: a("s_lshr_b32 s53, s60, 3"); a("s_lshl_b32 s53, s53, 9")
    a(f"s_add_u32 s53, s53, {IN1H}")
    a("s_lshl_b32 s54, s60, 11"); a(f"s_add_u32 s54, s54, {YO}")
    a("s_cmp_ge_u32 s60, 16"); a("s_cbranch_scc1 L_notk")
    a("s_lshl_b32 s63, s60, 8"); a(f"s_add_u32 s63, s63, {TK}")
    a(f"v_mov_b32 v{HC}, 0"); a(f"v_mov_b32 v{HC+1}, 0")
    a("s_mov_b64 exec, 1")
    a(f"buffer_store_dwordx4 v[{HC}:{HC+3}], off, s[36:39], s63 sc1")
    a("s_mov_b64 exec, -1")
    a.label("L_notk")
    cm("32 rows of wo stay in registers until the end")
    a(f"""
    s_cmp_eq_u32 s55, 1
    s_cselect_b32 s44, s22, s12
    s_cselect_b32 s45, s23, s13
    s_mov_b32 s46, {4096*896}
    s_mul_i32 s63, s48, {32*896}
    v_bfrev_b32 v{T+7}, v3
    v_lshrrev_b32 v{T+7}, 30, v{T+7}
    v_mul_u32_u24 v{T}, 896, v{T+7}
    v_lshl_add_u32 v{T}, v2, 4, v{T}
    """)
    a("s_mov_b32 s66, 0x00ff00ff"); a("s_mov_b32 s67, 0x00ff00ff")
    for i in range(8):
        for bk in range(4):
            r=WR+(i*4+bk)*4
            if bk==3: a("s_mov_b64 exec, s[66:67]")
            a(f"buffer_load_dwordx4 v[{r}:{r+3}], v{T}, s[44:47], s63 offen offset:{bk*256} nt")
        a("s_mov_b64 exec, -1")
        if i<7: a(f"s_add_u32 s63, s63, {4*896}")
    a("s_waitcnt vmcnt(0)")
    cm("has this head's ticket counter been initialised in this launch?")
    a("s_lshl_b32 s64, s96, 8"); a(f"s_add_u32 s64, s64, {TK}")
    a(f"s_mov_b32 s65, {SPIN}")
    a.label("L_rd")
    a(f"buffer_load_dwordx2 v[{DT}:{DT+1}], off, s[36:39], s64 offset:8 sc1")
    a("s_waitcnt vmcnt(0)")
    a(f"v_cmp_ne_u64 vcc, s[92:93], v[{DT}:{DT+1}]")
    a("s_cmp_eq_u64 vcc, 0")
    a("s_cbranch_scc1 L_rdd")
    spin_tail("L_rd",64)
    a.label("L_rdd")
    cm("q of this workgroup's B head")
    gather("L_gb",2,baseB,LQB,64)
    a(f"v_mov_b32 v{T}, {LGO}"); a(f"v_mov_b32 v{T+1}, 1")
    a(f"ds_write_b32 v{T}, v{T+1}")
    st(3)
    VK=24; PC=25
    def poll(lbl,loads,quads,hdr=None):
        loads()
        a("s_waitcnt vmcnt(0)")
        a(f"s_mov_b32 s65, {SPIN}")
        a.label(lbl)
        if hdr is not None: a(f"v_cmp_ne_u64 s[66:67], s[92:93], v[{hdr+2}:{hdr+3}]")
        for k,q in enumerate(quads):
            for e in range(4):
                if k==0: a(f"v_xor_b32 v{PC+e}, s{4+e}, v{q+e}")
                else: a(f"v_bitop3_b32 v{PC+e}, v{q+e}, s{4+e}, v{PC+e} bitop3:0xbe")
        a(f"v_or_b32 v{PC}, v{PC}, v{PC+1}")
        a(f"v_or3_b32 v{PC}, v{PC}, v{PC+2}, v{PC+3}")
        a(f"v_and_b32 v{PC}, 0xfff, v{PC}")
        a(f"v_cmp_ne_u32 vcc, 0, v{PC}")
        if hdr is not None: a("s_or_b64 vcc, vcc, s[66:67]")
        else: a("s_cmp_lg_u64 vcc, 0")
        a(f"s_cbranch_scc0 {lbl}d")
        a("s_mov_b64 exec, vcc")
        loads()
        a("s_mov_b64 exec, -1")
        a("s_waitcnt vmcnt(48)")
        spin_tail(lbl,psl)
        a.label(lbl+"d")
    tags("s92","s93")
    a(f"v_mov_b32 v{VK}, 0xfffff000")
    a(f"v_lshlrev_b32 v1, 1, v{T+7}"); a(f"v_and_b32 v{T+1}, 3, v0"); a(f"v_lshl_add_u32 v1, v{T+1}, 3, v1")
    a(f"v_lshrrev_b32 v{T+7}, 2, v0"); a(f"v_lshlrev_b32 v{T+7}, 11, v{T+7}")
    a(f"v_lshl_add_u32 v{T+7}, v{T+1}, 4, v{T+7}")
    a(f"v_lshrrev_b32 v{T+6}, 3, v0"); a(f"v_lshl_add_u32 v{T+6}, v{T+1}, 3, v{T+6}"); a(f"v_lshlrev_b32 v{T+6}, 4, v{T+6}")
    a("s_lshl_b32 s84, s48, 6"); a("s_lshl_b32 s60, s55, 18"); a("s_add_u32 s84, s84, s60"); a(f"s_add_u32 s84, s84, {YO}")
    for k in range(1,8): a(f"s_add_u32 s{84+k}, s{83+k}, 0x8000")
    a("""
    s_mov_b32 s40, s24
    s_mov_b32 s41, s25
    s_mov_b32 s42, 1792
    s_lshl_b32 s62, s48, 5
    s_mul_i32 s60, s55, 896
    s_add_u32 s62, s62, s60
    """)
    cm("the merged A record waits in LDS until the pool runs dry: no stores while HBM is saturated")
    lds_wait("L_mw",T,LMRG,3,32)
    a(f"v_lshlrev_b32 v{T}, 3, v0")
    a(f"ds_read_b128 v[{DT}:{DT+3}], v{T+2} offset:{LDMP+5120}")
    a(f"ds_read_b128 v[{DT+4}:{DT+7}], v{T+2} offset:{LDMP+5120+1024}")
    a(f"ds_read_b64 v[{DT+8}:{DT+9}], v{T} offset:{LDMP+5120+2048}")
    a(f"v_mov_b32 v{DT+10}, v{T+4}"); a(f"v_mov_b32 v{DT+11}, v{T+5}")
    a(f"v_and_b32 v{O}, 0x7f, v{T+3}"); a(f"v_lshrrev_b32 v{O+1}, 2, v2"); a(f"v_lshl_add_u32 v{O}, v{O+1}, 12, v{O}")
    a(f"v_lshrrev_b32 v{O+1}, 5, v0"); a(f"v_lshl_add_u32 v{O}, v{O+1}, 15, v{O}")
    a(f"v_lshlrev_b32 v{O+1}, 9, v0")
    a("s_and_b32 s65, s2, 31")
    a("s_lshl_b32 s98, s97, 16"); a("s_lshl_b32 s47, s65, 7"); a("s_add_u32 s98, s98, s47"); a(f"s_add_u32 s98, s98, {IN1D}")
    a("s_lshl_b32 s99, s97, 13"); a("s_lshl_b32 s47, s65, 4"); a("s_add_u32 s99, s99, s47"); a(f"s_add_u32 s99, s99, {IN1H}")
    a("s_add_u32 s47, s98, 0x4000")
    a("s_waitcnt lgkmcnt(0)")
    enc(range(DT,DT+8),VK)
    lds_wait("L_aw",T,LSIG if asig else LCNT,1,2)
    a(f"buffer_store_dwordx4 v[{DT}:{DT+3}], v{O}, s[36:39], s98 offen sc1")
    a(f"buffer_store_dwordx4 v[{DT+4}:{DT+7}], v{O}, s[36:39], s47 offen sc1")
    a("s_mov_b64 exec, 0xffff")
    a(f"buffer_store_dwordx4 v[{DT+8}:{DT+11}], v{O+1}, s[36:39], s99 offen sc1")
    a("s_mov_b64 exec, -1")
    cm("wait until this workgroup's streaming waves are done, then combine the softmax records for 32 output rows")
    lds_wait("L_ow",T,LCNT,thr,2)
    OM=O; OW=O+1; OL=O+2; OX=O+3; OO=O+4; OB=O+8
    def l1loads():
        a(f"buffer_load_dwordx4 v[{HD}:{HD+3}], v{T+6}, s[36:39], s53 offen sc1")
        for j in range(4):
            a(f"buffer_load_dwordx4 v[{DT+4*j}:{DT+4*j+3}], v{T+2}, s[36:39], s52 offen offset:{j*1024} sc1")
    poll("L_hp",l1loads,[DT+4*j for j in range(4)],HD)
    if not est: st(5)
    def xr(reg,op,sw):
        a(f"v_mov_b32 v{OX}, v{reg}"); a(f"{sw} v{reg}, v{OX}"); a(f"{op} v{reg}, v{reg}, v{OX}")
    RED=("quad_perm:[1,0,3,2]","quad_perm:[2,3,0,1]","row_ror:8")
    a(f"v_max_f32_dpp v{OM}, v{HD}, v{HD} {RED[0]} {DPPF}")
    for m in RED[1:]: a(f"v_max_f32_dpp v{OM}, v{OM}, v{OM} {m} {DPPF}")
    xr(OM,"v_max_f32","v_permlane16_swap_b32"); xr(OM,"v_max_f32","v_permlane32_swap_b32")
    a(f"v_sub_f32 v{OW}, v{HD}, v{OM}")
    a(f"v_exp_f32 v{OW}, v{OW}")
    a(f"v_mul_f32 v{OL}, v{OW}, v{HD+1}")
    lchain=[f"v_add_f32_dpp v{OL}, v{OL}, v{OL} {m} {DPPF}" for m in RED]+[f"v_mov_b32 v{OX}, v{OL}",f"v_permlane16_swap_b32 v{OL}, v{OX}",
            f"v_add_f32 v{OL}, v{OL}, v{OX}",f"v_mov_b32 v{OX}, v{OL}",f"v_permlane32_swap_b32 v{OL}, v{OX}"]
    for j in range(4):
        for e in range(4):
            a(f"{'v_mul_f32_dpp' if j==0 else 'v_fmac_f32_dpp'} v{OO+e}, v{OW}, v{DT+4*j+e} quad_perm:[{j},{j},{j},{j}] {DPPF}")
            if e%2==1: a(lchain[2*j+e//2])
    a(f"v_add_f32 v{OL}, v{OL}, v{OX}")
    a(f"v_permlane32_swap_b32 v{OO}, v{OO+1}"); a(f"v_permlane32_swap_b32 v{OO+2}, v{OO+3}")
    a(f"v_rcp_f32 v{OL}, v{OL}")
    a(f"v_add_f32 v{OO}, v{OO}, v{OO+1}"); a(f"v_add_f32 v{OO+2}, v{OO+2}, v{OO+3}")
    a(f"v_permlane16_swap_b32 v{OO}, v{OO+2}")
    a(f"v_add_f32 v{OO}, v{OO}, v{OO+2}")
    a(f"v_add_f32_dpp v{OO}, v{OO}, v{OO} row_ror:8 {DPPF}")
    a(f"v_mul_f32 v{OO}, v{OO}, v{OL}")
    a(f"v_cvt_pk_bf16_f32 v{OO}, v{OO}, v{OO}")
    for i in range(8): a(f"v_mov_b32_dpp v{OB+i}, v{OO} row_newbcast:{i} {DPPF}")
    def prm(i,v): a(f"v_perm_b32 v{HA+(i%2)*4+v}, v{OB+i}, v{OB+i}, v{SEL[0][v]}")
    for v in range(4): prm(0,v)
    for i in range(8):
        ar=HA+(i%2)*4
        for bk in range(4):
            r=WR+(i*4+bk)*4; c=HC+bk*4
            a(f"v_mfma_f32_16x16x32_bf16 v[{c}:{c+3}], v[{ar}:{ar+3}], v[{r}:{r+3}], {'0' if i==0 else 'v[%d:%d]'%(c,c+3)}")
            if i<7 and bk<2: prm(i+1,2*bk); prm(i+1,2*bk+1)
    cm("both half waves hold the same sums: pack two column blocks per store")
    a(f"v_lshrrev_b32 v{OX}, 5, v0"); a(f"v_lshl_add_u32 v{OX}, v{OX}, 9, v{T+3}")
    for pr in range(2):
        c=HC+pr*8
        for e in range(4): a(f"v_permlane32_swap_b32 v{c+e}, v{c+4+e}")
        enc(range(c,c+4),VK)
        if pr==1: a("s_mov_b32 exec_hi, 0x00ff00ff")
        a(f"buffer_store_dwordx4 v[{c}:{c+3}], v{OX}, s[36:39], s54 offen offset:{pr*1024} sc1")
    a("s_mov_b64 exec, -1")
    st(6)
    cm("28 helpers per branch sum the 128 partial rows for 16 output columns each")
    a("s_cmp_ge_u32 s48, 28")
    a("s_cbranch_scc1 L_he")
    def l2loads():
        for k in range(8):
            a(f"buffer_load_dwordx4 v[{DT+4*k}:{DT+4*k+3}], v{T+7}, s[36:39], s{84+k} offen sc1")
    poll("L_yp",l2loads,[DT+4*k for k in range(8)])
    for e in range(0,16,2): a(f"v_pk_add_f32 v[{O+e}:{O+e+1}], v[{DT+e}:{DT+e+1}], v[{DT+16+e}:{DT+17+e}]")
    for half in (8,4):
        for e in range(0,half,2): a(f"v_pk_add_f32 v[{O+e}:{O+e+1}], v[{O+e}:{O+e+1}], v[{O+half+e}:{O+half+e+1}]")
    a(f"v_permlane32_swap_b32 v{O}, v{O+1}"); a(f"v_permlane32_swap_b32 v{O+2}, v{O+3}")
    a(f"v_add_f32 v{O}, v{O}, v{O+1}"); a(f"v_add_f32 v{O+2}, v{O+2}, v{O+3}")
    a(f"v_permlane16_swap_b32 v{O}, v{O+2}")
    a(f"v_add_f32 v{O}, v{O}, v{O+2}")
    for m in ("row_ror:8","row_ror:4"): a(f"v_add_f32_dpp v{O}, v{O}, v{O} {m} {DPPF}")
    a(f"v_cvt_pk_bf16_f32 v{O}, v{O}, v{O}")
    a("s_mov_b32 exec_lo, 0x000f000f"); a("s_mov_b32 exec_hi, 0x000f000f")
    a(f"buffer_store_short v{O}, v1, s[40:43], s62 offen")
    a("s_mov_b64 exec, -1")
    a.label("L_he")
    write_stamps(True)
    a("s_endpgm")

    VOFF=1; VSC=4; VM=5; VL=6; VMC=7
    Q=16; PA=24; ACC=32; AR=40; D=48; T=52; PKR=60; VOFF2=62; VTK=63
    RING=64
    STEP=4096*W
    NA=(1<<19)//STEP; NB=((1<<20)-PK*1024)//STEP
    NT=16*PK//8
    if dlp is None: dlp=dl
    TQ=min(tq,16-dlp)
    cd=[dl]
    vq=[]
    BB=(blk*1024).bit_length()-1
    assert PK%blk==0 and NB%4==0 and NV%4==0 and (2*PK)%(8<<(pm&7))==0
    for k in range(pad): a.raw("    s_nop 0")
    a.label("L_stream")
    cm("---------------- streaming waves")
    a(f"""
    s_sub_u32 s31, s30, 1
    v_lshlrev_b32 v{VOFF}, 9, v3
    v_lshl_add_u32 v{VOFF}, v2, 4, v{VOFF}
    s_mov_b32 s34, 0x200000
    s_mov_b32 s35, 0x20000
    s_mov_b32 s42, 0x200000
    s_mov_b32 s43, 0x20000
    s_lshl_b32 s61, s31, 12
    s_lshl_b32 s49, s55, {BB}
    s_and_b32 s60, s48, 15
    s_lshl_b32 s60, s60, 20
    s_add_u32 s60, s60, s49
    s_lshl_b32 s64, s97, 24
    s_add_u32 s60, s60, s64
    """)
    def adv(r):
        a(f"s_bitset1_b32 {r}, {BB}"); a(f"s_add_u32 {r}, {r}, {STEP}"); a(f"s_bitset0_b32 {r}, {BB}")
    after_kernarg()
    a("s_add_u32 s32, s6, s60"); a("s_addc_u32 s33, s7, 0")
    a("s_add_u32 s40, s8, s60"); a("s_addc_u32 s41, s9, 0")
    if bar0: a("s_barrier")
    if est: st(2)
    OFFS=[0,256,2048,2304]
    PH=[('A','K',NA),('A','V',NA),('B','K',NB),('B','V',NB)]
    ends=[NA,2*NA-NV,2*NA-NV+NB]
    def ld(base,i,srd,soff,voff=VOFF,rf='v'):
        r=base+i*4
        a(f"buffer_load_dwordx4 {rf}[{r}:{r+3}], v{voff}, {srd}, {soff} offen offset:{OFFS[i]} nt")
    def issue_static(h,p):
        h%=16
        ld(RING+(h//4)*16,h%4,"s[32:35]","s52"); vq.append(h)
        if h%4==3:
            adv("s52")
            if p is not None and p<3:
                a("s_add_u32 s53, s53, 1")
                a(f"s_cmp_eq_u32 s53, {ends[p]}")
                b=(40,56,58)[p]
                a(f"s_cselect_b32 s32, s{b}, s32"); a(f"s_cselect_b32 s33, s{b+1}, s33"); a(f"s_cselect_b32 s52, {'s94' if p==0 else 's61'}, s52")
    def ticket_req():
        a("s_mov_b64 exec, 1")
        a(f"v_mov_b32 v{VTK}, 1")
        a(f"buffer_atomic_add v{VTK}, off, s[36:39], s91 sc0 sc1"); vq.append('A')
        a("s_mov_b64 exec, -1")
    def ticket_use():
        assert 'A' not in vq
        a(f"v_readfirstlane_b32 s90, v{VTK}")
        lo=pm&7
        if pm&8:
            a(f"s_lshr_b32 s89, s90, {lo+3}"); a("s_add_u32 s89, s89, s96"); a(f"s_lshr_b32 s88, s90, {lo}"); a("s_add_u32 s88, s88, s89"); a("s_and_b32 s88, s88, 7")
        else: a(f"s_bfe_u32 s88, s90, {lo|(3<<16)}")
        a("s_lshl_b32 s88, s88, 21")
        a(f"s_lshr_b32 s89, s90, {lo+3}"); a(f"s_lshl_b32 s89, s89, {13+lo}"); a("s_add_u32 s88, s88, s89")
        if lo:
            if pm&16: a("s_add_u32 s89, s90, s96"); a(f"s_and_b32 s89, s89, {(1<<lo)-1}")
            else: a(f"s_and_b32 s89, s90, {(1<<lo)-1}")
            a("s_lshl_b32 s89, s89, 13"); a("s_add_u32 s88, s88, s89")
        a(f"s_add_u32 s88, s88, {2*NB*STEP}")
        if apub=='help' and asig:
            a(f"s_cmp_ge_u32 s90, {NT-(asig-1)}"); a("s_cselect_b32 s89, 1, 0")
            a(f"v_mov_b32 v{NON+2}, s89")
            a("s_mov_b64 exec, 1"); a(f"ds_max_u32 v{PA+2}, v{NON+2} offset:{LSIG-LCNT}"); a("s_mov_b64 exec, -1")
        a(f"s_cmp_lt_u32 s90, {NT}")
        if nr0: a("s_cselect_b32 s88, s88, 0"); a("s_cselect_b32 s82, s82, 0"); a("s_cselect_b32 s86, s86, 0")
        else: a(f"s_cselect_b32 s88, s88, {INV}")
    def issue_pool(h):
        h%=16
        if h==0: ticket_use()
        if h==TQ: ticket_req()
        k=h//4
        ld(RING+k*16,h%4,"s[80:83]" if k<2 else "s[84:87]","s88",VOFF if k%2==0 else VOFF2); vq.append(h)
    def setup2():
        selectors()
        a(f"""
        s_lshl_b32 s60, s48, 21
        s_add_u32 s60, s60, s49
        s_add_u32 s56, s16, s60
        s_addc_u32 s57, s17, 0
        s_add_u32 s58, s18, s60
        s_addc_u32 s59, s19, 0
        s_lshl_b32 s60, s96, 24
        s_add_u32 s80, s16, s60
        s_addc_u32 s81, s17, 0
        s_mov_b32 s82, 0x1000000
        s_mov_b32 s83, 0x20000
        s_add_u32 s84, s18, s60
        s_addc_u32 s85, s19, 0
        s_mov_b32 s86, 0x1000000
        s_mov_b32 s87, 0x20000
        s_lshl_b32 s91, s96, 8
        s_add_u32 s91, s91, {TK}
        s_mov_b32 s62, {f2u(math.log2(math.e)/16.0)}
        s_lshl_b32 s63, s31, 15
        s_add_u32 s63, s63, {LSC}
        v_add_u32 v{VOFF2}, 0x1000, v{VOFF}
        """)
    cm(f"while q is being computed: first {NV} V units of branch A go to AGPRs, then the K ring starts; {dl} loads in flight")
    n=0
    a("s_mov_b32 s94, s61")
    for k in range(NV):
        for i in range(4):
            if n>=dl: a(f"s_waitcnt vmcnt({dl-1})")
            if est and n==dl: st(4)
            ld(k*16,i,"s[40:43]","s94",rf='a'); n+=1
            if n==dl: setup2()
        adv("s94")
    a("s_mov_b32 s52, s61")
    a(f"s_mov_b32 s53, {dl//4}")
    for h in range(dl):
        if n>=dl: a(f"s_waitcnt vmcnt({dl-1})")
        issue_static(h,None); n+=1
        if n==dl: setup2()
    st(6)
    a("s_barrier")
    st(1)
    def arrive(c,iss):
        k=vq.index(c%16)
        a(f"s_waitcnt vmcnt({len(vq)-1-k})")
        del vq[:k+1]
        if sum(1 for x in vq if isinstance(x,int))<cd[0]: iss(c+cd[0])
    def do_boost(iss):
        for h in range(dl,dl+boost): iss(h)
    def loop_begin(lbl):
        vq[:]=[x for x in vq if x!='S']
        if align: a.flush(); a.raw(f".p2align {align}")
        a.label(lbl)
        return list(vq)
    def dots1(base,i,nh,dbase):
        s_=i//2
        for e4 in range(4):
            e=(i%2)*4+e4
            for h in range(nh):
                d=dbase+s_*nh+h
                a(f"v_dot2_f32_bf16 v{d}, v{base+i*4+e4}, v{Q+h*8+e}, {'0' if e==0 else 'v%d'%d}")
    def reduce(nh,dbase,tb,ns=2):
        for s_ in range(ns):
            if nh==2:
                a(f"v_add_f32_dpp v{tb+s_}, v{dbase+s_*2}, v{dbase+s_*2} row_ror:8 row_mask:0xf bank_mask:0x3")
                a(f"v_add_f32_dpp v{tb+s_}, v{dbase+s_*2+1}, v{dbase+s_*2+1} row_ror:8 row_mask:0xf bank_mask:0xc")
            else:
                a(f"v_add_f32_dpp v{tb+s_}, v{dbase+s_}, v{dbase+s_} row_ror:8 {DPPF}")
        for m in ("row_half_mirror","quad_perm:[1,0,3,2]","quad_perm:[2,3,0,1]"):
            for s_ in range(ns):
                a(f"v_add_f32_dpp v{tb+s_}, v{tb+s_}, v{tb+s_} {m} {DPPF}")
    def kunit(j,jl,nh,iss):
        for i in range(4):
            arrive(4*j+i,iss); dots1(RING+j*16,i,nh,D)
        reduce(nh,D,T)
        a(f"v_max3_f32 v{VM}, v{VM}, v{T}, v{T+1}")
        a(f"v_cvt_pk_bf16_f32 v{T+2}, v{T}, v{T+1}")
        a(f"ds_write_b32 v{VSC}, v{T+2} offset:{jl*256}")
    def pcalc(t0,ar):
        a(f"v_fma_f32 v{t0}, v{t0}, s62, -v{VMC}")
        a(f"v_fma_f32 v{t0+1}, v{t0+1}, s62, -v{VMC}")
        a(f"v_exp_f32 v{t0}, v{t0}")
        a(f"v_exp_f32 v{t0+1}, v{t0+1}")
        a(f"v_add_f32 v{VL}, v{VL}, v{t0}")
        a(f"v_add_f32 v{VL}, v{VL}, v{t0+1}")
        a(f"v_cvt_pk_bf16_f32 v{t0}, v{t0}, v{t0+1}")
        for s_ in range(2):
            for v in range(4):
                a(f"v_perm_b32 v{ar+s_*4+v}, v{t0}, v{t0}, v{SEL[s_][v]}")
    def pvunit(j,iss):
        for i in range(4):
            arrive(4*j+i,iss)
            r=RING+j*16+i*4; c=ACC+(i%2)*4; ar=AR+(i//2)*4
            a(f"v_mfma_f32_16x16x32_bf16 v[{c}:{c+3}], v[{ar}:{ar+3}], v[{r}:{r+3}], v[{c}:{c+3}]")
    def vunit(j,jl,iss,par=None,nxt=None,side=None):
        if par is None: par=j%2
        if nxt is None: nxt=jl+1
        pk=PKR+par
        a("s_waitcnt lgkmcnt(0)")
        a(f"v_lshlrev_b32 v{T}, 16, v{pk}")
        a(f"v_and_b32 v{T+1}, 0xffff0000, v{pk}")
        a(f"ds_read_b32 v{PKR+1-par}, v{VSC} offset:{nxt*256}")
        pcalc(T,AR)
        if side is None: pvunit(j,iss)
        else:
            for i in range(4):
                r=side*16+i*4; c=ACC+(i%2)*4; ar=AR+(i//2)*4
                a(f"v_mfma_f32_16x16x32_bf16 v[{c}:{c+3}], v[{ar}:{ar+3}], a[{r}:{r+3}], v[{c}:{c+3}]")
    def xrow(reg,op):
        a(f"v_mov_b32 v{T+7}, v{reg}")
        a(f"v_permlane16_swap_b32 v{reg}, v{T+7}")
        a(f"{op} v{reg}, v{reg}, v{T+7}")
        a(f"v_mov_b32 v{T+7}, v{reg}")
        a(f"v_permlane32_swap_b32 v{reg}, v{T+7}")
        a(f"{op} v{reg}, v{reg}, v{T+7}")
    NON=28; VK=31
    def pubvec():
        a(f"v_mov_b32 v{PA+2}, {LCNT}"); a(f"v_mov_b32 v{PA+3}, 1")
        a(f"ds_read_b64 v[{NON}:{NON+1}], v{PA+2} offset:{LNON-LCNT}")
        a(f"v_lshrrev_b32 v{PA}, 5, v0"); a(f"v_lshlrev_b32 v{PA}, 14, v{PA}")
        a(f"v_lshrrev_b32 v{PA+1}, 2, v2"); a(f"v_lshl_add_u32 v{PA}, v{PA+1}, 12, v{PA}")
        a(f"v_and_b32 v{PA+1}, 3, v2"); a(f"v_lshl_add_u32 v{PA}, v{PA+1}, 5, v{PA}")
        a(f"v_and_b32 v{PA+1}, 1, v3"); a(f"v_lshl_add_u32 v{PA}, v{PA+1}, 4, v{PA}")
        a(f"v_lshlrev_b32 v{PA+1}, 9, v0")
        a(f"v_mov_b32 v{VK}, 0xfffff000")
    def pubaddr(kind):
        if kind=='A': return
        a("s_add_u32 s64, s96, 16")
        a("s_and_b32 s65, s2, 15"); a("s_lshl_b32 s65, s65, 1"); a("s_add_u32 s65, s65, s31")
        a("s_lshl_b32 s44, s64, 15"); a("s_lshl_b32 s47, s65, 7"); a("s_add_u32 s44, s44, s47"); a(f"s_add_u32 s44, s44, {IN1D}")
        a("s_lshl_b32 s46, s64, 12"); a("s_lshl_b32 s47, s65, 4"); a("s_add_u32 s46, s46, s47"); a(f"s_add_u32 s46, s46, {IN1H}")
        a(f"v_readfirstlane_b32 s64, v{NON}"); a(f"v_readfirstlane_b32 s65, v{NON+1}")
        tags("s64","s65")
    def mergeA():
        xrow(VL,"v_add_f32")
        a("s_mul_i32 s64, s31, 2560"); a(f"s_add_u32 s64, s64, {LDMP}")
        a(f"v_lshlrev_b32 v{T+4}, 4, v0"); a(f"v_lshlrev_b32 v{T+5}, 3, v0")
        a(f"v_add_u32 v{T}, s64, v{T+4}"); a(f"v_add_u32 v{T+1}, s64, v{T+5}")
        a(f"ds_write_b128 v{T}, v[{ACC}:{ACC+3}]")
        a(f"ds_write_b128 v{T}, v[{ACC+4}:{ACC+7}] offset:1024")
        a(f"ds_write_b64 v{T+1}, v[{VL}:{VMC}] offset:2048")
        a("s_waitcnt lgkmcnt(0)")
        a("s_mov_b64 exec, 1")
        a(f"ds_add_rtn_u32 v{T+2}, v{PA+2}, v{PA+3} offset:{LMRG-LCNT}")
        a("s_mov_b64 exec, -1")
        a(f"s_sub_u32 s64, {2*LDMP+2560}, s64")
        a(f"v_add_u32 v{T}, s64, v{T+4}"); a(f"v_add_u32 v{T+1}, s64, v{T+5}")
        a("s_waitcnt lgkmcnt(0)")
        a(f"v_readfirstlane_b32 s64, v{T+2}")
        a("s_cmp_eq_u32 s64, 0")
        a("s_cbranch_scc1 L_nopub")
        a(f"ds_read_b64 v[{T+2}:{T+3}], v{T+1} offset:2048")
        a(f"ds_read_b128 v[{AR}:{AR+3}], v{T}")
        a(f"ds_read_b128 v[{AR+4}:{AR+7}], v{T} offset:1024")
        a("s_waitcnt lgkmcnt(2)")
        a(f"v_max_f32 v{T+4}, v{VMC}, v{T+3}")
        a(f"v_sub_f32 v{T+5}, v{VMC}, v{T+4}"); a(f"v_sub_f32 v{T+6}, v{T+3}, v{T+4}")
        a(f"v_exp_f32 v{T+5}, v{T+5}"); a(f"v_exp_f32 v{T+6}, v{T+6}")
        a(f"v_mov_b32 v{VMC}, v{T+4}")
        a(f"v_mul_f32 v{VL}, v{VL}, v{T+5}"); a(f"v_fmac_f32 v{VL}, v{T+2}, v{T+6}")
        for d,sr in ((T,T+5),(T+1,T+6)):
            a(f"v_mov_b32_dpp v{d}, v{sr} row_newbcast:0 row_mask:0x3 bank_mask:0xf")
            a(f"v_mov_b32_dpp v{d}, v{sr} row_newbcast:8 row_mask:0xc bank_mask:0xf")
        for i in range(8): a(f"v_mul_f32 v{ACC+i}, v{ACC+i}, v{T}")
        a("s_waitcnt lgkmcnt(0)")
        for i in range(8): a(f"v_fmac_f32 v{ACC+i}, v{AR+i}, v{T+1}")
        a(f"v_lshlrev_b32 v{T}, 4, v0"); a(f"v_lshlrev_b32 v{T+1}, 3, v0")
        a(f"v_mov_b32 v{T+2}, v{VMC}"); a(f"v_mov_b32 v{T+3}, v{VL}")
        a(f"ds_write_b128 v{T}, v[{ACC}:{ACC+3}] offset:{LDMP+5120}")
        a(f"ds_write_b128 v{T}, v[{ACC+4}:{ACC+7}] offset:{LDMP+5120+1024}")
        a(f"ds_write_b64 v{T+1}, v[{T+2}:{T+3}] offset:{LDMP+5120+2048}")
        a("s_waitcnt lgkmcnt(0)")
        a("s_mov_b64 exec, 1"); a(f"ds_add_u32 v{PA+2}, v{PA+3} offset:{LMRG-LCNT}"); a("s_mov_b64 exec, -1")
        a.label("L_nopub")
    def publish(kind):
        cm("both half waves hold the same sums: one store carries both 128-column blocks")
        for e in range(4): a(f"v_permlane32_swap_b32 v{ACC+e}, v{ACC+4+e}")
        enc(range(ACC,ACC+4),VK)
        a(f"buffer_store_dwordx4 v[{ACC}:{ACC+3}], v{PA}, s[36:39], s44 offen sc1")
        xrow(VL,"v_add_f32")
        a(f"v_mov_b32 v{T}, v{VMC}"); a(f"v_mov_b32 v{T+1}, v{VL}"); a(f"v_mov_b32 v{T+2}, v{NON}"); a(f"v_mov_b32 v{T+3}, v{NON+1}")
        a("s_mov_b64 exec, 0xff")
        a(f"buffer_store_dwordx4 v[{T}:{T+3}], v{PA+1}, s[36:39], s46 offen sc1")
        a("s_mov_b64 exec, 1")
        a(f"ds_add_u32 v{PA+2}, v{PA+3}")
        a("s_mov_b64 exec, -1")
    def loadq(lq,nh):
        a(f"v_lshlrev_b32 v{T}, 4, v2")
        for h in range(nh):
            a(f"ds_read_b128 v[{Q+h*8}:{Q+h*8+3}], v{T} offset:{lq+h*512}")
            a(f"ds_read_b128 v[{Q+h*8+4}:{Q+h*8+7}], v{T} offset:{lq+h*512+256}")
    for p,(br,kv,n) in enumerate(PH):
        nh=2 if br=='A' else 1
        iss=lambda h,p=p: issue_static(h,p)
        cm(f"---- branch {br}, {'scores = q.K (bf16-rounded, kept in LDS) and running max' if kv=='K' else 'p = exp2(c*s - c*max), o += p.V'}")
        a(f"v_lshlrev_b32 v{VSC}, 2, v0")
        a(f"v_add_u32 v{VSC}, s63, v{VSC}")
        done=0; tail=0
        if kv=='K':
            loadq(LQA if br=='A' else LQB,nh)
            a(f"v_mov_b32 v{VM}, 0xff800000")
            a("s_waitcnt lgkmcnt(0)")
        else:
            a(f"ds_read_b32 v{PKR}, v{VSC} offset:{NV*256 if p==1 else 0}")
            xrow(VM,"v_max_f32")
            a(f"v_cvt_pk_bf16_f32 v{VM}, v{VM}, v{VM}")
            a(f"v_and_b32 v{VM}, 0xffff0000, v{VM}")
            a(f"v_mul_f32 v{VMC}, s62, v{VM}")
            a(f"v_mov_b32 v{VL}, 0")
            for i in range(8): a(f"v_mov_b32 v{ACC+i}, 0")
            if p==1: pubvec()
            pubaddr(br)
            if p==3: tail=8
        def group(jl0,iss):
            for j in range(4):
                if kv=='K': kunit(j,jl0+j,nh,iss)
                else: vunit(j,jl0+j,iss)
        if p==1 and NV:
            for k in range(NV):
                vunit(k%4,None,iss,0,k)
                vunit(None,None,None,1,NV+k+1,side=k)
            done=2*NV
            a(f"v_add_u32 v{VSC}, {done*256}, v{VSC}")
        if done==0 and len(vq)!=dl:
            group(0,iss); done=4
            a(f"v_add_u32 v{VSC}, 1024, v{VSC}")
        assert (n-done-tail)%4==0
        a(f"s_mov_b32 s60, {(n-done-tail)//4}")
        q0=loop_begin(f"L_ph{p}")
        group(0,iss)
        assert vq==q0,(vq,q0)
        a(f"v_add_u32 v{VSC}, 1024, v{VSC}")
        a("s_sub_u32 s60, s60, 1")
        a("s_cmp_lg_u32 s60, 0")
        a(f"s_cbranch_scc1 L_ph{p}")
        if p<3: do_boost(lambda h: issue_static(h,p+1))
        if p==1:
            mergeA()
            lds_wait("L_go",T,LGO,1,2)
        if tail:
            def iss1(h):
                if h==16+TQ: ticket_req()
                iss(h)
            for h in range(dl,dlp): iss(h)
            cd[0]=dlp
            group(0,iss1)
            group(4,lambda h: issue_static(h,None) if h<16 else issue_pool(h))
            if wthr:
                a("s_mov_b64 exec, 1"); a(f"ds_add_u32 v{PA+2}, v{PA+3} offset:{LMRG-LCNT}"); a("s_mov_b64 exec, -1")
            st(5)
            cm("---- dynamic pool: 16-key blocks of branch B handed out by ticket, online softmax")
            a(f"s_cmp_eq_u32 s88, {0 if nr0 else INV}")
            a("s_cbranch_scc1 L_pool_end")
            def block(sfx):
                for j in range(2):
                    for i in range(4):
                        arrive(4*j+i,issue_pool); dots1(RING+j*16,i,1,D+2*j)
                reduce(1,D,T,4)
                a(f"v_cvt_pk_bf16_f32 v{T+4}, v{T}, v{T+1}")
                a(f"v_cvt_pk_bf16_f32 v{T+5}, v{T+2}, v{T+3}")
                a(f"v_lshlrev_b32 v{T}, 16, v{T+4}"); a(f"v_and_b32 v{T+1}, 0xffff0000, v{T+4}")
                a(f"v_lshlrev_b32 v{T+2}, 16, v{T+5}"); a(f"v_and_b32 v{T+3}, 0xffff0000, v{T+5}")
                a(f"v_max3_f32 v{T+4}, v{T}, v{T+1}, v{T+2}")
                a(f"v_max_f32 v{T+4}, v{T+4}, v{T+3}")
                a(f"v_cmp_gt_f32 vcc, v{T+4}, v{VM}")
                a("s_cmp_eq_u64 vcc, 0")
                a(f"s_cbranch_scc1 L_norescale{sfx}")
                a(f"v_max_f32 v{VM}, v{VM}, v{T+4}")
                xrow(VM,"v_max_f32")
                a(f"v_mul_f32 v{T+4}, s62, v{VM}")
                a(f"v_sub_f32 v{T+5}, v{VMC}, v{T+4}")
                a(f"v_exp_f32 v{T+5}, v{T+5}")
                a(f"v_mov_b32 v{VMC}, v{T+4}")
                a(f"v_mul_f32 v{VL}, v{VL}, v{T+5}")
                for i in range(8): a(f"v_mul_f32 v{ACC+i}, v{ACC+i}, v{T+5}")
                a.label(f"L_norescale{sfx}")
                pcalc(T,AR)
                pvunit(2,issue_pool)
                pcalc(T+2,AR)
                pvunit(3,issue_pool)
            q0=loop_begin("L_pool")
            block("")
            assert vq==q0,(vq,q0)
            a(f"s_cmp_lg_u32 s88, {0 if nr0 else INV}")
            a("s_cbranch_scc1 L_pool")
            a.label("L_pool_end")
            publish('B')
        if p<3 and not (est and p!=1): st(2+p)
    write_stamps(False)
    a.label("L_done")
    a("s_endpgm")
    if report is not None:
        import rep; rep.emit(a,report,WS_USED,W,LW)
    a.raw('.section .rodata,"a"')
    for nm,nv in ((NAME,256+16*NV),)+((("report_kernel",16),) if report is not None else ()):
        a.raw(".p2align 6"); a.raw(f".amdhsa_kernel {nm}")
        a.raw(f"  .amdhsa_next_free_vgpr {nv}"); a.raw("  .amdhsa_next_free_sgpr 100"); a.raw(f"  .amdhsa_accum_offset {min(nv,256)}")
        a.raw("  .amdhsa_float_denorm_mode_32 3")
        a.raw("  .amdhsa_group_segment_fixed_size 0"); a.raw("  .amdhsa_kernarg_size 104"); a.raw("  .amdhsa_user_sgpr_count 2")
        a.raw("  .amdhsa_user_sgpr_kernarg_segment_ptr 1"); a.raw("  .amdhsa_system_sgpr_workgroup_id_x 1"); a.raw(".end_amdhsa_kernel")
    return a.text()

def make(cfgs, listfile="list.txt"):
    import build
    lines=[]
    for c in cfgs:
        lab="g22_"+"_".join(f"{k}{str(v).replace(' ','').replace(',','.').strip('()[]')}" for k,v in c.items() if k!='stamp')
        fn="k_"+lab+".s"
        open(fn,"w").write(gen(**c))
        co=build.build(fn)
        lines.append(f"{lab} {co} {256*W if c.get('stamp') else 0} {NAME}:256:{(W+1)*64}:{c.get('lds',75520)}")
    open(listfile,"w").write("\n".join(lines)+"\n")
if __name__=="__main__":
    import json
    cfg=json.loads(sys.argv[2]) if len(sys.argv)>2 else {}
    open(sys.argv[1],"w").write(gen(**cfg))
```

```python
import struct, math, sys
from asmlib import Asm
NAME="concat_heads__gqa_block_cached__mha_block_cached__decode_kernel"
HDR=open('concat_heads__gqa_block_cached__mha_block_cached__decode.s.ref').read().split('; Override')[0]
def f2u(x): return struct.unpack('<I',struct.pack('<f',x))[0]
QP=0x10000
TK=0x50000
IN1H=0x60000
IN1D=0x80000
YO=0x180000
WS_USED=0x200000
LQA=0; LQB=1024; LCNT=1536; LGO=1540; LMRG=1544; LSIG=1548; LNON=1552; LDMP=2048; LSC=2048+3*2560
DPPF="row_mask:0xf bank_mask:0xf"
INV=0x7f000000
W=2; LW=1

def gen(stamp=False, lds=75520, dl=10, NV=12, PK=128, blk=32, tq=3, gsleep=24, psl=1, spin=1<<20, mix=True, report=None,
        thr=2, boost=0, sep=False, clr=2, cfl='sc1', wsoff=0, bar0=28, est=False, smodel=False, dlp=12, pm=20, shh=0, align=0, pad=0, ax=True, nr0=True, apub='help', pmask=True, asig=33, ph=True, thrA=2, den=0, bx=False, hgate=None, hsl=2, warm=0, wfl='sc1', wthr=0):
    SPIN=spin
    a=Asm()
    cm=lambda t: a.raw("    ; "+t)
    a.raw(HDR.rstrip())
    if report is None: a.raw(f"; @launch grid=(256,1,1) block=({(W+1)*64},1,1) lds={lds}")
    else:
        a.raw(f"; @launch kernel={NAME} grid=(256,1,1) block=({(W+1)*64},1,1) lds={lds}")
        a.raw("; @launch kernel=report_kernel grid=(1,1,1) block=(64,1,1) lds=1024")
    a.raw('.amdgcn_target "amdgcn-amd-amdhsa--gfx950"')
    a.raw(".text"); a.raw(f".globl {NAME}"); a.raw(".p2align 8"); a.raw(f".type {NAME},@function"); a.raw(f"{NAME}:")
    def st(k):
        if stamp:
            a("s_memrealtime s[68:69]"); a("s_waitcnt lgkmcnt(0)"); a(f"s_mov_b32 s{72+k}, s68")
    for t in """Decode attention for both branches in one launch, HBM-bound (805 MB of K/V read once, nt loads).
    256 workgroups x 3 waves, one per CU.  Waves 1,2 stream; wave 0 is a helper.
    Streaming waves: A_k, A_v, B_k, B_v (static shares), then a dynamic pool of 16-key blocks of B (atomic tickets)
      K pass : 4 rows x 256 B per load, v_dot2 + DPP row reduction, scores rounded to bf16 (as the reference does), kept in LDS
      V pass : p = exp2(c*s - c*max) with the true max of the pass, o += p.V by MFMA with a diagonal A operand
      about 10 loads in flight per wave: enough to saturate HBM without oversubscribing the fabric
    Helper: q = x.wq (4 k-slices, MFMA) -> nonce-tagged granules in d_ws -> gathered per workgroup;
      at the end combines the (m, l, o) records of a head for 32 rows, multiplies with wo, and 28 helpers per branch
      add the 128 partial rows.  Every 16-byte granule handed over in d_ws carries this launch's nonce (64 bits, or 4 x 12 low mantissa bits).""".split("\n"):
        cm(t.strip())
    a(f"""
    s_cmp_ge_u32 s2, 256
    s_cbranch_scc1 L_done
    s_load_dwordx16 s[4:19], s[0:1], 0
    s_load_dwordx8 s[20:27], s[0:1], 64
    s_load_dwordx2 s[28:29], s[0:1], 96
    v_lshrrev_b32 v1, 6, v0
    v_and_b32 v0, 63, v0
    v_readfirstlane_b32 s30, v1
    v_and_b32 v2, 15, v0
    v_lshrrev_b32 v3, 4, v0
    s_mov_b32 s38, {WS_USED}
    s_mov_b32 s39, 0x20000
    s_lshr_b32 s48, s2, 4
    s_lshl_b32 s48, s48, 3
    s_and_b32 s49, s2, 7
    s_or_b32 s48, s48, s49
    s_bfe_u32 s55, s2, 0x10003
    s_lshr_b32 s96, s2, 4
    s_lshr_b32 s97, s2, 5
    """)
    if bx: a("s_lshl_b32 s49, s49, 1"); a("s_xor_b32 s96, s96, s49")
    elif ax: a("s_xor_b32 s97, s97, s49")
    a("s_cmp_eq_u32 s30, 0"); a("s_cbranch_scc0 L_stream")
    def selectors():
        a("""
        v_and_b32 v4, 1, v0
        v_cmp_eq_u32 vcc, 1, v4
        v_mov_b32 v5, 0x0c0c0100
        v_mov_b32 v6, 0x01000c0c
        v_cndmask_b32 v5, v5, v6, vcc
        v_mov_b32 v6, 0x0c0c0302
        v_mov_b32 v7, 0x03020c0c
        v_cndmask_b32 v6, v6, v7, vcc
        v_bfe_u32 v4, v0, 1, 2
        v_mov_b32 v7, 0x0c0c0c0c
        """)
        for v in range(4):
            a(f"v_cmp_eq_u32 vcc, {v}, v4")
            a(f"v_cndmask_b32 v{8+v}, v7, v5, vcc")
            a(f"v_cndmask_b32 v{12+v}, v7, v6, vcc")
    SEL=[[8,9,10,11],[12,13,14,15]]
    def after_kernarg():
        a("s_waitcnt lgkmcnt(0)")
        if stamp:
            for k in range(8): a(f"s_mov_b32 s{72+k}, 0")
        st(0)
        if wsoff: a(f"s_add_u32 s36, s28, {wsoff}"); a("s_addc_u32 s37, s29, 0")
        else: a("s_mov_b32 s36, s28"); a("s_mov_b32 s37, s29")
    def write_stamps(helper):
        if not stamp: return
        st(7)
        a("s_mov_b32 s36, s28"); a("s_mov_b32 s37, s29")
        a("s_getreg_b32 s66, hwreg(HW_REG_XCC_ID)")
        a("s_mov_b64 exec, 1")
        a("v_mov_b32 v4, 0")
        if not helper:
            a("v_mov_b32 v20, s72"); a("v_mov_b32 v21, s79"); a("v_mov_b32 v22, s66"); a("s_getreg_b32 s67, hwreg(HW_REG_HW_ID)"); a("v_mov_b32 v23, s67")
            a(f"s_lshl_b32 s64, s2, {LW}"); a("s_add_u32 s64, s64, s31"); a("s_lshl_b32 s64, s64, 4")
            a("buffer_store_dwordx4 v[20:23], v4, s[36:39], s64 offen")
        for k in range(8): a(f"v_mov_b32 v{40+k}, s{72+k}")
        a(f"s_mul_i32 s64, s2, {W+1}"); a("s_add_u32 s64, s64, s30"); a("s_lshl_b32 s64, s64, 5"); a("s_add_u32 s64, s64, 0x4000")
        a("buffer_store_dwordx4 v[40:43], v4, s[36:39], s64 offen")
        a("buffer_store_dwordx4 v[44:47], v4, s[36:39], s64 offen offset:16")
    def spin_tail(lbl,sleep):
        if sleep: a(f"s_sleep {sleep}")
        a("s_sub_u32 s65, s65, 1"); a("s_cmp_lg_u32 s65, 0")
        a(f"s_cbranch_scc1 {lbl}")
    def lds_wait(lbl,tmp,addr,val,sleep):
        a(f"v_mov_b32 v{tmp}, {addr}")
        a(f"s_mov_b32 s65, {SPIN}")
        a.label(lbl)
        a(f"ds_read_b32 v{tmp+1}, v{tmp}")
        a("s_waitcnt lgkmcnt(0)")
        a(f"v_readfirstlane_b32 s64, v{tmp+1}")
        a(f"s_cmp_ge_u32 s64, {val}")
        a(f"s_cbranch_scc1 {lbl}d")
        spin_tail(lbl,sleep)
        a.label(lbl+"d")

    def tags(lo,hi):
        a(f"s_and_b32 s4, {lo}, 0x7ff")
        a(f"s_lshr_b32 s5, {lo}, 11")
        a(f"s_lshr_b32 s6, {lo}, 22"); a(f"s_lshl_b32 s7, {hi}, 10"); a("s_or_b32 s6, s6, s7")
        a(f"s_lshr_b32 s7, {hi}, 1")
        for k in (5,6,7): a(f"s_xor_b32 s{k}, s{k}, s4"); a(f"s_and_b32 s{k}, s{k}, 0x7ff")
        for k in range(4): a(f"s_sub_u32 s{8+k}, 0x800, s{4+k}")
    def enc(regs,vmask):
        for k,r in enumerate(regs): a(f"v_add_u32 v{r}, s{8+k%4}, v{r}")
        for k,r in enumerate(regs): a(f"v_and_or_b32 v{r}, v{r}, v{vmask}, s{4+k%4}")
    WR=64; XR=16; HA=32; HC=40; T=56; DT=192; HD=16; O=224
    cm("---------------- helper wave: s48 = index 0..127 inside the branch, s55 = branch (0 = A, 1 = B)")
    a(f"""
    s_setprio 3
    s_memrealtime s[92:93]
    s_mov_b32 s42, 896
    s_mov_b32 s43, 0x20000
    s_mov_b32 s47, 0x20000
    s_mov_b32 s82, 256
    s_mov_b32 s83, 0x20000
    s_and_b32 s60, s48, 31
    s_lshr_b32 s61, s48, 5
    s_mov_b32 s46, {448*8192}
    v_mul_u32_u24 v{T}, 56, v3
    s_mul_i32 s62, s61, 224
    s_mov_b32 s63, {28*8192}
    v_mul_lo_u32 v{T+1}, s63, v3
    v_lshl_add_u32 v{T+1}, v2, 4, v{T+1}
    s_mul_i32 s63, s61, {112*8192}
    s_lshl_b32 s64, s60, 8
    s_add_u32 s63, s63, s64
    s_and_b32 s56, s2, 0xf8
    """)
    after_kernarg()
    cm("workgroup 0 publishes this launch's nonce (tags every hand-off through d_ws) in the zeroed d_debug")
    a(f"""
    s_mov_b32 s80, s26
    s_mov_b32 s81, s27
    s_cmp_lg_u32 s2, 0
    s_cbranch_scc1 L_nononce
    s_or_b32 s92, s92, 1
    v_mov_b32 v{T+4}, s92
    v_mov_b32 v{T+5}, s93
    v_lshlrev_b32 v{T+6}, 3, v0
    s_mov_b32 exec_hi, 0
    buffer_store_dwordx2 v[{T+4}:{T+5}], v{T+6}, s[80:83], 0 offen sc1
    s_mov_b64 exec, -1
    """)
    a.label("L_nononce")
    cm("partial q: 112 rows x 128 columns of wq")
    a("""
    s_cmp_eq_u32 s55, 0
    s_cselect_b32 s40, s4, s14
    s_cselect_b32 s41, s5, s15
    s_cselect_b32 s44, s10, s20
    s_cselect_b32 s45, s11, s21
    """)
    for i in range(28):
        a(f"buffer_load_dwordx4 v[{WR+4*i}:{WR+4*i+3}], v{T+1}, s[44:47], s63 offen nt")
        if i<27: a("s_add_u32 s63, s63, 8192")
        if i==0:
            for k in range(7):
                a(f"buffer_load_dwordx2 v[{XR+2*k}:{XR+2*k+1}], v{T}, s[40:43], s62 offen offset:{8*k}")
        if i+1==bar0: a("s_barrier")
    a(f"buffer_load_dwordx2 v[{T+4}:{T+5}], off, s[80:83], s56 sc1")
    selectors()
    a(f"""
    v_mov_b32 v{HC+4}, {LCNT}
    v_mov_b32 v{HC+6}, 0
    v_mov_b32 v{HC+7}, 0
    ds_write_b64 v{HC+4}, v[{HC+6}:{HC+7}]
    ds_write_b64 v{HC+4}, v[{HC+6}:{HC+7}] offset:8
    v_lshlrev_b32 v{T+2}, 4, v0
    v_and_b32 v{T+3}, 1, v3
    v_lshlrev_b32 v{T+3}, 4, v{T+3}
    v_lshl_add_u32 v{T+3}, v2, 5, v{T+3}
    v_lshrrev_b32 v{T+6}, 5, v0
    v_lshlrev_b32 v{T+6}, 4, v{T+6}
    v_lshl_add_u32 v{T+6}, v{T+3}, 1, v{T+6}
    s_lshl_b32 s63, s61, 15
    s_lshl_b32 s64, s60, 10
    s_add_u32 s63, s63, s64
    s_lshl_b32 s64, s55, 17
    s_add_u32 s63, s63, s64
    s_add_u32 s63, s63, {QP}
    """)
    for i in range(28):
        a(f"s_waitcnt vmcnt({28-i})")
        ar=HA+(i%2)*4
        for v in range(4):
            a(f"v_perm_b32 v{ar+v}, v{XR+i//2}, v{XR+i//2}, v{SEL[i%2][v]}")
        a(f"v_mfma_f32_16x16x32_bf16 v[{HC}:{HC+3}], v[{ar}:{ar+3}], v[{WR+4*i}:{WR+4*i+3}], {'0' if i==0 else 'v[%d:%d]'%(HC,HC+3)}")
    st(1)
    a(f"s_mov_b32 s65, {SPIN}")
    a.label("L_np")
    a("s_waitcnt vmcnt(0)")
    a(f"v_readfirstlane_b32 s92, v{T+4}"); a(f"v_readfirstlane_b32 s93, v{T+5}")
    a("s_cmp_lg_u32 s92, 0")
    a("s_cbranch_scc1 L_nd")
    a(f"buffer_load_dwordx2 v[{T+4}:{T+5}], off, s[80:83], s56 sc1")
    spin_tail("L_np",0)
    a.label("L_nd")
    a("s_mov_b32 exec_lo, 0")
    a(f"v_mov_b32 v{HC}, v{HC+2}"); a(f"v_mov_b32 v{HC+1}, v{HC+3}")
    a("s_mov_b32 exec_lo, -1")
    a(f"v_mov_b32 v{HC+2}, v{T+4}"); a(f"v_mov_b32 v{HC+3}, v{T+5}")
    a(f"buffer_store_dwordx4 v[{HC}:{HC+3}], v{T+6}, s[36:39], s63 offen sc1")
    a(f"v_mov_b32 v{T}, {LNON}")
    a(f"ds_write_b64 v{T}, v[{T+4}:{T+5}]")
    st(2)
    def gather(lbl,nk,base,ldsoff,sleep):
        a(f"s_mov_b32 s65, {SPIN}")
        a.label(lbl)
        base()
        for ks in range(4):
            for k in range(nk):
                r=DT+(ks*nk+k)*4
                a(f"buffer_load_dwordx4 v[{r}:{r+3}], v{T+2}, s[36:39], s62 offen offset:{k*1024} sc1")
            if ks<3: a("s_add_u32 s62, s62, 0x8000")
        a("s_mov_b64 s[66:67], 0")
        for j in range(4*nk):
            a(f"s_waitcnt vmcnt({4*nk-1-j})")
            a(f"v_cmp_ne_u64 vcc, s[92:93], v[{DT+j*4+2}:{DT+j*4+3}]")
            a("s_or_b64 s[66:67], s[66:67], vcc")
        a("s_cmp_eq_u64 s[66:67], 0")
        a(f"s_cbranch_scc1 {lbl}d")
        spin_tail(lbl,sleep)
        a.label(lbl+"d")
        def pr(j): return f"v[{DT+j*4}:{DT+j*4+1}]"
        for k in range(nk):
            a(f"v_pk_add_f32 {pr(k)}, {pr(k)}, {pr(nk+k)}")
            a(f"v_pk_add_f32 {pr(2*nk+k)}, {pr(2*nk+k)}, {pr(3*nk+k)}")
        for k in range(nk): a(f"v_pk_add_f32 {pr(k)}, {pr(k)}, {pr(2*nk+k)}")
        a(f"v_lshlrev_b32 v{T}, 2, v0")
        for k in range(nk): a(f"v_cvt_pk_bf16_f32 v{DT+k*4+2}, v{DT+k*4}, v{DT+k*4+1}")
        for k in range(nk): a(f"ds_write_b32 v{T}, v{DT+k*4+2} offset:{ldsoff+256*k}")
        a("s_waitcnt lgkmcnt(0)")
    def baseA(): a("s_lshl_b32 s62, s97, 12"); a(f"s_add_u32 s62, s62, {QP}")
    def baseB(): a("s_lshl_b32 s62, s96, 11"); a(f"s_add_u32 s62, s62, {QP+0x20000}")
    cm("gather the two A q heads of this workgroup (back off first: the other producers finish at about the same time)")
    if gsleep: a(f"s_sleep {gsleep}")
    gather("L_ga",4,baseA,LQA,8)
    if est: st(5)
    a("s_barrier")
    a("s_setprio 0")
    st(4)
    cm("16 helpers initialise one ticket counter each: {0, 0, nonce} in one store")
    a("s_lshl_b32 s60, s55, 7"); a("s_add_u32 s60, s60, s48")
    a("s_lshl_b32 s52, s60, 12"); a(f"s_add_u32 s52, s52, {IN1D}")
    if ph: a("s_lshl_b32 s53, s60, 9")
    else: a("s_lshr_b32 s53, s60, 3"); a("s_lshl_b32 s53, s53, 9")
    a(f"s_add_u32 s53, s53, {IN1H}")
    a("s_lshl_b32 s54, s60, 11"); a(f"s_add_u32 s54, s54, {YO}")
    a("s_cmp_ge_u32 s60, 16"); a("s_cbranch_scc1 L_notk")
    a("s_lshl_b32 s63, s60, 8"); a(f"s_add_u32 s63, s63, {TK}")
    a(f"v_mov_b32 v{HC}, 0"); a(f"v_mov_b32 v{HC+1}, 0")
    a("s_mov_b64 exec, 1")
    a(f"buffer_store_dwordx4 v[{HC}:{HC+3}], off, s[36:39], s63 sc1")
    a("s_mov_b64 exec, -1")
    a.label("L_notk")
    cm("32 rows of wo stay in registers until the end")
    a(f"""
    s_cmp_eq_u32 s55, 1
    s_cselect_b32 s44, s22, s12
    s_cselect_b32 s45, s23, s13
    s_mov_b32 s46, {4096*896}
    s_mul_i32 s63, s48, {32*896}
    v_bfrev_b32 v{T+7}, v3
    v_lshrrev_b32 v{T+7}, 30, v{T+7}
    v_mul_u32_u24 v{T}, 896, v{T+7}
    v_lshl_add_u32 v{T}, v2, 4, v{T}
    """)
    a("s_mov_b32 s66, 0x00ff00ff"); a("s_mov_b32 s67, 0x00ff00ff")
    for i in range(8):
        for bk in range(4):
            r=WR+(i*4+bk)*4
            if bk==3: a("s_mov_b64 exec, s[66:67]")
            a(f"buffer_load_dwordx4 v[{r}:{r+3}], v{T}, s[44:47], s63 offen offset:{bk*256} nt")
        a("s_mov_b64 exec, -1")
        if i<7: a(f"s_add_u32 s63, s63, {4*896}")
    a("s_waitcnt vmcnt(0)")
    cm("has this head's ticket counter been initialised in this launch?")
    a("s_lshl_b32 s64, s96, 8"); a(f"s_add_u32 s64, s64, {TK}")
    a(f"s_mov_b32 s65, {SPIN}")
    a.label("L_rd")
    a(f"buffer_load_dwordx2 v[{DT}:{DT+1}], off, s[36:39], s64 offset:8 sc1")
    a("s_waitcnt vmcnt(0)")
    a(f"v_cmp_ne_u64 vcc, s[92:93], v[{DT}:{DT+1}]")
    a("s_cmp_eq_u64 vcc, 0")
    a("s_cbranch_scc1 L_rdd")
    spin_tail("L_rd",64)
    a.label("L_rdd")
    cm("q of this workgroup's B head")
    gather("L_gb",2,baseB,LQB,64)
    a(f"v_mov_b32 v{T}, {LGO}"); a(f"v_mov_b32 v{T+1}, 1")
    a(f"ds_write_b32 v{T}, v{T+1}")
    st(3)
    VK=24; PC=25
    def poll(lbl,loads,quads,hdr=None):
        loads()
        a("s_waitcnt vmcnt(0)")
        a(f"s_mov_b32 s65, {SPIN}")
        a.label(lbl)
        if hdr is not None: a(f"v_cmp_ne_u64 s[66:67], s[92:93], v[{hdr+2}:{hdr+3}]")
        for k,q in enumerate(quads):
            for e in range(4):
                if k==0: a(f"v_xor_b32 v{PC+e}, s{4+e}, v{q+e}")
                else: a(f"v_bitop3_b32 v{PC+e}, v{q+e}, s{4+e}, v{PC+e} bitop3:0xbe")
        a(f"v_or_b32 v{PC}, v{PC}, v{PC+1}")
        a(f"v_or3_b32 v{PC}, v{PC}, v{PC+2}, v{PC+3}")
        a(f"v_and_b32 v{PC}, 0xfff, v{PC}")
        a(f"v_cmp_ne_u32 vcc, 0, v{PC}")
        if hdr is not None: a("s_or_b64 vcc, vcc, s[66:67]")
        else: a("s_cmp_lg_u64 vcc, 0")
        a(f"s_cbranch_scc0 {lbl}d")
        a("s_mov_b64 exec, vcc")
        loads()
        a("s_mov_b64 exec, -1")
        a("s_waitcnt vmcnt(48)")
        spin_tail(lbl,psl)
        a.label(lbl+"d")
    tags("s92","s93")
    a(f"v_mov_b32 v{VK}, 0xfffff000")
    a(f"v_lshlrev_b32 v1, 1, v{T+7}"); a(f"v_and_b32 v{T+1}, 3, v0"); a(f"v_lshl_add_u32 v1, v{T+1}, 3, v1")
    a(f"v_lshrrev_b32 v{T+7}, 2, v0"); a(f"v_lshlrev_b32 v{T+7}, 11, v{T+7}")
    a(f"v_lshl_add_u32 v{T+7}, v{T+1}, 4, v{T+7}")
    a(f"v_lshrrev_b32 v{T+6}, 3, v0"); a(f"v_lshl_add_u32 v{T+6}, v{T+1}, 3, v{T+6}"); a(f"v_lshlrev_b32 v{T+6}, 4, v{T+6}")
    a("s_lshl_b32 s84, s48, 6"); a("s_lshl_b32 s60, s55, 18"); a("s_add_u32 s84, s84, s60"); a(f"s_add_u32 s84, s84, {YO}")
    for k in range(1,8): a(f"s_add_u32 s{84+k}, s{83+k}, 0x8000")
    a("""
    s_mov_b32 s40, s24
    s_mov_b32 s41, s25
    s_mov_b32 s42, 1792
    s_lshl_b32 s62, s48, 5
    s_mul_i32 s60, s55, 896
    s_add_u32 s62, s62, s60
    """)
    cm("the merged A record waits in LDS until the pool runs dry: no stores while HBM is saturated")
    lds_wait("L_mw",T,LMRG,3,32)
    a(f"v_lshlrev_b32 v{T}, 3, v0")
    a(f"ds_read_b128 v[{DT}:{DT+3}], v{T+2} offset:{LDMP+5120}")
    a(f"ds_read_b128 v[{DT+4}:{DT+7}], v{T+2} offset:{LDMP+5120+1024}")
    a(f"ds_read_b64 v[{DT+8}:{DT+9}], v{T} offset:{LDMP+5120+2048}")
    a(f"v_mov_b32 v{DT+10}, v{T+4}"); a(f"v_mov_b32 v{DT+11}, v{T+5}")
    a(f"v_and_b32 v{O}, 0x7f, v{T+3}"); a(f"v_lshrrev_b32 v{O+1}, 2, v2"); a(f"v_lshl_add_u32 v{O}, v{O+1}, 12, v{O}")
    a(f"v_lshrrev_b32 v{O+1}, 5, v0"); a(f"v_lshl_add_u32 v{O}, v{O+1}, 15, v{O}")
    a(f"v_lshlrev_b32 v{O+1}, 9, v0")
    a("s_and_b32 s65, s2, 31")
    a("s_lshl_b32 s98, s97, 16"); a("s_lshl_b32 s47, s65, 7"); a("s_add_u32 s98, s98, s47"); a(f"s_add_u32 s98, s98, {IN1D}")
    a("s_lshl_b32 s99, s97, 13"); a("s_lshl_b32 s47, s65, 4"); a("s_add_u32 s99, s99, s47"); a(f"s_add_u32 s99, s99, {IN1H}")
    a("s_add_u32 s47, s98, 0x4000")
    a("s_waitcnt lgkmcnt(0)")
    enc(range(DT,DT+8),VK)
    lds_wait("L_aw",T,LSIG if asig else LCNT,1,2)
    a(f"buffer_store_dwordx4 v[{DT}:{DT+3}], v{O}, s[36:39], s98 offen sc1")
    a(f"buffer_store_dwordx4 v[{DT+4}:{DT+7}], v{O}, s[36:39], s47 offen sc1")
    a("s_mov_b64 exec, 0xffff")
    a(f"buffer_store_dwordx4 v[{DT+8}:{DT+11}], v{O+1}, s[36:39], s99 offen sc1")
    a("s_mov_b64 exec, -1")
    cm("wait until this workgroup's streaming waves are done, then combine the softmax records for 32 output rows")
    a("s_cmp_eq_u32 s55, 0"); a(f"s_cselect_b32 s57, {thrA}, {thr}")
    lds_wait("L_ow",T,LCNT,"s57",2)
    OM=O; OW=O+1; OL=O+2; OX=O+3; OO=O+4; OB=O+8
    def l1loads():
        a(f"buffer_load_dwordx4 v[{HD}:{HD+3}], v{T+6}, s[36:39], s53 offen sc1")
        for j in range(4):
            a(f"buffer_load_dwordx4 v[{DT+4*j}:{DT+4*j+3}], v{T+2}, s[36:39], s52 offen offset:{j*1024} sc1")
    if hgate is not None:
        cm("only look at the record heads until almost all records are there")
        a(f"s_mov_b32 s65, {SPIN}")
        a.label("L_hg")
        a(f"buffer_load_dwordx4 v[{HD}:{HD+3}], v{T+6}, s[36:39], s53 offen sc1")
        a("s_waitcnt vmcnt(0)")
        a(f"v_cmp_ne_u64 vcc, s[92:93], v[{HD+2}:{HD+3}]")
        a("s_bcnt1_i32_b64 s64, vcc")
        a(f"s_cmp_le_u32 s64, {2*hgate}")
        a("s_cbranch_scc1 L_hgd")
        spin_tail("L_hg",hsl)
        a.label("L_hgd")
    poll("L_hp",l1loads,[DT+4*j for j in range(4)],HD)
    if not est: st(5)
    def xr(reg,op,sw):
        a(f"v_mov_b32 v{OX}, v{reg}"); a(f"{sw} v{reg}, v{OX}"); a(f"{op} v{reg}, v{reg}, v{OX}")
    RED=("quad_perm:[1,0,3,2]","quad_perm:[2,3,0,1]","row_ror:8")
    a(f"v_max_f32_dpp v{OM}, v{HD}, v{HD} {RED[0]} {DPPF}")
    for m in RED[1:]: a(f"v_max_f32_dpp v{OM}, v{OM}, v{OM} {m} {DPPF}")
    xr(OM,"v_max_f32","v_permlane16_swap_b32"); xr(OM,"v_max_f32","v_permlane32_swap_b32")
    a(f"v_sub_f32 v{OW}, v{HD}, v{OM}")
    a(f"v_exp_f32 v{OW}, v{OW}")
    a(f"v_mul_f32 v{OL}, v{OW}, v{HD+1}")
    lchain=[f"v_add_f32_dpp v{OL}, v{OL}, v{OL} {m} {DPPF}" for m in RED]+[f"v_mov_b32 v{OX}, v{OL}",f"v_permlane16_swap_b32 v{OL}, v{OX}",
            f"v_add_f32 v{OL}, v{OL}, v{OX}",f"v_mov_b32 v{OX}, v{OL}",f"v_permlane32_swap_b32 v{OL}, v{OX}"]
    for j in range(4):
        for e in range(4):
            a(f"{'v_mul_f32_dpp' if j==0 else 'v_fmac_f32_dpp'} v{OO+e}, v{OW}, v{DT+4*j+e} quad_perm:[{j},{j},{j},{j}] {DPPF}")
            if e%2==1: a(lchain[2*j+e//2])
    a(f"v_add_f32 v{OL}, v{OL}, v{OX}")
    a(f"v_permlane32_swap_b32 v{OO}, v{OO+1}"); a(f"v_permlane32_swap_b32 v{OO+2}, v{OO+3}")
    a(f"v_rcp_f32 v{OL}, v{OL}")
    a(f"v_add_f32 v{OO}, v{OO}, v{OO+1}"); a(f"v_add_f32 v{OO+2}, v{OO+2}, v{OO+3}")
    a(f"v_permlane16_swap_b32 v{OO}, v{OO+2}")
    a(f"v_add_f32 v{OO}, v{OO}, v{OO+2}")
    a(f"v_add_f32_dpp v{OO}, v{OO}, v{OO} row_ror:8 {DPPF}")
    a(f"v_mul_f32 v{OO}, v{OO}, v{OL}")
    a(f"v_cvt_pk_bf16_f32 v{OO}, v{OO}, v{OO}")
    for i in range(8): a(f"v_mov_b32_dpp v{OB+i}, v{OO} row_newbcast:{i} {DPPF}")
    def prm(i,v): a(f"v_perm_b32 v{HA+(i%2)*4+v}, v{OB+i}, v{OB+i}, v{SEL[0][v]}")
    for v in range(4): prm(0,v)
    for i in range(8):
        ar=HA+(i%2)*4
        for bk in range(4):
            r=WR+(i*4+bk)*4; c=HC+bk*4
            a(f"v_mfma_f32_16x16x32_bf16 v[{c}:{c+3}], v[{ar}:{ar+3}], v[{r}:{r+3}], {'0' if i==0 else 'v[%d:%d]'%(c,c+3)}")
            if i<7 and bk<2: prm(i+1,2*bk); prm(i+1,2*bk+1)
    cm("both half waves hold the same sums: pack two column blocks per store")
    a(f"v_lshrrev_b32 v{OX}, 5, v0"); a(f"v_lshl_add_u32 v{OX}, v{OX}, 9, v{T+3}")
    for pr in range(2):
        c=HC+pr*8
        for e in range(4): a(f"v_permlane32_swap_b32 v{c+e}, v{c+4+e}")
        enc(range(c,c+4),VK)
        if pr==1: a("s_mov_b32 exec_hi, 0x00ff00ff")
        a(f"buffer_store_dwordx4 v[{c}:{c+3}], v{OX}, s[36:39], s54 offen offset:{pr*1024} sc1")
    a("s_mov_b64 exec, -1")
    st(6)
    cm("28 helpers per branch sum the 128 partial rows for 16 output columns each")
    a("s_cmp_ge_u32 s48, 28")
    a("s_cbranch_scc1 L_he")
    def l2loads():
        for k in range(8):
            a(f"buffer_load_dwordx4 v[{DT+4*k}:{DT+4*k+3}], v{T+7}, s[36:39], s{84+k} offen sc1")
    poll("L_yp",l2loads,[DT+4*k for k in range(8)])
    for e in range(0,16,2): a(f"v_pk_add_f32 v[{O+e}:{O+e+1}], v[{DT+e}:{DT+e+1}], v[{DT+16+e}:{DT+17+e}]")
    for half in (8,4):
        for e in range(0,half,2): a(f"v_pk_add_f32 v[{O+e}:{O+e+1}], v[{O+e}:{O+e+1}], v[{O+half+e}:{O+half+e+1}]")
    a(f"v_permlane32_swap_b32 v{O}, v{O+1}"); a(f"v_permlane32_swap_b32 v{O+2}, v{O+3}")
    a(f"v_add_f32 v{O}, v{O}, v{O+1}"); a(f"v_add_f32 v{O+2}, v{O+2}, v{O+3}")
    a(f"v_permlane16_swap_b32 v{O}, v{O+2}")
    a(f"v_add_f32 v{O}, v{O}, v{O+2}")
    for m in ("row_ror:8","row_ror:4"): a(f"v_add_f32_dpp v{O}, v{O}, v{O} {m} {DPPF}")
    a(f"v_cvt_pk_bf16_f32 v{O}, v{O}, v{O}")
    a("s_mov_b32 exec_lo, 0x000f000f"); a("s_mov_b32 exec_hi, 0x000f000f")
    a(f"buffer_store_short v{O}, v1, s[40:43], s62 offen")
    a("s_mov_b64 exec, -1")
    a.label("L_he")
    write_stamps(True)
    a("s_endpgm")

    VOFF=1; VSC=4; VM=5; VL=6; VMC=7
    Q=16; PA=24; ACC=32; AR=40; D=48; T=52; PKR=60; VOFF2=62; VTK=63
    RING=64
    STEP=4096*W
    NA=(1<<19)//STEP; NB=((1<<20)-PK*1024)//STEP
    NT=16*PK//8
    if dlp is None: dlp=dl
    TQ=min(tq,16-dlp)
    cd=[dl]
    vq=[]
    BB=(blk*1024).bit_length()-1
    assert PK%blk==0 and NB%4==0 and NV%4==0 and (2*PK)%(8<<(pm&7))==0
    for k in range(pad): a.raw("    s_nop 0")
    a.label("L_stream")
    cm("---------------- streaming waves")
    a(f"""
    s_sub_u32 s31, s30, 1
    v_lshlrev_b32 v{VOFF}, 9, v3
    v_lshl_add_u32 v{VOFF}, v2, 4, v{VOFF}
    s_mov_b32 s34, 0x200000
    s_mov_b32 s35, 0x20000
    s_mov_b32 s42, 0x200000
    s_mov_b32 s43, 0x20000
    s_lshl_b32 s61, s31, 12
    s_lshl_b32 s49, s55, {BB}
    s_and_b32 s60, s48, 15
    s_lshl_b32 s60, s60, 20
    s_add_u32 s60, s60, s49
    s_lshl_b32 s64, s97, 24
    s_add_u32 s60, s60, s64
    """)
    def adv(r):
        a(f"s_bitset1_b32 {r}, {BB}"); a(f"s_add_u32 {r}, {r}, {STEP}"); a(f"s_bitset0_b32 {r}, {BB}")
    after_kernarg()
    a("s_add_u32 s32, s6, s60"); a("s_addc_u32 s33, s7, 0")
    a("s_add_u32 s40, s8, s60"); a("s_addc_u32 s41, s9, 0")
    if bar0: a("s_barrier")
    if est: st(2)
    OFFS=[0,256,2048,2304]
    PH=[('A','K',NA),('A','V',NA),('B','K',NB),('B','V',NB)]
    ends=[NA,2*NA-NV,2*NA-NV+NB]
    def ld(base,i,srd,soff,voff=VOFF,rf='v'):
        r=base+i*4
        a(f"buffer_load_dwordx4 {rf}[{r}:{r+3}], v{voff}, {srd}, {soff} offen offset:{OFFS[i]} nt")
    def issue_static(h,p):
        h%=16
        ld(RING+(h//4)*16,h%4,"s[32:35]","s52"); vq.append(h)
        if h%4==3:
            adv("s52")
            if p is not None and p<3:
                a("s_add_u32 s53, s53, 1")
                a(f"s_cmp_eq_u32 s53, {ends[p]}")
                b=(40,56,58)[p]
                a(f"s_cselect_b32 s32, s{b}, s32"); a(f"s_cselect_b32 s33, s{b+1}, s33"); a(f"s_cselect_b32 s52, {'s94' if p==0 else 's61'}, s52")
    def ticket_req():
        a("s_mov_b64 exec, 1")
        a(f"v_mov_b32 v{VTK}, 1")
        a(f"buffer_atomic_add v{VTK}, off, s[36:39], s91 sc0 sc1"); vq.append('A')
        a("s_mov_b64 exec, -1")
    def ticket_use():
        assert 'A' not in vq
        a(f"v_readfirstlane_b32 s90, v{VTK}")
        lo=pm&7
        if pm&8:
            a(f"s_lshr_b32 s89, s90, {lo+3}"); a("s_add_u32 s89, s89, s96"); a(f"s_lshr_b32 s88, s90, {lo}"); a("s_add_u32 s88, s88, s89"); a("s_and_b32 s88, s88, 7")
        else: a(f"s_bfe_u32 s88, s90, {lo|(3<<16)}")
        a("s_lshl_b32 s88, s88, 21")
        a(f"s_lshr_b32 s89, s90, {lo+3}"); a(f"s_lshl_b32 s89, s89, {13+lo}"); a("s_add_u32 s88, s88, s89")
        if lo:
            if pm&16: a("s_add_u32 s89, s90, s96"); a(f"s_and_b32 s89, s89, {(1<<lo)-1}")
            else: a(f"s_and_b32 s89, s90, {(1<<lo)-1}")
            a("s_lshl_b32 s89, s89, 13"); a("s_add_u32 s88, s88, s89")
        a(f"s_add_u32 s88, s88, {2*NB*STEP}")
        if apub=='help' and asig:
            a(f"s_cmp_ge_u32 s90, {NT-(asig-1)}"); a("s_cselect_b32 s89, 1, 0")
            a(f"v_mov_b32 v{NON+2}, s89")
            a("s_mov_b64 exec, 1"); a(f"ds_max_u32 v{PA+2}, v{NON+2} offset:{LSIG-LCNT}"); a("s_mov_b64 exec, -1")
        a(f"s_cmp_lt_u32 s90, {NT}")
        if nr0: a("s_cselect_b32 s88, s88, 0"); a("s_cselect_b32 s82, s82, 0"); a("s_cselect_b32 s86, s86, 0")
        else: a(f"s_cselect_b32 s88, s88, {INV}")
    def issue_pool(h):
        h%=16
        if h==0: ticket_use()
        if h==TQ: ticket_req()
        k=h//4
        ld(RING+k*16,h%4,"s[80:83]" if k<2 else "s[84:87]","s88",VOFF if k%2==0 else VOFF2); vq.append(h)
    def setup2():
        selectors()
        a(f"""
        s_and_b32 s60, s2, 7
        s_lshl_b32 s60, s60, 21
        s_add_u32 s60, s60, s49
        s_lshl_b32 s64, s96, 24
        s_add_u32 s60, s60, s64
        s_add_u32 s56, s16, s60
        s_addc_u32 s57, s17, 0
        s_add_u32 s58, s18, s60
        s_addc_u32 s59, s19, 0
        s_lshl_b32 s60, s96, 24
        s_add_u32 s80, s16, s60
        s_addc_u32 s81, s17, 0
        s_mov_b32 s82, 0x1000000
        s_mov_b32 s83, 0x20000
        s_add_u32 s84, s18, s60
        s_addc_u32 s85, s19, 0
        s_mov_b32 s86, 0x1000000
        s_mov_b32 s87, 0x20000
        s_lshl_b32 s91, s96, 8
        s_add_u32 s91, s91, {TK}
        s_mov_b32 s62, {f2u(math.log2(math.e)/16.0)}
        s_lshl_b32 s63, s31, 15
        s_add_u32 s63, s63, {LSC}
        v_add_u32 v{VOFF2}, 0x1000, v{VOFF}
        """)
    cm(f"while q is being computed: first {NV} V units of branch A go to AGPRs, then the K ring starts; {dl} loads in flight")
    n=0
    a("s_mov_b32 s94, s61")
    for k in range(NV):
        for i in range(4):
            if n>=dl: a(f"s_waitcnt vmcnt({dl-1})")
            if est and n==dl: st(4)
            ld(k*16,i,"s[40:43]","s94",rf='a'); n+=1
            if n==dl: setup2()
        adv("s94")
    a("s_mov_b32 s52, s61")
    a(f"s_mov_b32 s53, {dl//4}")
    for h in range(dl):
        if n>=dl: a(f"s_waitcnt vmcnt({dl-1})")
        issue_static(h,None); n+=1
        if n==dl: setup2()
    st(6)
    a("s_barrier")
    st(1)
    def arrive(c,iss):
        k=vq.index(c%16)
        a(f"s_waitcnt vmcnt({len(vq)-1-k})")
        del vq[:k+1]
        if sum(1 for x in vq if isinstance(x,int))<cd[0]: iss(c+cd[0])
    def do_boost(iss):
        for h in range(dl,dl+boost): iss(h)
    def loop_begin(lbl):
        vq[:]=[x for x in vq if x!='S']
        if align: a.flush(); a.raw(f".p2align {align}")
        a.label(lbl)
        return list(vq)
    def dots1(base,i,nh,dbase):
        s_=i//2
        for e4 in range(4):
            e=(i%2)*4+e4
            for h in range(nh):
                d=dbase+s_*nh+h
                a(f"v_dot2_f32_bf16 v{d}, v{base+i*4+e4}, v{Q+h*8+e}, {'0' if e==0 else 'v%d'%d}")
    def reduce(nh,dbase,tb,ns=2):
        for s_ in range(ns):
            if nh==2:
                a(f"v_add_f32_dpp v{tb+s_}, v{dbase+s_*2}, v{dbase+s_*2} row_ror:8 row_mask:0xf bank_mask:0x3")
                a(f"v_add_f32_dpp v{tb+s_}, v{dbase+s_*2+1}, v{dbase+s_*2+1} row_ror:8 row_mask:0xf bank_mask:0xc")
            else:
                a(f"v_add_f32_dpp v{tb+s_}, v{dbase+s_}, v{dbase+s_} row_ror:8 {DPPF}")
        for m in ("row_half_mirror","quad_perm:[1,0,3,2]","quad_perm:[2,3,0,1]"):
            for s_ in range(ns):
                a(f"v_add_f32_dpp v{tb+s_}, v{tb+s_}, v{tb+s_} {m} {DPPF}")
    def kunit(j,jl,nh,iss):
        for i in range(4):
            arrive(4*j+i,iss); dots1(RING+j*16,i,nh,D)
        reduce(nh,D,T)
        a(f"v_max3_f32 v{VM}, v{VM}, v{T}, v{T+1}")
        a(f"v_cvt_pk_bf16_f32 v{T+2}, v{T}, v{T+1}")
        a(f"ds_write_b32 v{VSC}, v{T+2} offset:{jl*256}")
    def pcalc(t0,ar):
        a(f"v_fma_f32 v{t0}, v{t0}, s62, -v{VMC}")
        a(f"v_fma_f32 v{t0+1}, v{t0+1}, s62, -v{VMC}")
        a(f"v_exp_f32 v{t0}, v{t0}")
        a(f"v_exp_f32 v{t0+1}, v{t0+1}")
        a(f"v_add_f32 v{VL}, v{VL}, v{t0}")
        a(f"v_add_f32 v{VL}, v{VL}, v{t0+1}")
        a(f"v_cvt_pk_bf16_f32 v{t0}, v{t0}, v{t0+1}")
        for s_ in range(2):
            for v in range(4):
                a(f"v_perm_b32 v{ar+s_*4+v}, v{t0}, v{t0}, v{SEL[s_][v]}")
    def pvunit(j,iss):
        for i in range(4):
            arrive(4*j+i,iss)
            r=RING+j*16+i*4; c=ACC+(i%2)*4; ar=AR+(i//2)*4
            a(f"v_mfma_f32_16x16x32_bf16 v[{c}:{c+3}], v[{ar}:{ar+3}], v[{r}:{r+3}], v[{c}:{c+3}]")
    def vunit(j,jl,iss,par=None,nxt=None,side=None):
        if par is None: par=j%2
        if nxt is None: nxt=jl+1
        pk=PKR+par
        a("s_waitcnt lgkmcnt(0)")
        a(f"v_lshlrev_b32 v{T}, 16, v{pk}")
        a(f"v_and_b32 v{T+1}, 0xffff0000, v{pk}")
        a(f"ds_read_b32 v{PKR+1-par}, v{VSC} offset:{nxt*256}")
        pcalc(T,AR)
        if side is None: pvunit(j,iss)
        else:
            for i in range(4):
                r=side*16+i*4; c=ACC+(i%2)*4; ar=AR+(i//2)*4
                a(f"v_mfma_f32_16x16x32_bf16 v[{c}:{c+3}], v[{ar}:{ar+3}], a[{r}:{r+3}], v[{c}:{c+3}]")
    def xrow(reg,op):
        a(f"v_mov_b32 v{T+7}, v{reg}")
        a(f"v_permlane16_swap_b32 v{reg}, v{T+7}")
        a(f"{op} v{reg}, v{reg}, v{T+7}")
        a(f"v_mov_b32 v{T+7}, v{reg}")
        a(f"v_permlane32_swap_b32 v{reg}, v{T+7}")
        a(f"{op} v{reg}, v{reg}, v{T+7}")
    NON=28; VK=31
    def pubvec():
        a(f"v_mov_b32 v{PA+2}, {LCNT}"); a(f"v_mov_b32 v{PA+3}, 1")
        a(f"ds_read_b64 v[{NON}:{NON+1}], v{PA+2} offset:{LNON-LCNT}")
        a(f"v_lshrrev_b32 v{PA}, 5, v0"); a(f"v_lshlrev_b32 v{PA}, 14, v{PA}")
        a(f"v_lshrrev_b32 v{PA+1}, 2, v2"); a(f"v_lshl_add_u32 v{PA}, v{PA+1}, 12, v{PA}")
        a(f"v_and_b32 v{PA+1}, 3, v2"); a(f"v_lshl_add_u32 v{PA}, v{PA+1}, 5, v{PA}")
        a(f"v_and_b32 v{PA+1}, 1, v3"); a(f"v_lshl_add_u32 v{PA}, v{PA+1}, 4, v{PA}")
        a(f"v_lshlrev_b32 v{PA+1}, 9, v0")
        a(f"v_mov_b32 v{VK}, 0xfffff000")
    def pubaddr(kind):
        if kind=='A': return
        a("s_add_u32 s64, s96, 16")
        a("s_and_b32 s65, s2, 15"); a("s_lshl_b32 s65, s65, 1"); a("s_add_u32 s65, s65, s31")
        a("s_lshl_b32 s44, s64, 15"); a("s_lshl_b32 s47, s65, 7"); a("s_add_u32 s44, s44, s47"); a(f"s_add_u32 s44, s44, {IN1D}")
        a("s_lshl_b32 s46, s64, 12"); a("s_lshl_b32 s47, s65, 4"); a("s_add_u32 s46, s46, s47"); a(f"s_add_u32 s46, s46, {IN1H}")
        a(f"v_readfirstlane_b32 s64, v{NON}"); a(f"v_readfirstlane_b32 s65, v{NON+1}")
        tags("s64","s65")
    def mergeA():
        xrow(VL,"v_add_f32")
        a("s_mul_i32 s64, s31, 2560"); a(f"s_add_u32 s64, s64, {LDMP}")
        a(f"v_lshlrev_b32 v{T+4}, 4, v0"); a(f"v_lshlrev_b32 v{T+5}, 3, v0")
        a(f"v_add_u32 v{T}, s64, v{T+4}"); a(f"v_add_u32 v{T+1}, s64, v{T+5}")
        a(f"ds_write_b128 v{T}, v[{ACC}:{ACC+3}]")
        a(f"ds_write_b128 v{T}, v[{ACC+4}:{ACC+7}] offset:1024")
        a(f"ds_write_b64 v{T+1}, v[{VL}:{VMC}] offset:2048")
        a("s_waitcnt lgkmcnt(0)")
        a("s_mov_b64 exec, 1")
        a(f"ds_add_rtn_u32 v{T+2}, v{PA+2}, v{PA+3} offset:{LMRG-LCNT}")
        a("s_mov_b64 exec, -1")
        a(f"s_sub_u32 s64, {2*LDMP+2560}, s64")
        a(f"v_add_u32 v{T}, s64, v{T+4}"); a(f"v_add_u32 v{T+1}, s64, v{T+5}")
        a("s_waitcnt lgkmcnt(0)")
        a(f"v_readfirstlane_b32 s64, v{T+2}")
        a("s_cmp_eq_u32 s64, 0")
        a("s_cbranch_scc1 L_nopub")
        a(f"ds_read_b64 v[{T+2}:{T+3}], v{T+1} offset:2048")
        a(f"ds_read_b128 v[{AR}:{AR+3}], v{T}")
        a(f"ds_read_b128 v[{AR+4}:{AR+7}], v{T} offset:1024")
        a("s_waitcnt lgkmcnt(2)")
        a(f"v_max_f32 v{T+4}, v{VMC}, v{T+3}")
        a(f"v_sub_f32 v{T+5}, v{VMC}, v{T+4}"); a(f"v_sub_f32 v{T+6}, v{T+3}, v{T+4}")
        a(f"v_exp_f32 v{T+5}, v{T+5}"); a(f"v_exp_f32 v{T+6}, v{T+6}")
        a(f"v_mov_b32 v{VMC}, v{T+4}")
        a(f"v_mul_f32 v{VL}, v{VL}, v{T+5}"); a(f"v_fmac_f32 v{VL}, v{T+2}, v{T+6}")
        for d,sr in ((T,T+5),(T+1,T+6)):
            a(f"v_mov_b32_dpp v{d}, v{sr} row_newbcast:0 row_mask:0x3 bank_mask:0xf")
            a(f"v_mov_b32_dpp v{d}, v{sr} row_newbcast:8 row_mask:0xc bank_mask:0xf")
        for i in range(8): a(f"v_mul_f32 v{ACC+i}, v{ACC+i}, v{T}")
        a("s_waitcnt lgkmcnt(0)")
        for i in range(8): a(f"v_fmac_f32 v{ACC+i}, v{AR+i}, v{T+1}")
        a(f"v_lshlrev_b32 v{T}, 4, v0"); a(f"v_lshlrev_b32 v{T+1}, 3, v0")
        a(f"v_mov_b32 v{T+2}, v{VMC}"); a(f"v_mov_b32 v{T+3}, v{VL}")
        a(f"ds_write_b128 v{T}, v[{ACC}:{ACC+3}] offset:{LDMP+5120}")
        a(f"ds_write_b128 v{T}, v[{ACC+4}:{ACC+7}] offset:{LDMP+5120+1024}")
        a(f"ds_write_b64 v{T+1}, v[{T+2}:{T+3}] offset:{LDMP+5120+2048}")
        a("s_waitcnt lgkmcnt(0)")
        a("s_mov_b64 exec, 1"); a(f"ds_add_u32 v{PA+2}, v{PA+3} offset:{LMRG-LCNT}"); a("s_mov_b64 exec, -1")
        a.label("L_nopub")
    def publish(kind):
        cm("both half waves hold the same sums: one store carries both 128-column blocks")
        for e in range(4): a(f"v_permlane32_swap_b32 v{ACC+e}, v{ACC+4+e}")
        enc(range(ACC,ACC+4),VK)
        a(f"buffer_store_dwordx4 v[{ACC}:{ACC+3}], v{PA}, s[36:39], s44 offen sc1")
        xrow(VL,"v_add_f32")
        a(f"v_mov_b32 v{T}, v{VMC}"); a(f"v_mov_b32 v{T+1}, v{VL}"); a(f"v_mov_b32 v{T+2}, v{NON}"); a(f"v_mov_b32 v{T+3}, v{NON+1}")
        a("s_mov_b64 exec, 0xff")
        a(f"buffer_store_dwordx4 v[{T}:{T+3}], v{PA+1}, s[36:39], s46 offen sc1")
        a("s_mov_b64 exec, 1")
        a(f"ds_add_u32 v{PA+2}, v{PA+3}")
        a("s_mov_b64 exec, -1")
    def loadq(lq,nh):
        a(f"v_lshlrev_b32 v{T}, 4, v2")
        for h in range(nh):
            a(f"ds_read_b128 v[{Q+h*8}:{Q+h*8+3}], v{T} offset:{lq+h*512}")
            a(f"ds_read_b128 v[{Q+h*8+4}:{Q+h*8+7}], v{T} offset:{lq+h*512+256}")
    for p,(br,kv,n) in enumerate(PH):
        nh=2 if br=='A' else 1
        iss=lambda h,p=p: issue_static(h,p)
        cm(f"---- branch {br}, {'scores = q.K (bf16-rounded, kept in LDS) and running max' if kv=='K' else 'p = exp2(c*s - c*max), o += p.V'}")
        a(f"v_lshlrev_b32 v{VSC}, 2, v0")
        a(f"v_add_u32 v{VSC}, s63, v{VSC}")
        done=0; tail=0
        if kv=='K':
            loadq(LQA if br=='A' else LQB,nh)
            a(f"v_mov_b32 v{VM}, 0xff800000")
            a("s_waitcnt lgkmcnt(0)")
        else:
            a(f"ds_read_b32 v{PKR}, v{VSC} offset:{NV*256 if p==1 else 0}")
            xrow(VM,"v_max_f32")
            a(f"v_cvt_pk_bf16_f32 v{VM}, v{VM}, v{VM}")
            a(f"v_and_b32 v{VM}, 0xffff0000, v{VM}")
            a(f"v_mul_f32 v{VMC}, s62, v{VM}")
            a(f"v_mov_b32 v{VL}, 0")
            for i in range(8): a(f"v_mov_b32 v{ACC+i}, 0")
            if p==1: pubvec()
            pubaddr(br)
            if p==3: tail=8
        def group(jl0,iss):
            for j in range(4):
                if kv=='K': kunit(j,jl0+j,nh,iss)
                else: vunit(j,jl0+j,iss)
        if p==1 and NV:
            for k in range(NV):
                vunit(k%4,None,iss,0,k)
                vunit(None,None,None,1,NV+k+1,side=k)
            done=2*NV
            a(f"v_add_u32 v{VSC}, {done*256}, v{VSC}")
        if done==0 and len(vq)!=dl:
            group(0,iss); done=4
            a(f"v_add_u32 v{VSC}, 1024, v{VSC}")
        assert (n-done-tail)%4==0
        a(f"s_mov_b32 s60, {(n-done-tail)//4}")
        q0=loop_begin(f"L_ph{p}")
        group(0,iss)
        assert vq==q0,(vq,q0)
        a(f"v_add_u32 v{VSC}, 1024, v{VSC}")
        a("s_sub_u32 s60, s60, 1")
        a("s_cmp_lg_u32 s60, 0")
        a(f"s_cbranch_scc1 L_ph{p}")
        if p<3: do_boost(lambda h: issue_static(h,p+1))
        if p==1:
            mergeA()
            lds_wait("L_go",T,LGO,1,2)
        if tail:
            def iss1(h):
                if h==16+TQ: ticket_req()
                iss(h)
            for h in range(dl,dlp): iss(h)
            cd[0]=dlp
            group(0,iss1)
            group(4,lambda h: issue_static(h,None) if h<16 else issue_pool(h))
            if wthr:
                a("s_mov_b64 exec, 1"); a(f"ds_add_u32 v{PA+2}, v{PA+3} offset:{LMRG-LCNT}"); a("s_mov_b64 exec, -1")
            st(5)
            cm("---- dynamic pool: 16-key blocks of branch B handed out by ticket, online softmax")
            a(f"s_cmp_eq_u32 s88, {0 if nr0 else INV}")
            a("s_cbranch_scc1 L_pool_end")
            def block(sfx):
                for j in range(2):
                    for i in range(4):
                        arrive(4*j+i,issue_pool); dots1(RING+j*16,i,1,D+2*j)
                reduce(1,D,T,4)
                a(f"v_cvt_pk_bf16_f32 v{T+4}, v{T}, v{T+1}")
                a(f"v_cvt_pk_bf16_f32 v{T+5}, v{T+2}, v{T+3}")
                a(f"v_lshlrev_b32 v{T}, 16, v{T+4}"); a(f"v_and_b32 v{T+1}, 0xffff0000, v{T+4}")
                a(f"v_lshlrev_b32 v{T+2}, 16, v{T+5}"); a(f"v_and_b32 v{T+3}, 0xffff0000, v{T+5}")
                a(f"v_max3_f32 v{T+4}, v{T}, v{T+1}, v{T+2}")
                a(f"v_max_f32 v{T+4}, v{T+4}, v{T+3}")
                a(f"v_cmp_gt_f32 vcc, v{T+4}, v{VM}")
                a("s_cmp_eq_u64 vcc, 0")
                a(f"s_cbranch_scc1 L_norescale{sfx}")
                a(f"v_max_f32 v{VM}, v{VM}, v{T+4}")
                xrow(VM,"v_max_f32")
                a(f"v_mul_f32 v{T+4}, s62, v{VM}")
                a(f"v_sub_f32 v{T+5}, v{VMC}, v{T+4}")
                a(f"v_exp_f32 v{T+5}, v{T+5}")
                a(f"v_mov_b32 v{VMC}, v{T+4}")
                a(f"v_mul_f32 v{VL}, v{VL}, v{T+5}")
                for i in range(8): a(f"v_mul_f32 v{ACC+i}, v{ACC+i}, v{T+5}")
                a.label(f"L_norescale{sfx}")
                pcalc(T,AR)
                pvunit(2,issue_pool)
                pcalc(T+2,AR)
                pvunit(3,issue_pool)
            q0=loop_begin("L_pool")
            block("")
            assert vq==q0,(vq,q0)
            a(f"s_cmp_lg_u32 s88, {0 if nr0 else INV}")
            a("s_cbranch_scc1 L_pool")
            a.label("L_pool_end")
            publish('B')
        if p<3 and not (est and p!=1): st(2+p)
    write_stamps(False)
    a.label("L_done")
    a("s_endpgm")
    if report is not None:
        import rep; rep.emit(a,report,WS_USED,W,LW)
    a.raw('.section .rodata,"a"')
    for nm,nv in ((NAME,256+16*NV),)+((("report_kernel",16),) if report is not None else ()):
        a.raw(".p2align 6"); a.raw(f".amdhsa_kernel {nm}")
        a.raw(f"  .amdhsa_next_free_vgpr {nv}"); a.raw("  .amdhsa_next_free_sgpr 100"); a.raw(f"  .amdhsa_accum_offset {min(nv,256)}")
        a.raw(f"  .amdhsa_float_denorm_mode_32 {den}")
        a.raw("  .amdhsa_group_segment_fixed_size 0"); a.raw("  .amdhsa_kernarg_size 104"); a.raw("  .amdhsa_user_sgpr_count 2")
        a.raw("  .amdhsa_user_sgpr_kernarg_segment_ptr 1"); a.raw("  .amdhsa_system_sgpr_workgroup_id_x 1"); a.raw(".end_amdhsa_kernel")
    return a.text()

def make(cfgs, listfile="list.txt"):
    import build
    lines=[]
    for c in cfgs:
        lab="g22_"+"_".join(f"{k}{str(v).replace(' ','').replace(',','.').strip('()[]')}" for k,v in c.items() if k!='stamp')
        fn="k_"+lab+".s"
        open(fn,"w").write(gen(**c))
        co=build.build(fn)
        lines.append(f"{lab} {co} {256*W if c.get('stamp') else 0} {NAME}:256:{(W+1)*64}:{c.get('lds',75520)}")
    open(listfile,"w").write("\n".join(lines)+"\n")
if __name__=="__main__":
    import json
    cfg=json.loads(sys.argv[2]) if len(sys.argv)>2 else {}
    open(sys.argv[1],"w").write(gen(**cfg))
```

```python
import struct, math, sys
from asmlib import Asm
NAME="concat_heads__gqa_block_cached__mha_block_cached__decode_kernel"
HDR=open('concat_heads__gqa_block_cached__mha_block_cached__decode.s.ref').read().split('; Override')[0]
def f2u(x): return struct.unpack('<I',struct.pack('<f',x))[0]
QP=0x10000
TK=0x50000
IN1D=0x80000
YO=0x180000
WS_USED=0x200000
LQA=0; LQB=1024; LCNT=1536; LGO=1540; LMRG=1544; LSIG=1548; LNON=1552; LDMP=2048; LSC=2048+3*2560
DPPF="row_mask:0xf bank_mask:0xf"
INV=0x7f000000
W=2; LW=1

def gen(stamp=False, lds=75520, dl=10, NV=12, PK=64, blk=32, tq=3, gsleep=24, psl=1, spin=1<<20, mix=True, report=None,
        thr=2, boost=0, sep=False, clr=2, cfl='sc1', wsoff=0, bar0=28, est=False, smodel=False, dlp=12, pm=20, shh=0, align=0, pad=0, ax=True, nr0=True, apub='help', pmask=True, asig=33, ph=True, thrA=2, den=0, pfl='sc1', sfl='sc1', bx=False, hgate=None, hsl=2, warm=0, wfl='sc1', wthr=0):
    SPIN=spin
    a=Asm()
    cm=lambda t: a.raw("    ; "+t)
    a.raw(HDR.rstrip())
    if report is None: a.raw(f"; @launch grid=(256,1,1) block=({(W+1)*64},1,1) lds={lds}")
    else:
        a.raw(f"; @launch kernel={NAME} grid=(256,1,1) block=({(W+1)*64},1,1) lds={lds}")
        a.raw("; @launch kernel=report_kernel grid=(1,1,1) block=(64,1,1) lds=1024")
    a.raw('.amdgcn_target "amdgcn-amd-amdhsa--gfx950"')
    a.raw(".text"); a.raw(f".globl {NAME}"); a.raw(".p2align 8"); a.raw(f".type {NAME},@function"); a.raw(f"{NAME}:")
    def st(k):
        if stamp:
            a("s_memrealtime s[68:69]"); a("s_waitcnt lgkmcnt(0)"); a(f"s_mov_b32 s{72+k}, s68")
    for t in """Decode attention for both branches in one launch, HBM-bound (805 MB of K/V read once, nt loads).
    256 workgroups x 3 waves, one per CU.  Waves 1,2 stream; wave 0 is a helper.
    Streaming waves: A_k, A_v, B_k, B_v (static shares), then a dynamic pool of 16-key blocks of B (atomic tickets)
      K pass : 4 rows x 256 B per load, v_dot2 + DPP row reduction, scores rounded to bf16 (as the reference does), kept in LDS
      V pass : p = exp2(c*s - c*max) with the true max of the pass, o += p.V by MFMA with a diagonal A operand
      about 10 loads in flight per wave: enough to saturate HBM without oversubscribing the fabric
    Helper: q = x.wq (4 k-slices, MFMA) -> nonce-tagged granules in d_ws -> gathered per workgroup;
      at the end combines the (m, l, o) records of a head for 32 rows, multiplies with wo, and 28 helpers per branch
      add the 128 partial rows.  Every 16-byte granule handed over in d_ws carries this launch's nonce (64 bits, or slices of it in the 12 low mantissa bits of the partial sums).""".split("\n"):
        cm(t.strip())
    a(f"""
    s_cmp_ge_u32 s2, 256
    s_cbranch_scc1 L_done
    s_load_dwordx16 s[4:19], s[0:1], 0
    s_load_dwordx8 s[20:27], s[0:1], 64
    s_load_dwordx2 s[28:29], s[0:1], 96
    v_lshrrev_b32 v1, 6, v0
    v_and_b32 v0, 63, v0
    v_readfirstlane_b32 s30, v1
    v_and_b32 v2, 15, v0
    v_lshrrev_b32 v3, 4, v0
    s_mov_b32 s38, {WS_USED}
    s_mov_b32 s39, 0x20000
    s_lshr_b32 s48, s2, 4
    s_lshl_b32 s48, s48, 3
    s_and_b32 s49, s2, 7
    s_or_b32 s48, s48, s49
    s_bfe_u32 s55, s2, 0x10003
    s_lshr_b32 s96, s2, 4
    s_lshr_b32 s97, s2, 5
    """)
    if bx: a("s_lshl_b32 s49, s49, 1"); a("s_xor_b32 s96, s96, s49")
    elif ax: a("s_xor_b32 s97, s97, s49")
    a("s_cmp_eq_u32 s30, 0"); a("s_cbranch_scc0 L_stream")
    def selectors():
        a("""
        v_and_b32 v4, 1, v0
        v_cmp_eq_u32 vcc, 1, v4
        v_mov_b32 v5, 0x0c0c0100
        v_mov_b32 v6, 0x01000c0c
        v_cndmask_b32 v5, v5, v6, vcc
        v_mov_b32 v6, 0x0c0c0302
        v_mov_b32 v7, 0x03020c0c
        v_cndmask_b32 v6, v6, v7, vcc
        v_bfe_u32 v4, v0, 1, 2
        v_mov_b32 v7, 0x0c0c0c0c
        """)
        for v in range(4):
            a(f"v_cmp_eq_u32 vcc, {v}, v4")
            a(f"v_cndmask_b32 v{8+v}, v7, v5, vcc")
            a(f"v_cndmask_b32 v{12+v}, v7, v6, vcc")
    SEL=[[8,9,10,11],[12,13,14,15]]
    def after_kernarg():
        a("s_waitcnt lgkmcnt(0)")
        if stamp:
            for k in range(8): a(f"s_mov_b32 s{72+k}, 0")
        st(0)
        if wsoff: a(f"s_add_u32 s36, s28, {wsoff}"); a("s_addc_u32 s37, s29, 0")
        else: a("s_mov_b32 s36, s28"); a("s_mov_b32 s37, s29")
    def write_stamps(helper):
        if not stamp: return
        st(7)
        a("s_mov_b32 s36, s28"); a("s_mov_b32 s37, s29")
        a("s_getreg_b32 s66, hwreg(HW_REG_XCC_ID)")
        a("s_mov_b64 exec, 1")
        a("v_mov_b32 v4, 0")
        if not helper:
            a("v_mov_b32 v20, s72"); a("v_mov_b32 v21, s79"); a("v_mov_b32 v22, s66"); a("s_getreg_b32 s67, hwreg(HW_REG_HW_ID)"); a("v_mov_b32 v23, s67")
            a(f"s_lshl_b32 s64, s2, {LW}"); a("s_add_u32 s64, s64, s31"); a("s_lshl_b32 s64, s64, 4")
            a("buffer_store_dwordx4 v[20:23], v4, s[36:39], s64 offen")
        for k in range(8): a(f"v_mov_b32 v{40+k}, s{72+k}")
        a(f"s_mul_i32 s64, s2, {W+1}"); a("s_add_u32 s64, s64, s30"); a("s_lshl_b32 s64, s64, 5"); a("s_add_u32 s64, s64, 0x4000")
        a("buffer_store_dwordx4 v[40:43], v4, s[36:39], s64 offen")
        a("buffer_store_dwordx4 v[44:47], v4, s[36:39], s64 offen offset:16")
    def spin_tail(lbl,sleep):
        if sleep: a(f"s_sleep {sleep}")
        a("s_sub_u32 s65, s65, 1"); a("s_cmp_lg_u32 s65, 0")
        a(f"s_cbranch_scc1 {lbl}")
    def lds_wait(lbl,tmp,addr,val,sleep):
        a(f"v_mov_b32 v{tmp}, {addr}")
        a(f"s_mov_b32 s65, {SPIN}")
        a.label(lbl)
        a(f"ds_read_b32 v{tmp+1}, v{tmp}")
        a("s_waitcnt lgkmcnt(0)")
        a(f"v_readfirstlane_b32 s64, v{tmp+1}")
        a(f"s_cmp_ge_u32 s64, {val}")
        a(f"s_cbranch_scc1 {lbl}d")
        spin_tail(lbl,sleep)
        a.label(lbl+"d")

    def tags(lo,hi):
        a(f"s_and_b32 s4, {lo}, 0x7ff")
        a(f"s_lshr_b32 s5, {lo}, 11")
        a(f"s_lshr_b32 s6, {lo}, 22"); a(f"s_lshl_b32 s7, {hi}, 10"); a("s_or_b32 s6, s6, s7")
        a(f"s_lshr_b32 s7, {hi}, 1")
        for k in (5,6,7): a(f"s_xor_b32 s{k}, s{k}, s4"); a(f"s_and_b32 s{k}, s{k}, 0x7ff")
        for k in range(4): a(f"s_sub_u32 s{8+k}, 0x800, s{4+k}")
    def enc(regs,vmask):
        for k,r in enumerate(regs): a(f"v_add_u32 v{r}, s{8+k%4}, v{r}")
        for k,r in enumerate(regs): a(f"v_and_or_b32 v{r}, v{r}, v{vmask}, s{4+k%4}")
    def encp(quads,vmask,pay):
        for q in quads:
            for e in range(3): a(f"v_add_u32 v{q+e}, s{8+e}, v{q+e}")
            a(f"v_add_u32 v{q+3}, 0x800, v{q+3}")
        for q in quads:
            for e in range(3): a(f"v_and_or_b32 v{q+e}, v{q+e}, v{vmask}, s{4+e}")
            a(f"v_and_or_b32 v{q+3}, v{q+3}, v{vmask}, v{pay}")
    def payload(dst,vm,vl,vsh,sel):
        a(f"v_add_u32 v{vl}, 0x80, v{vl}")
        a(f"v_cndmask_b32 v{dst}, v{vm}, v{vl}, {sel}")
        a(f"v_bfe_u32 v{dst}, v{dst}, v{vsh}, 12")
    def payconst(vsh,sel):
        a(f"v_and_b32 v{vsh}, 1, v3"); a(f"v_mul_u32_u24 v{vsh}, 12, v{vsh}"); a(f"v_sub_u32 v{vsh}, 20, v{vsh}")
        a(f"s_mov_b32 s{sel}, 0xaaaaaaaa"); a(f"s_mov_b32 s{sel+1}, 0xaaaaaaaa")
    WR=64; XR=16; HA=32; HC=40; T=56; DT=192; HD=16; O=224
    cm("---------------- helper wave: s48 = index 0..127 inside the branch, s55 = branch (0 = A, 1 = B)")
    a(f"""
    s_setprio 3
    s_memrealtime s[92:93]
    s_mov_b32 s42, 896
    s_mov_b32 s43, 0x20000
    s_mov_b32 s47, 0x20000
    s_mov_b32 s82, 256
    s_mov_b32 s83, 0x20000
    s_and_b32 s60, s48, 31
    s_lshr_b32 s61, s48, 5
    s_mov_b32 s46, {448*8192}
    v_mul_u32_u24 v{T}, 56, v3
    s_mul_i32 s62, s61, 224
    s_mov_b32 s63, {28*8192}
    v_mul_lo_u32 v{T+1}, s63, v3
    v_lshl_add_u32 v{T+1}, v2, 4, v{T+1}
    s_mul_i32 s63, s61, {112*8192}
    s_lshl_b32 s64, s60, 8
    s_add_u32 s63, s63, s64
    s_and_b32 s56, s2, 0xf8
    """)
    after_kernarg()
    cm("workgroup 0 publishes this launch's nonce (tags every hand-off through d_ws) in the zeroed d_debug")
    a(f"""
    s_mov_b32 s80, s26
    s_mov_b32 s81, s27
    s_cmp_lg_u32 s2, 0
    s_cbranch_scc1 L_nononce
    s_or_b32 s92, s92, 1
    v_mov_b32 v{T+4}, s92
    v_mov_b32 v{T+5}, s93
    v_lshlrev_b32 v{T+6}, 3, v0
    s_mov_b32 exec_hi, 0
    buffer_store_dwordx2 v[{T+4}:{T+5}], v{T+6}, s[80:83], 0 offen sc1
    s_mov_b64 exec, -1
    """)
    a.label("L_nononce")
    cm("partial q: 112 rows x 128 columns of wq")
    a("""
    s_cmp_eq_u32 s55, 0
    s_cselect_b32 s40, s4, s14
    s_cselect_b32 s41, s5, s15
    s_cselect_b32 s44, s10, s20
    s_cselect_b32 s45, s11, s21
    """)
    for i in range(28):
        a(f"buffer_load_dwordx4 v[{WR+4*i}:{WR+4*i+3}], v{T+1}, s[44:47], s63 offen nt")
        if i<27: a("s_add_u32 s63, s63, 8192")
        if i==0:
            for k in range(7):
                a(f"buffer_load_dwordx2 v[{XR+2*k}:{XR+2*k+1}], v{T}, s[40:43], s62 offen offset:{8*k}")
        if i+1==bar0: a("s_barrier")
    a(f"buffer_load_dwordx2 v[{T+4}:{T+5}], off, s[80:83], s56 sc1")
    selectors()
    a(f"""
    v_mov_b32 v{HC+4}, {LCNT}
    v_mov_b32 v{HC+6}, 0
    v_mov_b32 v{HC+7}, 0
    ds_write_b64 v{HC+4}, v[{HC+6}:{HC+7}]
    ds_write_b64 v{HC+4}, v[{HC+6}:{HC+7}] offset:8
    v_lshlrev_b32 v{T+2}, 4, v0
    v_and_b32 v{T+3}, 1, v3
    v_lshlrev_b32 v{T+3}, 4, v{T+3}
    v_lshl_add_u32 v{T+3}, v2, 5, v{T+3}
    v_lshrrev_b32 v{T+6}, 5, v0
    v_lshlrev_b32 v{T+6}, 4, v{T+6}
    v_lshl_add_u32 v{T+6}, v{T+3}, 1, v{T+6}
    s_lshl_b32 s63, s61, 15
    s_lshl_b32 s64, s60, 10
    s_add_u32 s63, s63, s64
    s_lshl_b32 s64, s55, 17
    s_add_u32 s63, s63, s64
    s_add_u32 s63, s63, {QP}
    """)
    for i in range(28):
        a(f"s_waitcnt vmcnt({28-i})")
        ar=HA+(i%2)*4
        for v in range(4):
            a(f"v_perm_b32 v{ar+v}, v{XR+i//2}, v{XR+i//2}, v{SEL[i%2][v]}")
        a(f"v_mfma_f32_16x16x32_bf16 v[{HC}:{HC+3}], v[{ar}:{ar+3}], v[{WR+4*i}:{WR+4*i+3}], {'0' if i==0 else 'v[%d:%d]'%(HC,HC+3)}")
    st(1)
    a(f"s_mov_b32 s65, {SPIN}")
    a.label("L_np")
    a("s_waitcnt vmcnt(0)")
    a(f"v_readfirstlane_b32 s92, v{T+4}"); a(f"v_readfirstlane_b32 s93, v{T+5}")
    a("s_cmp_lg_u32 s92, 0")
    a("s_cbranch_scc1 L_nd")
    a(f"buffer_load_dwordx2 v[{T+4}:{T+5}], off, s[80:83], s56 sc1")
    spin_tail("L_np",0)
    a.label("L_nd")
    a("s_mov_b32 exec_lo, 0")
    a(f"v_mov_b32 v{HC}, v{HC+2}"); a(f"v_mov_b32 v{HC+1}, v{HC+3}")
    a("s_mov_b32 exec_lo, -1")
    a(f"v_mov_b32 v{HC+2}, v{T+4}"); a(f"v_mov_b32 v{HC+3}, v{T+5}")
    a(f"buffer_store_dwordx4 v[{HC}:{HC+3}], v{T+6}, s[36:39], s63 offen sc1")
    a(f"v_mov_b32 v{T}, {LNON}")
    a(f"ds_write_b64 v{T}, v[{T+4}:{T+5}]")
    st(2)
    def gather(lbl,nk,base,ldsoff,sleep):
        a(f"s_mov_b32 s65, {SPIN}")
        a.label(lbl)
        base()
        for ks in range(4):
            for k in range(nk):
                r=DT+(ks*nk+k)*4
                a(f"buffer_load_dwordx4 v[{r}:{r+3}], v{T+2}, s[36:39], s62 offen offset:{k*1024} sc1")
            if ks<3: a("s_add_u32 s62, s62, 0x8000")
        a("s_mov_b64 s[66:67], 0")
        for j in range(4*nk):
            a(f"s_waitcnt vmcnt({4*nk-1-j})")
            a(f"v_cmp_ne_u64 vcc, s[92:93], v[{DT+j*4+2}:{DT+j*4+3}]")
            a("s_or_b64 s[66:67], s[66:67], vcc")
        a("s_cmp_eq_u64 s[66:67], 0")
        a(f"s_cbranch_scc1 {lbl}d")
        spin_tail(lbl,sleep)
        a.label(lbl+"d")
        def pr(j): return f"v[{DT+j*4}:{DT+j*4+1}]"
        for k in range(nk):
            a(f"v_pk_add_f32 {pr(k)}, {pr(k)}, {pr(nk+k)}")
            a(f"v_pk_add_f32 {pr(2*nk+k)}, {pr(2*nk+k)}, {pr(3*nk+k)}")
        for k in range(nk): a(f"v_pk_add_f32 {pr(k)}, {pr(k)}, {pr(2*nk+k)}")
        a(f"v_lshlrev_b32 v{T}, 2, v0")
        for k in range(nk): a(f"v_cvt_pk_bf16_f32 v{DT+k*4+2}, v{DT+k*4}, v{DT+k*4+1}")
        for k in range(nk): a(f"ds_write_b32 v{T}, v{DT+k*4+2} offset:{ldsoff+256*k}")
        a("s_waitcnt lgkmcnt(0)")
    def baseA(): a("s_lshl_b32 s62, s97, 12"); a(f"s_add_u32 s62, s62, {QP}")
    def baseB(): a("s_lshl_b32 s62, s96, 11"); a(f"s_add_u32 s62, s62, {QP+0x20000}")
    cm("gather the two A q heads of this workgroup (back off first: the other producers finish at about the same time)")
    if gsleep: a(f"s_sleep {gsleep}")
    gather("L_ga",4,baseA,LQA,8)
    if est: st(5)
    a("s_barrier")
    a("s_setprio 0")
    st(4)
    cm("16 helpers initialise one ticket counter each: {0, 0, nonce} in one store")
    a("s_lshl_b32 s60, s55, 7"); a("s_add_u32 s60, s60, s48")
    a("s_lshl_b32 s52, s60, 12"); a(f"s_add_u32 s52, s52, {IN1D}")
    a("s_lshl_b32 s54, s60, 11"); a(f"s_add_u32 s54, s54, {YO}")
    a("s_cmp_ge_u32 s60, 16"); a("s_cbranch_scc1 L_notk")
    a("s_lshl_b32 s63, s60, 8"); a(f"s_add_u32 s63, s63, {TK}")
    a(f"v_mov_b32 v{HC}, 0"); a(f"v_mov_b32 v{HC+1}, 0")
    a("s_mov_b64 exec, 1")
    a(f"buffer_store_dwordx4 v[{HC}:{HC+3}], off, s[36:39], s63 sc1")
    a("s_mov_b64 exec, -1")
    a.label("L_notk")
    cm("32 rows of wo stay in registers until the end")
    a(f"""
    s_cmp_eq_u32 s55, 1
    s_cselect_b32 s44, s22, s12
    s_cselect_b32 s45, s23, s13
    s_mov_b32 s46, {4096*896}
    s_mul_i32 s63, s48, {32*896}
    v_bfrev_b32 v{T+7}, v3
    v_lshrrev_b32 v{T+7}, 30, v{T+7}
    v_mul_u32_u24 v{T}, 896, v{T+7}
    v_lshl_add_u32 v{T}, v2, 4, v{T}
    """)
    a("s_mov_b32 s66, 0x00ff00ff"); a("s_mov_b32 s67, 0x00ff00ff")
    for i in range(8):
        for bk in range(4):
            r=WR+(i*4+bk)*4
            if bk==3: a("s_mov_b64 exec, s[66:67]")
            a(f"buffer_load_dwordx4 v[{r}:{r+3}], v{T}, s[44:47], s63 offen offset:{bk*256} nt")
        a("s_mov_b64 exec, -1")
        if i<7: a(f"s_add_u32 s63, s63, {4*896}")
    a("s_waitcnt vmcnt(0)")
    cm("has this head's ticket counter been initialised in this launch?")
    a("s_lshl_b32 s64, s96, 8"); a(f"s_add_u32 s64, s64, {TK}")
    a(f"s_mov_b32 s65, {SPIN}")
    a.label("L_rd")
    a(f"buffer_load_dwordx2 v[{DT}:{DT+1}], off, s[36:39], s64 offset:8 sc1")
    a("s_waitcnt vmcnt(0)")
    a(f"v_cmp_ne_u64 vcc, s[92:93], v[{DT}:{DT+1}]")
    a("s_cmp_eq_u64 vcc, 0")
    a("s_cbranch_scc1 L_rdd")
    spin_tail("L_rd",64)
    a.label("L_rdd")
    cm("q of this workgroup's B head")
    gather("L_gb",2,baseB,LQB,64)
    a(f"v_mov_b32 v{T}, {LGO}"); a(f"v_mov_b32 v{T+1}, 1")
    a(f"ds_write_b32 v{T}, v{T+1}")
    st(3)
    VK=24; PC=25
    def poll(lbl,loads,quads,ne=4):
        loads()
        a("s_waitcnt vmcnt(0)")
        a(f"s_mov_b32 s65, {SPIN}")
        a.label(lbl)
        for k,q in enumerate(quads):
            for e in range(ne):
                if k==0: a(f"v_xor_b32 v{PC+e}, s{4+e}, v{q+e}")
                else: a(f"v_bitop3_b32 v{PC+e}, v{q+e}, s{4+e}, v{PC+e} bitop3:0xbe")
        if ne==4: a(f"v_or_b32 v{PC}, v{PC}, v{PC+3}")
        a(f"v_or3_b32 v{PC}, v{PC}, v{PC+1}, v{PC+2}")
        a(f"v_and_b32 v{PC}, 0xfff, v{PC}")
        a(f"v_cmp_ne_u32 vcc, 0, v{PC}")
        a("s_cmp_lg_u64 vcc, 0")
        a(f"s_cbranch_scc0 {lbl}d")
        a("s_mov_b64 exec, vcc")
        loads()
        a("s_mov_b64 exec, -1")
        a("s_waitcnt vmcnt(48)")
        spin_tail(lbl,psl)
        a.label(lbl+"d")
    tags("s92","s93")
    a(f"v_mov_b32 v{VK}, 0xfffff000")
    a(f"v_lshlrev_b32 v1, 1, v{T+7}"); a(f"v_and_b32 v{T+1}, 3, v0"); a(f"v_lshl_add_u32 v1, v{T+1}, 3, v1")
    a(f"v_lshrrev_b32 v{T+7}, 2, v0"); a(f"v_lshlrev_b32 v{T+7}, 11, v{T+7}")
    a(f"v_lshl_add_u32 v{T+7}, v{T+1}, 4, v{T+7}")
    a("s_lshl_b32 s84, s48, 6"); a("s_lshl_b32 s60, s55, 18"); a("s_add_u32 s84, s84, s60"); a(f"s_add_u32 s84, s84, {YO}")
    for k in range(1,8): a(f"s_add_u32 s{84+k}, s{83+k}, 0x8000")
    a("""
    s_mov_b32 s40, s24
    s_mov_b32 s41, s25
    s_mov_b32 s42, 1792
    s_lshl_b32 s62, s48, 5
    s_mul_i32 s60, s55, 896
    s_add_u32 s62, s62, s60
    """)
    cm("the merged A record waits in LDS until the pool runs dry: no stores while HBM is saturated")
    lds_wait("L_mw",T,LMRG,3,32)
    a(f"v_lshlrev_b32 v{T}, 3, v0")
    a(f"ds_read_b128 v[{DT}:{DT+3}], v{T+2} offset:{LDMP+5120}")
    a(f"ds_read_b128 v[{DT+4}:{DT+7}], v{T+2} offset:{LDMP+5120+1024}")
    a(f"ds_read_b64 v[{DT+8}:{DT+9}], v{T} offset:{LDMP+5120+2048}")
    a(f"v_and_b32 v{O}, 0x7f, v{T+3}"); a(f"v_lshrrev_b32 v{O+1}, 2, v2"); a(f"v_lshl_add_u32 v{O}, v{O+1}, 12, v{O}")
    a(f"v_lshrrev_b32 v{O+1}, 5, v0"); a(f"v_lshl_add_u32 v{O}, v{O+1}, 15, v{O}")
    a("s_and_b32 s65, s2, 31")
    a("s_lshl_b32 s98, s97, 16"); a("s_lshl_b32 s47, s65, 7"); a("s_add_u32 s98, s98, s47"); a(f"s_add_u32 s98, s98, {IN1D}")
    a("s_add_u32 s47, s98, 0x4000")
    payconst(O+1,12)
    a("s_waitcnt lgkmcnt(0)")
    for d,sr in ((DT+10,DT+8),(DT+11,DT+9)):
        a(f"v_mov_b32_dpp v{d}, v{sr} row_newbcast:0 row_mask:0x3 bank_mask:0xf")
        a(f"v_mov_b32_dpp v{d}, v{sr} row_newbcast:8 row_mask:0xc bank_mask:0xf")
    payload(DT+8,DT+10,DT+11,O+1,"s[12:13]")
    encp([DT,DT+4],VK,DT+8)
    a(f"v_and_b32 v{T+6}, 1, v0"); a(f"v_mul_u32_u24 v{T+6}, 12, v{T+6}")
    a(f"s_mov_b32 s14, {f2u(math.log2(math.e)/16.0)}")
    lds_wait("L_aw",T,LSIG if asig else LCNT,1,2)
    a(f"buffer_store_dwordx4 v[{DT}:{DT+3}], v{O}, s[36:39], s98 offen sc1")
    a(f"buffer_store_dwordx4 v[{DT+4}:{DT+7}], v{O}, s[36:39], s47 offen sc1")
    cm("wait until this workgroup's streaming waves are done, then combine the softmax records for 32 output rows")
    a("s_cmp_eq_u32 s55, 0"); a(f"s_cselect_b32 s57, {thrA}, {thr}")
    lds_wait("L_ow",T,LCNT,"s57",2)
    OM=O; OL=O+2; OX=O+3; OO=O+4; OB=O+8; OY=O+16; OW=O+20; OD=O+24
    def l1loads():
        for j in range(4):
            a(f"buffer_load_dwordx4 v[{DT+4*j}:{DT+4*j+3}], v{T+2}, s[36:39], s52 offen offset:{j*1024} {pfl}")
    poll("L_hp",l1loads,[DT+4*j for j in range(4)],3)
    if not est: st(5)
    def xr(reg,op,sw):
        a(f"v_mov_b32 v{OX}, v{reg}"); a(f"{sw} v{reg}, v{OX}"); a(f"{op} v{reg}, v{reg}, v{OX}")
    cm("record heads: lanes 0,1 of a quad rebuild m, lanes 2,3 rebuild l")
    for j in range(4): a(f"v_lshlrev_b32 v{OY+j}, 20, v{DT+4*j+3}")
    for j in range(4): a(f"v_lshrrev_b32 v{OY+j}, v{T+6}, v{OY+j}")
    for j in range(4): a(f"v_or_b32_dpp v{OY+j}, v{OY+j}, v{OY+j} quad_perm:[1,0,3,2] {DPPF}")
    for j in range(4): a(f"v_mul_f32 v{OW+j}, s14, v{OY+j}")
    a(f"v_max_f32 v{OM}, v{OW}, v{OW+1}")
    a(f"v_max3_f32 v{OM}, v{OM}, v{OW+2}, v{OW+3}")
    a(f"v_and_b32 v{OD}, v{VK}, v{DT+3}"); a(f"v_and_b32 v{OD+1}, v{VK}, v{DT+7}")
    a(f"v_max_f32_dpp v{OM}, v{OM}, v{OM} row_ror:8 {DPPF}")
    a(f"v_mov_b32 v{OX}, v{OM}")
    a(f"v_and_b32 v{OD+2}, v{VK}, v{DT+11}"); a(f"v_and_b32 v{OD+3}, v{VK}, v{DT+15}")
    a(f"v_permlane16_swap_b32 v{OM}, v{OX}"); a(f"v_max_f32 v{OM}, v{OM}, v{OX}")
    xr(OM,"v_max_f32","v_permlane32_swap_b32")
    for j in range(4): a(f"v_sub_f32 v{OW+j}, v{OW+j}, v{OM}")
    for j in range(4): a(f"v_exp_f32 v{OW+j}, v{OW+j}")
    Q0="quad_perm:[0,0,0,0]"
    for j in range(4): a(f"{'v_mul_f32_dpp' if j==0 else 'v_fmac_f32_dpp'} v{OL}, v{OW+j}, v{OY+j} {Q0} {DPPF}")
    lchain=[None,f"v_mov_b32_dpp v{OL}, v{OL} quad_perm:[2,2,2,2] {DPPF}",f"v_add_f32_dpp v{OL}, v{OL}, v{OL} row_ror:8 {DPPF}",f"v_mov_b32 v{OX}, v{OL}",f"v_permlane16_swap_b32 v{OL}, v{OX}",
            f"v_add_f32 v{OL}, v{OL}, v{OX}",f"v_mov_b32 v{OX}, v{OL}",f"v_permlane32_swap_b32 v{OL}, v{OX}"]
    for j in range(4):
        for e in range(4):
            src=DT+4*j+e if e<3 else OD+j
            a(f"{'v_mul_f32_dpp' if j==0 else 'v_fmac_f32_dpp'} v{OO+e}, v{OW+j}, v{src} {Q0} {DPPF}")
            if e%2==1 and lchain[2*j+e//2]: a(lchain[2*j+e//2])
    a(f"v_add_f32 v{OL}, v{OL}, v{OX}")
    a(f"v_permlane32_swap_b32 v{OO}, v{OO+1}"); a(f"v_permlane32_swap_b32 v{OO+2}, v{OO+3}")
    a(f"v_rcp_f32 v{OL}, v{OL}")
    a(f"v_add_f32 v{OO}, v{OO}, v{OO+1}"); a(f"v_add_f32 v{OO+2}, v{OO+2}, v{OO+3}")
    a(f"v_permlane16_swap_b32 v{OO}, v{OO+2}")
    a(f"v_add_f32 v{OO}, v{OO}, v{OO+2}")
    a(f"v_add_f32_dpp v{OO}, v{OO}, v{OO} row_ror:8 {DPPF}")
    a(f"v_mul_f32 v{OO}, v{OO}, v{OL}")
    a(f"v_cvt_pk_bf16_f32 v{OO}, v{OO}, v{OO}")
    for i in range(8): a(f"v_mov_b32_dpp v{OB+i}, v{OO} row_newbcast:{i} {DPPF}")
    def prm(i,v): a(f"v_perm_b32 v{HA+(i%2)*4+v}, v{OB+i}, v{OB+i}, v{SEL[0][v]}")
    for v in range(4): prm(0,v)
    for i in range(8):
        ar=HA+(i%2)*4
        for bk in range(4):
            r=WR+(i*4+bk)*4; c=HC+bk*4
            a(f"v_mfma_f32_16x16x32_bf16 v[{c}:{c+3}], v[{ar}:{ar+3}], v[{r}:{r+3}], {'0' if i==0 else 'v[%d:%d]'%(c,c+3)}")
            if i<7 and bk<2: prm(i+1,2*bk); prm(i+1,2*bk+1)
    cm("both half waves hold the same sums: pack two column blocks per store")
    a(f"v_lshrrev_b32 v{OX}, 5, v0"); a(f"v_lshl_add_u32 v{OX}, v{OX}, 9, v{T+3}")
    for pr in range(2):
        c=HC+pr*8
        for e in range(4): a(f"v_permlane32_swap_b32 v{c+e}, v{c+4+e}")
        enc(range(c,c+4),VK)
        if pr==1: a("s_mov_b32 exec_hi, 0x00ff00ff")
        a(f"buffer_store_dwordx4 v[{c}:{c+3}], v{OX}, s[36:39], s54 offen offset:{pr*1024} {sfl}")
    a("s_mov_b64 exec, -1")
    st(6)
    cm("28 helpers per branch sum the 128 partial rows for 16 output columns each")
    a("s_cmp_ge_u32 s48, 28")
    a("s_cbranch_scc1 L_he")
    def l2loads():
        for k in range(8):
            a(f"buffer_load_dwordx4 v[{DT+4*k}:{DT+4*k+3}], v{T+7}, s[36:39], s{84+k} offen {pfl}")
    poll("L_yp",l2loads,[DT+4*k for k in range(8)])
    for e in range(0,16,2): a(f"v_pk_add_f32 v[{O+e}:{O+e+1}], v[{DT+e}:{DT+e+1}], v[{DT+16+e}:{DT+17+e}]")
    for half in (8,4):
        for e in range(0,half,2): a(f"v_pk_add_f32 v[{O+e}:{O+e+1}], v[{O+e}:{O+e+1}], v[{O+half+e}:{O+half+e+1}]")
    a(f"v_permlane32_swap_b32 v{O}, v{O+1}"); a(f"v_permlane32_swap_b32 v{O+2}, v{O+3}")
    a(f"v_add_f32 v{O}, v{O}, v{O+1}"); a(f"v_add_f32 v{O+2}, v{O+2}, v{O+3}")
    a(f"v_permlane16_swap_b32 v{O}, v{O+2}")
    a(f"v_add_f32 v{O}, v{O}, v{O+2}")
    for m in ("row_ror:8","row_ror:4"): a(f"v_add_f32_dpp v{O}, v{O}, v{O} {m} {DPPF}")
    a(f"v_cvt_pk_bf16_f32 v{O}, v{O}, v{O}")
    a("s_mov_b32 exec_lo, 0x000f000f"); a("s_mov_b32 exec_hi, 0x000f000f")
    a(f"buffer_store_short v{O}, v1, s[40:43], s62 offen")
    a("s_mov_b64 exec, -1")
    a.label("L_he")
    write_stamps(True)
    a("s_endpgm")

    VOFF=1; VSC=4; VM=5; VL=6; VMC=7
    Q=16; PA=24; ACC=32; AR=40; D=48; T=52; PKR=60; VOFF2=62; VTK=63
    RING=64
    STEP=4096*W
    NA=(1<<19)//STEP; NB=((1<<20)-PK*1024)//STEP
    NT=16*PK//8
    if dlp is None: dlp=dl
    TQ=min(tq,16-dlp)
    cd=[dl]
    vq=[]
    BB=(blk*1024).bit_length()-1
    assert PK%blk==0 and NB%4==0 and NV%4==0 and (2*PK)%(8<<(pm&7))==0
    for k in range(pad): a.raw("    s_nop 0")
    a.label("L_stream")
    cm("---------------- streaming waves")
    a(f"""
    s_sub_u32 s31, s30, 1
    v_lshlrev_b32 v{VOFF}, 9, v3
    v_lshl_add_u32 v{VOFF}, v2, 4, v{VOFF}
    s_mov_b32 s34, 0x200000
    s_mov_b32 s35, 0x20000
    s_mov_b32 s42, 0x200000
    s_mov_b32 s43, 0x20000
    s_lshl_b32 s61, s31, 12
    s_lshl_b32 s49, s55, {BB}
    s_and_b32 s60, s48, 15
    s_lshl_b32 s60, s60, 20
    s_add_u32 s60, s60, s49
    s_lshl_b32 s64, s97, 24
    s_add_u32 s60, s60, s64
    """)
    def adv(r):
        a(f"s_bitset1_b32 {r}, {BB}"); a(f"s_add_u32 {r}, {r}, {STEP}"); a(f"s_bitset0_b32 {r}, {BB}")
    after_kernarg()
    a("s_add_u32 s32, s6, s60"); a("s_addc_u32 s33, s7, 0")
    a("s_add_u32 s40, s8, s60"); a("s_addc_u32 s41, s9, 0")
    if bar0: a("s_barrier")
    if est: st(2)
    OFFS=[0,256,2048,2304]
    PH=[('A','K',NA),('A','V',NA),('B','K',NB),('B','V',NB)]
    ends=[NA,2*NA-NV,2*NA-NV+NB]
    def ld(base,i,srd,soff,voff=VOFF,rf='v'):
        r=base+i*4
        a(f"buffer_load_dwordx4 {rf}[{r}:{r+3}], v{voff}, {srd}, {soff} offen offset:{OFFS[i]} nt")
    def issue_static(h,p):
        h%=16
        ld(RING+(h//4)*16,h%4,"s[32:35]","s52"); vq.append(h)
        if h%4==3:
            adv("s52")
            if p is not None and p<3:
                a("s_add_u32 s53, s53, 1")
                a(f"s_cmp_eq_u32 s53, {ends[p]}")
                b=(40,56,58)[p]
                a(f"s_cselect_b32 s32, s{b}, s32"); a(f"s_cselect_b32 s33, s{b+1}, s33"); a(f"s_cselect_b32 s52, {'s94' if p==0 else 's61'}, s52")
    def ticket_req():
        a("s_mov_b64 exec, 1")
        a(f"v_mov_b32 v{VTK}, 1")
        a(f"buffer_atomic_add v{VTK}, off, s[36:39], s91 sc0 sc1"); vq.append('A')
        a("s_mov_b64 exec, -1")
    def ticket_use():
        assert 'A' not in vq
        a(f"v_readfirstlane_b32 s90, v{VTK}")
        lo=pm&7
        if pm&8:
            a(f"s_lshr_b32 s89, s90, {lo+3}"); a("s_add_u32 s89, s89, s96"); a(f"s_lshr_b32 s88, s90, {lo}"); a("s_add_u32 s88, s88, s89"); a("s_and_b32 s88, s88, 7")
        else: a(f"s_bfe_u32 s88, s90, {lo|(3<<16)}")
        a("s_lshl_b32 s88, s88, 21")
        a(f"s_lshr_b32 s89, s90, {lo+3}"); a(f"s_lshl_b32 s89, s89, {13+lo}"); a("s_add_u32 s88, s88, s89")
        if lo:
            if pm&16: a("s_add_u32 s89, s90, s96"); a(f"s_and_b32 s89, s89, {(1<<lo)-1}")
            else: a(f"s_and_b32 s89, s90, {(1<<lo)-1}")
            a("s_lshl_b32 s89, s89, 13"); a("s_add_u32 s88, s88, s89")
        a(f"s_add_u32 s88, s88, {2*NB*STEP}")
        if apub=='help' and asig:
            a(f"s_cmp_ge_u32 s90, {NT-(asig-1)}"); a("s_cselect_b32 s89, 1, 0")
            a(f"v_mov_b32 v{NON+2}, s89")
            a("s_mov_b64 exec, 1"); a(f"ds_max_u32 v{PA+2}, v{NON+2} offset:{LSIG-LCNT}"); a("s_mov_b64 exec, -1")
        a(f"s_cmp_lt_u32 s90, {NT}")
        if nr0: a("s_cselect_b32 s88, s88, 0"); a("s_cselect_b32 s82, s82, 0"); a("s_cselect_b32 s86, s86, 0")
        else: a(f"s_cselect_b32 s88, s88, {INV}")
    def issue_pool(h):
        h%=16
        if h==0: ticket_use()
        if h==TQ: ticket_req()
        k=h//4
        ld(RING+k*16,h%4,"s[80:83]" if k<2 else "s[84:87]","s88",VOFF if k%2==0 else VOFF2); vq.append(h)
    def setup2():
        selectors()
        a(f"""
        s_and_b32 s60, s2, 7
        s_lshl_b32 s60, s60, 21
        s_add_u32 s60, s60, s49
        s_lshl_b32 s64, s96, 24
        s_add_u32 s60, s60, s64
        s_add_u32 s56, s16, s60
        s_addc_u32 s57, s17, 0
        s_add_u32 s58, s18, s60
        s_addc_u32 s59, s19, 0
        s_lshl_b32 s60, s96, 24
        s_add_u32 s80, s16, s60
        s_addc_u32 s81, s17, 0
        s_mov_b32 s82, 0x1000000
        s_mov_b32 s83, 0x20000
        s_add_u32 s84, s18, s60
        s_addc_u32 s85, s19, 0
        s_mov_b32 s86, 0x1000000
        s_mov_b32 s87, 0x20000
        s_lshl_b32 s91, s96, 8
        s_add_u32 s91, s91, {TK}
        s_mov_b32 s62, {f2u(math.log2(math.e)/16.0)}
        s_lshl_b32 s63, s31, 15
        s_add_u32 s63, s63, {LSC}
        v_add_u32 v{VOFF2}, 0x1000, v{VOFF}
        """)
    cm(f"while q is being computed: first {NV} V units of branch A go to AGPRs, then the K ring starts; {dl} loads in flight")
    n=0
    a("s_mov_b32 s94, s61")
    for k in range(NV):
        for i in range(4):
            if n>=dl: a(f"s_waitcnt vmcnt({dl-1})")
            if est and n==dl: st(4)
            ld(k*16,i,"s[40:43]","s94",rf='a'); n+=1
            if n==dl: setup2()
        adv("s94")
    a("s_mov_b32 s52, s61")
    a(f"s_mov_b32 s53, {dl//4}")
    for h in range(dl):
        if n>=dl: a(f"s_waitcnt vmcnt({dl-1})")
        issue_static(h,None); n+=1
        if n==dl: setup2()
    st(6)
    a("s_barrier")
    st(1)
    def arrive(c,iss):
        k=vq.index(c%16)
        a(f"s_waitcnt vmcnt({len(vq)-1-k})")
        del vq[:k+1]
        if sum(1 for x in vq if isinstance(x,int))<cd[0]: iss(c+cd[0])
    def do_boost(iss):
        for h in range(dl,dl+boost): iss(h)
    def loop_begin(lbl):
        vq[:]=[x for x in vq if x!='S']
        if align: a.flush(); a.raw(f".p2align {align}")
        a.label(lbl)
        return list(vq)
    def dots1(base,i,nh,dbase):
        s_=i//2
        for e4 in range(4):
            e=(i%2)*4+e4
            for h in range(nh):
                d=dbase+s_*nh+h
                a(f"v_dot2_f32_bf16 v{d}, v{base+i*4+e4}, v{Q+h*8+e}, {'0' if e==0 else 'v%d'%d}")
    def reduce(nh,dbase,tb,ns=2):
        for s_ in range(ns):
            if nh==2:
                a(f"v_add_f32_dpp v{tb+s_}, v{dbase+s_*2}, v{dbase+s_*2} row_ror:8 row_mask:0xf bank_mask:0x3")
                a(f"v_add_f32_dpp v{tb+s_}, v{dbase+s_*2+1}, v{dbase+s_*2+1} row_ror:8 row_mask:0xf bank_mask:0xc")
            else:
                a(f"v_add_f32_dpp v{tb+s_}, v{dbase+s_}, v{dbase+s_} row_ror:8 {DPPF}")
        for m in ("row_half_mirror","quad_perm:[1,0,3,2]","quad_perm:[2,3,0,1]"):
            for s_ in range(ns):
                a(f"v_add_f32_dpp v{tb+s_}, v{tb+s_}, v{tb+s_} {m} {DPPF}")
    def kunit(j,jl,nh,iss):
        for i in range(4):
            arrive(4*j+i,iss); dots1(RING+j*16,i,nh,D)
        reduce(nh,D,T)
        a(f"v_max3_f32 v{VM}, v{VM}, v{T}, v{T+1}")
        a(f"v_cvt_pk_bf16_f32 v{T+2}, v{T}, v{T+1}")
        a(f"ds_write_b32 v{VSC}, v{T+2} offset:{jl*256}")
    def pcalc(t0,ar):
        a(f"v_fma_f32 v{t0}, v{t0}, s62, -v{VMC}")
        a(f"v_fma_f32 v{t0+1}, v{t0+1}, s62, -v{VMC}")
        a(f"v_exp_f32 v{t0}, v{t0}")
        a(f"v_exp_f32 v{t0+1}, v{t0+1}")
        a(f"v_add_f32 v{VL}, v{VL}, v{t0}")
        a(f"v_add_f32 v{VL}, v{VL}, v{t0+1}")
        a(f"v_cvt_pk_bf16_f32 v{t0}, v{t0}, v{t0+1}")
        for s_ in range(2):
            for v in range(4):
                a(f"v_perm_b32 v{ar+s_*4+v}, v{t0}, v{t0}, v{SEL[s_][v]}")
    def pvunit(j,iss):
        for i in range(4):
            arrive(4*j+i,iss)
            r=RING+j*16+i*4; c=ACC+(i%2)*4; ar=AR+(i//2)*4
            a(f"v_mfma_f32_16x16x32_bf16 v[{c}:{c+3}], v[{ar}:{ar+3}], v[{r}:{r+3}], v[{c}:{c+3}]")
    def vunit(j,jl,iss,par=None,nxt=None,side=None):
        if par is None: par=j%2
        if nxt is None: nxt=jl+1
        pk=PKR+par
        a("s_waitcnt lgkmcnt(0)")
        a(f"v_lshlrev_b32 v{T}, 16, v{pk}")
        a(f"v_and_b32 v{T+1}, 0xffff0000, v{pk}")
        a(f"ds_read_b32 v{PKR+1-par}, v{VSC} offset:{nxt*256}")
        pcalc(T,AR)
        if side is None: pvunit(j,iss)
        else:
            for i in range(4):
                r=side*16+i*4; c=ACC+(i%2)*4; ar=AR+(i//2)*4
                a(f"v_mfma_f32_16x16x32_bf16 v[{c}:{c+3}], v[{ar}:{ar+3}], a[{r}:{r+3}], v[{c}:{c+3}]")
    def xrow(reg,op):
        a(f"v_mov_b32 v{T+7}, v{reg}")
        a(f"v_permlane16_swap_b32 v{reg}, v{T+7}")
        a(f"{op} v{reg}, v{reg}, v{T+7}")
        a(f"v_mov_b32 v{T+7}, v{reg}")
        a(f"v_permlane32_swap_b32 v{reg}, v{T+7}")
        a(f"{op} v{reg}, v{reg}, v{T+7}")
    NON=28; VK=31
    def pubvec():
        a(f"v_mov_b32 v{PA+2}, {LCNT}"); a(f"v_mov_b32 v{PA+3}, 1")
        a(f"ds_read_b64 v[{NON}:{NON+1}], v{PA+2} offset:{LNON-LCNT}")
        a(f"v_lshrrev_b32 v{PA}, 5, v0"); a(f"v_lshlrev_b32 v{PA}, 14, v{PA}")
        a(f"v_lshrrev_b32 v{PA+1}, 2, v2"); a(f"v_lshl_add_u32 v{PA}, v{PA+1}, 12, v{PA}")
        a(f"v_and_b32 v{PA+1}, 3, v2"); a(f"v_lshl_add_u32 v{PA}, v{PA+1}, 5, v{PA}")
        a(f"v_and_b32 v{PA+1}, 1, v3"); a(f"v_lshl_add_u32 v{PA}, v{PA+1}, 4, v{PA}")
        a(f"v_mov_b32 v{VK}, 0xfffff000")
    def pubaddr(kind):
        if kind=='A': return
        a("s_add_u32 s64, s96, 16")
        a("s_and_b32 s65, s2, 15"); a("s_lshl_b32 s65, s65, 1"); a("s_add_u32 s65, s65, s31")
        a("s_lshl_b32 s44, s64, 15"); a("s_lshl_b32 s47, s65, 7"); a("s_add_u32 s44, s44, s47"); a(f"s_add_u32 s44, s44, {IN1D}")
        payconst(PA+1,46)
        a(f"v_readfirstlane_b32 s64, v{NON}"); a(f"v_readfirstlane_b32 s65, v{NON+1}")
        tags("s64","s65")
    def mergeA():
        xrow(VL,"v_add_f32")
        a("s_mul_i32 s64, s31, 2560"); a(f"s_add_u32 s64, s64, {LDMP}")
        a(f"v_lshlrev_b32 v{T+4}, 4, v0"); a(f"v_lshlrev_b32 v{T+5}, 3, v0")
        a(f"v_add_u32 v{T}, s64, v{T+4}"); a(f"v_add_u32 v{T+1}, s64, v{T+5}")
        a(f"ds_write_b128 v{T}, v[{ACC}:{ACC+3}]")
        a(f"ds_write_b128 v{T}, v[{ACC+4}:{ACC+7}] offset:1024")
        a(f"ds_write_b32 v{T+1}, v{VL} offset:2048"); a(f"ds_write_b32 v{T+1}, v{VM} offset:2052")
        a("s_waitcnt lgkmcnt(0)")
        a("s_mov_b64 exec, 1")
        a(f"ds_add_rtn_u32 v{T+2}, v{PA+2}, v{PA+3} offset:{LMRG-LCNT}")
        a("s_mov_b64 exec, -1")
        a(f"s_sub_u32 s64, {2*LDMP+2560}, s64")
        a(f"v_add_u32 v{T}, s64, v{T+4}"); a(f"v_add_u32 v{T+1}, s64, v{T+5}")
        a("s_waitcnt lgkmcnt(0)")
        a(f"v_readfirstlane_b32 s64, v{T+2}")
        a("s_cmp_eq_u32 s64, 0")
        a("s_cbranch_scc1 L_nopub")
        a(f"ds_read_b64 v[{T+2}:{T+3}], v{T+1} offset:2048")
        a(f"ds_read_b128 v[{AR}:{AR+3}], v{T}")
        a(f"ds_read_b128 v[{AR+4}:{AR+7}], v{T} offset:1024")
        a("s_waitcnt lgkmcnt(2)")
        a(f"v_max_f32 v{VM}, v{VM}, v{T+3}")
        a(f"v_mul_f32 v{T+3}, s62, v{T+3}")
        a(f"v_max_f32 v{T+4}, v{VMC}, v{T+3}")
        a(f"v_sub_f32 v{T+5}, v{VMC}, v{T+4}"); a(f"v_sub_f32 v{T+6}, v{T+3}, v{T+4}")
        a(f"v_exp_f32 v{T+5}, v{T+5}"); a(f"v_exp_f32 v{T+6}, v{T+6}")
        a(f"v_mov_b32 v{VMC}, v{T+4}")
        a(f"v_mul_f32 v{VL}, v{VL}, v{T+5}"); a(f"v_fmac_f32 v{VL}, v{T+2}, v{T+6}")
        for d,sr in ((T,T+5),(T+1,T+6)):
            a(f"v_mov_b32_dpp v{d}, v{sr} row_newbcast:0 row_mask:0x3 bank_mask:0xf")
            a(f"v_mov_b32_dpp v{d}, v{sr} row_newbcast:8 row_mask:0xc bank_mask:0xf")
        for i in range(8): a(f"v_mul_f32 v{ACC+i}, v{ACC+i}, v{T}")
        a("s_waitcnt lgkmcnt(0)")
        for i in range(8): a(f"v_fmac_f32 v{ACC+i}, v{AR+i}, v{T+1}")
        a(f"v_lshlrev_b32 v{T}, 4, v0"); a(f"v_lshlrev_b32 v{T+1}, 3, v0")
        a(f"v_mov_b32 v{T+2}, v{VM}"); a(f"v_mov_b32 v{T+3}, v{VL}")
        a(f"ds_write_b128 v{T}, v[{ACC}:{ACC+3}] offset:{LDMP+5120}")
        a(f"ds_write_b128 v{T}, v[{ACC+4}:{ACC+7}] offset:{LDMP+5120+1024}")
        a(f"ds_write_b64 v{T+1}, v[{T+2}:{T+3}] offset:{LDMP+5120+2048}")
        a("s_waitcnt lgkmcnt(0)")
        a("s_mov_b64 exec, 1"); a(f"ds_add_u32 v{PA+2}, v{PA+3} offset:{LMRG-LCNT}"); a("s_mov_b64 exec, -1")
        a.label("L_nopub")
    def publish(kind):
        cm("both half waves hold the same sums: one store carries both 128-column blocks")
        xrow(VL,"v_add_f32")
        payload(T,VM,VL,PA+1,"s[46:47]")
        for e in range(4): a(f"v_permlane32_swap_b32 v{ACC+e}, v{ACC+4+e}")
        encp([ACC],VK,T)
        a(f"buffer_store_dwordx4 v[{ACC}:{ACC+3}], v{PA}, s[36:39], s44 offen {sfl}")
        a("s_mov_b64 exec, 1")
        a(f"ds_add_u32 v{PA+2}, v{PA+3}")
        a("s_mov_b64 exec, -1")
    def loadq(lq,nh):
        a(f"v_lshlrev_b32 v{T}, 4, v2")
        for h in range(nh):
            a(f"ds_read_b128 v[{Q+h*8}:{Q+h*8+3}], v{T} offset:{lq+h*512}")
            a(f"ds_read_b128 v[{Q+h*8+4}:{Q+h*8+7}], v{T} offset:{lq+h*512+256}")
    for p,(br,kv,n) in enumerate(PH):
        nh=2 if br=='A' else 1
        iss=lambda h,p=p: issue_static(h,p)
        cm(f"---- branch {br}, {'scores = q.K (bf16-rounded, kept in LDS) and running max' if kv=='K' else 'p = exp2(c*s - c*max), o += p.V'}")
        a(f"v_lshlrev_b32 v{VSC}, 2, v0")
        a(f"v_add_u32 v{VSC}, s63, v{VSC}")
        done=0; tail=0
        if kv=='K':
            loadq(LQA if br=='A' else LQB,nh)
            a(f"v_mov_b32 v{VM}, 0xff800000")
            a("s_waitcnt lgkmcnt(0)")
        else:
            a(f"ds_read_b32 v{PKR}, v{VSC} offset:{NV*256 if p==1 else 0}")
            xrow(VM,"v_max_f32")
            a(f"v_cvt_pk_bf16_f32 v{VM}, v{VM}, v{VM}")
            a(f"v_and_b32 v{VM}, 0xffff0000, v{VM}")
            a(f"v_mul_f32 v{VMC}, s62, v{VM}")
            a(f"v_mov_b32 v{VL}, 0")
            for i in range(8): a(f"v_mov_b32 v{ACC+i}, 0")
            if p==1: pubvec()
            pubaddr(br)
            if p==3: tail=8
        def group(jl0,iss):
            for j in range(4):
                if kv=='K': kunit(j,jl0+j,nh,iss)
                else: vunit(j,jl0+j,iss)
        if p==1 and NV:
            for k in range(NV):
                vunit(k%4,None,iss,0,k)
                vunit(None,None,None,1,NV+k+1,side=k)
            done=2*NV
            a(f"v_add_u32 v{VSC}, {done*256}, v{VSC}")
        if done==0 and len(vq)!=dl:
            group(0,iss); done=4
            a(f"v_add_u32 v{VSC}, 1024, v{VSC}")
        assert (n-done-tail)%4==0
        a(f"s_mov_b32 s60, {(n-done-tail)//4}")
        q0=loop_begin(f"L_ph{p}")
        group(0,iss)
        assert vq==q0,(vq,q0)
        a(f"v_add_u32 v{VSC}, 1024, v{VSC}")
        a("s_sub_u32 s60, s60, 1")
        a("s_cmp_lg_u32 s60, 0")
        a(f"s_cbranch_scc1 L_ph{p}")
        if p<3: do_boost(lambda h: issue_static(h,p+1))
        if p==1:
            mergeA()
            lds_wait("L_go",T,LGO,1,2)
        if tail:
            def iss1(h):
                if h==16+TQ: ticket_req()
                iss(h)
            for h in range(dl,dlp): iss(h)
            cd[0]=dlp
            group(0,iss1)
            group(4,lambda h: issue_static(h,None) if h<16 else issue_pool(h))
            if wthr:
                a("s_mov_b64 exec, 1"); a(f"ds_add_u32 v{PA+2}, v{PA+3} offset:{LMRG-LCNT}"); a("s_mov_b64 exec, -1")
            st(5)
            cm("---- dynamic pool: 16-key blocks of branch B handed out by ticket, online softmax")
            a(f"s_cmp_eq_u32 s88, {0 if nr0 else INV}")
            a("s_cbranch_scc1 L_pool_end")
            def block(sfx):
                for j in range(2):
                    for i in range(4):
                        arrive(4*j+i,issue_pool); dots1(RING+j*16,i,1,D+2*j)
                reduce(1,D,T,4)
                a(f"v_cvt_pk_bf16_f32 v{T+4}, v{T}, v{T+1}")
                a(f"v_cvt_pk_bf16_f32 v{T+5}, v{T+2}, v{T+3}")
                a(f"v_lshlrev_b32 v{T}, 16, v{T+4}"); a(f"v_and_b32 v{T+1}, 0xffff0000, v{T+4}")
                a(f"v_lshlrev_b32 v{T+2}, 16, v{T+5}"); a(f"v_and_b32 v{T+3}, 0xffff0000, v{T+5}")
                a(f"v_max3_f32 v{T+4}, v{T}, v{T+1}, v{T+2}")
                a(f"v_max_f32 v{T+4}, v{T+4}, v{T+3}")
                a(f"v_cmp_gt_f32 vcc, v{T+4}, v{VM}")
                a("s_cmp_eq_u64 vcc, 0")
                a(f"s_cbranch_scc1 L_norescale{sfx}")
                a(f"v_max_f32 v{VM}, v{VM}, v{T+4}")
                xrow(VM,"v_max_f32")
                a(f"v_mul_f32 v{T+4}, s62, v{VM}")
                a(f"v_sub_f32 v{T+5}, v{VMC}, v{T+4}")
                a(f"v_exp_f32 v{T+5}, v{T+5}")
                a(f"v_mov_b32 v{VMC}, v{T+4}")
                a(f"v_mul_f32 v{VL}, v{VL}, v{T+5}")
                for i in range(8): a(f"v_mul_f32 v{ACC+i}, v{ACC+i}, v{T+5}")
                a.label(f"L_norescale{sfx}")
                pcalc(T,AR)
                pvunit(2,issue_pool)
                pcalc(T+2,AR)
                pvunit(3,issue_pool)
            q0=loop_begin("L_pool")
            block("")
            assert vq==q0,(vq,q0)
            a(f"s_cmp_lg_u32 s88, {0 if nr0 else INV}")
            a("s_cbranch_scc1 L_pool")
            a.label("L_pool_end")
            publish('B')
        if p<3 and not (est and p!=1): st(2+p)
    write_stamps(False)
    a.label("L_done")
    a("s_endpgm")
    if report is not None:
        import rep; rep.emit(a,report,WS_USED,W,LW)
    a.raw('.section .rodata,"a"')
    for nm,nv in ((NAME,256+16*NV),)+((("report_kernel",16),) if report is not None else ()):
        a.raw(".p2align 6"); a.raw(f".amdhsa_kernel {nm}")
        a.raw(f"  .amdhsa_next_free_vgpr {nv}"); a.raw("  .amdhsa_next_free_sgpr 100"); a.raw(f"  .amdhsa_accum_offset {min(nv,256)}")
        a.raw(f"  .amdhsa_float_denorm_mode_32 {den}")
        a.raw("  .amdhsa_group_segment_fixed_size 0"); a.raw("  .amdhsa_kernarg_size 104"); a.raw("  .amdhsa_user_sgpr_count 2")
        a.raw("  .amdhsa_user_sgpr_kernarg_segment_ptr 1"); a.raw("  .amdhsa_system_sgpr_workgroup_id_x 1"); a.raw(".end_amdhsa_kernel")
    return a.text()

def make(cfgs, listfile="list.txt"):
    import build
    lines=[]
    for c in cfgs:
        lab="g29_"+"_".join(f"{k}{str(v).replace(' ','').replace(',','.').strip('()[]')}" for k,v in c.items() if k!='stamp')
        fn="k_"+lab+".s"
        open(fn,"w").write(gen(**c))
        co=build.build(fn)
        lines.append(f"{lab} {co} {256*W if c.get('stamp') else 0} {NAME}:256:{(W+1)*64}:{c.get('lds',75520)}")
    open(listfile,"w").write("\n".join(lines)+"\n")
if __name__=="__main__":
    import json
    cfg=json.loads(sys.argv[2]) if len(sys.argv)>2 else {}
    open(sys.argv[1],"w").write(gen(**cfg))
```

```python
import struct, math, sys
from asmlib import Asm
NAME="concat_heads__gqa_block_cached__mha_block_cached__decode_kernel"
HDR=open('concat_heads__gqa_block_cached__mha_block_cached__decode.s.ref').read().split('; Override')[0]
def f2u(x): return struct.unpack('<I',struct.pack('<f',x))[0]
QP=0x10000
TK=0x50000
IN1D=0x80000
YO=0x180000
WS_USED=0x200000
LQA=0; LQB=1024; LCNT=1536; LGO=1540; LMRG=1544; LSIG=1548; LNON=1552; LDMP=2048; LSC=2048+3*2560
DPPF="row_mask:0xf bank_mask:0xf"
INV=0x7f000000
W=2; LW=1

def gen(stamp=False, lds=75520, dl=10, NV=12, PK=64, blk=32, tq=3, gsleep=24, psl=1, spin=1<<20, mix=True, report=None,
        thr=2, boost=0, sep=False, clr=2, cfl='sc1', wsoff=0, bar0=28, est=False, smodel=False, dlp=12, pm=20, shh=0, align=0, pad=0, ax=True, nr0=True, apub='help', pmask=True, asig=17, ph=True, thrA=2, den=0, yt=False, pfl='sc1', sfl='sc1', bx=False, hgate=None, hsl=2, warm=0, wfl='sc1', wthr=0):
    SPIN=spin
    a=Asm()
    cm=lambda t: a.raw("    ; "+t)
    a.raw(HDR.rstrip())
    if report is None: a.raw(f"; @launch grid=(256,1,1) block=({(W+1)*64},1,1) lds={lds}")
    else:
        a.raw(f"; @launch kernel={NAME} grid=(256,1,1) block=({(W+1)*64},1,1) lds={lds}")
        a.raw("; @launch kernel=report_kernel grid=(1,1,1) block=(64,1,1) lds=1024")
    a.raw('.amdgcn_target "amdgcn-amd-amdhsa--gfx950"')
    a.raw(".text"); a.raw(f".globl {NAME}"); a.raw(".p2align 8"); a.raw(f".type {NAME},@function"); a.raw(f"{NAME}:")
    def st(k):
        if stamp:
            a("s_memrealtime s[68:69]"); a("s_waitcnt lgkmcnt(0)"); a(f"s_mov_b32 s{72+k}, s68")
    for t in """Decode attention for both branches in one launch, HBM-bound (805 MB of K/V read once, nt loads).
    256 workgroups x 3 waves, one per CU.  Waves 1,2 stream; wave 0 is a helper.
    Streaming waves: A_k, A_v, B_k, B_v (static shares), then a dynamic pool of 16-key blocks of B (atomic tickets)
      K pass : 4 rows x 256 B per load, v_dot2 + DPP row reduction, scores rounded to bf16 (as the reference does), kept in LDS
      V pass : p = exp2(c*s - c*max) with the true max of the pass, o += p.V by MFMA with a diagonal A operand
      about 10 loads in flight per wave: enough to saturate HBM without oversubscribing the fabric
    Helper: q = x.wq (4 k-slices, MFMA) -> nonce-tagged granules in d_ws -> gathered per workgroup;
      at the end combines the (m, l, o) records of a head for 32 rows, multiplies with wo, and 28 helpers per branch
      add the 128 partial rows.  Every 16-byte granule handed over in d_ws carries this launch's nonce (64 bits, or slices of it in the 12 low mantissa bits of the partial sums).""".split("\n"):
        cm(t.strip())
    a(f"""
    s_cmp_ge_u32 s2, 256
    s_cbranch_scc1 L_done
    s_load_dwordx16 s[4:19], s[0:1], 0
    s_load_dwordx8 s[20:27], s[0:1], 64
    s_load_dwordx2 s[28:29], s[0:1], 96
    v_lshrrev_b32 v1, 6, v0
    v_and_b32 v0, 63, v0
    v_readfirstlane_b32 s30, v1
    v_and_b32 v2, 15, v0
    v_lshrrev_b32 v3, 4, v0
    s_mov_b32 s38, {WS_USED}
    s_mov_b32 s39, 0x20000
    s_lshr_b32 s48, s2, 4
    s_lshl_b32 s48, s48, 3
    s_and_b32 s49, s2, 7
    s_or_b32 s48, s48, s49
    s_bfe_u32 s55, s2, 0x10003
    s_lshr_b32 s96, s2, 4
    s_lshr_b32 s97, s2, 5
    """)
    if bx: a("s_lshl_b32 s49, s49, 1"); a("s_xor_b32 s96, s96, s49")
    elif ax: a("s_xor_b32 s97, s97, s49")
    a("s_cmp_eq_u32 s30, 0"); a("s_cbranch_scc0 L_stream")
    def selectors():
        a("""
        v_and_b32 v4, 1, v0
        v_cmp_eq_u32 vcc, 1, v4
        v_mov_b32 v5, 0x0c0c0100
        v_mov_b32 v6, 0x01000c0c
        v_cndmask_b32 v5, v5, v6, vcc
        v_mov_b32 v6, 0x0c0c0302
        v_mov_b32 v7, 0x03020c0c
        v_cndmask_b32 v6, v6, v7, vcc
        v_bfe_u32 v4, v0, 1, 2
        v_mov_b32 v7, 0x0c0c0c0c
        """)
        for v in range(4):
            a(f"v_cmp_eq_u32 vcc, {v}, v4")
            a(f"v_cndmask_b32 v{8+v}, v7, v5, vcc")
            a(f"v_cndmask_b32 v{12+v}, v7, v6, vcc")
    SEL=[[8,9,10,11],[12,13,14,15]]
    def after_kernarg():
        a("s_waitcnt lgkmcnt(0)")
        if stamp:
            for k in range(8): a(f"s_mov_b32 s{72+k}, 0")
        st(0)
        if wsoff: a(f"s_add_u32 s36, s28, {wsoff}"); a("s_addc_u32 s37, s29, 0")
        else: a("s_mov_b32 s36, s28"); a("s_mov_b32 s37, s29")
    def write_stamps(helper):
        if not stamp: return
        st(7)
        a("s_mov_b32 s36, s28"); a("s_mov_b32 s37, s29")
        a("s_getreg_b32 s66, hwreg(HW_REG_XCC_ID)")
        a("s_mov_b64 exec, 1")
        a("v_mov_b32 v4, 0")
        if not helper:
            a("v_mov_b32 v20, s72"); a("v_mov_b32 v21, s79"); a("v_mov_b32 v22, s66"); a("s_getreg_b32 s67, hwreg(HW_REG_HW_ID)"); a("v_mov_b32 v23, s67")
            a(f"s_lshl_b32 s64, s2, {LW}"); a("s_add_u32 s64, s64, s31"); a("s_lshl_b32 s64, s64, 4")
            a("buffer_store_dwordx4 v[20:23], v4, s[36:39], s64 offen")
        for k in range(8): a(f"v_mov_b32 v{40+k}, s{72+k}")
        a(f"s_mul_i32 s64, s2, {W+1}"); a("s_add_u32 s64, s64, s30"); a("s_lshl_b32 s64, s64, 5"); a("s_add_u32 s64, s64, 0x4000")
        a("buffer_store_dwordx4 v[40:43], v4, s[36:39], s64 offen")
        a("buffer_store_dwordx4 v[44:47], v4, s[36:39], s64 offen offset:16")
    def spin_tail(lbl,sleep):
        if sleep: a(f"s_sleep {sleep}")
        a("s_sub_u32 s65, s65, 1"); a("s_cmp_lg_u32 s65, 0")
        a(f"s_cbranch_scc1 {lbl}")
    def lds_wait(lbl,tmp,addr,val,sleep):
        a(f"v_mov_b32 v{tmp}, {addr}")
        a(f"s_mov_b32 s65, {SPIN}")
        a.label(lbl)
        a(f"ds_read_b32 v{tmp+1}, v{tmp}")
        a("s_waitcnt lgkmcnt(0)")
        a(f"v_readfirstlane_b32 s64, v{tmp+1}")
        a(f"s_cmp_ge_u32 s64, {val}")
        a(f"s_cbranch_scc1 {lbl}d")
        spin_tail(lbl,sleep)
        a.label(lbl+"d")

    def tags(lo,hi):
        a(f"s_and_b32 s4, {lo}, 0x7ff")
        a(f"s_lshr_b32 s5, {lo}, 11")
        a(f"s_lshr_b32 s6, {lo}, 22"); a(f"s_lshl_b32 s7, {hi}, 10"); a("s_or_b32 s6, s6, s7")
        a(f"s_lshr_b32 s7, {hi}, 1")
        for k in (5,6,7): a(f"s_xor_b32 s{k}, s{k}, s4"); a(f"s_and_b32 s{k}, s{k}, 0x7ff")
        for k in range(4): a(f"s_sub_u32 s{8+k}, 0x800, s{4+k}")
    def enc(regs,vmask):
        for k,r in enumerate(regs): a(f"v_add_u32 v{r}, s{8+k%4}, v{r}")
        for k,r in enumerate(regs): a(f"v_and_or_b32 v{r}, v{r}, v{vmask}, s{4+k%4}")
    def encp(quads,vmask,pay):
        for q in quads:
            for e in range(3): a(f"v_add_u32 v{q+e}, s{8+e}, v{q+e}")
            a(f"v_add_u32 v{q+3}, 0x800, v{q+3}")
        for q in quads:
            for e in range(3): a(f"v_and_or_b32 v{q+e}, v{q+e}, v{vmask}, s{4+e}")
            a(f"v_and_or_b32 v{q+3}, v{q+3}, v{vmask}, v{pay}")
    def payload(dst,vm,vl,vsh,sel):
        a(f"v_add_u32 v{vl}, 0x80, v{vl}")
        a(f"v_cndmask_b32 v{dst}, v{vm}, v{vl}, {sel}")
        a(f"v_bfe_u32 v{dst}, v{dst}, v{vsh}, 12")
    def payconst(vsh,sel):
        a(f"v_and_b32 v{vsh}, 1, v3"); a(f"v_mul_u32_u24 v{vsh}, 12, v{vsh}"); a(f"v_sub_u32 v{vsh}, 20, v{vsh}")
        a(f"s_mov_b32 s{sel}, 0xaaaaaaaa"); a(f"s_mov_b32 s{sel+1}, 0xaaaaaaaa")
    WR=64; XR=16; HA=32; HC=40; T=56; DT=192; HD=16; O=224
    cm("---------------- helper wave: s48 = index 0..127 inside the branch, s55 = branch (0 = A, 1 = B)")
    a(f"""
    s_setprio 3
    s_memrealtime s[92:93]
    s_mov_b32 s42, 896
    s_mov_b32 s43, 0x20000
    s_mov_b32 s47, 0x20000
    s_mov_b32 s82, 256
    s_mov_b32 s83, 0x20000
    s_and_b32 s60, s48, 31
    s_lshr_b32 s61, s48, 5
    s_mov_b32 s46, {448*8192}
    v_mul_u32_u24 v{T}, 56, v3
    s_mul_i32 s62, s61, 224
    s_mov_b32 s63, {28*8192}
    v_mul_lo_u32 v{T+1}, s63, v3
    v_lshl_add_u32 v{T+1}, v2, 4, v{T+1}
    s_mul_i32 s63, s61, {112*8192}
    s_lshl_b32 s64, s60, 8
    s_add_u32 s63, s63, s64
    s_and_b32 s56, s2, 0xf8
    """)
    after_kernarg()
    cm("workgroup 0 publishes this launch's nonce (tags every hand-off through d_ws) in the zeroed d_debug")
    a(f"""
    s_mov_b32 s80, s26
    s_mov_b32 s81, s27
    s_cmp_lg_u32 s2, 0
    s_cbranch_scc1 L_nononce
    s_or_b32 s92, s92, 1
    v_mov_b32 v{T+4}, s92
    v_mov_b32 v{T+5}, s93
    v_lshlrev_b32 v{T+6}, 3, v0
    s_mov_b32 exec_hi, 0
    buffer_store_dwordx2 v[{T+4}:{T+5}], v{T+6}, s[80:83], 0 offen sc1
    s_mov_b64 exec, -1
    """)
    a.label("L_nononce")
    cm("partial q: 112 rows x 128 columns of wq")
    a("""
    s_cmp_eq_u32 s55, 0
    s_cselect_b32 s40, s4, s14
    s_cselect_b32 s41, s5, s15
    s_cselect_b32 s44, s10, s20
    s_cselect_b32 s45, s11, s21
    """)
    for i in range(28):
        a(f"buffer_load_dwordx4 v[{WR+4*i}:{WR+4*i+3}], v{T+1}, s[44:47], s63 offen nt")
        if i<27: a("s_add_u32 s63, s63, 8192")
        if i==0:
            for k in range(7):
                a(f"buffer_load_dwordx2 v[{XR+2*k}:{XR+2*k+1}], v{T}, s[40:43], s62 offen offset:{8*k}")
        if i+1==bar0: a("s_barrier")
    a(f"buffer_load_dwordx2 v[{T+4}:{T+5}], off, s[80:83], s56 sc1")
    selectors()
    a(f"""
    v_mov_b32 v{HC+4}, {LCNT}
    v_mov_b32 v{HC+6}, 0
    v_mov_b32 v{HC+7}, 0
    ds_write_b64 v{HC+4}, v[{HC+6}:{HC+7}]
    ds_write_b64 v{HC+4}, v[{HC+6}:{HC+7}] offset:8
    v_lshlrev_b32 v{T+2}, 4, v0
    v_and_b32 v{T+3}, 1, v3
    v_lshlrev_b32 v{T+3}, 4, v{T+3}
    v_lshl_add_u32 v{T+3}, v2, 5, v{T+3}
    v_lshrrev_b32 v{T+6}, 5, v0
    v_lshlrev_b32 v{T+6}, 4, v{T+6}
    v_lshl_add_u32 v{T+6}, v{T+3}, 1, v{T+6}
    s_lshl_b32 s63, s61, 15
    s_lshl_b32 s64, s60, 10
    s_add_u32 s63, s63, s64
    s_lshl_b32 s64, s55, 17
    s_add_u32 s63, s63, s64
    s_add_u32 s63, s63, {QP}
    """)
    for i in range(28):
        a(f"s_waitcnt vmcnt({28-i})")
        ar=HA+(i%2)*4
        for v in range(4):
            a(f"v_perm_b32 v{ar+v}, v{XR+i//2}, v{XR+i//2}, v{SEL[i%2][v]}")
        a(f"v_mfma_f32_16x16x32_bf16 v[{HC}:{HC+3}], v[{ar}:{ar+3}], v[{WR+4*i}:{WR+4*i+3}], {'0' if i==0 else 'v[%d:%d]'%(HC,HC+3)}")
    st(1)
    a(f"s_mov_b32 s65, {SPIN}")
    a.label("L_np")
    a("s_waitcnt vmcnt(0)")
    a(f"v_readfirstlane_b32 s92, v{T+4}"); a(f"v_readfirstlane_b32 s93, v{T+5}")
    a("s_cmp_lg_u32 s92, 0")
    a("s_cbranch_scc1 L_nd")
    a(f"buffer_load_dwordx2 v[{T+4}:{T+5}], off, s[80:83], s56 sc1")
    spin_tail("L_np",0)
    a.label("L_nd")
    a("s_mov_b32 exec_lo, 0")
    a(f"v_mov_b32 v{HC}, v{HC+2}"); a(f"v_mov_b32 v{HC+1}, v{HC+3}")
    a("s_mov_b32 exec_lo, -1")
    a(f"v_mov_b32 v{HC+2}, v{T+4}"); a(f"v_mov_b32 v{HC+3}, v{T+5}")
    a(f"buffer_store_dwordx4 v[{HC}:{HC+3}], v{T+6}, s[36:39], s63 offen sc1")
    a(f"v_mov_b32 v{T}, {LNON}")
    a(f"ds_write_b64 v{T}, v[{T+4}:{T+5}]")
    st(2)
    def gather(lbl,nk,base,ldsoff,sleep):
        a(f"s_mov_b32 s65, {SPIN}")
        a.label(lbl)
        base()
        for ks in range(4):
            for k in range(nk):
                r=DT+(ks*nk+k)*4
                a(f"buffer_load_dwordx4 v[{r}:{r+3}], v{T+2}, s[36:39], s62 offen offset:{k*1024} sc1")
            if ks<3: a("s_add_u32 s62, s62, 0x8000")
        a("s_mov_b64 s[66:67], 0")
        for j in range(4*nk):
            a(f"s_waitcnt vmcnt({4*nk-1-j})")
            a(f"v_cmp_ne_u64 vcc, s[92:93], v[{DT+j*4+2}:{DT+j*4+3}]")
            a("s_or_b64 s[66:67], s[66:67], vcc")
        a("s_cmp_eq_u64 s[66:67], 0")
        a(f"s_cbranch_scc1 {lbl}d")
        spin_tail(lbl,sleep)
        a.label(lbl+"d")
        def pr(j): return f"v[{DT+j*4}:{DT+j*4+1}]"
        for k in range(nk):
            a(f"v_pk_add_f32 {pr(k)}, {pr(k)}, {pr(nk+k)}")
            a(f"v_pk_add_f32 {pr(2*nk+k)}, {pr(2*nk+k)}, {pr(3*nk+k)}")
        for k in range(nk): a(f"v_pk_add_f32 {pr(k)}, {pr(k)}, {pr(2*nk+k)}")
        a(f"v_lshlrev_b32 v{T}, 2, v0")
        for k in range(nk): a(f"v_cvt_pk_bf16_f32 v{DT+k*4+2}, v{DT+k*4}, v{DT+k*4+1}")
        for k in range(nk): a(f"ds_write_b32 v{T}, v{DT+k*4+2} offset:{ldsoff+256*k}")
        a("s_waitcnt lgkmcnt(0)")
    def baseA(): a("s_lshl_b32 s62, s97, 12"); a(f"s_add_u32 s62, s62, {QP}")
    def baseB(): a("s_lshl_b32 s62, s96, 11"); a(f"s_add_u32 s62, s62, {QP+0x20000}")
    cm("gather the two A q heads of this workgroup (back off first: the other producers finish at about the same time)")
    if gsleep: a(f"s_sleep {gsleep}")
    gather("L_ga",4,baseA,LQA,8)
    if est: st(5)
    a("s_barrier")
    a("s_setprio 0")
    st(4)
    cm("16 helpers initialise one ticket counter each: {0, 0, nonce} in one store")
    a("s_lshl_b32 s60, s55, 7"); a("s_add_u32 s60, s60, s48")
    a("s_lshl_b32 s52, s60, 12"); a(f"s_add_u32 s52, s52, {IN1D}")
    if yt: a("s_lshl_b32 s54, s55, 18"); a("s_lshl_b32 s63, s48, 6"); a("s_add_u32 s54, s54, s63"); a(f"s_add_u32 s54, s54, {YO}"); a("s_add_u32 s53, s54, 0x20000")
    else: a("s_lshl_b32 s54, s60, 11"); a(f"s_add_u32 s54, s54, {YO}")
    a("s_cmp_ge_u32 s60, 16"); a("s_cbranch_scc1 L_notk")
    a("s_lshl_b32 s63, s60, 8"); a(f"s_add_u32 s63, s63, {TK}")
    a(f"v_mov_b32 v{HC}, 0"); a(f"v_mov_b32 v{HC+1}, 0")
    a("s_mov_b64 exec, 1")
    a(f"buffer_store_dwordx4 v[{HC}:{HC+3}], off, s[36:39], s63 sc1")
    a("s_mov_b64 exec, -1")
    a.label("L_notk")
    cm("32 rows of wo stay in registers until the end")
    a(f"""
    s_cmp_eq_u32 s55, 1
    s_cselect_b32 s44, s22, s12
    s_cselect_b32 s45, s23, s13
    s_mov_b32 s46, {4096*896}
    s_mul_i32 s63, s48, {32*896}
    v_bfrev_b32 v{T+7}, v3
    v_lshrrev_b32 v{T+7}, 30, v{T+7}
    v_mul_u32_u24 v{T}, 896, v{T+7}
    v_lshl_add_u32 v{T}, v2, 4, v{T}
    """)
    a("s_mov_b32 s66, 0x00ff00ff"); a("s_mov_b32 s67, 0x00ff00ff")
    for i in range(8):
        for bk in range(4):
            r=WR+(i*4+bk)*4
            if bk==3: a("s_mov_b64 exec, s[66:67]")
            a(f"buffer_load_dwordx4 v[{r}:{r+3}], v{T}, s[44:47], s63 offen offset:{bk*256} nt")
        a("s_mov_b64 exec, -1")
        if i<7: a(f"s_add_u32 s63, s63, {4*896}")
    a("s_waitcnt vmcnt(0)")
    cm("has this head's ticket counter been initialised in this launch?")
    a("s_lshl_b32 s64, s96, 8"); a(f"s_add_u32 s64, s64, {TK}")
    a(f"s_mov_b32 s65, {SPIN}")
    a.label("L_rd")
    a(f"buffer_load_dwordx2 v[{DT}:{DT+1}], off, s[36:39], s64 offset:8 sc1")
    a("s_waitcnt vmcnt(0)")
    a(f"v_cmp_ne_u64 vcc, s[92:93], v[{DT}:{DT+1}]")
    a("s_cmp_eq_u64 vcc, 0")
    a("s_cbranch_scc1 L_rdd")
    spin_tail("L_rd",64)
    a.label("L_rdd")
    cm("q of this workgroup's B head")
    gather("L_gb",2,baseB,LQB,64)
    a(f"v_mov_b32 v{T}, {LGO}"); a(f"v_mov_b32 v{T+1}, 1")
    a(f"ds_write_b32 v{T}, v{T+1}")
    st(3)
    VK=24; PC=25
    def poll(lbl,loads,quads,ne=4):
        loads()
        a("s_waitcnt vmcnt(0)")
        a(f"s_mov_b32 s65, {SPIN}")
        a.label(lbl)
        for k,q in enumerate(quads):
            for e in range(ne):
                if k==0: a(f"v_xor_b32 v{PC+e}, s{4+e}, v{q+e}")
                else: a(f"v_bitop3_b32 v{PC+e}, v{q+e}, s{4+e}, v{PC+e} bitop3:0xbe")
        if ne==4: a(f"v_or_b32 v{PC}, v{PC}, v{PC+3}")
        a(f"v_or3_b32 v{PC}, v{PC}, v{PC+1}, v{PC+2}")
        a(f"v_and_b32 v{PC}, 0xfff, v{PC}")
        a(f"v_cmp_ne_u32 vcc, 0, v{PC}")
        a("s_cmp_lg_u64 vcc, 0")
        a(f"s_cbranch_scc0 {lbl}d")
        a("s_mov_b64 exec, vcc")
        loads()
        a("s_mov_b64 exec, -1")
        a("s_waitcnt vmcnt(48)")
        spin_tail(lbl,psl)
        a.label(lbl+"d")
    tags("s92","s93")
    a(f"v_mov_b32 v{VK}, 0xfffff000")
    a(f"v_lshlrev_b32 v1, 1, v{T+7}"); a(f"v_and_b32 v{T+1}, 3, v0"); a(f"v_lshl_add_u32 v1, v{T+1}, 3, v1")
    a(f"v_lshrrev_b32 v{T+7}, 2, v0"); a(f"v_lshlrev_b32 v{T+7}, 11, v{T+7}")
    a(f"v_lshl_add_u32 v{T+7}, v{T+1}, 4, v{T+7}")
    a(f"s_lshl_b32 s84, s48, {13 if yt else 6}"); a("s_lshl_b32 s60, s55, 18"); a("s_add_u32 s84, s84, s60"); a(f"s_add_u32 s84, s84, {YO}")
    for k in range(1,8): a(f"s_add_u32 s{84+k}, s{83+k}, {1024 if yt else 0x8000}")
    if yt:
        a(f"v_mov_b32 v{T+7}, v{T+2}")
        a(f"v_and_b32 v29, 0x3f, v{T+3}"); a(f"v_lshrrev_b32 v{T}, 1, v2"); a(f"v_lshl_add_u32 v29, v{T}, 13, v29")
        a(f"v_lshrrev_b32 v{T}, 5, v0"); a(f"v_lshl_add_u32 v29, v{T}, 16, v29")
    a("""
    s_mov_b32 s40, s24
    s_mov_b32 s41, s25
    s_mov_b32 s42, 1792
    s_lshl_b32 s62, s48, 5
    s_mul_i32 s60, s55, 896
    s_add_u32 s62, s62, s60
    """)
    cm("the merged A record waits in LDS until the pool runs dry: no stores while HBM is saturated")
    lds_wait("L_mw",T,LMRG,3,32)
    a(f"v_lshlrev_b32 v{T}, 3, v0")
    a(f"ds_read_b128 v[{DT}:{DT+3}], v{T+2} offset:{LDMP+5120}")
    a(f"ds_read_b128 v[{DT+4}:{DT+7}], v{T+2} offset:{LDMP+5120+1024}")
    a(f"ds_read_b64 v[{DT+8}:{DT+9}], v{T} offset:{LDMP+5120+2048}")
    a(f"v_and_b32 v{O}, 0x7f, v{T+3}"); a(f"v_lshrrev_b32 v{O+1}, 2, v2"); a(f"v_lshl_add_u32 v{O}, v{O+1}, 12, v{O}")
    a(f"v_lshrrev_b32 v{O+1}, 5, v0"); a(f"v_lshl_add_u32 v{O}, v{O+1}, 15, v{O}")
    a("s_and_b32 s65, s2, 31")
    a("s_lshl_b32 s98, s97, 16"); a("s_lshl_b32 s47, s65, 7"); a("s_add_u32 s98, s98, s47"); a(f"s_add_u32 s98, s98, {IN1D}")
    a("s_add_u32 s47, s98, 0x4000")
    payconst(O+1,12)
    a("s_waitcnt lgkmcnt(0)")
    for d,sr in ((DT+10,DT+8),(DT+11,DT+9)):
        a(f"v_mov_b32_dpp v{d}, v{sr} row_newbcast:0 row_mask:0x3 bank_mask:0xf")
        a(f"v_mov_b32_dpp v{d}, v{sr} row_newbcast:8 row_mask:0xc bank_mask:0xf")
    payload(DT+8,DT+10,DT+11,O+1,"s[12:13]")
    encp([DT,DT+4],VK,DT+8)
    a(f"v_and_b32 v{T+6}, 1, v0"); a(f"v_mul_u32_u24 v{T+6}, 12, v{T+6}")
    a(f"s_mov_b32 s14, {f2u(math.log2(math.e)/16.0)}")
    lds_wait("L_aw",T,LSIG if asig else LCNT,1,2)
    a(f"buffer_store_dwordx4 v[{DT}:{DT+3}], v{O}, s[36:39], s98 offen sc1")
    a(f"buffer_store_dwordx4 v[{DT+4}:{DT+7}], v{O}, s[36:39], s47 offen sc1")
    cm("wait until this workgroup's streaming waves are done, then combine the softmax records for 32 output rows")
    a("s_cmp_eq_u32 s55, 0"); a(f"s_cselect_b32 s57, {thrA}, {thr}")
    lds_wait("L_ow",T,LCNT,"s57",2)
    OM=O; OL=O+2; OX=O+3; OO=O+4; OB=O+8; OY=O+16; OW=O+20; OD=O+24
    def l1loads():
        for j in range(4):
            a(f"buffer_load_dwordx4 v[{DT+4*j}:{DT+4*j+3}], v{T+2}, s[36:39], s52 offen offset:{j*1024} {pfl}")
    poll("L_hp",l1loads,[DT+4*j for j in range(4)],3)
    if not est: st(5)
    def xr(reg,op,sw):
        a(f"v_mov_b32 v{OX}, v{reg}"); a(f"{sw} v{reg}, v{OX}"); a(f"{op} v{reg}, v{reg}, v{OX}")
    cm("record heads: lanes 0,1 of a quad rebuild m, lanes 2,3 rebuild l")
    for j in range(4): a(f"v_lshlrev_b32 v{OY+j}, 20, v{DT+4*j+3}")
    for j in range(4): a(f"v_lshrrev_b32 v{OY+j}, v{T+6}, v{OY+j}")
    for j in range(4): a(f"v_or_b32_dpp v{OY+j}, v{OY+j}, v{OY+j} quad_perm:[1,0,3,2] {DPPF}")
    for j in range(4): a(f"v_mul_f32 v{OW+j}, s14, v{OY+j}")
    a(f"v_max_f32 v{OM}, v{OW}, v{OW+1}")
    a(f"v_max3_f32 v{OM}, v{OM}, v{OW+2}, v{OW+3}")
    a(f"v_and_b32 v{OD}, v{VK}, v{DT+3}"); a(f"v_and_b32 v{OD+1}, v{VK}, v{DT+7}")
    a(f"v_max_f32_dpp v{OM}, v{OM}, v{OM} row_ror:8 {DPPF}")
    a(f"v_mov_b32 v{OX}, v{OM}")
    a(f"v_and_b32 v{OD+2}, v{VK}, v{DT+11}"); a(f"v_and_b32 v{OD+3}, v{VK}, v{DT+15}")
    a(f"v_permlane16_swap_b32 v{OM}, v{OX}"); a(f"v_max_f32 v{OM}, v{OM}, v{OX}")
    xr(OM,"v_max_f32","v_permlane32_swap_b32")
    for j in range(4): a(f"v_sub_f32 v{OW+j}, v{OW+j}, v{OM}")
    for j in range(4): a(f"v_exp_f32 v{OW+j}, v{OW+j}")
    Q0="quad_perm:[0,0,0,0]"
    for j in range(4): a(f"{'v_mul_f32_dpp' if j==0 else 'v_fmac_f32_dpp'} v{OL}, v{OW+j}, v{OY+j} {Q0} {DPPF}")
    lchain=[None,f"v_mov_b32_dpp v{OL}, v{OL} quad_perm:[2,2,2,2] {DPPF}",f"v_add_f32_dpp v{OL}, v{OL}, v{OL} row_ror:8 {DPPF}",f"v_mov_b32 v{OX}, v{OL}",f"v_permlane16_swap_b32 v{OL}, v{OX}",
            f"v_add_f32 v{OL}, v{OL}, v{OX}",f"v_mov_b32 v{OX}, v{OL}",f"v_permlane32_swap_b32 v{OL}, v{OX}"]
    for j in range(4):
        for e in range(4):
            src=DT+4*j+e if e<3 else OD+j
            a(f"{'v_mul_f32_dpp' if j==0 else 'v_fmac_f32_dpp'} v{OO+e}, v{OW+j}, v{src} {Q0} {DPPF}")
            if e%2==1 and lchain[2*j+e//2]: a(lchain[2*j+e//2])
    a(f"v_add_f32 v{OL}, v{OL}, v{OX}")
    a(f"v_permlane32_swap_b32 v{OO}, v{OO+1}"); a(f"v_permlane32_swap_b32 v{OO+2}, v{OO+3}")
    a(f"v_rcp_f32 v{OL}, v{OL}")
    a(f"v_add_f32 v{OO}, v{OO}, v{OO+1}"); a(f"v_add_f32 v{OO+2}, v{OO+2}, v{OO+3}")
    a(f"v_permlane16_swap_b32 v{OO}, v{OO+2}")
    a(f"v_add_f32 v{OO}, v{OO}, v{OO+2}")
    a(f"v_add_f32_dpp v{OO}, v{OO}, v{OO} row_ror:8 {DPPF}")
    a(f"v_mul_f32 v{OO}, v{OO}, v{OL}")
    a(f"v_cvt_pk_bf16_f32 v{OO}, v{OO}, v{OO}")
    for i in range(8): a(f"v_mov_b32_dpp v{OB+i}, v{OO} row_newbcast:{i} {DPPF}")
    def prm(i,v): a(f"v_perm_b32 v{HA+(i%2)*4+v}, v{OB+i}, v{OB+i}, v{SEL[0][v]}")
    for v in range(4): prm(0,v)
    for i in range(8):
        ar=HA+(i%2)*4
        for bk in range(4):
            r=WR+(i*4+bk)*4; c=HC+bk*4
            a(f"v_mfma_f32_16x16x32_bf16 v[{c}:{c+3}], v[{ar}:{ar+3}], v[{r}:{r+3}], {'0' if i==0 else 'v[%d:%d]'%(c,c+3)}")
            if i<7 and bk<2: prm(i+1,2*bk); prm(i+1,2*bk+1)
    cm("both half waves hold the same sums: pack two column blocks per store")
    a(f"v_lshrrev_b32 v{OX}, 5, v0"); a(f"v_lshl_add_u32 v{OX}, v{OX}, 9, v{T+3}")
    for pr in range(2):
        c=HC+pr*8
        for e in range(4): a(f"v_permlane32_swap_b32 v{c+e}, v{c+4+e}")
        enc(range(c,c+4),VK)
        if pr==1: a("s_mov_b32 exec_hi, 0x00ff00ff")
        if yt: a(f"buffer_store_dwordx4 v[{c}:{c+3}], v29, s[36:39], {'s53' if pr else 's54'} offen {sfl}")
        else: a(f"buffer_store_dwordx4 v[{c}:{c+3}], v{OX}, s[36:39], s54 offen offset:{pr*1024} {sfl}")
    a("s_mov_b64 exec, -1")
    st(6)
    cm("28 helpers per branch sum the 128 partial rows for 16 output columns each")
    a("s_cmp_ge_u32 s48, 28")
    a("s_cbranch_scc1 L_he")
    def l2loads():
        for k in range(8):
            a(f"buffer_load_dwordx4 v[{DT+4*k}:{DT+4*k+3}], v{T+7}, s[36:39], s{84+k} offen {pfl}")
    poll("L_yp",l2loads,[DT+4*k for k in range(8)])
    for e in range(0,16,2): a(f"v_pk_add_f32 v[{O+e}:{O+e+1}], v[{DT+e}:{DT+e+1}], v[{DT+16+e}:{DT+17+e}]")
    for half in (8,4):
        for e in range(0,half,2): a(f"v_pk_add_f32 v[{O+e}:{O+e+1}], v[{O+e}:{O+e+1}], v[{O+half+e}:{O+half+e+1}]")
    a(f"v_permlane32_swap_b32 v{O}, v{O+1}"); a(f"v_permlane32_swap_b32 v{O+2}, v{O+3}")
    a(f"v_add_f32 v{O}, v{O}, v{O+1}"); a(f"v_add_f32 v{O+2}, v{O+2}, v{O+3}")
    a(f"v_permlane16_swap_b32 v{O}, v{O+2}")
    a(f"v_add_f32 v{O}, v{O}, v{O+2}")
    for m in ("row_ror:8","row_ror:4"): a(f"v_add_f32_dpp v{O}, v{O}, v{O} {m} {DPPF}")
    a(f"v_cvt_pk_bf16_f32 v{O}, v{O}, v{O}")
    a("s_mov_b32 exec_lo, 0x000f000f"); a("s_mov_b32 exec_hi, 0x000f000f")
    a(f"buffer_store_short v{O}, v1, s[40:43], s62 offen")
    a("s_mov_b64 exec, -1")
    a.label("L_he")
    write_stamps(True)
    a("s_endpgm")

    VOFF=1; VSC=4; VM=5; VL=6; VMC=7
    Q=16; PA=24; ACC=32; AR=40; D=48; T=52; PKR=60; VOFF2=62; VTK=63
    RING=64
    STEP=4096*W
    NA=(1<<19)//STEP; NB=((1<<20)-PK*1024)//STEP
    NT=16*PK//8
    if dlp is None: dlp=dl
    TQ=min(tq,16-dlp)
    cd=[dl]
    vq=[]
    BB=(blk*1024).bit_length()-1
    assert PK%blk==0 and NB%4==0 and NV%4==0 and (2*PK)%(8<<(pm&7))==0
    for k in range(pad): a.raw("    s_nop 0")
    a.label("L_stream")
    cm("---------------- streaming waves")
    a(f"""
    s_sub_u32 s31, s30, 1
    v_lshlrev_b32 v{VOFF}, 9, v3
    v_lshl_add_u32 v{VOFF}, v2, 4, v{VOFF}
    s_mov_b32 s34, 0x200000
    s_mov_b32 s35, 0x20000
    s_mov_b32 s42, 0x200000
    s_mov_b32 s43, 0x20000
    s_lshl_b32 s61, s31, 12
    s_lshl_b32 s49, s55, {BB}
    s_and_b32 s60, s48, 15
    s_lshl_b32 s60, s60, 20
    s_add_u32 s60, s60, s49
    s_lshl_b32 s64, s97, 24
    s_add_u32 s60, s60, s64
    """)
    def adv(r):
        a(f"s_bitset1_b32 {r}, {BB}"); a(f"s_add_u32 {r}, {r}, {STEP}"); a(f"s_bitset0_b32 {r}, {BB}")
    after_kernarg()
    a("s_add_u32 s32, s6, s60"); a("s_addc_u32 s33, s7, 0")
    a("s_add_u32 s40, s8, s60"); a("s_addc_u32 s41, s9, 0")
    if bar0: a("s_barrier")
    if est: st(2)
    OFFS=[0,256,2048,2304]
    PH=[('A','K',NA),('A','V',NA),('B','K',NB),('B','V',NB)]
    ends=[NA,2*NA-NV,2*NA-NV+NB]
    def ld(base,i,srd,soff,voff=VOFF,rf='v'):
        r=base+i*4
        a(f"buffer_load_dwordx4 {rf}[{r}:{r+3}], v{voff}, {srd}, {soff} offen offset:{OFFS[i]} nt")
    def issue_static(h,p):
        h%=16
        ld(RING+(h//4)*16,h%4,"s[32:35]","s52"); vq.append(h)
        if h%4==3:
            adv("s52")
            if p is not None and p<3:
                a("s_add_u32 s53, s53, 1")
                a(f"s_cmp_eq_u32 s53, {ends[p]}")
                b=(40,56,58)[p]
                a(f"s_cselect_b32 s32, s{b}, s32"); a(f"s_cselect_b32 s33, s{b+1}, s33"); a(f"s_cselect_b32 s52, {'s94' if p==0 else 's61'}, s52")
    def ticket_req():
        a("s_mov_b64 exec, 1")
        a(f"v_mov_b32 v{VTK}, 1")
        a(f"buffer_atomic_add v{VTK}, off, s[36:39], s91 sc0 sc1"); vq.append('A')
        a("s_mov_b64 exec, -1")
    def ticket_use():
        assert 'A' not in vq
        a(f"v_readfirstlane_b32 s90, v{VTK}")
        lo=pm&7
        if pm&8:
            a(f"s_lshr_b32 s89, s90, {lo+3}"); a("s_add_u32 s89, s89, s96"); a(f"s_lshr_b32 s88, s90, {lo}"); a("s_add_u32 s88, s88, s89"); a("s_and_b32 s88, s88, 7")
        else: a(f"s_bfe_u32 s88, s90, {lo|(3<<16)}")
        a("s_lshl_b32 s88, s88, 21")
        a(f"s_lshr_b32 s89, s90, {lo+3}"); a(f"s_lshl_b32 s89, s89, {13+lo}"); a("s_add_u32 s88, s88, s89")
        if lo:
            if pm&16: a("s_add_u32 s89, s90, s96"); a(f"s_and_b32 s89, s89, {(1<<lo)-1}")
            else: a(f"s_and_b32 s89, s90, {(1<<lo)-1}")
            a("s_lshl_b32 s89, s89, 13"); a("s_add_u32 s88, s88, s89")
        a(f"s_add_u32 s88, s88, {2*NB*STEP}")
        if apub=='help' and asig:
            a(f"s_cmp_ge_u32 s90, {NT-(asig-1)}"); a("s_cselect_b32 s89, 1, 0")
            a(f"v_mov_b32 v{NON+2}, s89")
            a("s_mov_b64 exec, 1"); a(f"ds_max_u32 v{PA+2}, v{NON+2} offset:{LSIG-LCNT}"); a("s_mov_b64 exec, -1")
        a(f"s_cmp_lt_u32 s90, {NT}")
        if nr0: a("s_cselect_b32 s88, s88, 0"); a("s_cselect_b32 s82, s82, 0"); a("s_cselect_b32 s86, s86, 0")
        else: a(f"s_cselect_b32 s88, s88, {INV}")
    def issue_pool(h):
        h%=16
        if h==0: ticket_use()
        if h==TQ: ticket_req()
        k=h//4
        ld(RING+k*16,h%4,"s[80:83]" if k<2 else "s[84:87]","s88",VOFF if k%2==0 else VOFF2); vq.append(h)
    def setup2():
        selectors()
        a(f"""
        s_and_b32 s60, s2, 7
        s_lshl_b32 s60, s60, 21
        s_add_u32 s60, s60, s49
        s_lshl_b32 s64, s96, 24
        s_add_u32 s60, s60, s64
        s_add_u32 s56, s16, s60
        s_addc_u32 s57, s17, 0
        s_add_u32 s58, s18, s60
        s_addc_u32 s59, s19, 0
        s_lshl_b32 s60, s96, 24
        s_add_u32 s80, s16, s60
        s_addc_u32 s81, s17, 0
        s_mov_b32 s82, 0x1000000
        s_mov_b32 s83, 0x20000
        s_add_u32 s84, s18, s60
        s_addc_u32 s85, s19, 0
        s_mov_b32 s86, 0x1000000
        s_mov_b32 s87, 0x20000
        s_lshl_b32 s91, s96, 8
        s_add_u32 s91, s91, {TK}
        s_mov_b32 s62, {f2u(math.log2(math.e)/16.0)}
        s_lshl_b32 s63, s31, 15
        s_add_u32 s63, s63, {LSC}
        v_add_u32 v{VOFF2}, 0x1000, v{VOFF}
        """)
    cm(f"while q is being computed: first {NV} V units of branch A go to AGPRs, then the K ring starts; {dl} loads in flight")
    n=0
    a("s_mov_b32 s94, s61")
    for k in range(NV):
        for i in range(4):
            if n>=dl: a(f"s_waitcnt vmcnt({dl-1})")
            if est and n==dl: st(4)
            ld(k*16,i,"s[40:43]","s94",rf='a'); n+=1
            if n==dl: setup2()
        adv("s94")
    a("s_mov_b32 s52, s61")
    a(f"s_mov_b32 s53, {dl//4}")
    for h in range(dl):
        if n>=dl: a(f"s_waitcnt vmcnt({dl-1})")
        issue_static(h,None); n+=1
        if n==dl: setup2()
    st(6)
    a("s_barrier")
    st(1)
    def arrive(c,iss):
        k=vq.index(c%16)
        a(f"s_waitcnt vmcnt({len(vq)-1-k})")
        del vq[:k+1]
        if sum(1 for x in vq if isinstance(x,int))<cd[0]: iss(c+cd[0])
    def do_boost(iss):
        for h in range(dl,dl+boost): iss(h)
    def loop_begin(lbl):
        vq[:]=[x for x in vq if x!='S']
        if align: a.flush(); a.raw(f".p2align {align}")
        a.label(lbl)
        return list(vq)
    def dots1(base,i,nh,dbase):
        s_=i//2
        for e4 in range(4):
            e=(i%2)*4+e4
            for h in range(nh):
                d=dbase+s_*nh+h
                a(f"v_dot2_f32_bf16 v{d}, v{base+i*4+e4}, v{Q+h*8+e}, {'0' if e==0 else 'v%d'%d}")
    def reduce(nh,dbase,tb,ns=2):
        for s_ in range(ns):
            if nh==2:
                a(f"v_add_f32_dpp v{tb+s_}, v{dbase+s_*2}, v{dbase+s_*2} row_ror:8 row_mask:0xf bank_mask:0x3")
                a(f"v_add_f32_dpp v{tb+s_}, v{dbase+s_*2+1}, v{dbase+s_*2+1} row_ror:8 row_mask:0xf bank_mask:0xc")
            else:
                a(f"v_add_f32_dpp v{tb+s_}, v{dbase+s_}, v{dbase+s_} row_ror:8 {DPPF}")
        for m in ("row_half_mirror","quad_perm:[1,0,3,2]","quad_perm:[2,3,0,1]"):
            for s_ in range(ns):
                a(f"v_add_f32_dpp v{tb+s_}, v{tb+s_}, v{tb+s_} {m} {DPPF}")
    def kunit(j,jl,nh,iss):
        for i in range(4):
            arrive(4*j+i,iss); dots1(RING+j*16,i,nh,D)
        reduce(nh,D,T)
        a(f"v_max3_f32 v{VM}, v{VM}, v{T}, v{T+1}")
        a(f"v_cvt_pk_bf16_f32 v{T+2}, v{T}, v{T+1}")
        a(f"ds_write_b32 v{VSC}, v{T+2} offset:{jl*256}")
    def pcalc(t0,ar):
        a(f"v_fma_f32 v{t0}, v{t0}, s62, -v{VMC}")
        a(f"v_fma_f32 v{t0+1}, v{t0+1}, s62, -v{VMC}")
        a(f"v_exp_f32 v{t0}, v{t0}")
        a(f"v_exp_f32 v{t0+1}, v{t0+1}")
        a(f"v_add_f32 v{VL}, v{VL}, v{t0}")
        a(f"v_add_f32 v{VL}, v{VL}, v{t0+1}")
        a(f"v_cvt_pk_bf16_f32 v{t0}, v{t0}, v{t0+1}")
        for s_ in range(2):
            for v in range(4):
                a(f"v_perm_b32 v{ar+s_*4+v}, v{t0}, v{t0}, v{SEL[s_][v]}")
    def pvunit(j,iss):
        for i in range(4):
            arrive(4*j+i,iss)
            r=RING+j*16+i*4; c=ACC+(i%2)*4; ar=AR+(i//2)*4
            a(f"v_mfma_f32_16x16x32_bf16 v[{c}:{c+3}], v[{ar}:{ar+3}], v[{r}:{r+3}], v[{c}:{c+3}]")
    def vunit(j,jl,iss,par=None,nxt=None,side=None):
        if par is None: par=j%2
        if nxt is None: nxt=jl+1
        pk=PKR+par
        a("s_waitcnt lgkmcnt(0)")
        a(f"v_lshlrev_b32 v{T}, 16, v{pk}")
        a(f"v_and_b32 v{T+1}, 0xffff0000, v{pk}")
        a(f"ds_read_b32 v{PKR+1-par}, v{VSC} offset:{nxt*256}")
        pcalc(T,AR)
        if side is None: pvunit(j,iss)
        else:
            for i in range(4):
                r=side*16+i*4; c=ACC+(i%2)*4; ar=AR+(i//2)*4
                a(f"v_mfma_f32_16x16x32_bf16 v[{c}:{c+3}], v[{ar}:{ar+3}], a[{r}:{r+3}], v[{c}:{c+3}]")
    def xrow(reg,op):
        a(f"v_mov_b32 v{T+7}, v{reg}")
        a(f"v_permlane16_swap_b32 v{reg}, v{T+7}")
        a(f"{op} v{reg}, v{reg}, v{T+7}")
        a(f"v_mov_b32 v{T+7}, v{reg}")
        a(f"v_permlane32_swap_b32 v{reg}, v{T+7}")
        a(f"{op} v{reg}, v{reg}, v{T+7}")
    NON=28; VK=31
    def pubvec():
        a(f"v_mov_b32 v{PA+2}, {LCNT}"); a(f"v_mov_b32 v{PA+3}, 1")
        a(f"ds_read_b64 v[{NON}:{NON+1}], v{PA+2} offset:{LNON-LCNT}")
        a(f"v_lshrrev_b32 v{PA}, 5, v0"); a(f"v_lshlrev_b32 v{PA}, 14, v{PA}")
        a(f"v_lshrrev_b32 v{PA+1}, 2, v2"); a(f"v_lshl_add_u32 v{PA}, v{PA+1}, 12, v{PA}")
        a(f"v_and_b32 v{PA+1}, 3, v2"); a(f"v_lshl_add_u32 v{PA}, v{PA+1}, 5, v{PA}")
        a(f"v_and_b32 v{PA+1}, 1, v3"); a(f"v_lshl_add_u32 v{PA}, v{PA+1}, 4, v{PA}")
        a(f"v_mov_b32 v{VK}, 0xfffff000")
    def pubaddr(kind):
        if kind=='A': return
        a("s_add_u32 s64, s96, 16")
        a("s_and_b32 s65, s2, 15"); a("s_lshl_b32 s65, s65, 1"); a("s_add_u32 s65, s65, s31")
        a("s_lshl_b32 s44, s64, 15"); a("s_lshl_b32 s47, s65, 7"); a("s_add_u32 s44, s44, s47"); a(f"s_add_u32 s44, s44, {IN1D}")
        payconst(PA+1,46)
        a(f"v_readfirstlane_b32 s64, v{NON}"); a(f"v_readfirstlane_b32 s65, v{NON+1}")
        tags("s64","s65")
    def mergeA():
        xrow(VL,"v_add_f32")
        a("s_mul_i32 s64, s31, 2560"); a(f"s_add_u32 s64, s64, {LDMP}")
        a(f"v_lshlrev_b32 v{T+4}, 4, v0"); a(f"v_lshlrev_b32 v{T+5}, 3, v0")
        a(f"v_add_u32 v{T}, s64, v{T+4}"); a(f"v_add_u32 v{T+1}, s64, v{T+5}")
        a(f"ds_write_b128 v{T}, v[{ACC}:{ACC+3}]")
        a(f"ds_write_b128 v{T}, v[{ACC+4}:{ACC+7}] offset:1024")
        a(f"ds_write_b32 v{T+1}, v{VL} offset:2048"); a(f"ds_write_b32 v{T+1}, v{VM} offset:2052")
        a("s_waitcnt lgkmcnt(0)")
        a("s_mov_b64 exec, 1")
        a(f"ds_add_rtn_u32 v{T+2}, v{PA+2}, v{PA+3} offset:{LMRG-LCNT}")
        a("s_mov_b64 exec, -1")
        a(f"s_sub_u32 s64, {2*LDMP+2560}, s64")
        a(f"v_add_u32 v{T}, s64, v{T+4}"); a(f"v_add_u32 v{T+1}, s64, v{T+5}")
        a("s_waitcnt lgkmcnt(0)")
        a(f"v_readfirstlane_b32 s64, v{T+2}")
        a("s_cmp_eq_u32 s64, 0")
        a("s_cbranch_scc1 L_nopub")
        a(f"ds_read_b64 v[{T+2}:{T+3}], v{T+1} offset:2048")
        a(f"ds_read_b128 v[{AR}:{AR+3}], v{T}")
        a(f"ds_read_b128 v[{AR+4}:{AR+7}], v{T} offset:1024")
        a("s_waitcnt lgkmcnt(2)")
        a(f"v_max_f32 v{VM}, v{VM}, v{T+3}")
        a(f"v_mul_f32 v{T+3}, s62, v{T+3}")
        a(f"v_max_f32 v{T+4}, v{VMC}, v{T+3}")
        a(f"v_sub_f32 v{T+5}, v{VMC}, v{T+4}"); a(f"v_sub_f32 v{T+6}, v{T+3}, v{T+4}")
        a(f"v_exp_f32 v{T+5}, v{T+5}"); a(f"v_exp_f32 v{T+6}, v{T+6}")
        a(f"v_mov_b32 v{VMC}, v{T+4}")
        a(f"v_mul_f32 v{VL}, v{VL}, v{T+5}"); a(f"v_fmac_f32 v{VL}, v{T+2}, v{T+6}")
        for d,sr in ((T,T+5),(T+1,T+6)):
            a(f"v_mov_b32_dpp v{d}, v{sr} row_newbcast:0 row_mask:0x3 bank_mask:0xf")
            a(f"v_mov_b32_dpp v{d}, v{sr} row_newbcast:8 row_mask:0xc bank_mask:0xf")
        for i in range(8): a(f"v_mul_f32 v{ACC+i}, v{ACC+i}, v{T}")
        a("s_waitcnt lgkmcnt(0)")
        for i in range(8): a(f"v_fmac_f32 v{ACC+i}, v{AR+i}, v{T+1}")
        a(f"v_lshlrev_b32 v{T}, 4, v0"); a(f"v_lshlrev_b32 v{T+1}, 3, v0")
        a(f"v_mov_b32 v{T+2}, v{VM}"); a(f"v_mov_b32 v{T+3}, v{VL}")
        a(f"ds_write_b128 v{T}, v[{ACC}:{ACC+3}] offset:{LDMP+5120}")
        a(f"ds_write_b128 v{T}, v[{ACC+4}:{ACC+7}] offset:{LDMP+5120+1024}")
        a(f"ds_write_b64 v{T+1}, v[{T+2}:{T+3}] offset:{LDMP+5120+2048}")
        a("s_waitcnt lgkmcnt(0)")
        a("s_mov_b64 exec, 1"); a(f"ds_add_u32 v{PA+2}, v{PA+3} offset:{LMRG-LCNT}"); a("s_mov_b64 exec, -1")
        a.label("L_nopub")
    def publish(kind):
        cm("both half waves hold the same sums: one store carries both 128-column blocks")
        xrow(VL,"v_add_f32")
        payload(T,VM,VL,PA+1,"s[46:47]")
        for e in range(4): a(f"v_permlane32_swap_b32 v{ACC+e}, v{ACC+4+e}")
        encp([ACC],VK,T)
        a(f"buffer_store_dwordx4 v[{ACC}:{ACC+3}], v{PA}, s[36:39], s44 offen {sfl}")
        a("s_mov_b64 exec, 1")
        a(f"ds_add_u32 v{PA+2}, v{PA+3}")
        a("s_mov_b64 exec, -1")
    def loadq(lq,nh):
        a(f"v_lshlrev_b32 v{T}, 4, v2")
        for h in range(nh):
            a(f"ds_read_b128 v[{Q+h*8}:{Q+h*8+3}], v{T} offset:{lq+h*512}")
            a(f"ds_read_b128 v[{Q+h*8+4}:{Q+h*8+7}], v{T} offset:{lq+h*512+256}")
    for p,(br,kv,n) in enumerate(PH):
        nh=2 if br=='A' else 1
        iss=lambda h,p=p: issue_static(h,p)
        cm(f"---- branch {br}, {'scores = q.K (bf16-rounded, kept in LDS) and running max' if kv=='K' else 'p = exp2(c*s - c*max), o += p.V'}")
        a(f"v_lshlrev_b32 v{VSC}, 2, v0")
        a(f"v_add_u32 v{VSC}, s63, v{VSC}")
        done=0; tail=0
        if kv=='K':
            loadq(LQA if br=='A' else LQB,nh)
            a(f"v_mov_b32 v{VM}, 0xff800000")
            a("s_waitcnt lgkmcnt(0)")
        else:
            a(f"ds_read_b32 v{PKR}, v{VSC} offset:{NV*256 if p==1 else 0}")
            xrow(VM,"v_max_f32")
            a(f"v_cvt_pk_bf16_f32 v{VM}, v{VM}, v{VM}")
            a(f"v_and_b32 v{VM}, 0xffff0000, v{VM}")
            a(f"v_mul_f32 v{VMC}, s62, v{VM}")
            a(f"v_mov_b32 v{VL}, 0")
            for i in range(8): a(f"v_mov_b32 v{ACC+i}, 0")
            if p==1: pubvec()
            pubaddr(br)
            if p==3: tail=8
        def group(jl0,iss):
            for j in range(4):
                if kv=='K': kunit(j,jl0+j,nh,iss)
                else: vunit(j,jl0+j,iss)
        if p==1 and NV:
            for k in range(NV):
                vunit(k%4,None,iss,0,k)
                vunit(None,None,None,1,NV+k+1,side=k)
            done=2*NV
            a(f"v_add_u32 v{VSC}, {done*256}, v{VSC}")
        if done==0 and len(vq)!=dl:
            group(0,iss); done=4
            a(f"v_add_u32 v{VSC}, 1024, v{VSC}")
        assert (n-done-tail)%4==0
        a(f"s_mov_b32 s60, {(n-done-tail)//4}")
        q0=loop_begin(f"L_ph{p}")
        group(0,iss)
        assert vq==q0,(vq,q0)
        a(f"v_add_u32 v{VSC}, 1024, v{VSC}")
        a("s_sub_u32 s60, s60, 1")
        a("s_cmp_lg_u32 s60, 0")
        a(f"s_cbranch_scc1 L_ph{p}")
        if p<3: do_boost(lambda h: issue_static(h,p+1))
        if p==1:
            mergeA()
            lds_wait("L_go",T,LGO,1,2)
        if tail:
            def iss1(h):
                if h==16+TQ: ticket_req()
                iss(h)
            for h in range(dl,dlp): iss(h)
            cd[0]=dlp
            group(0,iss1)
            group(4,lambda h: issue_static(h,None) if h<16 else issue_pool(h))
            if wthr:
                a("s_mov_b64 exec, 1"); a(f"ds_add_u32 v{PA+2}, v{PA+3} offset:{LMRG-LCNT}"); a("s_mov_b64 exec, -1")
            st(5)
            cm("---- dynamic pool: 16-key blocks of branch B handed out by ticket, online softmax")
            a(f"s_cmp_eq_u32 s88, {0 if nr0 else INV}")
            a("s_cbranch_scc1 L_pool_end")
            def block(sfx):
                for j in range(2):
                    for i in range(4):
                        arrive(4*j+i,issue_pool); dots1(RING+j*16,i,1,D+2*j)
                reduce(1,D,T,4)
                a(f"v_cvt_pk_bf16_f32 v{T+4}, v{T}, v{T+1}")
                a(f"v_cvt_pk_bf16_f32 v{T+5}, v{T+2}, v{T+3}")
                a(f"v_lshlrev_b32 v{T}, 16, v{T+4}"); a(f"v_and_b32 v{T+1}, 0xffff0000, v{T+4}")
                a(f"v_lshlrev_b32 v{T+2}, 16, v{T+5}"); a(f"v_and_b32 v{T+3}, 0xffff0000, v{T+5}")
                a(f"v_max3_f32 v{T+4}, v{T}, v{T+1}, v{T+2}")
                a(f"v_max_f32 v{T+4}, v{T+4}, v{T+3}")
                a(f"v_cmp_gt_f32 vcc, v{T+4}, v{VM}")
                a("s_cmp_eq_u64 vcc, 0")
                a(f"s_cbranch_scc1 L_norescale{sfx}")
                a(f"v_max_f32 v{VM}, v{VM}, v{T+4}")
                xrow(VM,"v_max_f32")
                a(f"v_mul_f32 v{T+4}, s62, v{VM}")
                a(f"v_sub_f32 v{T+5}, v{VMC}, v{T+4}")
                a(f"v_exp_f32 v{T+5}, v{T+5}")
                a(f"v_mov_b32 v{VMC}, v{T+4}")
                a(f"v_mul_f32 v{VL}, v{VL}, v{T+5}")
                for i in range(8): a(f"v_mul_f32 v{ACC+i}, v{ACC+i}, v{T+5}")
                a.label(f"L_norescale{sfx}")
                pcalc(T,AR)
                pvunit(2,issue_pool)
                pcalc(T+2,AR)
                pvunit(3,issue_pool)
            q0=loop_begin("L_pool")
            block("")
            assert vq==q0,(vq,q0)
            a(f"s_cmp_lg_u32 s88, {0 if nr0 else INV}")
            a("s_cbranch_scc1 L_pool")
            a.label("L_pool_end")
            publish('B')
        if p<3 and not (est and p!=1): st(2+p)
    write_stamps(False)
    a.label("L_done")
    a("s_endpgm")
    if report is not None:
        import rep; rep.emit(a,report,WS_USED,W,LW)
    a.raw('.section .rodata,"a"')
    for nm,nv in ((NAME,256+16*NV),)+((("report_kernel",16),) if report is not None else ()):
        a.raw(".p2align 6"); a.raw(f".amdhsa_kernel {nm}")
        a.raw(f"  .amdhsa_next_free_vgpr {nv}"); a.raw("  .amdhsa_next_free_sgpr 100"); a.raw(f"  .amdhsa_accum_offset {min(nv,256)}")
        a.raw(f"  .amdhsa_float_denorm_mode_32 {den}")
        a.raw("  .amdhsa_group_segment_fixed_size 0"); a.raw("  .amdhsa_kernarg_size 104"); a.raw("  .amdhsa_user_sgpr_count 2")
        a.raw("  .amdhsa_user_sgpr_kernarg_segment_ptr 1"); a.raw("  .amdhsa_system_sgpr_workgroup_id_x 1"); a.raw(".end_amdhsa_kernel")
    return a.text()

def make(cfgs, listfile="list.txt"):
    import build
    lines=[]
    for c in cfgs:
        lab="g29_"+"_".join(f"{k}{str(v).replace(' ','').replace(',','.').strip('()[]')}" for k,v in c.items() if k!='stamp')
        fn="k_"+lab+".s"
        open(fn,"w").write(gen(**c))
        co=build.build(fn)
        lines.append(f"{lab} {co} {256*W if c.get('stamp') else 0} {NAME}:256:{(W+1)*64}:{c.get('lds',75520)}")
    open(listfile,"w").write("\n".join(lines)+"\n")
if __name__=="__main__":
    import json
    cfg=json.loads(sys.argv[2]) if len(sys.argv)>2 else {}
    open(sys.argv[1],"w").write(gen(**cfg))
```

```python
import struct, math, sys
from asmlib import Asm
NAME="concat_heads__gqa_block_cached__mha_block_cached__decode_kernel"
HDR=open('concat_heads__gqa_block_cached__mha_block_cached__decode.s.ref').read().split('; Override')[0]
def f2u(x): return struct.unpack('<I',struct.pack('<f',x))[0]
QP=0x10000
TK=0x50000
IN1D=0x80000
YO=0x180000
WS_USED=0x200000
LQA=0; LQB=1024; LCNT=1536; LGO=1540; LMRG=1544; LSIG=1548; LNON=1552; LDMP=2048; LSC=2048+3*2560
DPPF="row_mask:0xf bank_mask:0xf"
INV=0x7f000000
W=2; LW=1

def gen(stamp=False, lds=75520, dl=10, NV=12, PK=64, blk=32, tq=3, gsleep=40, psl=1, spin=1<<20, mix=True, report=None,
        thr=2, boost=0, sep=False, clr=2, cfl='sc1', wsoff=0, bar0=28, est=False, smodel=False, dlp=12, pm=20, shh=0, align=0, pad=0, ax=True, nr0=True, apub='help', pmask=True, asig=17, ph=True, thrA=2, den=0, GR=(12,11,6,3), lp=None, t0e=False, yt=False, pfl='sc1', sfl='sc1', bx=False, hgate=None, hsl=2, warm=0, wfl='sc1', wthr=0):
    SPIN=spin
    a=Asm()
    cm=lambda t: a.raw("    ; "+t)
    a.raw(HDR.rstrip())
    if report is None: a.raw(f"; @launch grid=(256,1,1) block=({(W+1)*64},1,1) lds={lds}")
    else:
        a.raw(f"; @launch kernel={NAME} grid=(256,1,1) block=({(W+1)*64},1,1) lds={lds}")
        a.raw("; @launch kernel=report_kernel grid=(1,1,1) block=(64,1,1) lds=1024")
    a.raw('.amdgcn_target "amdgcn-amd-amdhsa--gfx950"')
    a.raw(".text"); a.raw(f".globl {NAME}"); a.raw(".p2align 8"); a.raw(f".type {NAME},@function"); a.raw(f"{NAME}:")
    def st(k):
        if stamp:
            a("s_memrealtime s[68:69]"); a("s_waitcnt lgkmcnt(0)"); a(f"s_mov_b32 s{72+k}, s68")
    for t in """Decode attention for both branches in one launch, HBM-bound (805 MB of K/V read once, nt loads).
    256 workgroups x 3 waves, one per CU.  Waves 1,2 stream; wave 0 is a helper.
    Streaming waves: A_k, A_v, B_k, B_v (static shares + 0..3 extra cycles by arrival rank), then a pool of 16-key blocks of B (atomic tickets)
      K pass : 4 rows x 256 B per load, v_dot2 + DPP row reduction, scores rounded to bf16 (as the reference does), kept in LDS
      V pass : p = exp2(c*s - c*max) with the true max of the pass, o += p.V by MFMA with a diagonal A operand
      about 10 loads in flight per wave: enough to saturate HBM without oversubscribing the fabric
    Helper: q = x.wq (4 k-slices, MFMA) -> nonce-tagged granules in d_ws -> gathered per workgroup;
      at the end combines the (m, l, o) records of a head for 32 rows, multiplies with wo, and 28 helpers per branch
      add the 128 partial rows.  Every 16-byte granule handed over in d_ws carries this launch's nonce (64 bits, or slices of it in the 12 low mantissa bits of the partial sums).""".split("\n"):
        cm(t.strip())
    a(f"""
    {"s_memrealtime s[70:71]" if t0e else ""}
    s_cmp_ge_u32 s2, 256
    s_cbranch_scc1 L_done
    s_load_dwordx16 s[4:19], s[0:1], 0
    s_load_dwordx8 s[20:27], s[0:1], 64
    s_load_dwordx2 s[28:29], s[0:1], 96
    v_lshrrev_b32 v1, 6, v0
    v_and_b32 v0, 63, v0
    v_readfirstlane_b32 s30, v1
    v_and_b32 v2, 15, v0
    v_lshrrev_b32 v3, 4, v0
    s_mov_b32 s38, {WS_USED}
    s_mov_b32 s39, 0x20000
    s_lshr_b32 s48, s2, 4
    s_lshl_b32 s48, s48, 3
    s_and_b32 s49, s2, 7
    s_or_b32 s48, s48, s49
    s_bfe_u32 s55, s2, 0x10003
    s_lshr_b32 s96, s2, 4
    s_lshr_b32 s97, s2, 5
    """)
    if bx: a("s_lshl_b32 s49, s49, 1"); a("s_xor_b32 s96, s96, s49")
    elif ax: a("s_xor_b32 s97, s97, s49")
    a("s_cmp_eq_u32 s30, 0"); a("s_cbranch_scc0 L_stream")
    def selectors():
        a("""
        v_and_b32 v4, 1, v0
        v_cmp_eq_u32 vcc, 1, v4
        v_mov_b32 v5, 0x0c0c0100
        v_mov_b32 v6, 0x01000c0c
        v_cndmask_b32 v5, v5, v6, vcc
        v_mov_b32 v6, 0x0c0c0302
        v_mov_b32 v7, 0x03020c0c
        v_cndmask_b32 v6, v6, v7, vcc
        v_bfe_u32 v4, v0, 1, 2
        v_mov_b32 v7, 0x0c0c0c0c
        """)
        for v in range(4):
            a(f"v_cmp_eq_u32 vcc, {v}, v4")
            a(f"v_cndmask_b32 v{8+v}, v7, v5, vcc")
            a(f"v_cndmask_b32 v{12+v}, v7, v6, vcc")
    SEL=[[8,9,10,11],[12,13,14,15]]
    def after_kernarg():
        a("s_waitcnt lgkmcnt(0)")
        if stamp:
            for k in range(8): a(f"s_mov_b32 s{72+k}, 0")
        st(0)
        if t0e: a("s_mov_b32 s72, s70")
        if wsoff: a(f"s_add_u32 s36, s28, {wsoff}"); a("s_addc_u32 s37, s29, 0")
        else: a("s_mov_b32 s36, s28"); a("s_mov_b32 s37, s29")
    def write_stamps(helper):
        if not stamp: return
        st(7)
        a("s_mov_b32 s36, s28"); a("s_mov_b32 s37, s29")
        a("s_getreg_b32 s66, hwreg(HW_REG_XCC_ID)")
        a("s_mov_b64 exec, 1")
        a("v_mov_b32 v4, 0")
        if not helper:
            a("v_mov_b32 v20, s72"); a("v_mov_b32 v21, s79"); a("v_mov_b32 v22, s66"); a("s_getreg_b32 s67, hwreg(HW_REG_HW_ID)"); a("v_mov_b32 v23, s67")
            a(f"s_lshl_b32 s64, s2, {LW}"); a("s_add_u32 s64, s64, s31"); a("s_lshl_b32 s64, s64, 4")
            a("buffer_store_dwordx4 v[20:23], v4, s[36:39], s64 offen")
        for k in range(8): a(f"v_mov_b32 v{40+k}, s{72+k}")
        a(f"s_mul_i32 s64, s2, {W+1}"); a("s_add_u32 s64, s64, s30"); a("s_lshl_b32 s64, s64, 5"); a("s_add_u32 s64, s64, 0x4000")
        a("buffer_store_dwordx4 v[40:43], v4, s[36:39], s64 offen")
        a("buffer_store_dwordx4 v[44:47], v4, s[36:39], s64 offen offset:16")
    def spin_tail(lbl,sleep):
        if sleep: a(f"s_sleep {sleep}")
        a("s_sub_u32 s65, s65, 1"); a("s_cmp_lg_u32 s65, 0")
        a(f"s_cbranch_scc1 {lbl}")
    def lds_wait(lbl,tmp,addr,val,sleep):
        a(f"v_mov_b32 v{tmp}, {addr}")
        a(f"s_mov_b32 s65, {SPIN}")
        a.label(lbl)
        a(f"ds_read_b32 v{tmp+1}, v{tmp}")
        a("s_waitcnt lgkmcnt(0)")
        a(f"v_readfirstlane_b32 s64, v{tmp+1}")
        a(f"s_cmp_ge_u32 s64, {val}")
        a(f"s_cbranch_scc1 {lbl}d")
        spin_tail(lbl,sleep)
        a.label(lbl+"d")

    def tags(lo,hi):
        a(f"s_and_b32 s4, {lo}, 0x7ff")
        a(f"s_lshr_b32 s5, {lo}, 11")
        a(f"s_lshr_b32 s6, {lo}, 22"); a(f"s_lshl_b32 s7, {hi}, 10"); a("s_or_b32 s6, s6, s7")
        a(f"s_lshr_b32 s7, {hi}, 1")
        for k in (5,6,7): a(f"s_xor_b32 s{k}, s{k}, s4"); a(f"s_and_b32 s{k}, s{k}, 0x7ff")
        for k in range(4): a(f"s_sub_u32 s{8+k}, 0x800, s{4+k}")
    def enc(regs,vmask):
        for k,r in enumerate(regs): a(f"v_add_u32 v{r}, s{8+k%4}, v{r}")
        for k,r in enumerate(regs): a(f"v_and_or_b32 v{r}, v{r}, v{vmask}, s{4+k%4}")
    def encp(quads,vmask,pay):
        for q in quads:
            for e in range(3): a(f"v_add_u32 v{q+e}, s{8+e}, v{q+e}")
            a(f"v_add_u32 v{q+3}, 0x800, v{q+3}")
        for q in quads:
            for e in range(3): a(f"v_and_or_b32 v{q+e}, v{q+e}, v{vmask}, s{4+e}")
            a(f"v_and_or_b32 v{q+3}, v{q+3}, v{vmask}, v{pay}")
    def payload(dst,vm,vl,vsh,sel):
        a(f"v_add_u32 v{vl}, 0x80, v{vl}")
        a(f"v_cndmask_b32 v{dst}, v{vm}, v{vl}, {sel}")
        a(f"v_bfe_u32 v{dst}, v{dst}, v{vsh}, 12")
    def payconst(vsh,sel):
        a(f"v_and_b32 v{vsh}, 1, v3"); a(f"v_mul_u32_u24 v{vsh}, 12, v{vsh}"); a(f"v_sub_u32 v{vsh}, 20, v{vsh}")
        a(f"s_mov_b32 s{sel}, 0xaaaaaaaa"); a(f"s_mov_b32 s{sel+1}, 0xaaaaaaaa")
    WR=64; XR=16; HA=32; HC=40; T=56; DT=192; HD=16; O=224
    cm("---------------- helper wave: s48 = index 0..127 inside the branch, s55 = branch (0 = A, 1 = B)")
    a(f"""
    s_setprio 3
    s_memrealtime s[92:93]
    s_mov_b32 s42, 896
    s_mov_b32 s43, 0x20000
    s_mov_b32 s47, 0x20000
    s_mov_b32 s82, 256
    s_mov_b32 s83, 0x20000
    s_and_b32 s60, s48, 31
    s_lshr_b32 s61, s48, 5
    s_mov_b32 s46, {448*8192}
    v_mul_u32_u24 v{T}, 56, v3
    s_mul_i32 s62, s61, 224
    s_mov_b32 s63, {28*8192}
    v_mul_lo_u32 v{T+1}, s63, v3
    v_lshl_add_u32 v{T+1}, v2, 4, v{T+1}
    s_mul_i32 s63, s61, {112*8192}
    s_lshl_b32 s64, s60, 8
    s_add_u32 s63, s63, s64
    s_and_b32 s56, s2, 0xf8
    """)
    after_kernarg()
    cm("workgroup 0 publishes this launch's nonce (tags every hand-off through d_ws) in the zeroed d_debug")
    a(f"""
    s_mov_b32 s80, s26
    s_mov_b32 s81, s27
    s_cmp_lg_u32 s2, 0
    s_cbranch_scc1 L_nononce
    s_or_b32 s92, s92, 1
    v_mov_b32 v{T+4}, s92
    v_mov_b32 v{T+5}, s93
    v_lshlrev_b32 v{T+6}, 3, v0
    s_mov_b32 exec_hi, 0
    buffer_store_dwordx2 v[{T+4}:{T+5}], v{T+6}, s[80:83], 0 offen sc1
    s_mov_b64 exec, -1
    """)
    a.label("L_nononce")
    cm("partial q: 112 rows x 128 columns of wq")
    a("""
    s_cmp_eq_u32 s55, 0
    s_cselect_b32 s40, s4, s14
    s_cselect_b32 s41, s5, s15
    s_cselect_b32 s44, s10, s20
    s_cselect_b32 s45, s11, s21
    """)
    for i in range(28):
        a(f"buffer_load_dwordx4 v[{WR+4*i}:{WR+4*i+3}], v{T+1}, s[44:47], s63 offen nt")
        if i<27: a("s_add_u32 s63, s63, 8192")
        if i==0:
            for k in range(7):
                a(f"buffer_load_dwordx2 v[{XR+2*k}:{XR+2*k+1}], v{T}, s[40:43], s62 offen offset:{8*k}")
        if i+1==bar0: a("s_barrier")
    a(f"buffer_load_dwordx2 v[{T+4}:{T+5}], off, s[80:83], s56 sc1")
    selectors()
    a(f"""
    v_mov_b32 v{HC+4}, {LCNT}
    v_mov_b32 v{HC+6}, 0
    v_mov_b32 v{HC+7}, 0
    ds_write_b64 v{HC+4}, v[{HC+6}:{HC+7}]
    ds_write_b64 v{HC+4}, v[{HC+6}:{HC+7}] offset:8
    v_lshlrev_b32 v{T+2}, 4, v0
    v_and_b32 v{T+3}, 1, v3
    v_lshlrev_b32 v{T+3}, 4, v{T+3}
    v_lshl_add_u32 v{T+3}, v2, 5, v{T+3}
    v_lshrrev_b32 v{T+6}, 5, v0
    v_lshlrev_b32 v{T+6}, 4, v{T+6}
    v_lshl_add_u32 v{T+6}, v{T+3}, 1, v{T+6}
    s_lshl_b32 s63, s61, 15
    s_lshl_b32 s64, s60, 10
    s_add_u32 s63, s63, s64
    s_lshl_b32 s64, s55, 17
    s_add_u32 s63, s63, s64
    s_add_u32 s63, s63, {QP}
    """)
    for i in range(28):
        a(f"s_waitcnt vmcnt({28-i})")
        ar=HA+(i%2)*4
        for v in range(4):
            a(f"v_perm_b32 v{ar+v}, v{XR+i//2}, v{XR+i//2}, v{SEL[i%2][v]}")
        a(f"v_mfma_f32_16x16x32_bf16 v[{HC}:{HC+3}], v[{ar}:{ar+3}], v[{WR+4*i}:{WR+4*i+3}], {'0' if i==0 else 'v[%d:%d]'%(HC,HC+3)}")
    st(1)
    a(f"s_mov_b32 s65, {SPIN}")
    a.label("L_np")
    a("s_waitcnt vmcnt(0)")
    a(f"v_readfirstlane_b32 s92, v{T+4}"); a(f"v_readfirstlane_b32 s93, v{T+5}")
    a("s_cmp_lg_u32 s92, 0")
    a("s_cbranch_scc1 L_nd")
    a(f"buffer_load_dwordx2 v[{T+4}:{T+5}], off, s[80:83], s56 sc1")
    spin_tail("L_np",0)
    a.label("L_nd")
    a("s_mov_b32 exec_lo, 0")
    a(f"v_mov_b32 v{HC}, v{HC+2}"); a(f"v_mov_b32 v{HC+1}, v{HC+3}")
    a("s_mov_b32 exec_lo, -1")
    a(f"v_mov_b32 v{HC+2}, v{T+4}"); a(f"v_mov_b32 v{HC+3}, v{T+5}")
    a(f"buffer_store_dwordx4 v[{HC}:{HC+3}], v{T+6}, s[36:39], s63 offen sc1")
    a(f"v_mov_b32 v{T}, {LNON}")
    a(f"ds_write_b64 v{T}, v[{T+4}:{T+5}]")
    st(2)
    def gather(lbl,nk,base,ldsoff,sleep):
        a(f"s_mov_b32 s65, {SPIN}")
        a.label(lbl)
        base()
        for ks in range(4):
            for k in range(nk):
                r=DT+(ks*nk+k)*4
                a(f"buffer_load_dwordx4 v[{r}:{r+3}], v{T+2}, s[36:39], s62 offen offset:{k*1024} sc1")
            if ks<3: a("s_add_u32 s62, s62, 0x8000")
        a("s_mov_b64 s[66:67], 0")
        for j in range(4*nk):
            a(f"s_waitcnt vmcnt({4*nk-1-j})")
            a(f"v_cmp_ne_u64 vcc, s[92:93], v[{DT+j*4+2}:{DT+j*4+3}]")
            a("s_or_b64 s[66:67], s[66:67], vcc")
        a("s_cmp_eq_u64 s[66:67], 0")
        a(f"s_cbranch_scc1 {lbl}d")
        spin_tail(lbl,sleep)
        a.label(lbl+"d")
        def pr(j): return f"v[{DT+j*4}:{DT+j*4+1}]"
        for k in range(nk):
            a(f"v_pk_add_f32 {pr(k)}, {pr(k)}, {pr(nk+k)}")
            a(f"v_pk_add_f32 {pr(2*nk+k)}, {pr(2*nk+k)}, {pr(3*nk+k)}")
        for k in range(nk): a(f"v_pk_add_f32 {pr(k)}, {pr(k)}, {pr(2*nk+k)}")
        a(f"v_lshlrev_b32 v{T}, 2, v0")
        for k in range(nk): a(f"v_cvt_pk_bf16_f32 v{DT+k*4+2}, v{DT+k*4}, v{DT+k*4+1}")
        for k in range(nk): a(f"ds_write_b32 v{T}, v{DT+k*4+2} offset:{ldsoff+256*k}")
        a("s_waitcnt lgkmcnt(0)")
    def baseA(): a("s_lshl_b32 s62, s97, 12"); a(f"s_add_u32 s62, s62, {QP}")
    def baseB(): a("s_lshl_b32 s62, s96, 11"); a(f"s_add_u32 s62, s62, {QP+0x20000}")
    cm("gather the two A q heads of this workgroup (back off first: the other producers finish at about the same time)")
    if gsleep: a(f"s_sleep {gsleep}")
    if lp is not None:
        cm("cheap poll first: one granule of each of the 16 producers")
        baseA()
        a(f"v_lshrrev_b32 v{T}, 2, v0"); a(f"v_lshlrev_b32 v{T}, 15, v{T}"); a(f"v_and_b32 v{T+1}, 3, v0"); a(f"v_lshl_add_u32 v{T}, v{T+1}, 10, v{T}")
        a(f"s_mov_b32 s65, {SPIN}")
        a("s_mov_b64 exec, 0xffff")
        a.label("L_lp")
        a(f"buffer_load_dwordx2 v[{DT}:{DT+1}], v{T}, s[36:39], s62 offen offset:1016 sc1")
        a("s_waitcnt vmcnt(0)")
        a(f"v_cmp_ne_u64 vcc, s[92:93], v[{DT}:{DT+1}]")
        a("s_and_b64 exec, exec, vcc")
        a("s_cbranch_scc0 L_lpd")
        spin_tail("L_lp",lp)
        a.label("L_lpd")
        a("s_mov_b64 exec, -1")
    gather("L_ga",4,baseA,LQA,8)
    if est: st(5)
    a("s_barrier")
    a("s_setprio 0")
    st(4)
    cm("16 helpers initialise one ticket counter each: {0, 0, nonce} in one store")
    a("s_lshl_b32 s60, s55, 7"); a("s_add_u32 s60, s60, s48")
    a("s_lshl_b32 s52, s60, 12"); a(f"s_add_u32 s52, s52, {IN1D}")
    if yt: a("s_lshl_b32 s54, s55, 18"); a("s_lshl_b32 s63, s48, 6"); a("s_add_u32 s54, s54, s63"); a(f"s_add_u32 s54, s54, {YO}"); a("s_add_u32 s53, s54, 0x20000")
    else: a("s_lshl_b32 s54, s60, 11"); a(f"s_add_u32 s54, s54, {YO}")
    a("s_cmp_ge_u32 s60, 16"); a("s_cbranch_scc1 L_notk")
    a("s_lshl_b32 s63, s60, 8"); a(f"s_add_u32 s63, s63, {TK}")
    a(f"v_mov_b32 v{HC}, 0"); a(f"v_mov_b32 v{HC+1}, 0")
    a("s_mov_b64 exec, 1")
    a(f"buffer_store_dwordx4 v[{HC}:{HC+3}], off, s[36:39], s63 sc1")
    a("s_mov_b64 exec, -1")
    a.label("L_notk")
    cm("32 rows of wo stay in registers until the end")
    a(f"""
    s_cmp_eq_u32 s55, 1
    s_cselect_b32 s44, s22, s12
    s_cselect_b32 s45, s23, s13
    s_mov_b32 s46, {4096*896}
    s_mul_i32 s63, s48, {32*896}
    v_bfrev_b32 v{T+7}, v3
    v_lshrrev_b32 v{T+7}, 30, v{T+7}
    v_mul_u32_u24 v{T}, 896, v{T+7}
    v_lshl_add_u32 v{T}, v2, 4, v{T}
    """)
    a("s_mov_b32 s66, 0x00ff00ff"); a("s_mov_b32 s67, 0x00ff00ff")
    for i in range(8):
        for bk in range(4):
            r=WR+(i*4+bk)*4
            if bk==3: a("s_mov_b64 exec, s[66:67]")
            a(f"buffer_load_dwordx4 v[{r}:{r+3}], v{T}, s[44:47], s63 offen offset:{bk*256} nt")
        a("s_mov_b64 exec, -1")
        if i<7: a(f"s_add_u32 s63, s63, {4*896}")
    a("s_waitcnt vmcnt(0)")
    cm("has this head's ticket counter been initialised in this launch?")
    a("s_lshl_b32 s64, s96, 8"); a(f"s_add_u32 s64, s64, {TK}")
    a(f"s_mov_b32 s65, {SPIN}")
    a.label("L_rd")
    a(f"buffer_load_dwordx2 v[{DT}:{DT+1}], off, s[36:39], s64 offset:8 sc1")
    a("s_waitcnt vmcnt(0)")
    a(f"v_cmp_ne_u64 vcc, s[92:93], v[{DT}:{DT+1}]")
    a("s_cmp_eq_u64 vcc, 0")
    a("s_cbranch_scc1 L_rdd")
    spin_tail("L_rd",64)
    a.label("L_rdd")
    cm("q of this workgroup's B head")
    gather("L_gb",2,baseB,LQB,64)
    a(f"v_mov_b32 v{T}, {LGO}"); a(f"v_mov_b32 v{T+1}, 1")
    a(f"ds_write_b32 v{T}, v{T+1}")
    st(3)
    VK=24; PC=25
    def poll(lbl,loads,quads,ne=4):
        loads()
        a("s_waitcnt vmcnt(0)")
        a(f"s_mov_b32 s65, {SPIN}")
        a.label(lbl)
        for k,q in enumerate(quads):
            for e in range(ne):
                if k==0: a(f"v_xor_b32 v{PC+e}, s{4+e}, v{q+e}")
                else: a(f"v_bitop3_b32 v{PC+e}, v{q+e}, s{4+e}, v{PC+e} bitop3:0xbe")
        if ne==4: a(f"v_or_b32 v{PC}, v{PC}, v{PC+3}")
        a(f"v_or3_b32 v{PC}, v{PC}, v{PC+1}, v{PC+2}")
        a(f"v_and_b32 v{PC}, 0xfff, v{PC}")
        a(f"v_cmp_ne_u32 vcc, 0, v{PC}")
        a("s_cmp_lg_u64 vcc, 0")
        a(f"s_cbranch_scc0 {lbl}d")
        a("s_mov_b64 exec, vcc")
        loads()
        a("s_mov_b64 exec, -1")
        a("s_waitcnt vmcnt(48)")
        spin_tail(lbl,psl)
        a.label(lbl+"d")
    tags("s92","s93")
    a(f"v_mov_b32 v{VK}, 0xfffff000")
    a(f"v_lshlrev_b32 v1, 1, v{T+7}"); a(f"v_and_b32 v{T+1}, 3, v0"); a(f"v_lshl_add_u32 v1, v{T+1}, 3, v1")
    a(f"v_lshrrev_b32 v{T+7}, 2, v0"); a(f"v_lshlrev_b32 v{T+7}, 11, v{T+7}")
    a(f"v_lshl_add_u32 v{T+7}, v{T+1}, 4, v{T+7}")
    a(f"s_lshl_b32 s84, s48, {13 if yt else 6}"); a("s_lshl_b32 s60, s55, 18"); a("s_add_u32 s84, s84, s60"); a(f"s_add_u32 s84, s84, {YO}")
    for k in range(1,8): a(f"s_add_u32 s{84+k}, s{83+k}, {1024 if yt else 0x8000}")
    if yt:
        a(f"v_mov_b32 v{T+7}, v{T+2}")
        a(f"v_and_b32 v29, 0x3f, v{T+3}"); a(f"v_lshrrev_b32 v{T}, 1, v2"); a(f"v_lshl_add_u32 v29, v{T}, 13, v29")
        a(f"v_lshrrev_b32 v{T}, 5, v0"); a(f"v_lshl_add_u32 v29, v{T}, 16, v29")
    a("""
    s_mov_b32 s40, s24
    s_mov_b32 s41, s25
    s_mov_b32 s42, 1792
    s_lshl_b32 s62, s48, 5
    s_mul_i32 s60, s55, 896
    s_add_u32 s62, s62, s60
    """)
    cm("the merged A record waits in LDS until the pool runs dry: no stores while HBM is saturated")
    lds_wait("L_mw",T,LMRG,3,32)
    a(f"v_lshlrev_b32 v{T}, 3, v0")
    a(f"ds_read_b128 v[{DT}:{DT+3}], v{T+2} offset:{LDMP+5120}")
    a(f"ds_read_b128 v[{DT+4}:{DT+7}], v{T+2} offset:{LDMP+5120+1024}")
    a(f"ds_read_b64 v[{DT+8}:{DT+9}], v{T} offset:{LDMP+5120+2048}")
    a(f"v_and_b32 v{O}, 0x7f, v{T+3}"); a(f"v_lshrrev_b32 v{O+1}, 2, v2"); a(f"v_lshl_add_u32 v{O}, v{O+1}, 12, v{O}")
    a(f"v_lshrrev_b32 v{O+1}, 5, v0"); a(f"v_lshl_add_u32 v{O}, v{O+1}, 15, v{O}")
    a("s_and_b32 s65, s2, 31")
    a("s_lshl_b32 s98, s97, 16"); a("s_lshl_b32 s47, s65, 7"); a("s_add_u32 s98, s98, s47"); a(f"s_add_u32 s98, s98, {IN1D}")
    a("s_add_u32 s47, s98, 0x4000")
    payconst(O+1,12)
    a("s_waitcnt lgkmcnt(0)")
    for d,sr in ((DT+10,DT+8),(DT+11,DT+9)):
        a(f"v_mov_b32_dpp v{d}, v{sr} row_newbcast:0 row_mask:0x3 bank_mask:0xf")
        a(f"v_mov_b32_dpp v{d}, v{sr} row_newbcast:8 row_mask:0xc bank_mask:0xf")
    payload(DT+8,DT+10,DT+11,O+1,"s[12:13]")
    encp([DT,DT+4],VK,DT+8)
    a(f"v_and_b32 v{T+6}, 1, v0"); a(f"v_mul_u32_u24 v{T+6}, 12, v{T+6}")
    a(f"s_mov_b32 s14, {f2u(math.log2(math.e)/16.0)}")
    lds_wait("L_aw",T,LSIG if asig else LCNT,1,2)
    a(f"buffer_store_dwordx4 v[{DT}:{DT+3}], v{O}, s[36:39], s98 offen sc1")
    a(f"buffer_store_dwordx4 v[{DT+4}:{DT+7}], v{O}, s[36:39], s47 offen sc1")
    cm("wait until this workgroup's streaming waves are done, then combine the softmax records for 32 output rows")
    a("s_cmp_eq_u32 s55, 0"); a(f"s_cselect_b32 s57, {thrA}, {thr}")
    lds_wait("L_ow",T,LCNT,"s57",2)
    OM=O; OL=O+2; OX=O+3; OO=O+4; OB=O+8; OY=O+16; OW=O+20; OD=O+24
    def l1loads():
        for j in range(4):
            a(f"buffer_load_dwordx4 v[{DT+4*j}:{DT+4*j+3}], v{T+2}, s[36:39], s52 offen offset:{j*1024} {pfl}")
    poll("L_hp",l1loads,[DT+4*j for j in range(4)],3)
    if not est: st(5)
    def xr(reg,op,sw):
        a(f"v_mov_b32 v{OX}, v{reg}"); a(f"{sw} v{reg}, v{OX}"); a(f"{op} v{reg}, v{reg}, v{OX}")
    cm("record heads: lanes 0,1 of a quad rebuild m, lanes 2,3 rebuild l")
    for j in range(4): a(f"v_lshlrev_b32 v{OY+j}, 20, v{DT+4*j+3}")
    for j in range(4): a(f"v_lshrrev_b32 v{OY+j}, v{T+6}, v{OY+j}")
    for j in range(4): a(f"v_or_b32_dpp v{OY+j}, v{OY+j}, v{OY+j} quad_perm:[1,0,3,2] {DPPF}")
    for j in range(4): a(f"v_mul_f32 v{OW+j}, s14, v{OY+j}")
    a(f"v_max_f32 v{OM}, v{OW}, v{OW+1}")
    a(f"v_max3_f32 v{OM}, v{OM}, v{OW+2}, v{OW+3}")
    a(f"v_and_b32 v{OD}, v{VK}, v{DT+3}"); a(f"v_and_b32 v{OD+1}, v{VK}, v{DT+7}")
    a(f"v_max_f32_dpp v{OM}, v{OM}, v{OM} row_ror:8 {DPPF}")
    a(f"v_mov_b32 v{OX}, v{OM}")
    a(f"v_and_b32 v{OD+2}, v{VK}, v{DT+11}"); a(f"v_and_b32 v{OD+3}, v{VK}, v{DT+15}")
    a(f"v_permlane16_swap_b32 v{OM}, v{OX}"); a(f"v_max_f32 v{OM}, v{OM}, v{OX}")
    xr(OM,"v_max_f32","v_permlane32_swap_b32")
    for j in range(4): a(f"v_sub_f32 v{OW+j}, v{OW+j}, v{OM}")
    for j in range(4): a(f"v_exp_f32 v{OW+j}, v{OW+j}")
    Q0="quad_perm:[0,0,0,0]"
    for j in range(4): a(f"{'v_mul_f32_dpp' if j==0 else 'v_fmac_f32_dpp'} v{OL}, v{OW+j}, v{OY+j} {Q0} {DPPF}")
    lchain=[None,f"v_mov_b32_dpp v{OL}, v{OL} quad_perm:[2,2,2,2] {DPPF}",f"v_add_f32_dpp v{OL}, v{OL}, v{OL} row_ror:8 {DPPF}",f"v_mov_b32 v{OX}, v{OL}",f"v_permlane16_swap_b32 v{OL}, v{OX}",
            f"v_add_f32 v{OL}, v{OL}, v{OX}",f"v_mov_b32 v{OX}, v{OL}",f"v_permlane32_swap_b32 v{OL}, v{OX}"]
    for j in range(4):
        for e in range(4):
            src=DT+4*j+e if e<3 else OD+j
            a(f"{'v_mul_f32_dpp' if j==0 else 'v_fmac_f32_dpp'} v{OO+e}, v{OW+j}, v{src} {Q0} {DPPF}")
            if e%2==1 and lchain[2*j+e//2]: a(lchain[2*j+e//2])
    a(f"v_add_f32 v{OL}, v{OL}, v{OX}")
    a(f"v_permlane32_swap_b32 v{OO}, v{OO+1}"); a(f"v_permlane32_swap_b32 v{OO+2}, v{OO+3}")
    a(f"v_rcp_f32 v{OL}, v{OL}")
    a(f"v_add_f32 v{OO}, v{OO}, v{OO+1}"); a(f"v_add_f32 v{OO+2}, v{OO+2}, v{OO+3}")
    a(f"v_permlane16_swap_b32 v{OO}, v{OO+2}")
    a(f"v_add_f32 v{OO}, v{OO}, v{OO+2}")
    a(f"v_add_f32_dpp v{OO}, v{OO}, v{OO} row_ror:8 {DPPF}")
    a(f"v_mul_f32 v{OO}, v{OO}, v{OL}")
    a(f"v_cvt_pk_bf16_f32 v{OO}, v{OO}, v{OO}")
    for i in range(8): a(f"v_mov_b32_dpp v{OB+i}, v{OO} row_newbcast:{i} {DPPF}")
    def prm(i,v): a(f"v_perm_b32 v{HA+(i%2)*4+v}, v{OB+i}, v{OB+i}, v{SEL[0][v]}")
    for v in range(4): prm(0,v)
    for i in range(8):
        ar=HA+(i%2)*4
        for bk in range(4):
            r=WR+(i*4+bk)*4; c=HC+bk*4
            a(f"v_mfma_f32_16x16x32_bf16 v[{c}:{c+3}], v[{ar}:{ar+3}], v[{r}:{r+3}], {'0' if i==0 else 'v[%d:%d]'%(c,c+3)}")
            if i<7 and bk<2: prm(i+1,2*bk); prm(i+1,2*bk+1)
    cm("both half waves hold the same sums: pack two column blocks per store")
    a(f"v_lshrrev_b32 v{OX}, 5, v0"); a(f"v_lshl_add_u32 v{OX}, v{OX}, 9, v{T+3}")
    for pr in range(2):
        c=HC+pr*8
        for e in range(4): a(f"v_permlane32_swap_b32 v{c+e}, v{c+4+e}")
        enc(range(c,c+4),VK)
        if pr==1: a("s_mov_b32 exec_hi, 0x00ff00ff")
        if yt: a(f"buffer_store_dwordx4 v[{c}:{c+3}], v29, s[36:39], {'s53' if pr else 's54'} offen {sfl}")
        else: a(f"buffer_store_dwordx4 v[{c}:{c+3}], v{OX}, s[36:39], s54 offen offset:{pr*1024} {sfl}")
    a("s_mov_b64 exec, -1")
    st(6)
    cm("28 helpers per branch sum the 128 partial rows for 16 output columns each")
    a("s_cmp_ge_u32 s48, 28")
    a("s_cbranch_scc1 L_he")
    def l2loads():
        for k in range(8):
            a(f"buffer_load_dwordx4 v[{DT+4*k}:{DT+4*k+3}], v{T+7}, s[36:39], s{84+k} offen {pfl}")
    poll("L_yp",l2loads,[DT+4*k for k in range(8)])
    for e in range(0,16,2): a(f"v_pk_add_f32 v[{O+e}:{O+e+1}], v[{DT+e}:{DT+e+1}], v[{DT+16+e}:{DT+17+e}]")
    for half in (8,4):
        for e in range(0,half,2): a(f"v_pk_add_f32 v[{O+e}:{O+e+1}], v[{O+e}:{O+e+1}], v[{O+half+e}:{O+half+e+1}]")
    a(f"v_permlane32_swap_b32 v{O}, v{O+1}"); a(f"v_permlane32_swap_b32 v{O+2}, v{O+3}")
    a(f"v_add_f32 v{O}, v{O}, v{O+1}"); a(f"v_add_f32 v{O+2}, v{O+2}, v{O+3}")
    a(f"v_permlane16_swap_b32 v{O}, v{O+2}")
    a(f"v_add_f32 v{O}, v{O}, v{O+2}")
    for m in ("row_ror:8","row_ror:4"): a(f"v_add_f32_dpp v{O}, v{O}, v{O} {m} {DPPF}")
    a(f"v_cvt_pk_bf16_f32 v{O}, v{O}, v{O}")
    a("s_mov_b32 exec_lo, 0x000f000f"); a("s_mov_b32 exec_hi, 0x000f000f")
    a(f"buffer_store_short v{O}, v1, s[40:43], s62 offen")
    a("s_mov_b64 exec, -1")
    a.label("L_he")
    write_stamps(True)
    a("s_endpgm")

    VOFF=1; VSC=4; VM=5; VL=6; VMC=7
    Q=16; PA=24; ACC=32; AR=40; D=48; T=52; PKR=60; VOFF2=62; VTK=63
    RING=64
    STEP=4096*W
    NA=(1<<19)//STEP; EM=len(GR)-1; EX=sum((EM-i)*g for i,g in enumerate(GR)); assert sum(GR)==32 and EX in (32,64); NB=((1<<20)-(PK+EX)*1024)//STEP
    NT=16*PK//8
    if dlp is None: dlp=dl
    TQ=min(tq,16-dlp)
    cd=[dl]
    vq=[]
    BB=(blk*1024).bit_length()-1
    assert blk==32 and PK%blk==0 and NB%4==0 and NV%4==0 and (2*PK)%(8<<(pm&7))==0
    for k in range(pad): a.raw("    s_nop 0")
    a.label("L_stream")
    cm("---------------- streaming waves")
    a(f"""
    s_sub_u32 s31, s30, 1
    v_lshlrev_b32 v{VOFF}, 9, v3
    v_lshl_add_u32 v{VOFF}, v2, 4, v{VOFF}
    s_mov_b32 s34, 0x1000000
    s_mov_b32 s35, 0x20000
    s_mov_b32 s42, 0x200000
    s_mov_b32 s43, 0x20000
    s_lshl_b32 s61, s31, 12
    s_lshl_b32 s49, s55, {BB}
    s_and_b32 s60, s48, 15
    s_lshl_b32 s60, s60, 20
    s_add_u32 s60, s60, s49
    s_lshl_b32 s64, s97, 24
    s_add_u32 s60, s60, s64
    """)
    def adv(r,last): a(f"s_add_u32 {r}, {r}, {STEP+(32768 if last else 0)}")
    after_kernarg()
    a("s_add_u32 s32, s6, s60"); a("s_addc_u32 s33, s7, 0")
    a("s_add_u32 s40, s8, s60"); a("s_addc_u32 s41, s9, 0")
    if bar0: a("s_barrier")
    if est: st(2)
    OFFS=[0,256,2048,2304]
    PH=[('A','K',NA),('A','V',NA),('B','K',NB),('B','V',NB)]
    c0=NA//4; c1=(2*NA-NV)//4; c2=c1+NB//4
    def ld(base,i,srd,soff,voff=VOFF,rf='v'):
        r=base+i*4
        a(f"buffer_load_dwordx4 {rf}[{r}:{r+3}], v{voff}, {srd}, {soff} offen offset:{OFFS[i]} nt")
    def issue_static(h,p):
        h%=16
        ld(RING+(h//4)*16,h%4,"s[32:35]","s52"); vq.append(h)
        if h%4==3: adv("s52",h==15)
        if h==15:
            a("s_add_u32 s53, s53, 1")
            def sw(b,off): a(f"s_cselect_b32 s32, s{b}, s32"); a(f"s_cselect_b32 s33, s{b+1}, s33"); a(f"s_cselect_b32 s52, {off}, s52")
            if p==0: a(f"s_cmp_eq_u32 s53, {c0}"); sw(40,"s94")
            if p==1: a(f"s_cmp_eq_u32 s53, {c1}"); sw(80,"s56")
            if p>=2:
                a(f"s_add_u32 s57, s58, s53")
                a("s_lshl_b32 s64, s57, 12"); a("s_and_b32 s64, s64, 0x1000")
                a("s_lshl_b32 s65, s57, 14"); a(f"s_and_b32 s65, s65, {0x8000 if EX==32 else 0x18000}"); a("s_or_b32 s64, s64, s65")
                a(f"s_lshl_b32 s65, s57, {19 if EX==32 else 18}"); a("s_and_b32 s65, s65, 0xe00000"); a("s_or_b32 s64, s64, s65")
                a(f"s_add_u32 s64, s64, {2*NB*STEP}")
                a(f"s_cmp_ge_u32 s53, {c2}"); a("s_cselect_b32 s52, s64, s52")
            if p==2: a("s_cmp_eq_u32 s53, s59"); sw(84,"s56"); a(f"s_cselect_b32 s53, {c1}, s53")
    def ticket_req():
        a("s_mov_b64 exec, 1")
        a(f"v_mov_b32 v{VTK}, 1")
        a(f"buffer_atomic_add v{VTK}, off, s[36:39], s91 sc0 sc1"); vq.append('A')
        a("s_mov_b64 exec, -1")
    def ticket_use():
        assert 'A' not in vq
        a(f"v_readfirstlane_b32 s90, v{VTK}")
        lo=pm&7
        if pm&8:
            a(f"s_lshr_b32 s89, s90, {lo+3}"); a("s_add_u32 s89, s89, s96"); a(f"s_lshr_b32 s88, s90, {lo}"); a("s_add_u32 s88, s88, s89"); a("s_and_b32 s88, s88, 7")
        else: a(f"s_bfe_u32 s88, s90, {lo|(3<<16)}")
        a("s_lshl_b32 s88, s88, 21")
        a(f"s_lshr_b32 s89, s90, {lo+3}"); a(f"s_lshl_b32 s89, s89, {13+lo}"); a("s_add_u32 s88, s88, s89")
        if lo:
            if pm&16: a("s_add_u32 s89, s90, s96"); a(f"s_and_b32 s89, s89, {(1<<lo)-1}")
            else: a(f"s_and_b32 s89, s90, {(1<<lo)-1}")
            a("s_lshl_b32 s89, s89, 13"); a("s_add_u32 s88, s88, s89")
        a(f"s_add_u32 s88, s88, {2*NB*STEP+EX*2048}")
        if apub=='help' and asig:
            a(f"s_cmp_ge_u32 s90, {NT-(asig-1)}"); a("s_cselect_b32 s89, 1, 0")
            a(f"v_mov_b32 v{NON+2}, s89")
            a("s_mov_b64 exec, 1"); a(f"ds_max_u32 v{PA+2}, v{NON+2} offset:{LSIG-LCNT}"); a("s_mov_b64 exec, -1")
        a(f"s_cmp_lt_u32 s90, {NT}")
        if nr0: a("s_cselect_b32 s88, s88, 0"); a("s_cselect_b32 s82, s82, 0"); a("s_cselect_b32 s86, s86, 0")
        else: a(f"s_cselect_b32 s88, s88, {INV}")
    def issue_pool(h):
        h%=16
        if h==0: ticket_use()
        if h==TQ: ticket_req()
        k=h//4
        ld(RING+k*16,h%4,"s[80:83]" if k<2 else "s[84:87]","s88",VOFF if k%2==0 else VOFF2); vq.append(h)
    def setup2():
        selectors()
        a(f"""
        s_and_b32 s56, s2, 7
        s_lshl_b32 s56, s56, 21
        s_add_u32 s56, s56, s49
        s_add_u32 s56, s56, s61
        s_mov_b32 s57, 0
        s_mov_b32 s58, 0
        s_mov_b32 s59, {c2}
        s_mov_b32 s95, 0
        s_lshl_b32 s60, s96, 24
        s_add_u32 s80, s16, s60
        s_addc_u32 s81, s17, 0
        s_mov_b32 s82, 0x1000000
        s_mov_b32 s83, 0x20000
        s_add_u32 s84, s18, s60
        s_addc_u32 s85, s19, 0
        s_mov_b32 s86, 0x1000000
        s_mov_b32 s87, 0x20000
        s_lshl_b32 s91, s96, 8
        s_add_u32 s91, s91, {TK}
        s_mov_b32 s62, {f2u(math.log2(math.e)/16.0)}
        s_lshl_b32 s63, s31, 15
        s_add_u32 s63, s63, {LSC}
        v_add_u32 v{VOFF2}, 0x1000, v{VOFF}
        """)
    cm(f"while q is being computed: first {NV} V units of branch A go to AGPRs, then the K ring starts; {dl} loads in flight")
    n=0
    a("s_mov_b32 s94, s61")
    for k in range(NV):
        for i in range(4):
            if n>=dl: a(f"s_waitcnt vmcnt({dl-1})")
            if est and n==dl: st(4)
            ld(k*16,i,"s[40:43]","s94",rf='a'); n+=1
            if n==dl: setup2()
        adv("s94",k%4==3)
    a("s_mov_b32 s52, s61")
    a("s_mov_b32 s53, 0")
    for h in range(dl):
        if n>=dl: a(f"s_waitcnt vmcnt({dl-1})")
        issue_static(h,0); n+=1
        if n==dl: setup2()
    st(6)
    a("s_barrier")
    st(1)
    def arrive(c,iss):
        k=vq.index(c%16)
        a(f"s_waitcnt vmcnt({len(vq)-1-k})")
        del vq[:k+1]
        if sum(1 for x in vq if isinstance(x,int))<cd[0]: iss(c+cd[0])
    def do_boost(iss):
        for h in range(dl,dl+boost): iss(h)
    def loop_begin(lbl):
        vq[:]=[x for x in vq if x!='S']
        if align: a.flush(); a.raw(f".p2align {align}")
        a.label(lbl)
        return list(vq)
    def dots1(base,i,nh,dbase):
        s_=i//2
        for e4 in range(4):
            e=(i%2)*4+e4
            for h in range(nh):
                d=dbase+s_*nh+h
                a(f"v_dot2_f32_bf16 v{d}, v{base+i*4+e4}, v{Q+h*8+e}, {'0' if e==0 else 'v%d'%d}")
    def reduce(nh,dbase,tb,ns=2):
        for s_ in range(ns):
            if nh==2:
                a(f"v_add_f32_dpp v{tb+s_}, v{dbase+s_*2}, v{dbase+s_*2} row_ror:8 row_mask:0xf bank_mask:0x3")
                a(f"v_add_f32_dpp v{tb+s_}, v{dbase+s_*2+1}, v{dbase+s_*2+1} row_ror:8 row_mask:0xf bank_mask:0xc")
            else:
                a(f"v_add_f32_dpp v{tb+s_}, v{dbase+s_}, v{dbase+s_} row_ror:8 {DPPF}")
        for m in ("row_half_mirror","quad_perm:[1,0,3,2]","quad_perm:[2,3,0,1]"):
            for s_ in range(ns):
                a(f"v_add_f32_dpp v{tb+s_}, v{tb+s_}, v{tb+s_} {m} {DPPF}")
    def kunit(j,jl,nh,iss):
        for i in range(4):
            arrive(4*j+i,iss); dots1(RING+j*16,i,nh,D)
        reduce(nh,D,T)
        a(f"v_max3_f32 v{VM}, v{VM}, v{T}, v{T+1}")
        a(f"v_cvt_pk_bf16_f32 v{T+2}, v{T}, v{T+1}")
        a(f"ds_write_b32 v{VSC}, v{T+2} offset:{jl*256}")
    def pcalc(t0,ar):
        a(f"v_fma_f32 v{t0}, v{t0}, s62, -v{VMC}")
        a(f"v_fma_f32 v{t0+1}, v{t0+1}, s62, -v{VMC}")
        a(f"v_exp_f32 v{t0}, v{t0}")
        a(f"v_exp_f32 v{t0+1}, v{t0+1}")
        a(f"v_add_f32 v{VL}, v{VL}, v{t0}")
        a(f"v_add_f32 v{VL}, v{VL}, v{t0+1}")
        a(f"v_cvt_pk_bf16_f32 v{t0}, v{t0}, v{t0+1}")
        for s_ in range(2):
            for v in range(4):
                a(f"v_perm_b32 v{ar+s_*4+v}, v{t0}, v{t0}, v{SEL[s_][v]}")
    def pvunit(j,iss):
        for i in range(4):
            arrive(4*j+i,iss)
            r=RING+j*16+i*4; c=ACC+(i%2)*4; ar=AR+(i//2)*4
            a(f"v_mfma_f32_16x16x32_bf16 v[{c}:{c+3}], v[{ar}:{ar+3}], v[{r}:{r+3}], v[{c}:{c+3}]")
    def vunit(j,jl,iss,par=None,nxt=None,side=None):
        if par is None: par=j%2
        if nxt is None: nxt=jl+1
        pk=PKR+par
        a("s_waitcnt lgkmcnt(0)")
        a(f"v_lshlrev_b32 v{T}, 16, v{pk}")
        a(f"v_and_b32 v{T+1}, 0xffff0000, v{pk}")
        a(f"ds_read_b32 v{PKR+1-par}, v{VSC} offset:{nxt*256}")
        pcalc(T,AR)
        if side is None: pvunit(j,iss)
        else:
            for i in range(4):
                r=side*16+i*4; c=ACC+(i%2)*4; ar=AR+(i//2)*4
                a(f"v_mfma_f32_16x16x32_bf16 v[{c}:{c+3}], v[{ar}:{ar+3}], a[{r}:{r+3}], v[{c}:{c+3}]")
    def xrow(reg,op):
        a(f"v_mov_b32 v{T+7}, v{reg}")
        a(f"v_permlane16_swap_b32 v{reg}, v{T+7}")
        a(f"{op} v{reg}, v{reg}, v{T+7}")
        a(f"v_mov_b32 v{T+7}, v{reg}")
        a(f"v_permlane32_swap_b32 v{reg}, v{T+7}")
        a(f"{op} v{reg}, v{reg}, v{T+7}")
    NON=28; VK=31
    def pubvec():
        a(f"v_mov_b32 v{PA+2}, {LCNT}"); a(f"v_mov_b32 v{PA+3}, 1")
        a(f"ds_read_b64 v[{NON}:{NON+1}], v{PA+2} offset:{LNON-LCNT}")
        a(f"v_lshrrev_b32 v{PA}, 5, v0"); a(f"v_lshlrev_b32 v{PA}, 14, v{PA}")
        a(f"v_lshrrev_b32 v{PA+1}, 2, v2"); a(f"v_lshl_add_u32 v{PA}, v{PA+1}, 12, v{PA}")
        a(f"v_and_b32 v{PA+1}, 3, v2"); a(f"v_lshl_add_u32 v{PA}, v{PA+1}, 5, v{PA}")
        a(f"v_and_b32 v{PA+1}, 1, v3"); a(f"v_lshl_add_u32 v{PA}, v{PA+1}, 4, v{PA}")
        a(f"v_mov_b32 v{VK}, 0xfffff000")
    def pubaddr(kind):
        if kind=='A': return
        a("s_add_u32 s64, s96, 16")
        a("s_and_b32 s65, s2, 15"); a("s_lshl_b32 s65, s65, 1"); a("s_add_u32 s65, s65, s31")
        a("s_lshl_b32 s44, s64, 15"); a("s_lshl_b32 s47, s65, 7"); a("s_add_u32 s44, s44, s47"); a(f"s_add_u32 s44, s44, {IN1D}")
        payconst(PA+1,46)
        a(f"v_readfirstlane_b32 s64, v{NON}"); a(f"v_readfirstlane_b32 s65, v{NON+1}")
        tags("s64","s65")
    def mergeA():
        xrow(VL,"v_add_f32")
        a("s_mul_i32 s64, s31, 2560"); a(f"s_add_u32 s64, s64, {LDMP}")
        a(f"v_lshlrev_b32 v{T+4}, 4, v0"); a(f"v_lshlrev_b32 v{T+5}, 3, v0")
        a(f"v_add_u32 v{T}, s64, v{T+4}"); a(f"v_add_u32 v{T+1}, s64, v{T+5}")
        a(f"ds_write_b128 v{T}, v[{ACC}:{ACC+3}]")
        a(f"ds_write_b128 v{T}, v[{ACC+4}:{ACC+7}] offset:1024")
        a(f"ds_write_b32 v{T+1}, v{VL} offset:2048"); a(f"ds_write_b32 v{T+1}, v{VM} offset:2052")
        a("s_waitcnt lgkmcnt(0)")
        a("s_mov_b64 exec, 1")
        a(f"ds_add_rtn_u32 v{T+2}, v{PA+2}, v{PA+3} offset:{LMRG-LCNT}")
        a("s_mov_b64 exec, -1")
        a(f"s_sub_u32 s64, {2*LDMP+2560}, s64")
        a(f"v_add_u32 v{T}, s64, v{T+4}"); a(f"v_add_u32 v{T+1}, s64, v{T+5}")
        a("s_waitcnt lgkmcnt(0)")
        a(f"v_readfirstlane_b32 s64, v{T+2}")
        a("s_cmp_eq_u32 s64, 0")
        a("s_cbranch_scc1 L_nopub")
        a(f"ds_read_b64 v[{T+2}:{T+3}], v{T+1} offset:2048")
        a(f"ds_read_b128 v[{AR}:{AR+3}], v{T}")
        a(f"ds_read_b128 v[{AR+4}:{AR+7}], v{T} offset:1024")
        a("s_waitcnt lgkmcnt(2)")
        a(f"v_max_f32 v{VM}, v{VM}, v{T+3}")
        a(f"v_mul_f32 v{T+3}, s62, v{T+3}")
        a(f"v_max_f32 v{T+4}, v{VMC}, v{T+3}")
        a(f"v_sub_f32 v{T+5}, v{VMC}, v{T+4}"); a(f"v_sub_f32 v{T+6}, v{T+3}, v{T+4}")
        a(f"v_exp_f32 v{T+5}, v{T+5}"); a(f"v_exp_f32 v{T+6}, v{T+6}")
        a(f"v_mov_b32 v{VMC}, v{T+4}")
        a(f"v_mul_f32 v{VL}, v{VL}, v{T+5}"); a(f"v_fmac_f32 v{VL}, v{T+2}, v{T+6}")
        for d,sr in ((T,T+5),(T+1,T+6)):
            a(f"v_mov_b32_dpp v{d}, v{sr} row_newbcast:0 row_mask:0x3 bank_mask:0xf")
            a(f"v_mov_b32_dpp v{d}, v{sr} row_newbcast:8 row_mask:0xc bank_mask:0xf")
        for i in range(8): a(f"v_mul_f32 v{ACC+i}, v{ACC+i}, v{T}")
        a("s_waitcnt lgkmcnt(0)")
        for i in range(8): a(f"v_fmac_f32 v{ACC+i}, v{AR+i}, v{T+1}")
        a(f"v_lshlrev_b32 v{T}, 4, v0"); a(f"v_lshlrev_b32 v{T+1}, 3, v0")
        a(f"v_mov_b32 v{T+2}, v{VM}"); a(f"v_mov_b32 v{T+3}, v{VL}")
        a(f"ds_write_b128 v{T}, v[{ACC}:{ACC+3}] offset:{LDMP+5120}")
        a(f"ds_write_b128 v{T}, v[{ACC+4}:{ACC+7}] offset:{LDMP+5120+1024}")
        a(f"ds_write_b64 v{T+1}, v[{T+2}:{T+3}] offset:{LDMP+5120+2048}")
        a("s_waitcnt lgkmcnt(0)")
        a("s_mov_b64 exec, 1"); a(f"ds_add_u32 v{PA+2}, v{PA+3} offset:{LMRG-LCNT}"); a("s_mov_b64 exec, -1")
        a.label("L_nopub")
    def publish(kind):
        cm("both half waves hold the same sums: one store carries both 128-column blocks")
        xrow(VL,"v_add_f32")
        payload(T,VM,VL,PA+1,"s[46:47]")
        for e in range(4): a(f"v_permlane32_swap_b32 v{ACC+e}, v{ACC+4+e}")
        encp([ACC],VK,T)
        a(f"buffer_store_dwordx4 v[{ACC}:{ACC+3}], v{PA}, s[36:39], s44 offen {sfl}")
        a("s_mov_b64 exec, 1")
        a(f"ds_add_u32 v{PA+2}, v{PA+3}")
        a("s_mov_b64 exec, -1")
    def loadq(lq,nh):
        a(f"v_lshlrev_b32 v{T}, 4, v2")
        for h in range(nh):
            a(f"ds_read_b128 v[{Q+h*8}:{Q+h*8+3}], v{T} offset:{lq+h*512}")
            a(f"ds_read_b128 v[{Q+h*8+4}:{Q+h*8+7}], v{T} offset:{lq+h*512+256}")
    for p,(br,kv,n) in enumerate(PH):
        nh=2 if br=='A' else 1
        iss=lambda h,p=p: issue_static(h,p)
        cm(f"---- branch {br}, {'scores = q.K (bf16-rounded, kept in LDS) and running max' if kv=='K' else 'p = exp2(c*s - c*max), o += p.V'}")
        a(f"v_lshlrev_b32 v{VSC}, 2, v0")
        a(f"v_add_u32 v{VSC}, s63, v{VSC}")
        done=0; tail=0
        if kv=='K':
            loadq(LQA if br=='A' else LQB,nh)
            a(f"v_mov_b32 v{VM}, 0xff800000")
            a("s_waitcnt lgkmcnt(0)")
        else:
            a(f"ds_read_b32 v{PKR}, v{VSC} offset:{NV*256 if p==1 else 0}")
            xrow(VM,"v_max_f32")
            a(f"v_cvt_pk_bf16_f32 v{VM}, v{VM}, v{VM}")
            a(f"v_and_b32 v{VM}, 0xffff0000, v{VM}")
            a(f"v_mul_f32 v{VMC}, s62, v{VM}")
            a(f"v_mov_b32 v{VL}, 0")
            for i in range(8): a(f"v_mov_b32 v{ACC+i}, 0")
            if p==1: pubvec()
            pubaddr(br)
            if p==3: tail=8
        def group(jl0,iss):
            for j in range(4):
                if kv=='K': kunit(j,jl0+j,nh,iss)
                else: vunit(j,jl0+j,iss)
        if p==1 and NV:
            for k in range(NV):
                vunit(k%4,None,iss,0,k)
                vunit(None,None,None,1,NV+k+1,side=k)
            done=2*NV
            a(f"v_add_u32 v{VSC}, {done*256}, v{VSC}")
        if done==0 and len(vq)!=dl:
            group(0,iss); done=4
            a(f"v_add_u32 v{VSC}, 1024, v{VSC}")
        assert (n-done-tail)%4==0
        if p==3: a(f"s_add_u32 s60, s95, {(n-done-tail)//4}")
        else: a(f"s_mov_b32 s60, {(n-done-tail)//4}")
        q0=loop_begin(f"L_ph{p}")
        if p==2:
            cm("extra 32-key cycles (K now, V later): the earlier a wave of a head gets here, the more it takes")
            a(f"s_cmp_eq_u32 s53, {c2-3}"); a("s_cbranch_scc0 L_rka")
            a("s_mov_b64 exec, 1"); a(f"v_mov_b32 v{VTK}, 1")
            a(f"buffer_atomic_add v{VTK}, off, s[36:39], s91 offset:4 sc0 sc1")
            a("s_mov_b64 exec, -1")
            a.label("L_rka")
            a(f"s_cmp_eq_u32 s53, {c2-2}"); a("s_cbranch_scc0 L_rkb")
            a(f"v_readfirstlane_b32 s90, v{VTK}")
            a(f"s_mov_b32 s58, {(-c2)&0xffffffff}")
            cum=0
            for g in GR[:-1]:
                cum+=g
                a(f"s_min_u32 s88, s90, {cum}"); a("s_addc_u32 s95, s95, 0"); a("s_add_u32 s58, s58, s88")
            a("s_add_u32 s59, s59, s95"); a("s_add_u32 s60, s60, s95")
            a.label("L_rkb")
        group(0,iss)
        assert vq==q0,(vq,q0)
        a(f"v_add_u32 v{VSC}, 1024, v{VSC}")
        a("s_sub_u32 s60, s60, 1")
        a("s_cmp_lg_u32 s60, 0")
        a(f"s_cbranch_scc1 L_ph{p}")
        if p<3: do_boost(lambda h: issue_static(h,p+1))
        if p==1:
            mergeA()
            lds_wait("L_go",T,LGO,1,2)
        if tail:
            def iss1(h):
                if h==16+TQ: ticket_req()
                iss(h)
            for h in range(dl,dlp): iss(h)
            cd[0]=dlp
            group(0,iss1)
            group(4,lambda h: issue_static(h,3) if h<16 else issue_pool(h))
            if wthr:
                a("s_mov_b64 exec, 1"); a(f"ds_add_u32 v{PA+2}, v{PA+3} offset:{LMRG-LCNT}"); a("s_mov_b64 exec, -1")
            st(5)
            cm("---- dynamic pool: 16-key blocks of branch B handed out by ticket, online softmax")
            a(f"s_cmp_eq_u32 s88, {0 if nr0 else INV}")
            a("s_cbranch_scc1 L_pool_end")
            def block(sfx):
                for j in range(2):
                    for i in range(4):
                        arrive(4*j+i,issue_pool); dots1(RING+j*16,i,1,D+2*j)
                reduce(1,D,T,4)
                a(f"v_cvt_pk_bf16_f32 v{T+4}, v{T}, v{T+1}")
                a(f"v_cvt_pk_bf16_f32 v{T+5}, v{T+2}, v{T+3}")
                a(f"v_lshlrev_b32 v{T}, 16, v{T+4}"); a(f"v_and_b32 v{T+1}, 0xffff0000, v{T+4}")
                a(f"v_lshlrev_b32 v{T+2}, 16, v{T+5}"); a(f"v_and_b32 v{T+3}, 0xffff0000, v{T+5}")
                a(f"v_max3_f32 v{T+4}, v{T}, v{T+1}, v{T+2}")
                a(f"v_max_f32 v{T+4}, v{T+4}, v{T+3}")
                a(f"v_cmp_gt_f32 vcc, v{T+4}, v{VM}")
                a("s_cmp_eq_u64 vcc, 0")
                a(f"s_cbranch_scc1 L_norescale{sfx}")
                a(f"v_max_f32 v{VM}, v{VM}, v{T+4}")
                xrow(VM,"v_max_f32")
                a(f"v_mul_f32 v{T+4}, s62, v{VM}")
                a(f"v_sub_f32 v{T+5}, v{VMC}, v{T+4}")
                a(f"v_exp_f32 v{T+5}, v{T+5}")
                a(f"v_mov_b32 v{VMC}, v{T+4}")
                a(f"v_mul_f32 v{VL}, v{VL}, v{T+5}")
                for i in range(8): a(f"v_mul_f32 v{ACC+i}, v{ACC+i}, v{T+5}")
                a.label(f"L_norescale{sfx}")
                pcalc(T,AR)
                pvunit(2,issue_pool)
                pcalc(T+2,AR)
                pvunit(3,issue_pool)
            q0=loop_begin("L_pool")
            block("")
            assert vq==q0,(vq,q0)
            a(f"s_cmp_lg_u32 s88, {0 if nr0 else INV}")
            a("s_cbranch_scc1 L_pool")
            a.label("L_pool_end")
            publish('B')
        if p<3 and not (est and p!=1): st(2+p)
    write_stamps(False)
    a.label("L_done")
    a("s_endpgm")
    if report is not None:
        import rep; rep.emit(a,report,WS_USED,W,LW)
    a.raw('.section .rodata,"a"')
    for nm,nv in ((NAME,256+16*NV),)+((("report_kernel",16),) if report is not None else ()):
        a.raw(".p2align 6"); a.raw(f".amdhsa_kernel {nm}")
        a.raw(f"  .amdhsa_next_free_vgpr {nv}"); a.raw("  .amdhsa_next_free_sgpr 100"); a.raw(f"  .amdhsa_accum_offset {min(nv,256)}")
        a.raw(f"  .amdhsa_float_denorm_mode_32 {den}")
        a.raw("  .amdhsa_group_segment_fixed_size 0"); a.raw("  .amdhsa_kernarg_size 104"); a.raw("  .amdhsa_user_sgpr_count 2")
        a.raw("  .amdhsa_user_sgpr_kernarg_segment_ptr 1"); a.raw("  .amdhsa_system_sgpr_workgroup_id_x 1"); a.raw(".end_amdhsa_kernel")
    return a.text()

def make(cfgs, listfile="list.txt"):
    import build
    lines=[]
    for c in cfgs:
        lab="g31_"+"_".join(f"{k}{str(v).replace(' ','').replace(',','.').strip('()[]')}" for k,v in c.items() if k!='stamp')
        fn="k_"+lab+".s"
        open(fn,"w").write(gen(**c))
        co=build.build(fn)
        lines.append(f"{lab} {co} {256*W if c.get('stamp') else 0} {NAME}:256:{(W+1)*64}:{c.get('lds',75520)}")
    open(listfile,"w").write("\n".join(lines)+"\n")
if __name__=="__main__":
    import json
    cfg=json.loads(sys.argv[2]) if len(sys.argv)>2 else {}
    open(sys.argv[1],"w").write(gen(**cfg))
```
